```python
import torch

def _softmax(x, axis=-1):
    return torch.softmax(x, dim=axis)

def _gelu(x):
    return torch.nn.functional.gelu(x, approximate='tanh')

def _silu(x):
    return torch.nn.functional.silu(x)

def _sigmoid(x):
    return torch.sigmoid(x)

def _layernorm(x, axis=-1, eps=1e-05):
    m = x.mean(dim=axis, keepdim=True)
    v = x.var(dim=axis, keepdim=True, unbiased=False)
    return (x - m) / torch.sqrt(v + eps)

def _scatter_add(tgt, idx, src, axis=0):
    return tgt.clone().index_add_(axis, idx, src)

def _segment_sum(src, seg, n):
    out = torch.zeros((n,) + src.shape[1:], dtype=src.dtype)
    return out.index_add_(0, seg, src)

def _pad(x, pw):
    flat = tuple((v for pair in reversed(pw) for v in pair))
    return torch.nn.functional.pad(x, flat)
kernel_name = 'adaLN_cond__gqa_block_cached__glu_gated_bilinear__decode'

def setup_inputs():

    _w = lambda a: (lambda t: t.to(torch.bfloat16) if t.is_floating_point() else t)(torch.as_tensor(a))

    def _A_setup():
        B, Sq, D = (1, 1, 640)
        Hq, Hkv, Sk, Dh = (32, 32, 4096, 192)
        assert Hq % Hkv == 0, (Hq, Hkv)
        return {'x': _w((lambda *s: torch.randn(*s, dtype=torch.bfloat16) * 0.1)(B, Sq, D)), 'k_cache': _w((lambda *s: torch.randn(*s, dtype=torch.bfloat16) * 0.8)(B, Hkv, Sk, Dh)), 'v_cache': _w((lambda *s: torch.randn(*s, dtype=torch.bfloat16) * 3.2)(B, Hkv, Sk, Dh)), 'wq': _w((lambda *s: torch.randn(*s, dtype=torch.bfloat16) * 0.8)(D, Hq * Dh) * D ** (-0.5)), 'wo': _w((lambda *s: torch.randn(*s, dtype=torch.bfloat16) * 3.2)(Hq * Dh, D) * (Hq * Dh) ** (-0.5))}
    _A_in = _A_setup()

    def _B_setup():
        B, S, D, F = (1, 1, 640, 1536)
        return {'x': _w((lambda *s: torch.randn(*s, dtype=torch.bfloat16) * 0.1)(B, S, D)), 'w_gate': _w((lambda *s: torch.randn(*s, dtype=torch.bfloat16) * 3.2)(D, F) * D ** (-0.5)), 'w_up': _w((lambda *s: torch.randn(*s, dtype=torch.bfloat16) * 3.2)(D, F) * D ** (-0.5)), 'w_down': _w((lambda *s: torch.randn(*s, dtype=torch.bfloat16) * 3.2)(F, D) * F ** (-0.5))}
    _B_in = _B_setup()
    return {'A_x': _A_in['x'], 'A_k_cache': _A_in['k_cache'], 'A_v_cache': _A_in['v_cache'], 'A_wq': _A_in['wq'], 'A_wo': _A_in['wo'], 'B_x': _B_in['x'], 'B_w_gate': _B_in['w_gate'], 'B_w_up': _B_in['w_up'], 'B_w_down': _B_in['w_down'], 'c': _w((lambda *s: torch.randn(*s, dtype=torch.bfloat16) * 0.4)(1, 640) * 8.0), 'w_mod': _w((lambda *s: torch.randn(*s, dtype=torch.bfloat16) * 0.4)(640, 6 * 640) * 640 ** (-0.5) * 8.0)}

def reference(A_x, A_k_cache, A_v_cache, A_wq, A_wo, B_x, B_w_gate, B_w_up, B_w_down, c, w_mod):

    def _A_ref(x, k_cache, v_cache, wq, wo):
        B, Sq, D = x.shape
        Hq, Dh = (32, 192)
        Hkv = k_cache.shape[1]
        rep = Hq // Hkv
        q = (lambda x, *d: x.permute(*d))((x @ wq).reshape(B, Sq, Hq, Dh), 0, 2, 1, 3)
        k = (lambda x, n, axis: torch.repeat_interleave(x, n, dim=axis))(k_cache, rep, axis=1)
        v = (lambda x, n, axis: torch.repeat_interleave(x, n, dim=axis))(v_cache, rep, axis=1)
        scores = torch.einsum('bhqd,bhkd->bhqk', q, k) * Dh ** (-0.5)
        p = _softmax(scores, axis=-1)
        o = torch.einsum('bhqk,bhkd->bhqd', p, v)
        return (lambda x, *d: x.permute(*d))(o, 0, 2, 1, 3).reshape(B, Sq, Hq * Dh) @ wo

    def _B_ref(x, w_gate, w_up, w_down):
        g = torch.einsum('bsd,df->bsf', x, w_gate)
        u = torch.einsum('bsd,df->bsf', x, w_up)
        h = g * u
        return torch.einsum('bsf,fd->bsd', h, w_down)
    x = A_x
    mod = (_silu(c) @ w_mod).reshape(c.shape[0], 6, 1, -1)
    sa, ca, ga, sb, cb, gb = (mod[:, 0].clone(), mod[:, 1].clone(), mod[:, 2].clone(), mod[:, 3].clone(), mod[:, 4].clone(), mod[:, 5].clone())
    h = _layernorm(x, axis=-1) * (1 + ca) + sa
    x = x + ga * _A_ref(h, A_k_cache, A_v_cache, A_wq, A_wo)
    h = _layernorm(x, axis=-1) * (1 + cb) + sb
    x = x + gb * _B_ref(h, B_w_gate, B_w_up, B_w_down)
    return x
```

```python
import re
TRANS = ('v_exp_f32', 'v_log_f32', 'v_rcp_f32', 'v_rsq_f32', 'v_sqrt_f32', 'v_sin_f32', 'v_cos_f32', 'v_rcp_iflag_f32')
MFMA_PASS = {'v_mfma_f32_16x16x32_bf16': 4, 'v_mfma_f32_32x32x16_bf16': 8, 'v_mfma_f32_16x16x16_bf16': 4, 'v_mfma_f32_4x4x4_16b_bf16': 2}
RAW_T = {2: 5, 4: 8, 8: 12, 16: 20}
OVL_T = {2: 4, 4: 6, 8: 10, 16: 18}
WARC_T = {2: 1, 4: 3, 8: 7, 16: 15}

def regs_of(tok):
    tok = tok.strip()
    neg = tok.startswith('-')
    if neg: tok = tok[1:]
    m = re.fullmatch(r'abs\((.*)\)', tok)
    if m: tok = m.group(1)
    m = re.fullmatch(r'\|(.*)\|', tok)
    if m: tok = m.group(1)
    m = re.fullmatch(r'([vsa])(\d+)', tok)
    if m: return [(m.group(1), int(m.group(2)))]
    m = re.fullmatch(r'([vsa])\[(\d+):(\d+)\]', tok)
    if m: return [(m.group(1), i) for i in range(int(m.group(2)), int(m.group(3)) + 1)]
    if tok == 'vcc': return [('s', 106), ('s', 107)]
    if tok == 'vcc_lo': return [('s', 106)]
    if tok == 'vcc_hi': return [('s', 107)]
    if tok == 'exec': return [('s', 126), ('s', 127)]
    if tok == 'm0': return [('s', 124)]
    return []

def split_ops(s):
    out = []; depth = 0; cur = ''
    for ch in s:
        if ch in '[(': depth += 1
        if ch in '])': depth -= 1
        if ch == ',' and depth == 0:
            out.append(cur); cur = ''
        else: cur += ch
    if cur.strip(): out.append(cur)
    return [o.strip() for o in out]

class Ins:
    def __init__(self, text):
        self.text = text
        t = text.split(';')[0].strip()
        parts = t.split(None, 1)
        self.mn = parts[0]
        rest = parts[1] if len(parts) > 1 else ''
        ops = split_ops(rest)
        self.mods = ''
        if ops:
            last = ops[-1].split(None, 1)
            ops[-1] = last[0]
            self.mods = last[1] if len(last) > 1 else ''
        self.ops = ops
        mn = self.mn
        self.dst = []; self.src = []
        R = regs_of
        self.is_valu = mn.startswith('v_') and not mn.startswith('v_mfma')
        self.is_mfma = mn.startswith('v_mfma')
        self.is_vmem = mn.startswith(('buffer_', 'global_', 'flat_'))
        self.is_ds = mn.startswith('ds_')
        self.is_salu = mn.startswith('s_')
        self.is_dpp = '_dpp' in mn or 'quad_perm' in self.mods or 'row_' in self.mods
        base = mn.replace('_e32', '').replace('_e64', '').replace('_dpp', '')
        self.base = base
        if self.is_mfma:
            self.dst = R(ops[0]); self.A = R(ops[1]); self.B = R(ops[2]); self.C = R(ops[3]); self.src = self.A + self.B + self.C
            self.passes = MFMA_PASS[mn]
        elif self.is_valu:
            if base.startswith('v_permlane') and 'swap' in base:
                self.dst = R(ops[0]) + R(ops[1]); self.src = R(ops[0]) + R(ops[1])
            elif base in ('v_nop',):
                pass
            elif base.startswith(('v_add_co', 'v_sub_co', 'v_addc_co', 'v_subb_co', 'v_div_scale')):
                self.dst = R(ops[0]) + R(ops[1]); self.src = sum((R(o) for o in ops[2:]), [])
            else:
                self.dst = R(ops[0]); self.src = sum((R(o) for o in ops[1:]), [])
                if base.startswith(('v_fmac', 'v_dot2c', 'v_pk_fmac')): self.src += R(ops[0])
                if base == 'v_cndmask_b32' and len(ops) == 3: self.src += R('vcc')
                if base == 'v_div_fmas_f32': self.src += R('vcc')
                if self.is_dpp: self.src += R(ops[0])
        elif self.is_ds:
            if base.startswith('ds_read') or '_rtn' in base or 'permute' in base or 'swizzle' in base:
                self.dst = R(ops[0]); self.src = sum((R(o) for o in ops[1:]), [])
            else:
                self.src = sum((R(o) for o in ops), [])
        elif self.is_vmem:
            lds = re.search(r'\blds\b', self.mods) is not None
            self.lds = lds
            if 'load' in base and not lds:
                self.dst = R(ops[0]); self.src = sum((R(o) for o in ops[1:]), [])
            else:
                self.src = sum((R(o) for o in ops), [])
                if lds: self.src += R('m0')
            self.wide_store = ('store' in base and ('x4' in base or 'x3' in base))
            self.sdata = R(ops[0]) if 'store' in base else []
        elif self.is_salu:
            if base.startswith(('s_cmp', 's_cbranch', 's_branch', 's_nop', 's_waitcnt', 's_barrier', 's_sleep', 's_endpgm', 's_setprio', 's_bitcmp')):
                self.src = sum((R(o) for o in ops), [])
            else:
                self.dst = R(ops[0]); self.src = sum((R(o) for o in ops[1:]), [])
                if 'saveexec' in base: self.dst += R('exec')

class Asm:
    def __init__(self):
        self.items = []
        self.nlabel = 0
    def __call__(self, text):
        for line in text.split('\n'):
            s = line.strip()
            if not s: continue
            if s.startswith(';') or s.startswith('.') or s.endswith(':'):
                self.items.append(('l', s))
            else:
                self.items.append(('i', Ins(s)))
    def label(self, stem='L'):
        self.nlabel += 1
        return f'{stem}_{self.nlabel}'
    def finish(self):
        out = []
        hist = []
        pos = 0
        nops_added = 0
        for kind, it in self.items:
            if kind == 'l':
                out.append(it); continue
            need = 0
            c = it
            csrc = set(c.src); cdst = set(c.dst)
            for p, ppos in reversed(hist):
                dist = pos - ppos - 1
                if dist >= 20: break
                req = 0
                pdst = set(p.dst)
                vov = {r for r in pdst if r[0] in 'va'}
                sov = {r for r in pdst if r[0] == 's'}
                if p.is_valu:
                    raw = vov & csrc
                    if raw:
                        if c.base in ('v_readfirstlane_b32', 'v_readlane_b32'): req = max(req, 1)
                        if c.is_valu and c.is_dpp: req = max(req, 2)
                        if c.base.startswith('v_permlane'): req = max(req, 2)
                        if c.is_mfma: req = max(req, 2)
                        if p.base in TRANS and not (c.base in TRANS): req = max(req, 1)
                    if p.base.startswith('v_dot'):
                        if c.base == p.base:
                            ab = set(sum((regs_of(o) for o in c.ops[1:3]), []))
                            if vov & ab: req = max(req, 3)
                        elif vov & (csrc | cdst): req = max(req, 3)
                    if sov & csrc:
                        if c.is_valu:
                            req = max(req, 2)
                            if c.base in ('v_readlane_b32', 'v_writelane_b32'): req = max(req, 4)
                            if c.base == 'v_div_fmas_f32': req = max(req, 4)
                        if c.is_vmem: req = max(req, 5)
                        if c.is_salu: req = max(req, 1)
                if p.is_mfma:
                    n = p.passes
                    if c.is_mfma:
                        if vov & (set(c.A) | set(c.B)): req = max(req, RAW_T[n])
                        if vov & set(c.C):
                            if c.C == p.dst and c.passes == n: req = max(req, 2 if n == 2 else 0)
                            else: req = max(req, OVL_T[n])
                        elif vov & cdst: req = max(req, RAW_T[n])
                    else:
                        if vov & (csrc | cdst): req = max(req, RAW_T[n])
                        if c.is_valu and (set(p.C) & cdst): req = max(req, WARC_T[n])
                if p.is_salu and ('s', 124) in pdst and c.is_vmem and getattr(c, 'lds', False): req = max(req, 1)
                if p.is_vmem and getattr(p, 'wide_store', False) and (set(p.sdata) & cdst):
                    req = max(req, 2 if c.is_valu else 1)
                need = max(need, req - dist)
            while need > 0:
                k = min(need, 16)
                out.append(f's_nop {k - 1}')
                pos += k; need -= k; nops_added += 1
            out.append(c.text)
            hist.append((c, pos))
            if c.base == 's_nop':
                pos += int(c.ops[0], 0) + 1
            else:
                pos += 1
            if len(hist) > 40: hist.pop(0)
        self.nops_added = nops_added
        return '\n'.join(out) + '\n'
```

```python
import sys
from asmfw import Asm
NAME = 'adaLN_cond__gqa_block_cached__glu_gated_bilinear__decode'

HEADER_COMMENT = open('cdna_kernels/' + NAME + '.s.ref').read().split('; Override launch')[0]

R_MOD = 0x00000; R_Y = 0x10000; R_HM = 0x16000; R_X2 = 0x17000
R_Q = (0x20000, 0x40000); R_ST = (0x60000, 0x64000); R_O = (0x70000, 0xA0000)
R_DBG = 0x200000
F_FLAGS, F_H, F_Q, F_ML, CNT_CLR, CNT_O, F_ODONE = 0, 4, 8, 12, 16, 20, 24
KISS, VISS, PRDY, ML = 64, 96, 128, 192
SC, HV, QV, PD, RED, X2, TRED, STG = 0x100, 0x280, 0x380, 0x800, 0x1000, 0x4000, 0x4A00, 0x5000
LDS_A, LDS_B, LDS_T = 0x6000, 0xB000, 0x13000
LDS_SIZE = 0x27000
SRD = dict(X=4, K=8, V=12, WQ=16, WO=20, WG=24, WU=28, WD=32, C=36, WMOD=40, OUT=44, DBG=48, WS=52)
KARG = dict(X=0, K=8, V=16, WQ=24, WO=32, WG=48, WU=56, WD=64, C=72, WMOD=80, OUT=88, DBG=96, WS=104)
SIZE = dict(X=1280, K=50331648, V=50331648, WQ=7864320, WO=7864320, WG=1966080, WU=1966080, WD=1966080, C=1280,
            WMOD=4915200, OUT=1280, DBG=256, WS=268435456)
def srd(n): return f's[{SRD[n]}:{SRD[n]+3}]'
sW, sX, sI, sH, sS, sR = 56, 57, 58, 59, 60, 61
LOG2E = 0x3fb8aa3b
SCALE = 0x3d93cd3a
SPIN_MAX = 20000

def gen(DK=3, DV=4, DV_LATE=8, VISS_AT=24, stamps=False, sleep_poll=1):
    A = Asm()
    nst = [0]
    def stamp(idx):
        if stamps: A(f's_memrealtime s[{86 + 2*idx}:{87 + 2*idx}]')
    def flush_stamps(n):
        if not stamps: return
        A('s_waitcnt lgkmcnt(0)')
        A(f's_lshl_b32 s62, s2, 4'); A(f's_add_u32 s62, s62, s{sW}'); A('s_lshl_b32 s62, s62, 5'); A(f's_add_u32 s62, s62, {R_DBG}')
        A('s_mov_b64 exec, 1')
        for k in range(8):
            A(f'v_mov_b32 v{8+k}, ' + (f's{86+2*k}' if k < n else '0'))
        A('v_mov_b32 v1, 0')
        A(f'buffer_store_dwordx4 v[8:11], v1, {srd("WS")}, s62 offen')
        A(f'buffer_store_dwordx4 v[12:15], v1, {srd("WS")}, s62 offen offset:16')

    def lds_wait(off, vz, vt, cmp_val=None, addr=None):
        L = A.label('LW'); D = A.label('LWD')
        A('s_mov_b32 s63, 0')
        A(f'{L}:')
        A(f'ds_read_b32 v{vt}, v{vz} offset:{off}')
        A('s_waitcnt lgkmcnt(0)')
        A(f'v_readfirstlane_b32 s62, v{vt}')
        if cmp_val is None: A('s_cmp_lg_u32 s62, 0')
        else: A(f's_cmp_ge_u32 s62, {cmp_val}')
        A(f's_cbranch_scc1 {D}')
        A('s_sleep 1')
        A('s_add_u32 s63, s63, 1'); A(f's_cmp_lt_u32 s63, {SPIN_MAX * 8}'); A(f's_cbranch_scc1 {L}')
        A(f'{D}:')
    def lds_set(off, vz, vone):
        A(f'ds_write_b32 v{vz}, v{vone} offset:{off}')

    def poll(loads, regs, vt, regionAB=None, sleep=None):
        L = A.label('PL'); D = A.label('PD')
        A('s_mov_b32 s63, 0')
        A(f'{L}:')
        if regionAB:
            A('s_and_b32 s62, s63, 7'); A('s_cmp_eq_u32 s62, 7')
            A(f's_mov_b32 s64, {regionAB[0]}'); A(f's_cselect_b32 s64, {regionAB[1]}, s64')
        loads()
        A('s_waitcnt vmcnt(0)')
        r = list(regs)
        first = True
        while r:
            if first:
                if len(r) >= 3: A(f'v_min3_u32 v{vt}, v{r[0]}, v{r[1]}, v{r[2]}'); r = r[3:]
                elif len(r) == 2: A(f'v_min_u32 v{vt}, v{r[0]}, v{r[1]}'); r = []
                else: A(f'v_mov_b32 v{vt}, v{r[0]}'); r = []
                first = False
            elif len(r) >= 2: A(f'v_min3_u32 v{vt}, v{vt}, v{r[0]}, v{r[1]}'); r = r[2:]
            else: A(f'v_min_u32 v{vt}, v{vt}, v{r[0]}'); r = []
        A(f'v_cmp_eq_u32 vcc, 0, v{vt}')
        A(f's_cbranch_vccz {D}')
        sl = sleep_poll if sleep is None else sleep
        if sl: A(f's_sleep {sl}')
        A('s_add_u32 s63, s63, 1'); A(f's_cmp_lt_u32 s63, {SPIN_MAX}'); A(f's_cbranch_scc1 {L}')
        A(f'{D}:')

    def rbf(dst, src, tmp=None):
        A(f'v_cvt_pk_bf16_f32 v{dst}, v{src}, v{src}')
        A(f'v_and_b32 v{dst}, 0xffff0000, v{dst}')

    def allreduce(regs, op, tmp):
        for pat in ('quad_perm:[1,0,3,2]', 'quad_perm:[2,3,0,1]', 'row_half_mirror', 'row_mirror'):
            for r in regs:
                A(f'{op}_dpp v{r}, v{r}, v{r} {pat} row_mask:0xf bank_mask:0xf')
        for sw in ('v_permlane16_swap_b32', 'v_permlane32_swap_b32'):
            for r, t in zip(regs, tmp): A(f'v_mov_b32 v{t}, v{r}')
            for r, t in zip(regs, tmp): A(f'{sw} v{r}, v{t}')
            for r, t in zip(regs, tmp): A(f'{op} v{r}, v{r}, v{t}')

    def tr_addr(RS, vdst, vt0, vt1, base_sgpr=None, base_imm=0):
        T = RS // 32
        A(f'v_lshrrev_b32 v{vt0}, 2, v0')
        A(f'v_mul_u32_u24 v{vt0}, {RS}, v{vt0}')
        A(f'v_and_b32 v{vt1}, 3, v0'); A(f'v_lshlrev_b32 v{vt1}, 3, v{vt1}')
        A(f'v_add_u32 v{vt0}, v{vt0}, v{vt1}')
        if base_sgpr is not None: A(f'v_add_u32 v{vt0}, s{base_sgpr}, v{vt0}')
        if base_imm: A(f'v_add_u32 v{vt0}, {base_imm}, v{vt0}')
        if T == 1:
            A(f'v_mov_b32 v{vdst}, v{vt0}'); return
        if RS == 128: A(f'v_bfe_u32 v{vt1}, v0, 3, 2')
        elif RS == 64: A(f'v_bfe_u32 v{vt1}, v0, 4, 1')
        for ct in range(T):
            A(f'v_xor_b32 v{vdst+ct}, {ct}, v{vt1}')
            A(f'v_lshl_add_u32 v{vdst+ct}, v{vdst+ct}, 5, v{vt0}')
    def dma_addr(RS, rowstride, vdst, vt0, vt1):
        cpr = RS // 16; lg = cpr.bit_length() - 1
        A(f'v_lshrrev_b32 v{vt0}, {lg}, v0')
        A(f'v_and_b32 v{vt1}, {cpr - 1}, v0')
        if RS == 128:
            A(f'v_bfe_u32 v{vdst}, v{vt0}, 1, 2'); A(f'v_lshlrev_b32 v{vdst}, 1, v{vdst}'); A(f'v_xor_b32 v{vt1}, v{vt1}, v{vdst}')
        elif RS == 64:
            A(f'v_bfe_u32 v{vdst}, v{vt0}, 2, 1'); A(f'v_lshlrev_b32 v{vdst}, 1, v{vdst}'); A(f'v_xor_b32 v{vt1}, v{vt1}, v{vdst}')
        A(f'v_mul_u32_u24 v{vt0}, {rowstride}, v{vt0}')
        A(f'v_lshl_add_u32 v{vdst}, v{vt1}, 4, v{vt0}')
    def dma_issue(n, srdname_or_str, vaddr, s_goff, gstep, s_lds, lds_imm=0):
        sr = srd(srdname_or_str) if srdname_or_str in SRD else srdname_or_str
        for k in range(n):
            if s_lds is None: A(f's_mov_b32 m0, {lds_imm + 1024 * k}')
            else: A(f's_add_u32 m0, s{s_lds}, {lds_imm + 1024 * k}')
            A(f'buffer_load_dwordx4 v{vaddr}, {sr}, s{s_goff} offen nt lds')
            if k + 1 < n: A(f's_add_u32 s{s_goff}, s{s_goff}, {gstep}')
    def merge4(acc, dst):
        for r in range(4): A(f'v_mov_b32 v{dst+r}, v{acc+r}')
        for ct in (1, 2, 3):
            m = 0x0001000100010001 << ct
            A(f's_mov_b32 s80, {m & 0xffffffff}'); A(f's_mov_b32 s81, {m >> 32}')
            for r in range(4): A(f'v_cndmask_b32 v{dst+r}, v{dst+r}, v{acc+4*ct+r}, s[80:81]')
    def set_exec(mask):
        lo, hi = mask & 0xffffffff, mask >> 32
        A(f's_mov_b32 exec_lo, {lo}'); A(f's_mov_b32 exec_hi, {hi}')

    A(HEADER_COMMENT.rstrip())
    A(f'; @launch grid=(256,1,1) block=(1024,1,1) lds={LDS_SIZE}')
    A('.amdgcn_target "amdgcn-amd-amdhsa--gfx950"')
    A('.text'); A(f'.globl {NAME}_kernel'); A('.p2align 8'); A(f'.type {NAME}_kernel,@function'); A(f'{NAME}_kernel:')
    for n in ('K', 'WMOD', 'WQ', 'WS', 'C', 'X', 'V', 'DBG', 'WO', 'WG', 'WU', 'WD', 'OUT'):
        A(f's_load_dwordx2 s[{SRD[n]}:{SRD[n]+1}], s[0:1], {KARG[n]}')
    stamp(0)
    A('v_lshrrev_b32 v1, 6, v0'); A('v_and_b32 v0, 63, v0')
    A(f'v_readfirstlane_b32 s{sW}, v1')
    for n in SRD:
        A(f's_mov_b32 s{SRD[n]+2}, {SIZE[n]}'); A(f's_mov_b32 s{SRD[n]+3}, 0x20000')
    A('s_cmp_ge_u32 s2, 256'); A('s_cbranch_scc1 L_END')
    A(f's_and_b32 s{sX}, s2, 7'); A(f's_lshr_b32 s{sI}, s2, 3')
    A(f's_lshr_b32 s{sH}, s{sI}, 3'); A(f's_lshl_b32 s62, s{sX}, 2'); A(f's_add_u32 s{sH}, s{sH}, s62')
    A(f's_and_b32 s{sS}, s{sI}, 7'); A(f's_and_b32 s{sR}, s{sW}, 7')
    A('v_lshrrev_b32 v1, 3, v0'); A('v_mul_u32_u24 v1, 1536, v1'); A('v_and_b32 v2, 7, v0'); A('v_lshl_add_u32 v2, v2, 4, v1')
    A('v_mov_b32 v3, 0'); A('v_mov_b32 v4, 1')
    A(f's_lshl_b32 s65, s{sH}, 12'); A(f's_lshl_b32 s62, s{sS}, 9'); A('s_add_u32 s65, s65, s62'); A(f's_lshl_b32 s62, s{sR}, 6'); A('s_add_u32 s65, s65, s62')
    A('s_mul_i32 s65, s65, 384'); A('s_add_u32 s66, s65, 12288')
    A(f's_lshl_b32 s67, s{sR}, 2')
    A('v_mov_b32 v5, s67')
    A('s_waitcnt lgkmcnt(0)')
    A(f's_cmp_ge_u32 s{sW}, 8'); A('s_cbranch_scc1 L_KWAVE')

    vZ, vONE, vPF = 3, 4, 5
    A(f's_cmp_eq_u32 s{sR}, 2'); A('s_cbranch_scc1 L_F2')
    A(f's_cmp_ge_u32 s{sR}, 3'); A('s_cbranch_scc1 L_F3')
    A(f's_mul_i32 s68, s{sI}, 43'); A('s_lshr_b32 s68, s68, 8')
    A('s_mul_i32 s62, s68, 6'); A(f's_sub_u32 s69, s{sI}, s62')
    A(f's_cmp_ge_u32 s{sI}, 30'); A('s_cbranch_scc1 L_F01_NODMA')
    dma_addr(128, 12288, 6, 7, 8)
    A(f's_mul_i32 s70, s68, {128 * 12288}'); A(f's_mul_i32 s62, s{sX}, 1536'); A('s_add_u32 s70, s70, s62')
    A('s_lshl_b32 s62, s69, 8'); A('s_add_u32 s70, s70, s62'); A(f's_lshl_b32 s62, s{sR}, 7'); A('s_add_u32 s70, s70, s62')
    A(f's_lshl_b32 s71, s{sR}, 14'); A(f's_add_u32 s71, s71, {LDS_B}')
    dma_issue(16, 'WQ', 6, 70, 8 * 12288, 71)
    A('L_F01_NODMA:')
    A(f's_cmp_eq_u32 s{sR}, 1'); A('s_cbranch_scc1 L_F1_A')
    A('v_lshlrev_b32 v7, 2, v0')
    for j in range(5): A(f'buffer_load_dword v{10+j}, v7, {srd("X")}, 0 offen offset:{256*j}')
    A('v_and_b32 v8, 31, v0'); A('v_lshlrev_b32 v8, 3, v8'); A('s_lshl_b32 s62, s68, 8')
    A(f'buffer_load_dwordx2 v[16:17], v8, {srd("X")}, s62 offen')
    A('s_barrier')
    poll(lambda: A(f'buffer_load_dword v9, v7, {srd("DBG")}, 0 offen sc1'), [9], 18)
    lds_set(F_FLAGS, vZ, vONE)
    stamp(1)
    A(f's_cmp_ge_u32 s{sI}, 30'); A('s_cbranch_scc1 L_F0_QG')
    for j in range(5):
        A(f'v_lshlrev_b32 v{20+2*j}, 16, v{10+j}'); A(f'v_and_b32 v{21+2*j}, 0xffff0000, v{10+j}')
    ln_stats(A, list(range(20, 30)), 30, 31, 32, 33, allreduce, rbf)
    A('v_lshlrev_b32 v34, 16, v16'); A('v_and_b32 v35, 0xffff0000, v16'); A('v_lshlrev_b32 v36, 16, v17'); A('v_and_b32 v37, 0xffff0000, v17')
    ln_apply(A, [34, 35, 36, 37], 30, 31, rbf)
    A('s_branch L_F01_B')
    A('L_F1_A:')
    A('s_barrier')
    A(f's_cmp_ge_u32 s{sI}, 30'); A('s_cbranch_scc1 L_VSTREAM')
    A('L_F01_B:')
    tr_addr(128, 40, 44, 45, base_sgpr=71)
    A('s_waitcnt vmcnt(0)')
    for u in range(4):
        for ct in range(4):
            r = 64 + (u * 4 + ct) * 4
            for hh in range(2):
                A(f'ds_read_b64_tr_b16 v[{r+2*hh}:{r+2*hh+1}], v{40+ct} offset:{(32*u+16*hh)*128}')
    A(f'v_lshrrev_b32 v46, 4, v0'); A('v_lshlrev_b32 v46, 3, v46')
    A(f's_cmp_eq_u32 s{sR}, 1'); A('s_cbranch_scc1 L_F1_WAITH')
    A('v_and_b32 v8, 31, v0'); A('v_lshlrev_b32 v8, 2, v8'); A('v_lshrrev_b32 v9, 5, v0'); A('v_mul_u32_u24 v9, 640, v9'); A('v_add_u32 v8, v8, v9')
    A('s_lshl_b32 s62, s68, 7'); A('v_add_u32 v8, s62, v8')
    A('v_lshrrev_b32 v9, 6, v8'); A('v_lshlrev_b32 v9, 10, v9'); A('v_and_b32 v8, 63, v8'); A('v_lshl_add_u32 v8, v8, 2, v9')
    def ld():
        for ks in range(4): A(f'buffer_load_dwordx4 v[{48+4*ks}:{51+4*ks}], v8, {srd("WS")}, 0 offen offset:{256*ks} sc1')
    poll(ld, list(range(48, 64)), 18)
    stamp(2)
    for r in range(4):
        A(f'v_add_f32 v{48+r}, v{48+r}, v{52+r}'); A(f'v_add_f32 v{56+r}, v{56+r}, v{60+r}')
    for r in range(4): A(f'v_add_f32 v{48+r}, v{48+r}, v{56+r}')
    for r in range(4): rbf(48 + r, 48 + r)
    for r in range(4): A(f'v_mov_b32 v{52+r}, v{48+r}')
    for r in range(4): A(f'v_permlane32_swap_b32 v{48+r}, v{52+r}')
    for r in range(4): A(f'v_add_f32 v{52+r}, 1.0, v{52+r}')
    for r in range(4): rbf(52 + r, 52 + r)
    for r in range(4): A(f'v_mul_f32 v{52+r}, v{34+r}, v{52+r}')
    for r in range(4): rbf(52 + r, 52 + r)
    for r in range(4): A(f'v_add_f32 v{52+r}, v{52+r}, v{48+r}')
    A('v_cvt_pk_bf16_f32 v56, v52, v53'); A('v_cvt_pk_bf16_f32 v57, v54, v55')
    A('v_and_b32 v8, 31, v0'); A('v_lshlrev_b32 v8, 3, v8')
    A(f'ds_write_b64 v8, v[56:57] offset:{HV}')
    lds_set(F_H, vZ, vONE)
    A('s_branch L_F01_C')
    A('L_F1_WAITH:')
    lds_wait(F_H, vZ, 18)
    A('L_F01_C:')
    for u in range(4):
        A(f'ds_read2_b64 v[{48+4*u}:{51+4*u}], v46 offset0:{HV//8 + 8*u} offset1:{HV//8 + 8*u + 4}')
    for r in range(16): A(f'v_mov_b32 v{20+r}, 0')
    A('s_waitcnt lgkmcnt(0)')
    for u in range(4):
        for ct in range(4):
            r = 64 + (u * 4 + ct) * 4
            A(f'v_mfma_f32_16x16x32_bf16 v[{20+4*ct}:{23+4*ct}], v[{r}:{r+3}], v[{48+4*u}:{51+4*u}], v[{20+4*ct}:{23+4*ct}]')
    merge4(20, 36)
    for r in range(4): A(f'v_or_b32 v{36+r}, 1, v{36+r}')
    A('v_and_b32 v8, 15, v0'); A('v_lshlrev_b32 v8, 6, v8'); A('v_lshrrev_b32 v9, 4, v0'); A('v_lshl_add_u32 v8, v9, 4, v8')
    A('s_mul_i32 s70, s68, 24576'); A(f's_mul_i32 s62, s{sX}, 3072'); A('s_add_u32 s70, s70, s62'); A('s_lshl_b32 s62, s69, 9'); A('s_add_u32 s70, s70, s62')
    A(f's_lshl_b32 s62, s{sR}, 8'); A('s_add_u32 s70, s70, s62')
    A(f's_add_u32 s72, s70, {R_Q[0]}'); A(f's_add_u32 s73, s70, {R_Q[1]}')
    set_exec(0x000f000f000f000f)
    A(f'buffer_store_dwordx4 v[36:39], v8, {srd("WS")}, s72 offen')
    A(f'buffer_store_dwordx4 v[36:39], v8, {srd("WS")}, s73 offen sc1')
    A('s_mov_b64 exec, -1')
    stamp(3)
    A(f's_cmp_eq_u32 s{sR}, 1'); A('s_cbranch_scc1 L_VSTREAM_LATE')
    A('L_F0_QG:')
    A('v_lshlrev_b32 v8, 4, v0'); A(f's_mul_i32 s62, s{sH}, 768'); A('v_add_u32 v8, s62, v8')
    for ks in range(1, 5): A(f'v_add_u32 v{40+ks}, {24576*ks}, v8')
    A('v_mov_b32 v40, v8')
    set_exec((1 << 48) - 1)
    def ld():
        for ks in range(5): A(f'buffer_load_dwordx4 v[{48+4*ks}:{51+4*ks}], v{40+ks}, {srd("WS")}, s64 offen sc1')
    poll(ld, list(range(48, 68)), 18, regionAB=R_Q)
    for r in range(4):
        A(f'v_add_f32 v{48+r}, v{48+r}, v{52+r}'); A(f'v_add_f32 v{56+r}, v{56+r}, v{60+r}')
    for r in range(4): A(f'v_add_f32 v{48+r}, v{48+r}, v{56+r}')
    for r in range(4): A(f'v_add_f32 v{48+r}, v{48+r}, v{64+r}')
    A('v_cvt_pk_bf16_f32 v56, v48, v49'); A('v_cvt_pk_bf16_f32 v57, v50, v51')
    A('v_lshlrev_b32 v8, 3, v0')
    A(f'ds_write_b64 v8, v[56:57] offset:{QV}')
    A('s_mov_b64 exec, -1')
    lds_set(F_Q, vZ, vONE)
    stamp(4)
    A('s_branch L_VSTREAM_LATE')

    A('L_F2:')
    A('s_cmp_ge_u32 s2, 240'); A('s_cbranch_scc1 L_F2_NONE')
    A('s_lshr_b32 s68, s2, 2'); A('s_and_b32 s69, s2, 3')
    A('v_lshlrev_b32 v7, 3, v0'); A('s_mul_i32 s62, s69, 320')
    A(f'buffer_load_dwordx2 v[10:11], v7, {srd("C")}, s62 offen')
    dma_addr(128, 7680, 6, 8, 9)
    A(f's_mul_i32 s70, s69, {160 * 7680}'); A('s_lshl_b32 s62, s68, 7'); A('s_add_u32 s70, s70, s62')
    dma_issue(20, 'WMOD', 6, 70, 8 * 7680, None, LDS_A)
    A('s_barrier')
    A('s_waitcnt vmcnt(20)')
    A('v_lshlrev_b32 v12, 16, v10'); A('v_and_b32 v13, 0xffff0000, v10'); A('v_lshlrev_b32 v14, 16, v11'); A('v_and_b32 v15, 0xffff0000, v11')
    A(f's_mov_b32 s62, {LOG2E | 0x80000000}')
    for r in range(4): A(f'v_mul_f32 v{16+r}, s62, v{12+r}')
    for r in range(4): A(f'v_exp_f32 v{16+r}, v{16+r}')
    for r in range(4): A(f'v_add_f32 v{16+r}, 1.0, v{16+r}')
    for r in range(4): fdiv(A, 12 + r, 12 + r, 16 + r, 20, 21, 22, 23)
    A('v_cvt_pk_bf16_f32 v16, v12, v13'); A('v_cvt_pk_bf16_f32 v17, v14, v15')
    set_exec((1 << 40) - 1)
    A(f'ds_write_b64 v7, v[16:17] offset:{SC}')
    A('s_mov_b64 exec, -1')
    tr_addr(128, 6, 10, 11, base_imm=LDS_A)
    A(f'v_lshrrev_b32 v10, 4, v0'); A('v_lshlrev_b32 v10, 3, v10')
    for u in range(5):
        A(f'ds_read2_b64 v[{28+4*u}:{31+4*u}], v10 offset0:{SC//8 + 8*u} offset1:{SC//8 + 8*u + 4}')
    for r in range(16): A(f'v_mov_b32 v{12+r}, 0')
    A('s_waitcnt vmcnt(0)')
    stamp(1)
    for u in range(5):
        for ct in range(4):
            r = 48 + (u * 4 + ct) * 4
            for hh in range(2):
                A(f'ds_read_b64_tr_b16 v[{r+2*hh}:{r+2*hh+1}], v{6+ct} offset:{(32*u+16*hh)*128}')
    A('s_waitcnt lgkmcnt(0)')
    for u in range(5):
        for ct in range(4):
            r = 48 + (u * 4 + ct) * 4
            A(f'v_mfma_f32_16x16x32_bf16 v[{12+4*ct}:{15+4*ct}], v[{r}:{r+3}], v[{28+4*u}:{31+4*u}], v[{12+4*ct}:{15+4*ct}]')
    merge4(12, 28)
    for r in range(4): A(f'v_or_b32 v{28+r}, 1, v{28+r}')
    A('v_and_b32 v8, 15, v0'); A('v_lshlrev_b32 v8, 6, v8'); A('v_lshrrev_b32 v9, 4, v0'); A('v_lshl_add_u32 v8, v9, 4, v8')
    A(f's_lshl_b32 s70, s2, 8')
    stamp(2)
    lds_wait(F_FLAGS, vZ, 10)
    set_exec(0x000f000f000f000f)
    A(f'buffer_store_dwordx4 v[28:31], v8, {srd("WS")}, s70 offen sc1')
    A('s_mov_b64 exec, -1')
    stamp(3)
    A('s_branch L_VSTREAM')
    A('L_F2_NONE:')
    A('s_barrier')
    A('s_branch L_VSTREAM')

    A('L_F3:')
    A(f's_cmp_ge_u32 s{sR}, 4'); A('s_cbranch_scc1 L_F4')
    A('v_lshlrev_b32 v7, 2, v0'); A('ds_write_b32 v7, v3'); A('s_waitcnt lgkmcnt(0)')
    A('s_barrier')
    A('s_branch L_VSTREAM')
    A('L_F4:')
    A('s_cmp_ge_u32 s2, 64'); A('s_cbranch_scc1 L_F2_NONE')
    A('v_lshlrev_b32 v7, 4, v0')
    for r in range(4): A(f'v_mov_b32 v{8+r}, 0')
    A('s_lshl_b32 s70, s2, 14'); A(f's_sub_u32 s62, s{sR}, 4'); A('s_lshl_b32 s62, s62, 12'); A('s_add_u32 s70, s70, s62')
    for n in range(4): A(f'buffer_store_dwordx4 v[8:11], v7, {srd("WS")}, s70 offen offset:{1024*n} sc1')
    A('s_barrier')
    A('s_waitcnt vmcnt(0)')
    A('s_mov_b64 exec, 1')
    A(f'ds_add_rtn_u32 v12, v3, v4 offset:{CNT_CLR}')
    A('s_waitcnt lgkmcnt(0)')
    A('v_readfirstlane_b32 s62, v12')
    A('s_lshl_b32 s70, s2, 2')
    A('s_cmp_lg_u32 s62, 3'); A('s_cbranch_scc1 L_F4_X')
    A(f'buffer_store_dword v4, v3, {srd("DBG")}, s70 offen sc1')
    A('L_F4_X:')
    A('s_mov_b64 exec, -1')
    stamp(1)
    A('s_branch L_VSTREAM')

    VD = 32
    def vstream(depth, tag):
        lds_wait(KISS, vPF, 6)
        stamp(5)
        for n in range(24):
            T, tt, c = n // 12, (n % 12) // 3, n % 3
            A(f'buffer_load_dwordx4 v[{VD+4*n}:{VD+4*n+3}], v2, {srd("V")}, s{65+T} offen offset:{tt*384+c*128} nt')
            if n + 1 == VISS_AT: lds_set(VISS, vPF, vONE)
            if n + 1 >= depth and n + 1 < 24: A(f's_waitcnt vmcnt({depth-1})')
    A('L_VSTREAM_LATE:')
    A('s_waitcnt vmcnt(0)')
    vstream(DV_LATE, 'L')
    A('s_branch L_PV')
    A('L_VSTREAM:')
    A('s_waitcnt vmcnt(0)')
    vstream(DV, 'N')
    A('L_PV:')
    A('v_and_b32 v14, 7, v0')
    A('v_and_b32 v15, 1, v14'); A('v_lshlrev_b32 v15, 4, v15'); A('v_mov_b32 v10, 0xffff'); A('v_lshlrev_b32 v15, v15, v10')
    A('v_lshrrev_b32 v14, 1, v14')
    for d in range(4):
        A(f'v_cmp_eq_u32 vcc, {d}, v14'); A(f'v_cndmask_b32 v{6+d}, 0, v15, vcc')
    for r in range(12): A(f'v_mov_b32 v{16+r}, 0')
    A('v_lshrrev_b32 v14, 3, v0'); A('v_lshlrev_b32 v14, 4, v14'); A(f's_lshl_b32 s62, s{sR}, 8'); A('v_add_u32 v14, s62, v14')
    lds_wait(PRDY, vPF, 15)
    stamp(6)
    for T in range(2):
        A(f'ds_read_b128 v[10:13], v14 offset:{PD + 128*T}')
        A('s_waitcnt lgkmcnt(0)')
        for tt in range(4):
            t = 4 * T + tt
            for d in range(4): A(f'v_and_b32 v{28+d}, v{10+tt}, v{6+d}')
            for c in range(3):
                n = 3 * t + c
                A(f's_waitcnt vmcnt({23-n})')
                A(f'v_mfma_f32_16x16x32_bf16 v[{16+4*c}:{19+4*c}], v[{VD+4*n}:{VD+4*n+3}], v[28:31], v[{16+4*c}:{19+4*c}]')
    A('v_lshrrev_b32 v14, 5, v0'); A(f's_lshl_b32 s62, s{sR}, 1'); A('v_add_u32 v14, s62, v14'); A('v_mul_u32_u24 v14, 768, v14')
    A('v_bfe_u32 v15, v0, 4, 1'); A('v_lshl_add_u32 v14, v15, 7, v14'); A('v_and_b32 v15, 7, v0'); A('v_lshl_add_u32 v14, v15, 2, v14')
    set_exec(0xff00ff0000ff00ff)
    for c in range(3):
        for r in range(4):
            A(f'ds_write_b32 v14, v{16+4*c+r} offset:{RED + 256*c + 32*r}')
    A('s_mov_b64 exec, 1')
    A(f'ds_add_rtn_u32 v15, v3, v4 offset:{CNT_O}')
    A('s_waitcnt lgkmcnt(0)')
    A('v_readfirstlane_b32 s62, v15')
    A('s_mov_b64 exec, -1')
    A('s_cmp_lg_u32 s62, 7'); A('s_cbranch_scc1 L_VEND')
    A('v_lshlrev_b32 v14, 4, v0')
    set_exec((1 << 48) - 1)
    for k in range(16): A(f'ds_read_b128 v[{32+4*k}:{35+4*k}], v14 offset:{RED + 768*k}')
    A(f's_lshl_b32 s62, s{sH}, 3'); A(f's_add_u32 s62, s62, s{sS}'); A('s_mul_i32 s62, s62, 768')
    A(f's_add_u32 s72, s62, {R_O[0]}'); A(f's_add_u32 s73, s62, {R_O[1]}')
    A('s_waitcnt lgkmcnt(0)')
    step = 1
    while step < 16:
        for k in range(0, 16, 2 * step):
            for h2 in range(2):
                a = 32 + 4 * k + 2 * h2; b = 32 + 4 * (k + step) + 2 * h2
                A(f'v_pk_add_f32 v[{a}:{a+1}], v[{a}:{a+1}], v[{b}:{b+1}]')
        step *= 2
    for r in range(4): A(f'v_or_b32 v{32+r}, 1, v{32+r}')
    A(f'buffer_store_dwordx4 v[32:35], v14, {srd("WS")}, s72 offen')
    A(f'buffer_store_dwordx4 v[32:35], v14, {srd("WS")}, s73 offen sc1')
    A('s_mov_b64 exec, -1')
    lds_set(F_ODONE, vZ, vONE)
    A('L_VEND:')
    stamp(7)
    flush_stamps(8)
    A('s_endpgm')

    A('L_KWAVE:')
    KD = 32
    for n in range(24):
        T, tt, c = n // 12, (n % 12) // 3, n % 3
        A(f'buffer_load_dwordx4 v[{KD+4*n}:{KD+4*n+3}], v2, {srd("K")}, s{65+T} offen offset:{tt*384+c*128} nt')
        if n + 1 == DK: A('s_barrier')
        if n + 1 >= DK and n + 1 < 24: A(f's_waitcnt vmcnt({DK-1})')
    lds_set(KISS, vPF, vONE)
    stamp(1)
    A('v_and_b32 v6, 7, v0'); A('v_lshlrev_b32 v6, 4, v6')
    lds_wait(F_Q, vZ, 7)
    stamp(2)
    for c in range(3): A(f'ds_read_b128 v[{8+4*c}:{11+4*c}], v6 offset:{QV + 128*c}')
    A('s_waitcnt lgkmcnt(0)')
    for tp in range(0, 8, 2):
        A(f's_waitcnt vmcnt({21 - 3*(tp+1)})')
        for c in range(3):
            for d in range(4):
                for t in (tp, tp + 1):
                    kr = KD + 4 * (3 * t + c) + d
                    src2 = '0' if (c == 0 and d == 0) else f'v{20+t}'
                    A(f'v_dot2_f32_bf16 v{20+t}, v{kr}, v{8+4*c+d}, {src2}')
    def setmask(m, s): A(f's_mov_b32 s{s}, {m}'); A(f's_mov_b32 s{s+1}, {m}')
    setmask(0xf0f0f0f0, 80); setmask(0xaaaaaaaa, 82); setmask(0xcccccccc, 84)
    for j in range(4):
        A(f'v_cndmask_b32 v{8+j}, v{20+j}, v{24+j}, s[80:81]')
        A(f'v_cndmask_b32 v{12+j}, v{24+j}, v{20+j}, s[80:81]')
    for j in range(4): A(f'v_add_f32_dpp v{8+j}, v{12+j}, v{8+j} row_half_mirror row_mask:0xf bank_mask:0xf')
    for jj in (0, 1):
        A(f'v_cndmask_b32 v{12+jj}, v{8+2*jj}, v{9+2*jj}, s[82:83]')
        A(f'v_cndmask_b32 v{14+jj}, v{9+2*jj}, v{8+2*jj}, s[82:83]')
    for jj in (0, 1): A(f'v_add_f32_dpp v{12+jj}, v{14+jj}, v{12+jj} quad_perm:[1,0,3,2] row_mask:0xf bank_mask:0xf')
    A('v_cndmask_b32 v8, v12, v13, s[84:85]'); A('v_cndmask_b32 v9, v13, v12, s[84:85]')
    A('v_add_f32_dpp v8, v9, v8 quad_perm:[2,3,0,1] row_mask:0xf bank_mask:0xf')
    rbf(8, 8); A(f'v_mul_f32 v8, {SCALE}, v8'); rbf(8, 8)
    A('v_mov_b32 v9, v8')
    allreduce([9], 'v_max_f32', [10])
    A('v_sub_f32 v10, v8, v9'); A(f'v_mul_f32 v10, {LOG2E}, v10'); A('v_exp_f32 v10, v10')
    allreduce([10], 'v_add_f32', [11])
    A('v_or_b32 v12, 1, v9'); A('v_mov_b32 v13, v10')
    A(f's_lshl_b32 s62, s{sH}, 6'); A(f's_lshl_b32 s63, s{sS}, 3'); A('s_add_u32 s62, s62, s63'); A(f's_add_u32 s62, s62, s{sR}'); A('s_lshl_b32 s62, s62, 3')
    A(f's_add_u32 s72, s62, {R_ST[0]}'); A(f's_add_u32 s73, s62, {R_ST[1]}')
    A('s_mov_b64 exec, 1')
    A(f'buffer_store_dwordx2 v[12:13], v3, {srd("WS")}, s72 offen')
    A(f'buffer_store_dwordx2 v[12:13], v3, {srd("WS")}, s73 offen sc1')
    A('s_mov_b64 exec, -1')
    stamp(3)
    A(f's_cmp_lg_u32 s{sR}, 0'); A('s_cbranch_scc1 L_K_WAITML')
    A('v_lshlrev_b32 v14, 3, v0'); A(f's_lshl_b32 s62, s{sH}, 9'); A('v_add_u32 v14, s62, v14')
    poll(lambda: A(f'buffer_load_dwordx2 v[12:13], v14, {srd("WS")}, s64 offen sc1'), [12, 13], 15, regionAB=R_ST)
    A('v_and_b32 v12, 0xffff0000, v12')
    A('v_mov_b32 v16, v12')
    allreduce([16], 'v_max_f32', [15])
    A('v_sub_f32 v12, v12, v16'); A(f'v_mul_f32 v12, {LOG2E}, v12'); A('v_exp_f32 v12, v12'); A('v_mul_f32 v17, v12, v13')
    allreduce([17], 'v_add_f32', [15])
    A(f'ds_write_b64 v3, v[16:17] offset:{ML}')
    lds_set(F_ML, vZ, vONE)
    A('s_branch L_K_P')
    A('L_K_WAITML:')
    lds_wait(F_ML, vZ, 15)
    A(f'ds_read_b64 v[16:17], v3 offset:{ML}')
    A('s_waitcnt lgkmcnt(0)')
    A('L_K_P:')
    A('v_sub_f32 v10, v8, v16'); A(f'v_mul_f32 v10, {LOG2E}, v10'); A('v_exp_f32 v10, v10')
    fdiv(A, 10, 10, 17, 20, 21, 22, 23)
    A('v_cvt_pk_bf16_f32 v10, v10, v10')
    A('v_bfe_u32 v11, v0, 2, 1'); A('v_lshlrev_b32 v11, 5, v11'); A('v_lshrrev_b32 v12, 3, v0'); A('v_lshl_add_u32 v11, v12, 2, v11')
    A('v_and_b32 v12, 3, v0'); A('v_add_u32 v11, v11, v12'); A('v_lshlrev_b32 v11, 2, v11'); A(f's_lshl_b32 s62, s{sR}, 8'); A('v_add_u32 v11, s62, v11')
    A(f'ds_write_b32 v11, v10 offset:{PD}')
    lds_set(PRDY, vPF, vONE)
    stamp(4)
    A(f's_cmp_lt_u32 s{sI}, 20'); A('s_cbranch_scc1 L_TW')
    A(f's_cmp_lt_u32 s{sI}, 26'); A('s_cbranch_scc1 L_TG')
    A(f's_cmp_lt_u32 s{sI}, 31'); A('s_cbranch_scc1 L_TD')
    A('s_branch L_KEND')

    FR = 64
    A('L_TW:')
    dma_addr(64, 1280, 6, 7, 8)
    A(f's_mul_i32 s70, s{sX}, 768'); A(f's_mul_i32 s62, s{sR}, 96'); A('s_add_u32 s70, s70, s62'); A('s_mul_i32 s70, s70, 1280')
    A(f's_lshl_b32 s62, s{sI}, 6'); A('s_add_u32 s70, s70, s62')
    A(f's_mul_i32 s71, s{sR}, 6144'); A(f's_add_u32 s71, s71, {LDS_T}')
    tr_addr(64, 10, 12, 13, base_sgpr=71)
    A('v_lshrrev_b32 v14, 5, v0'); A('v_mul_u32_u24 v14, 3072, v14'); A('v_and_b32 v15, 31, v0'); A('v_lshl_add_u32 v14, v15, 4, v14')
    A(f's_lshl_b32 s62, s{sX}, 2'); A(f's_lshr_b32 s63, s{sR}, 1'); A('s_add_u32 s62, s62, s63'); A('s_mul_i32 s62, s62, 6144')
    A(f's_and_b32 s63, s{sR}, 1'); A('s_mul_i32 s63, s63, 384'); A('s_add_u32 s62, s62, s63'); A('v_add_u32 v14, s62, v14')
    A(f's_lshl_b32 s74, s{sR}, 9'); A(f's_add_u32 s74, s74, {STG}')
    A('v_lshl_add_u32 v16, v15, 3, s74')
    A('v_lshrrev_b32 v17, 4, v0'); A('v_lshl_add_u32 v17, v17, 3, s74')
    lds_wait(VISS, vPF, 7)
    dma_issue(6, 'WO', 6, 70, 16 * 1280, 71)
    for r in range(8): A(f'v_mov_b32 v{20+r}, 0')
    A('s_waitcnt vmcnt(0)')
    for u in range(3):
        for ct in range(2):
            r = FR + (u * 2 + ct) * 4
            for hh in range(2): A(f'ds_read_b64_tr_b16 v[{r+2*hh}:{r+2*hh+1}], v{10+ct} offset:{(32*u+16*hh)*64}')
    stamp(5)
    lds_wait(F_ODONE, vZ, 7)
    set_exec(0x00ffffff00ffffff)
    def ld():
        for n in range(4): A(f'buffer_load_dwordx4 v[{32+4*n}:{35+4*n}], v14, {srd("WS")}, s64 offen offset:{768*n} sc1')
    poll(ld, list(range(32, 48)), 7, regionAB=R_O, sleep=0)
    A('s_mov_b64 exec, -1')
    stamp(6)
    for h2 in range(2):
        A(f'v_pk_add_f32 v[{32+2*h2}:{33+2*h2}], v[{32+2*h2}:{33+2*h2}], v[{36+2*h2}:{37+2*h2}]')
        A(f'v_pk_add_f32 v[{40+2*h2}:{41+2*h2}], v[{40+2*h2}:{41+2*h2}], v[{44+2*h2}:{45+2*h2}]')
    for h2 in range(2): A(f'v_pk_add_f32 v[{32+2*h2}:{33+2*h2}], v[{32+2*h2}:{33+2*h2}], v[{40+2*h2}:{41+2*h2}]')
    for r in range(4): A(f'v_mov_b32 v{36+r}, v{32+r}')
    for r in range(4): A(f'v_permlane32_swap_b32 v{32+r}, v{36+r}')
    for h2 in range(2): A(f'v_pk_add_f32 v[{32+2*h2}:{33+2*h2}], v[{32+2*h2}:{33+2*h2}], v[{36+2*h2}:{37+2*h2}]')
    A('v_cvt_pk_bf16_f32 v36, v32, v33'); A('v_cvt_pk_bf16_f32 v37, v34, v35')
    set_exec(0x00ffffff)
    A('ds_write_b64 v16, v[36:37]')
    A('s_mov_b64 exec, -1')
    for u in range(3): A(f'ds_read2_b64 v[{40+4*u}:{43+4*u}], v17 offset0:{8*u} offset1:{8*u+4}')
    A('s_waitcnt lgkmcnt(0)')
    for u in range(3):
        for ct in range(2):
            r = FR + (u * 2 + ct) * 4
            A(f'v_mfma_f32_16x16x32_bf16 v[{20+4*ct}:{23+4*ct}], v[{r}:{r+3}], v[{40+4*u}:{43+4*u}], v[{20+4*ct}:{23+4*ct}]')
    A('v_lshrrev_b32 v7, 4, v0'); A('v_lshlrev_b32 v7, 4, v7'); A(f's_lshl_b32 s62, s{sR}, 7'); A('v_add_u32 v7, s62, v7')
    set_exec(0x0001000100010001)
    for ct in range(2): A(f'ds_write_b128 v7, v[{20+4*ct}:{23+4*ct}] offset:{TRED + 64*ct}')
    A('s_mov_b64 exec, -1')
    A('s_waitcnt lgkmcnt(0)')
    A('s_barrier')
    A(f's_cmp_lg_u32 s{sR}, 0'); A('s_cbranch_scc1 L_KEND')
    A('v_lshlrev_b32 v7, 4, v0')
    set_exec(0xff)
    for k in range(8): A(f'ds_read_b128 v[{32+4*k}:{35+4*k}], v7 offset:{TRED + 128*k}')
    A(f's_mul_i32 s62, s{sX}, 2560'); A(f's_lshl_b32 s63, s{sI}, 7'); A('s_add_u32 s62, s62, s63'); A(f's_add_u32 s62, s62, {R_Y}')
    A('s_waitcnt lgkmcnt(0)')
    tree_add(A, 32, 8)
    for r in range(4): A(f'v_or_b32 v{32+r}, 1, v{32+r}')
    A(f'buffer_store_dwordx4 v[32:35], v7, {srd("WS")}, s62 offen sc1')
    A('s_mov_b64 exec, -1')
    A('s_branch L_KEND')

    A('L_TG:')
    A(f's_mul_i32 s75, s{sX}, 6'); A(f's_add_u32 s75, s75, s{sI}'); A('s_sub_u32 s75, s75, 20')
    A(f's_and_b32 s76, s{sR}, 3')
    A(f's_cmp_ge_u32 s{sR}, 4')
    A(f's_cselect_b32 s68, s{SRD["WU"]}, s{SRD["WG"]}'); A(f's_cselect_b32 s69, s{SRD["WU"]+1}, s{SRD["WG"]+1}')
    A(f's_mov_b32 s70, {SIZE["WG"]}'); A('s_mov_b32 s71, 0x20000'); G_SRD = 's[68:71]'
    dma_addr(64, 3072, 6, 7, 8)
    A(f's_mul_i32 s77, s76, {160 * 3072}'); A('s_lshl_b32 s62, s75, 6'); A('s_add_u32 s77, s77, s62')
    A(f's_mul_i32 s78, s{sR}, 10240'); A(f's_add_u32 s78, s78, {LDS_T}')
    tr_addr(64, 10, 12, 13, base_sgpr=78)
    A('v_and_b32 v15, 31, v0'); A('v_lshlrev_b32 v14, 2, v15'); A(f's_mul_i32 s62, s{sR}, 80'); A('v_add_u32 v14, s62, v14')
    A('v_lshrrev_b32 v16, 5, v0')
    A('v_add_u32 v17, 1280, v14'); A('v_lshrrev_b32 v18, 6, v17'); A('v_lshlrev_b32 v18, 10, v18'); A('v_and_b32 v17, 63, v17'); A('v_lshl_add_u32 v17, v17, 2, v18')
    A('v_lshl_add_u32 v17, v16, 9, v17')
    A('v_lshlrev_b32 v18, 1, v14')
    set_exec(0x000fffff000fffff)
    A(f'buffer_load_dwordx2 v[28:29], v18, {srd("X")}, 0 offen')
    def ld():
        for ks in range(2): A(f'buffer_load_dwordx4 v[{32+4*ks}:{35+4*ks}], v17, {srd("WS")}, 0 offen offset:{256*ks} sc1')
    poll(ld, list(range(32, 40)), 7)
    A('s_mov_b64 exec, -1')
    for r in range(4): A(f'v_add_f32 v{32+r}, v{32+r}, v{36+r}')
    for r in range(4): A(f'v_mov_b32 v{36+r}, v{32+r}')
    for r in range(4): A(f'v_permlane32_swap_b32 v{32+r}, v{36+r}')
    for r in range(4): A(f'v_add_f32 v{32+r}, v{32+r}, v{36+r}')
    for r in range(4): rbf(20 + r, 32 + r)
    A('v_lshlrev_b32 v24, 16, v28'); A('v_and_b32 v25, 0xffff0000, v28'); A('v_lshlrev_b32 v26, 16, v29'); A('v_and_b32 v27, 0xffff0000, v29')
    A('v_lshlrev_b32 v18, 2, v0'); A('s_mul_i32 s62, s76, 160'); A('v_add_u32 v18, s62, v18')
    for k, base in enumerate((1920, 2560)):
        A(f'v_add_u32 v{28+k}, {base}, v18'); A(f'v_lshrrev_b32 v7, 6, v{28+k}'); A('v_lshlrev_b32 v7, 10, v7'); A(f'v_and_b32 v{28+k}, 63, v{28+k}'); A(f'v_lshl_add_u32 v{28+k}, v{28+k}, 2, v7')
    set_exec((1 << 40) - 1)
    def ld():
        for k in range(2):
            for ks in range(4): A(f'buffer_load_dwordx4 v[{32+16*k+4*ks}:{35+16*k+4*ks}], v{28+k}, {srd("WS")}, 0 offen offset:{256*ks} sc1')
    poll(ld, list(range(32, 64)), 7)
    A('s_mov_b64 exec, -1')
    for k in range(2):
        b0 = 32 + 16 * k
        for r in range(4):
            A(f'v_add_f32 v{b0+r}, v{b0+r}, v{b0+4+r}'); A(f'v_add_f32 v{b0+8+r}, v{b0+8+r}, v{b0+12+r}')
        for r in range(4): A(f'v_add_f32 v{b0+r}, v{b0+r}, v{b0+8+r}')
    for r in range(4): rbf(104 + r, 32 + r)
    for r in range(4): rbf(108 + r, 48 + r)
    for r in range(4): A(f'v_add_f32 v{108+r}, 1.0, v{108+r}')
    for r in range(4): rbf(108 + r, 108 + r)
    A('v_mul_u32_u24 v17, 10240, v16'); A('v_lshl_add_u32 v17, v14, 2, v17')
    A('v_lshlrev_b32 v14, 2, v14')
    A(f's_lshl_b32 s74, s{sR}, 9'); A(f's_add_u32 s74, s74, {STG}')
    A('v_lshl_add_u32 v16, v0, 3, s74')
    A('v_lshrrev_b32 v19, 4, v0'); A('v_lshl_add_u32 v19, v19, 3, s74')
    A('v_lshlrev_b32 v18, 2, v18')
    A('v_lshlrev_b32 v15, 5, v0'); A('v_lshlrev_b32 v9, 3, v0')
    lds_wait(VISS, vPF, 7)
    dma_issue(10, G_SRD, 6, 77, 16 * 3072, 78)
    for r in range(8): A(f'v_mov_b32 v{112+r}, 0')
    A('s_waitcnt vmcnt(0)')
    for u in range(5):
        for ct in range(2):
            r = FR + (u * 2 + ct) * 4
            for hh in range(2): A(f'ds_read_b64_tr_b16 v[{r+2*hh}:{r+2*hh+1}], v{10+ct} offset:{(32*u+16*hh)*64}')
    stamp(5)
    lds_wait(F_ODONE, vZ, 7)
    A(f's_mov_b32 s64, {R_Y}')
    set_exec(0x000fffff000fffff)
    def ld():
        for n in range(4):
            o = 2560 * n
            if o < 4096: A(f'buffer_load_dwordx4 v[{32+4*n}:{35+4*n}], v17, {srd("WS")}, s64 offen offset:{o} sc1')
            else: A(f'buffer_load_dwordx4 v[{32+4*n}:{35+4*n}], v17, {srd("WS")}, s72 offen offset:{o-5120} sc1')
    A(f's_mov_b32 s72, {R_Y + 5120}')
    poll(ld, list(range(32, 48)), 7)
    A('s_mov_b64 exec, -1')
    stamp(6)
    for h2 in range(2):
        A(f'v_pk_add_f32 v[{32+2*h2}:{33+2*h2}], v[{32+2*h2}:{33+2*h2}], v[{36+2*h2}:{37+2*h2}]')
        A(f'v_pk_add_f32 v[{40+2*h2}:{41+2*h2}], v[{40+2*h2}:{41+2*h2}], v[{44+2*h2}:{45+2*h2}]')
    for h2 in range(2): A(f'v_pk_add_f32 v[{32+2*h2}:{33+2*h2}], v[{32+2*h2}:{33+2*h2}], v[{40+2*h2}:{41+2*h2}]')
    for r in range(4): A(f'v_mov_b32 v{36+r}, v{32+r}')
    for r in range(4): A(f'v_permlane32_swap_b32 v{32+r}, v{36+r}')
    for h2 in range(2): A(f'v_pk_add_f32 v[{32+2*h2}:{33+2*h2}], v[{32+2*h2}:{33+2*h2}], v[{36+2*h2}:{37+2*h2}]')
    for r in range(4): rbf(32 + r, 32 + r)
    for r in range(4): A(f'v_mul_f32 v{32+r}, v{20+r}, v{32+r}')
    for r in range(4): rbf(32 + r, 32 + r)
    for r in range(4): A(f'v_add_f32 v{32+r}, v{24+r}, v{32+r}')
    for r in range(4): rbf(32 + r, 32 + r)
    set_exec(0x000fffff)
    A(f'ds_write_b128 v14, v[32:35] offset:{X2}')
    A('s_mov_b64 exec, -1')
    A('s_waitcnt lgkmcnt(0)')
    A('s_barrier')
    A(f'ds_read_b128 v[32:35], v15 offset:{X2}'); A(f'ds_read_b128 v[36:39], v15 offset:{X2+16}'); A(f'ds_read_b64 v[40:41], v9 offset:{X2+2048}')
    A(f'ds_read_b128 v[44:47], v18 offset:{X2}')
    A('s_waitcnt lgkmcnt(0)')
    ln_stats(A, list(range(32, 42)), 48, 49, 50, 51, allreduce, rbf)
    ln_apply(A, [44, 45, 46, 47], 48, 49, rbf)
    for r in range(4): A(f'v_mul_f32 v{44+r}, v{44+r}, v{108+r}')
    for r in range(4): rbf(44 + r, 44 + r)
    for r in range(4): A(f'v_add_f32 v{44+r}, v{44+r}, v{104+r}')
    A('v_cvt_pk_bf16_f32 v36, v44, v45'); A('v_cvt_pk_bf16_f32 v37, v46, v47')
    set_exec((1 << 40) - 1)
    A('ds_write_b64 v16, v[36:37]')
    A('s_mov_b64 exec, -1')
    for u in range(5): A(f'ds_read2_b64 v[{40+4*u}:{43+4*u}], v19 offset0:{8*u} offset1:{8*u+4}')
    A('s_waitcnt lgkmcnt(0)')
    for u in range(5):
        for ct in range(2):
            r = FR + (u * 2 + ct) * 4
            A(f'v_mfma_f32_16x16x32_bf16 v[{112+4*ct}:{115+4*ct}], v[{r}:{r+3}], v[{40+4*u}:{43+4*u}], v[{112+4*ct}:{115+4*ct}]')
    A('v_lshrrev_b32 v7, 4, v0'); A('v_lshlrev_b32 v7, 4, v7'); A(f's_lshl_b32 s62, s{sR}, 7'); A('v_add_u32 v7, s62, v7')
    set_exec(0x0001000100010001)
    for ct in range(2): A(f'ds_write_b128 v7, v[{112+4*ct}:{115+4*ct}] offset:{TRED + 64*ct}')
    A('s_mov_b64 exec, -1')
    A('s_waitcnt lgkmcnt(0)')
    A('s_barrier')
    A(f's_cmp_eq_u32 s{sR}, 1'); A('s_cbranch_scc1 L_TG_X2')
    A(f's_cmp_lg_u32 s{sR}, 0'); A('s_cbranch_scc1 L_KEND')
    A('v_lshlrev_b32 v7, 4, v0')
    set_exec(0xff)
    for k in range(8): A(f'ds_read_b128 v[{32+4*k}:{35+4*k}], v7 offset:{TRED + 128*k}')
    A('v_and_b32 v8, 3, v0'); A('v_lshlrev_b32 v8, 4, v8'); A('v_lshrrev_b32 v9, 2, v0'); A('v_lshl_add_u32 v8, v9, 3, v8')
    A('s_lshl_b32 s62, s75, 6'); A(f's_add_u32 s62, s62, {R_HM}')
    A('s_waitcnt lgkmcnt(0)')
    tree_add(A, 32, 4); tree_add(A, 48, 4)
    for r in range(4): rbf(32 + r, 32 + r)
    for r in range(4): rbf(48 + r, 48 + r)
    for r in range(4): A(f'v_mul_f32 v{32+r}, v{32+r}, v{48+r}')
    A('v_cvt_pk_bf16_f32 v36, v32, v33'); A('v_cvt_pk_bf16_f32 v37, v34, v35')
    A('v_mov_b32 v38, 0x80000000')
    for r in (36, 37):
        A(f'v_cmp_eq_u32 vcc, 0, v{r}'); A(f'v_cndmask_b32 v{r}, v{r}, v38, vcc')
    A(f'buffer_store_dwordx2 v[36:37], v8, {srd("WS")}, s62 offen sc1')
    A('s_mov_b64 exec, -1')
    A('s_branch L_KEND')
    A('L_TG_X2:')
    A('s_cmp_ge_u32 s75, 40'); A('s_cbranch_scc1 L_KEND')
    A('s_lshl_b32 s62, s75, 6'); A('v_lshl_add_u32 v7, v0, 4, s62')
    set_exec(0xf)
    A(f'ds_read_b128 v[32:35], v7 offset:{X2}')
    A(f's_mov_b32 s62, {R_X2}')
    A('s_waitcnt lgkmcnt(0)')
    for r in range(4): A(f'v_or_b32 v{32+r}, 1, v{32+r}')
    A(f'buffer_store_dwordx4 v[32:35], v7, {srd("WS")}, s62 offen sc1')
    A('s_mov_b64 exec, -1')
    A('s_branch L_KEND')

    A('L_TD:')
    A(f's_mul_i32 s75, s{sX}, 5'); A(f's_add_u32 s75, s75, s{sI}'); A('s_sub_u32 s75, s75, 26')
    dma_addr(32, 1280, 6, 7, 8)
    A(f's_mul_i32 s77, s{sR}, {192 * 1280}'); A('s_lshl_b32 s62, s75, 5'); A('s_add_u32 s77, s77, s62')
    A(f's_mul_i32 s78, s{sR}, 6144'); A(f's_add_u32 s78, s78, {LDS_T}')
    A('v_lshl_add_u32 v10, v0, 3, s78')
    A('v_lshlrev_b32 v14, 2, v0'); A('s_lshl_b32 s62, s75, 4'); A('v_add_u32 v14, s62, v14')
    A('v_add_u32 v17, 3200, v14'); A('v_lshrrev_b32 v18, 6, v17'); A('v_lshlrev_b32 v18, 10, v18'); A('v_and_b32 v17, 63, v17'); A('v_lshl_add_u32 v17, v17, 2, v18')
    A(f's_cmp_lg_u32 s{sR}, 0'); A('s_cbranch_scc1 L_TD_1')
    set_exec(0xf)
    def ld():
        for ks in range(4): A(f'buffer_load_dwordx4 v[{32+4*ks}:{35+4*ks}], v17, {srd("WS")}, 0 offen offset:{256*ks} sc1')
    poll(ld, list(range(32, 48)), 7)
    A('s_mov_b64 exec, -1')
    for r in range(4):
        A(f'v_add_f32 v{32+r}, v{32+r}, v{36+r}'); A(f'v_add_f32 v{40+r}, v{40+r}, v{44+r}')
    for r in range(4): A(f'v_add_f32 v{32+r}, v{32+r}, v{40+r}')
    for r in range(4): rbf(20 + r, 32 + r)
    A('L_TD_1:')
    A('v_lshrrev_b32 v17, 4, v0'); A('v_lshlrev_b32 v17, 4, v17'); A(f's_mul_i32 s62, s{sR}, 384'); A('v_add_u32 v17, s62, v17')
    A('v_and_b32 v18, 3, v0'); A('v_lshlrev_b32 v18, 4, v18'); A('s_lshl_b32 s62, s75, 6'); A('v_add_u32 v18, s62, v18'); A(f'v_add_u32 v18, {R_X2 - R_HM}, v18')
    lds_wait(VISS, vPF, 7)
    dma_issue(6, 'WD', 6, 77, 32 * 1280, 78)
    for r in range(4): A(f'v_mov_b32 v{24+r}, 0')
    A('s_waitcnt vmcnt(0)')
    for u in range(6):
        r = FR + u * 4
        for hh in range(2): A(f'ds_read_b64_tr_b16 v[{r+2*hh}:{r+2*hh+1}], v10 offset:{(32*u+16*hh)*32}')
    stamp(5)
    lds_wait(F_ODONE, vZ, 7)
    A(f's_mov_b32 s64, {R_HM}')
    def ld():
        for u in range(6): A(f'buffer_load_dwordx4 v[{32+4*u}:{35+4*u}], v17, {srd("WS")}, s64 offen offset:{64*u} sc1')
        A(f'buffer_load_dwordx4 v[56:59], v18, {srd("WS")}, s64 offen sc1')
    poll(ld, list(range(32, 60)), 7)
    stamp(6)
    for u in range(6):
        r = FR + u * 4
        A(f'v_mfma_f32_16x16x32_bf16 v[24:27], v[{r}:{r+3}], v[{32+4*u}:{35+4*u}], v[24:27]')
    A('v_lshrrev_b32 v7, 4, v0'); A('v_lshlrev_b32 v7, 4, v7'); A(f's_lshl_b32 s62, s{sR}, 6'); A('v_add_u32 v7, s62, v7')
    set_exec(0x0001000100010001)
    A(f'ds_write_b128 v7, v[24:27] offset:{TRED}')
    A('s_mov_b64 exec, -1')
    A('s_waitcnt lgkmcnt(0)')
    A('s_barrier')
    A(f's_cmp_lg_u32 s{sR}, 0'); A('s_cbranch_scc1 L_KEND')
    A('v_lshlrev_b32 v7, 4, v0')
    set_exec(0xf)
    for k in range(8): A(f'ds_read_b128 v[{64+4*k}:{67+4*k}], v7 offset:{TRED + 64*k}')
    for r in range(4): A(f'v_and_b32 v{56+r}, 0xffff0000, v{56+r}')
    A('v_lshlrev_b32 v14, 1, v14')
    A('s_waitcnt lgkmcnt(0)')
    tree_add(A, 64, 8)
    for r in range(4): rbf(64 + r, 64 + r)
    for r in range(4): A(f'v_mul_f32 v{64+r}, v{20+r}, v{64+r}')
    for r in range(4): rbf(64 + r, 64 + r)
    for r in range(4): A(f'v_add_f32 v{64+r}, v{56+r}, v{64+r}')
    A('v_cvt_pk_bf16_f32 v68, v64, v65'); A('v_cvt_pk_bf16_f32 v69, v66, v67')
    A(f'buffer_store_dwordx2 v[68:69], v14, {srd("OUT")}, 0 offen')
    A('s_mov_b64 exec, -1')
    A('L_KEND:')
    stamp(7)
    flush_stamps(8)
    A('L_END:')
    A('s_endpgm')
    A('.section .rodata,"a"'); A('.p2align 6'); A(f'.amdhsa_kernel {NAME}_kernel')
    A('  .amdhsa_next_free_vgpr 128'); A('  .amdhsa_next_free_sgpr 102'); A('  .amdhsa_accum_offset 128')
    A('  .amdhsa_group_segment_fixed_size 0'); A('  .amdhsa_kernarg_size 112'); A('  .amdhsa_user_sgpr_count 2')
    A('  .amdhsa_user_sgpr_kernarg_segment_ptr 1'); A('  .amdhsa_system_sgpr_workgroup_id_x 1')
    A('  .amdhsa_float_denorm_mode_32 3'); A('  .amdhsa_float_denorm_mode_16_64 3')
    A('.end_amdhsa_kernel')
    return A.finish()

def tree_add(A, base, n):
    step = 1
    while step < n:
        for k in range(0, n, 2 * step):
            for h2 in range(2):
                a = base + 4 * k + 2 * h2; b = base + 4 * (k + step) + 2 * h2
                A(f'v_pk_add_f32 v[{a}:{a+1}], v[{a}:{a+1}], v[{b}:{b+1}]')
        step *= 2

def fdiv(A, dst, num, den, t0, t1, t2, t3):
    A(f'v_rcp_f32 v{t0}, v{den}')
    A(f'v_mul_f32 v{t1}, v{num}, v{t0}')
    A(f'v_fma_f32 v{t2}, -v{t1}, v{den}, v{num}')
    A(f'v_fma_f32 v{t3}, v{t2}, v{t0}, v{t1}')
    A(f'v_cmp_o_f32 vcc, v{t3}, v{t3}')
    A(f'v_cndmask_b32 v{dst}, v{t1}, v{t3}, vcc')

def ln_stats(A, xs, vm, vs, t0, t1, allreduce, rbf):
    A(f'v_readfirstlane_b32 s62, v{xs[0]}')
    for r in xs: A(f'v_subrev_f32 v{r}, s62, v{r}')
    A(f'v_add_f32 v{vm}, v{xs[0]}, v{xs[1]}'); A(f'v_mul_f32 v{vs}, v{xs[0]}, v{xs[0]}')
    for k, r in enumerate(xs):
        if k >= 2: A(f'v_add_f32 v{vm}, v{vm}, v{r}')
        if k >= 1: A(f'v_fmac_f32 v{vs}, v{r}, v{r}')
    allreduce([vm, vs], 'v_add_f32', [t0, t1])
    inv = 0x3acccccd
    A(f'v_mul_f32 v{vm}, {inv}, v{vm}'); A(f'v_mul_f32 v{vs}, {inv}, v{vs}')
    A(f'v_fma_f32 v{vs}, -v{vm}, v{vm}, v{vs}')
    A(f'v_max_f32 v{vs}, 0, v{vs}')
    A(f'v_add_f32 v{vm}, s62, v{vm}')
    rbf(vm, vm); rbf(vs, vs)
    A(f'v_add_f32 v{vs}, 0x3727c5ac, v{vs}')
    rbf(vs, vs)
    A(f'v_sqrt_f32 v{vs}, v{vs}')
    rbf(vs, vs)
    A(f'v_rcp_f32 v{vs}, v{vs}')

def ln_apply(A, regs, vm, vs, rbf):
    for r in regs: A(f'v_sub_f32 v{r}, v{r}, v{vm}')
    for r in regs: rbf(r, r)
    for r in regs: A(f'v_mul_f32 v{r}, v{r}, v{vs}')
    for r in regs: rbf(r, r)

if __name__ == '__main__':
    import argparse
    ap = argparse.ArgumentParser()
    ap.add_argument('-o', default='cdna_kernels/' + NAME + '.s')
    ap.add_argument('--stamps', action='store_true')
    a = ap.parse_args()
    open(a.o, 'w').write(gen(stamps=a.stamps))
```

```python
import sys
from asmfw import Asm
NAME = 'adaLN_cond__gqa_block_cached__glu_gated_bilinear__decode'
HEADER_COMMENT = open('cdna_kernels/' + NAME + '.s.ref').read().split('; Override launch')[0]

R_MOD = 0xE0000; R_Y = 0x00000; R_HM = 0x10000; R_X2 = 0x12000; R_CLR = 0x18000; R_MF = 0x1A000
R_Q = (0x20000, 0x40000); R_ST = (0x60000, 0x64000); R_O = (0x70000, 0xA0000)
R_DBG = 0x200000
F_N, F_H, F_Q, F_ML, F_CLR, CNT_O, F_ODONE, CNT_FREE, CNT_VD, F_MV, CNT_TD = 0, 4, 8, 12, 16, 20, 24, 28, 32, 36, 40
KISS, VISS, PRDY, ML = 64, 96, 128, 192
SC, HV, QV, PD, OACC = 0x100, 0x280, 0x380, 0x800, 0x1000
X2P, TRED, STG, MODV, RED = 0x1400, 0x1A00, 0x2000, 0x3000, 0x1000
ONES = 0x3f803f80
LDS_A, LDS_B, LDS_T = 0x6000, 0xB000, 0x13000
LDS_SIZE = 0x27000
SRD = dict(X=4, K=8, V=12, WQ=16, WO=20, WG=24, WU=28, WD=32, C=36, WMOD=40, OUT=44, DBG=48, WS=52)
KARG = dict(X=0, K=8, V=16, WQ=24, WO=32, WG=48, WU=56, WD=64, C=72, WMOD=80, OUT=88, DBG=96, WS=104)
SIZE = dict(X=1280, K=50331648, V=50331648, WQ=7864320, WO=7864320, WG=1966080, WU=1966080, WD=1966080, C=1280,
            WMOD=4915200, OUT=1280, DBG=256, WS=268435456)
def srd(n): return f's[{SRD[n]}:{SRD[n]+3}]'
sW, sX, sI, sH, sS, sR = 56, 57, 58, 59, 60, 61
sN, sLIVE = 79, 3
LOG2E = 0x3fb8aa3b
SCALE = 0x3d93cd3a
SPIN_MAX = 20000

def gen(DK=3, DV=4, VISS_AT=24, stamps=False, sleep_poll=1, NSLEEP=4, dry=False, TW='v', TG='v', TD='t', TDEPTH=99, TPOL='nt'):
    A = Asm()
    vZ, vONE, vPF = 3, 4, 5
    def stamp(idx):
        if stamps: A(f's_memrealtime s[{86 + 2*idx}:{87 + 2*idx}]')
    def flush_stamps():
        if not stamps: return
        A('s_waitcnt lgkmcnt(0)')
        A(f's_lshl_b32 s62, s2, 4'); A(f's_add_u32 s62, s62, s{sW}'); A('s_lshl_b32 s62, s62, 5'); A(f's_add_u32 s62, s62, {R_DBG}')
        A('s_mov_b64 exec, 1')
        for k in range(8): A(f'v_mov_b32 v{8+k}, s{86+2*k}')
        A('v_mov_b32 v1, 0')
        A(f'buffer_store_dwordx4 v[8:11], v1, {srd("WS")}, s62 offen')
        A(f'buffer_store_dwordx4 v[12:15], v1, {srd("WS")}, s62 offen offset:16')
    def set_exec(mask):
        lo, hi = mask & 0xffffffff, mask >> 32
        for nm, m in (('exec_lo', lo), ('exec_hi', hi)):
            if m == 0xffffffff: A(f's_mov_b32 {nm}, s{sLIVE}')
            elif m == 0: A(f's_mov_b32 {nm}, 0')
            else: A(f's_and_b32 {nm}, s{sLIVE}, {m}')
    def full_exec(): set_exec((1 << 64) - 1)
    def barrier():
        L = A.label('BR')
        A(f's_cbranch_execz {L}'); A('s_barrier'); A(f'{L}:')
    def lds_wait(off, vz, vt, cmp_val=None):
        L = A.label('LW'); D = A.label('LWD')
        A('s_mov_b32 s63, 0')
        A(f's_cbranch_execz {D}')
        A(f'{L}:')
        A(f'ds_read_b32 v{vt}, v{vz} offset:{off}')
        A('s_waitcnt lgkmcnt(0)')
        A(f'v_readfirstlane_b32 s62, v{vt}')
        if cmp_val is None: A('s_cmp_lg_u32 s62, 0')
        else: A(f's_cmp_ge_u32 s62, {cmp_val}')
        A(f's_cbranch_scc1 {D}')
        A('s_sleep 1')
        A('s_add_u32 s63, s63, 1'); A(f's_cmp_lt_u32 s63, {SPIN_MAX * 8}'); A(f's_cbranch_scc1 {L}')
        A(f'{D}:')
    def lds_set(off, vz=vZ): A(f'ds_write_b32 v{vz}, v{vONE} offset:{off}')
    def lds_inc(off):
        set_exec(1); A(f'ds_add_u32 v{vZ}, v{vONE} offset:{off}'); full_exec()
    def poll(loads, regs, vt, regionAB=None, sleep=None, tags=(), vt2=None):
        L = A.label('PL'); D = A.label('PD')
        A('s_mov_b32 s63, 0')
        A(f'{L}:')
        if regionAB:
            A('s_and_b32 s62, s63, 7'); A('s_cmp_eq_u32 s62, 7')
            A(f's_mov_b32 s64, {regionAB[0]}'); A(f's_cselect_b32 s64, {regionAB[1]}, s64')
        loads()
        A('s_waitcnt vmcnt(0)')
        r = list(regs); first = True
        while r:
            if first:
                if len(r) >= 3: A(f'v_min3_u32 v{vt}, v{r[0]}, v{r[1]}, v{r[2]}'); r = r[3:]
                elif len(r) == 2: A(f'v_min_u32 v{vt}, v{r[0]}, v{r[1]}'); r = []
                else: A(f'v_mov_b32 v{vt}, v{r[0]}'); r = []
                first = False
            elif len(r) >= 2: A(f'v_min3_u32 v{vt}, v{vt}, v{r[0]}, v{r[1]}'); r = r[2:]
            else: A(f'v_min_u32 v{vt}, v{vt}, v{r[0]}'); r = []
        if regs: A(f'v_cmp_eq_u32 vcc, 0, v{vt}')
        if tags:
            tg = list(tags)
            x = vt2 if regs else vt
            A(f'v_xor_b32 v{x}, s{sN}, v{tg[0]}')
            for tr in tg[1:]: A(f'v_xor_b32 v{tr}, s{sN}, v{tr}')
            rest = tg[1:]
            while rest:
                if len(rest) >= 2: A(f'v_or3_b32 v{x}, v{x}, v{rest[0]}, v{rest[1]}'); rest = rest[2:]
                else: A(f'v_or_b32 v{x}, v{x}, v{rest[0]}'); rest = []
            if regs: A(f'v_cmp_ne_u32 s[82:83], 0, v{x}'); A('s_or_b64 vcc, vcc, s[82:83]')
            else: A(f'v_cmp_ne_u32 vcc, 0, v{x}')
        A(f's_cbranch_vccz {D}')
        sl = sleep_poll if sleep is None else sleep
        if sl: A(f's_sleep {sl}')
        A('s_add_u32 s63, s63, 1'); A(f's_cmp_lt_u32 s63, {SPIN_MAX}'); A(f's_cbranch_scc1 {L}')
        A(f'{D}:')
    def rbf(dst, src):
        A(f'v_cvt_pk_bf16_f32 v{dst}, v{src}, v{src}')
        A(f'v_and_b32 v{dst}, 0xffff0000, v{dst}')
    def rbf4(dst, src):
        for h in range(2):
            A(f'v_cvt_pk_bf16_f32 v{dst+2*h+1}, v{src+2*h}, v{src+2*h+1}')
        for h in range(2):
            A(f'v_lshlrev_b32 v{dst+2*h}, 16, v{dst+2*h+1}')
            A(f'v_and_b32 v{dst+2*h+1}, 0xffff0000, v{dst+2*h+1}')
    def allreduce(regs, op, tmp):
        for pat in ('quad_perm:[1,0,3,2]', 'quad_perm:[2,3,0,1]', 'row_half_mirror', 'row_mirror'):
            for r in regs: A(f'{op}_dpp v{r}, v{r}, v{r} {pat} row_mask:0xf bank_mask:0xf')
        for sw in ('v_permlane16_swap_b32', 'v_permlane32_swap_b32'):
            for r, t in zip(regs, tmp): A(f'v_mov_b32 v{t}, v{r}')
            for r, t in zip(regs, tmp): A(f'{sw} v{r}, v{t}')
            for r, t in zip(regs, tmp): A(f'{op} v{r}, v{r}, v{t}')
    def reduce_sgpr(regs, op, sdst):
        for pat in ('quad_perm:[1,0,3,2]', 'quad_perm:[2,3,0,1]', 'row_half_mirror', 'row_mirror'):
            for r in regs: A(f'{op}_dpp v{r}, v{r}, v{r} {pat} row_mask:0xf bank_mask:0xf')
        for r in regs: A(f'{op}_dpp v{r}, v{r}, v{r} row_bcast:15 row_mask:0xa bank_mask:0xf')
        for r in regs: A(f'{op}_dpp v{r}, v{r}, v{r} row_bcast:31 row_mask:0xc bank_mask:0xf')
        for r, sd in zip(regs, sdst): A(f'v_readlane_b32 s{sd}, v{r}, 63')
    def unpack2(dst, src):
        A(f'v_lshlrev_b32 v{dst}, 16, v{src}'); A(f'v_and_b32 v{dst+1}, 0xffff0000, v{src}')
    def rbf2(dst, src, t):
        A(f'v_cvt_pk_bf16_f32 v{t}, v{src}, v{src+1}'); unpack2(dst, t)
    def pk(op, d, a, b, bcast=False, negb=False):
        m = ''
        if bcast: m += ' op_sel_hi:[1,0]'
        if negb: m += ' neg_lo:[0,1] neg_hi:[0,1]'
        A(f'v_pk_{op}_f32 v[{d}:{d+1}], v[{a}:{a+1}], v[{b}:{b+1}]{m}')
    def tree2(base, n):
        step = 1
        while step < n:
            for k in range(0, n, 2 * step): pk('add', base + 2 * k, base + 2 * k, base + 2 * (k + step))
            step *= 2
    def ln_stats_pk(xs, vm, vinv):
        a, b = vm, vm + 1
        A(f's_mov_b32 s62, {ONES}')
        for k, r in enumerate(xs):
            A(f'v_dot2_f32_bf16 v{a}, v{r}, s62, ' + ('0' if k == 0 else f'v{a}'))
            A(f'v_dot2_f32_bf16 v{b}, v{r}, v{r}, ' + ('0' if k == 0 else f'v{b}'))
        reduce_sgpr([a, b], 'v_add_f32', [62, 63])
        A(f'v_mul_f32 v{a}, s62, v{vinv}'); A(f'v_mul_f32 v{b}, s63, v{vinv}')
        A(f'v_fma_f32 v{b}, -v{a}, v{a}, v{b}')
        A(f'v_max_f32 v{b}, 0, v{b}')
        rbf2(a, a, vm + 3)
        A(f'v_add_f32 v{b}, 0x3727c5ac, v{b}')
        rbf(b, b)
        A(f'v_sqrt_f32 v{b}, v{b}')
        rbf(b, b)
        A(f'v_rcp_f32 v{vm+2}, v{b}')
    def ln_apply_pk(b4, vm):
        for h in (0, 2): pk('add', b4 + h, b4 + h, vm, bcast=True, negb=True)
        rbf4(b4, b4)
        for h in (0, 2): pk('mul', b4 + h, b4 + h, vm + 2, bcast=True)
        rbf4(b4, b4)
    def tr_addr(RS, vdst, vt0, vt1, base_sgpr=None, base_imm=0):
        T = RS // 32
        A(f'v_lshrrev_b32 v{vt0}, 2, v0'); A(f'v_mul_u32_u24 v{vt0}, {RS}, v{vt0}')
        A(f'v_and_b32 v{vt1}, 3, v0'); A(f'v_lshl_add_u32 v{vt0}, v{vt1}, 3, v{vt0}')
        if base_sgpr is not None: A(f'v_add_u32 v{vt0}, s{base_sgpr}, v{vt0}')
        if base_imm: A(f'v_add_u32 v{vt0}, {base_imm}, v{vt0}')
        if RS == 128: A(f'v_bfe_u32 v{vt1}, v0, 3, 2')
        elif RS == 64: A(f'v_bfe_u32 v{vt1}, v0, 4, 1')
        for ct in range(T):
            A(f'v_xor_b32 v{vdst+ct}, {ct}, v{vt1}')
            A(f'v_lshl_add_u32 v{vdst+ct}, v{vdst+ct}, 5, v{vt0}')
    def dma_addr(RS, rowstride, vdst, vt0, vt1):
        cpr = RS // 16; lg = cpr.bit_length() - 1
        A(f'v_lshrrev_b32 v{vt0}, {lg}, v0'); A(f'v_and_b32 v{vt1}, {cpr - 1}, v0')
        if RS == 128:
            A(f'v_bfe_u32 v{vdst}, v{vt0}, 1, 2'); A(f'v_lshlrev_b32 v{vdst}, 1, v{vdst}'); A(f'v_xor_b32 v{vt1}, v{vt1}, v{vdst}')
        elif RS == 64:
            A(f'v_bfe_u32 v{vdst}, v{vt0}, 2, 1'); A(f'v_lshlrev_b32 v{vdst}, 1, v{vdst}'); A(f'v_xor_b32 v{vt1}, v{vt1}, v{vdst}')
        A(f'v_mul_u32_u24 v{vt0}, {rowstride}, v{vt0}')
        A(f'v_lshl_add_u32 v{vdst}, v{vt1}, 4, v{vt0}')
    def dma_issue(n, sr, vaddr, s_goff, gstep, s_lds, lds_imm=0, pace=0, pol='nt'):
        sr = srd(sr) if sr in SRD else sr
        L = A.label('DS')
        A(f's_cbranch_execz {L}')
        for k in range(n):
            if s_lds is None: A(f's_mov_b32 m0, {lds_imm + 1024 * k}')
            else: A(f's_add_u32 m0, s{s_lds}, {lds_imm + 1024 * k}')
            A(f'buffer_load_dwordx4 v{vaddr}, {sr}, s{s_goff} offen {pol} lds')
            if k + 1 < n: A(f's_add_u32 s{s_goff}, s{s_goff}, {gstep}')
            if pace and k + 1 >= pace and k + 1 < n: A(f's_waitcnt vmcnt({pace-1})')
        A(f'{L}:')
    def tail_gate(mode):
        if mode == 'v': lds_wait(VISS, vZ, 7, cmp_val=6)
        elif mode == 'o': lds_wait(F_ODONE, vZ, 7)
    def merge4(acc, dst):
        for r in range(4): A(f'v_mov_b32 v{dst+r}, v{acc+r}')
        for ct in (1, 2, 3):
            m = 0x00010001 << ct
            A(f's_mov_b32 s80, {m}'); A(f's_mov_b32 s81, {m}')
            for r in range(4): A(f'v_cndmask_b32 v{dst+r}, v{dst+r}, v{acc+4*ct+r}, s[80:81]')
    def mod_addr(vdst, vcol, vt):
        A(f'v_lshrrev_b32 v{vt}, 6, v{vcol}'); A(f'v_lshlrev_b32 v{vt}, 11, v{vt}')
        A(f'v_and_b32 v{vdst}, 63, v{vcol}'); A(f'v_lshl_add_u32 v{vdst}, v{vdst}, 2, v{vt}')
    def mod_loads(vaddr, quads, nks, so='s64'):
        for ks in range(nks):
            for hf in range(2):
                q = quads[2 * ks + hf]
                A(f'buffer_load_dwordx4 v[{q}:{q+3}], v{vaddr}, {srd("WS")}, {so} offen offset:{512*ks+256*hf} sc1')
    def mod_tags(quads): return [q + 1 for q in quads] + [q + 3 for q in quads]
    def mod_sum(dst, quads, nks):
        for hf in range(2):
            for e in range(2):
                r = [quads[2 * ks + hf] + 2 * e for ks in range(nks)]
                d = dst + 2 * hf + e
                if nks == 2: A(f'v_add_f32 v{d}, v{r[0]}, v{r[1]}')
                else:
                    A(f'v_add_f32 v{r[0]}, v{r[0]}, v{r[1]}'); A(f'v_add_f32 v{r[2]}, v{r[2]}, v{r[3]}'); A(f'v_add_f32 v{d}, v{r[0]}, v{r[2]}')
    def get_nonce(vt):
        lds_wait(F_N, vZ, vt); A(f's_mov_b32 s{sN}, s62')
    def tree_add(base, n):
        step = 1
        while step < n:
            for k in range(0, n, 2 * step):
                for h2 in range(2):
                    a = base + 4 * k + 2 * h2; b = base + 4 * (k + step) + 2 * h2
                    A(f'v_pk_add_f32 v[{a}:{a+1}], v[{a}:{a+1}], v[{b}:{b+1}]')
            step *= 2
    def half_swap_add(base, tmp):
        for r in range(4): A(f'v_mov_b32 v{tmp+r}, v{base+r}')
        for r in range(4): A(f'v_permlane32_swap_b32 v{base+r}, v{tmp+r}')
        for h2 in range(2): A(f'v_pk_add_f32 v[{base+2*h2}:{base+1+2*h2}], v[{base+2*h2}:{base+1+2*h2}], v[{tmp+2*h2}:{tmp+1+2*h2}]')
    def fdiv(dst, num, den, t0, t1, t2, t3):
        A(f'v_rcp_f32 v{t0}, v{den}')
        A(f'v_mul_f32 v{t1}, v{num}, v{t0}')
        A(f'v_fma_f32 v{t2}, -v{t1}, v{den}, v{num}')
        A(f'v_fma_f32 v{t3}, v{t2}, v{t0}, v{t1}')
        A(f'v_cmp_o_f32 vcc, v{t3}, v{t3}')
        A(f'v_cndmask_b32 v{dst}, v{t1}, v{t3}, vcc')
    def ln_stats(xs, vm, vs, t0, t1):
        A(f'v_readfirstlane_b32 s62, v{xs[0]}')
        for r in xs: A(f'v_subrev_f32 v{r}, s62, v{r}')
        A(f'v_add_f32 v{vm}, v{xs[0]}, v{xs[1]}'); A(f'v_mul_f32 v{vs}, v{xs[0]}, v{xs[0]}')
        for k, r in enumerate(xs):
            if k >= 2: A(f'v_add_f32 v{vm}, v{vm}, v{r}')
            if k >= 1: A(f'v_fmac_f32 v{vs}, v{r}, v{r}')
        allreduce([vm, vs], 'v_add_f32', [t0, t1])
        inv = 0x3acccccd
        A(f'v_mul_f32 v{vm}, {inv}, v{vm}'); A(f'v_mul_f32 v{vs}, {inv}, v{vs}')
        A(f'v_fma_f32 v{vs}, -v{vm}, v{vm}, v{vs}')
        A(f'v_max_f32 v{vs}, 0, v{vs}')
        A(f'v_add_f32 v{vm}, s62, v{vm}')
        rbf(vm, vm); rbf(vs, vs)
        A(f'v_add_f32 v{vs}, 0x3727c5ac, v{vs}')
        rbf(vs, vs)
        A(f'v_sqrt_f32 v{vs}, v{vs}')
        rbf(vs, vs)
        A(f'v_rcp_f32 v{vs}, v{vs}')
    def ln_apply(b4, vm, vs):
        for r in range(4): A(f'v_sub_f32 v{b4+r}, v{b4+r}, v{vm}')
        rbf4(b4, b4)
        for r in range(4): A(f'v_mul_f32 v{b4+r}, v{b4+r}, v{vs}')
        rbf4(b4, b4)
    def unpack4(dst, src):
        A(f'v_lshlrev_b32 v{dst}, 16, v{src}'); A(f'v_and_b32 v{dst+1}, 0xffff0000, v{src}')
        A(f'v_lshlrev_b32 v{dst+2}, 16, v{src+1}'); A(f'v_and_b32 v{dst+3}, 0xffff0000, v{src+1}')
    def dry_check(ret):
        A(f's_cbranch_execz {ret}')
    def d_index():
        A(f's_lshl_b32 s75, s{sX}, 2'); A(f's_add_u32 s75, s75, s{sI}'); A('s_sub_u32 s75, s75, 26')
        A(f's_lshl_b32 s62, s{sX}, 1'); A(f's_add_u32 s62, s62, s{sI}'); A('s_add_u32 s62, s62, 2')
        A(f's_cmp_ge_u32 s{sI}, 30'); A('s_cselect_b32 s75, s62, s75')
    def branch_if_no_role(label):
        L = A.label('NR')
        A(f's_cmp_lt_u32 s{sI}, 30'); A(f's_cbranch_scc1 {L}')
        A(f's_cmp_ge_u32 s{sX}, 4'); A(f's_cbranch_scc1 {label}')
        A(f'{L}:')
    def kb_pi():
        A(f's_mul_i32 s68, s{sI}, 43'); A('s_lshr_b32 s68, s68, 8'); A('s_mul_i32 s62, s68, 6'); A(f's_sub_u32 s69, s{sI}, s62')

    A(HEADER_COMMENT.rstrip())
    A(f'; @launch grid=(256,1,1) block=(1024,1,1) lds={LDS_SIZE}')
    A('.amdgcn_target "amdgcn-amd-amdhsa--gfx950"')
    A('.text'); A(f'.globl {NAME}_kernel'); A('.p2align 8'); A(f'.type {NAME}_kernel,@function'); A(f'{NAME}_kernel:')
    for n in ('K', 'WMOD', 'WQ', 'WS', 'C', 'X', 'V', 'DBG', 'WO', 'WG', 'WU', 'WD', 'OUT'):
        A(f's_load_dwordx2 s[{SRD[n]}:{SRD[n]+1}], s[0:1], {KARG[n]}')
    if stamps:
        for k in range(1, 8): A(f's_mov_b32 s{86+2*k}, 0')
    stamp(0)
    A('v_lshrrev_b32 v1, 6, v0'); A('v_and_b32 v0, 63, v0')
    A(f'v_readfirstlane_b32 s{sW}, v1')
    for n in SRD:
        A(f's_mov_b32 s{SRD[n]+2}, {SIZE[n]}'); A(f's_mov_b32 s{SRD[n]+3}, 0x20000')
    A(f's_mov_b32 s{sLIVE}, -1'); A(f's_mov_b32 s{sN}, 0')
    A('s_cmp_ge_u32 s2, 256'); A('s_cbranch_scc1 L_END')
    A(f's_and_b32 s{sX}, s2, 7'); A(f's_lshr_b32 s{sI}, s2, 3')
    A(f's_lshr_b32 s{sH}, s{sI}, 3'); A(f's_lshl_b32 s62, s{sX}, 2'); A(f's_add_u32 s{sH}, s{sH}, s62')
    A(f's_and_b32 s{sS}, s{sI}, 7'); A(f's_and_b32 s{sR}, s{sW}, 7')
    A('v_lshrrev_b32 v1, 3, v0'); A('v_mul_u32_u24 v1, 1536, v1'); A('v_and_b32 v2, 7, v0'); A('v_lshl_add_u32 v2, v2, 4, v1')
    A('v_mov_b32 v3, 0'); A('v_mov_b32 v4, 1')
    A(f's_lshl_b32 s67, s{sH}, 12'); A(f's_lshl_b32 s62, s{sS}, 9'); A('s_add_u32 s67, s67, s62'); A('s_mul_i32 s67, s67, 384')
    A(f's_mul_i32 s65, s{sR}, 24576'); A('s_add_u32 s65, s65, s67'); A('s_add_u32 s66, s65, 12288')
    A(f's_lshl_b32 s62, s{sR}, 2'); A('v_mov_b32 v5, s62')
    A('s_waitcnt lgkmcnt(0)')
    A(f's_cmp_ge_u32 s{sW}, 8'); A('s_cbranch_scc1 L_KWAVE')
    A(f's_cmp_eq_u32 s{sR}, 2'); A('s_cbranch_scc1 L_F2')
    A(f's_cmp_ge_u32 s{sR}, 3'); A('s_cbranch_scc1 L_F3')

    kb_pi()
    A(f's_lshl_b32 s71, s{sR}, 14'); A(f's_add_u32 s71, s71, {LDS_B}')
    A(f's_cmp_ge_u32 s{sI}, 30'); A('s_cbranch_scc1 L_F01_NODMA')
    dma_addr(128, 12288, 6, 7, 8)
    A(f's_mul_i32 s70, s68, {128 * 12288}'); A(f's_mul_i32 s62, s{sX}, 1536'); A('s_add_u32 s70, s70, s62')
    A('s_lshl_b32 s62, s69, 8'); A('s_add_u32 s70, s70, s62'); A(f's_lshl_b32 s62, s{sR}, 7'); A('s_add_u32 s70, s70, s62')
    dma_issue(16, 'WQ', 6, 70, 8 * 12288, 71)
    A('L_F01_NODMA:')
    A('v_lshlrev_b32 v7, 2, v0')
    for j in range(5): A(f'buffer_load_dword v{10+j}, v7, {srd("X")}, 0 offen offset:{256*j}')
    A('v_and_b32 v8, 31, v0'); A('v_lshlrev_b32 v8, 3, v8'); A('s_lshl_b32 s62, s68, 8')
    A(f'buffer_load_dwordx2 v[16:17], v8, {srd("X")}, s62 offen')
    A('s_barrier')
    A('L_F01_DRY:')
    A('s_waitcnt vmcnt(0)')
    A(f's_cmp_ge_u32 s{sI}, 30'); A('s_cbranch_scc1 L_F01_SKIPB')
    tr_addr(128, 40, 44, 45, base_sgpr=71)
    for u in range(4):
        for ct in range(4):
            r = 64 + (u * 4 + ct) * 4
            for hh in range(2):
                A(f'ds_read_b64_tr_b16 v[{r+2*hh}:{r+2*hh+1}], v{40+ct} offset:{(32*u+16*hh)*128}')
    A(f'v_lshrrev_b32 v46, 4, v0'); A('v_lshlrev_b32 v46, 3, v46')
    A('s_waitcnt lgkmcnt(0)')
    lds_inc(CNT_FREE)
    A(f's_cmp_eq_u32 s{sR}, 1'); A('s_cbranch_scc1 L_F1_WAITH')
    A('v_mov_b32 v29, 0x3acccccd')
    ln_stats_pk([10, 11, 12, 13, 14], 30, 29)
    unpack4(34, 16)
    ln_apply_pk(34, 30)
    A('v_and_b32 v8, 31, v0'); A('v_lshlrev_b32 v8, 2, v8'); A('v_lshrrev_b32 v9, 5, v0'); A('v_mul_u32_u24 v9, 640, v9'); A('v_add_u32 v8, v8, v9')
    A('s_lshl_b32 s62, s68, 7'); A('v_add_u32 v8, s62, v8')
    mod_addr(8, 8, 9)
    get_nonce(9)
    stamp(1)
    A(f's_mov_b32 s64, {R_MOD}')
    Q = [10, 14, 18, 22, 48, 52, 56, 60]
    poll(lambda: mod_loads(8, Q, 4), [], 9, tags=mod_tags(Q))
    stamp(2)
    mod_sum(26, Q, 4)
    rbf4(48, 26)
    for r in range(4): A(f'v_mov_b32 v{52+r}, v{48+r}')
    for r in range(4): A(f'v_permlane32_swap_b32 v{48+r}, v{52+r}')
    for r in range(4): A(f'v_add_f32 v{52+r}, 1.0, v{52+r}')
    rbf4(52, 52)
    for r in range(4): A(f'v_mul_f32 v{52+r}, v{34+r}, v{52+r}')
    rbf4(52, 52)
    for r in range(4): A(f'v_add_f32 v{52+r}, v{52+r}, v{48+r}')
    A('v_cvt_pk_bf16_f32 v56, v52, v53'); A('v_cvt_pk_bf16_f32 v57, v54, v55')
    A('v_and_b32 v8, 31, v0'); A('v_lshlrev_b32 v8, 3, v8')
    A(f'ds_write_b64 v8, v[56:57] offset:{HV}')
    lds_set(F_H)
    A('s_branch L_F01_C')
    A('L_F1_WAITH:')
    lds_wait(F_H, vZ, 18)
    A('L_F01_C:')
    for u in range(4):
        A(f'ds_read2_b64 v[{48+4*u}:{51+4*u}], v46 offset0:{HV//8 + 8*u} offset1:{HV//8 + 8*u + 4}')
    for r in range(16): A(f'v_mov_b32 v{20+r}, 0')
    A('v_and_b32 v8, 15, v0'); A('v_lshlrev_b32 v8, 6, v8'); A('v_lshrrev_b32 v9, 4, v0'); A('v_lshl_add_u32 v8, v9, 4, v8')
    A('s_mul_i32 s70, s68, 24576'); A(f's_mul_i32 s62, s{sX}, 3072'); A('s_add_u32 s70, s70, s62'); A('s_lshl_b32 s62, s69, 9'); A('s_add_u32 s70, s70, s62')
    A(f's_lshl_b32 s62, s{sR}, 8'); A('s_add_u32 s70, s70, s62')
    A(f's_add_u32 s72, s70, {R_Q[0]}'); A(f's_add_u32 s73, s70, {R_Q[1]}')
    A('s_waitcnt lgkmcnt(0)')
    for u in range(4):
        for ct in range(4):
            r = 64 + (u * 4 + ct) * 4
            A(f'v_mfma_f32_16x16x32_bf16 v[{20+4*ct}:{23+4*ct}], v[{r}:{r+3}], v[{48+4*u}:{51+4*u}], v[{20+4*ct}:{23+4*ct}]')
    lds_wait(F_CLR, vZ, 9)
    merge4(20, 36)
    for r in range(4): A(f'v_or_b32 v{36+r}, 1, v{36+r}')
    set_exec(0x000f000f000f000f)
    A(f'buffer_store_dwordx4 v[36:39], v8, {srd("WS")}, s72 offen')
    A(f'buffer_store_dwordx4 v[36:39], v8, {srd("WS")}, s73 offen sc1')
    full_exec()
    stamp(3)
    A('s_branch L_F01_D')
    A('L_F01_SKIPB:')
    lds_inc(CNT_FREE)
    get_nonce(9)
    lds_wait(F_CLR, vZ, 9)
    A('L_F01_D:')
    A(f's_cmp_eq_u32 s{sR}, 1'); A('s_cbranch_scc1 L_F1_T')
    A('v_and_b32 v8, 31, v0'); A('v_lshlrev_b32 v8, 2, v8'); A(f's_lshl_b32 s64, s{sX}, 7'); A(f's_add_u32 s64, s64, {R_CLR}')
    poll(lambda: A(f'buffer_load_dword v10, v8, {srd("WS")}, s64 offen sc1'), [], 9, tags=[10])
    A('v_lshlrev_b32 v40, 4, v0'); A(f's_mul_i32 s62, s{sH}, 768'); A('v_add_u32 v40, s62, v40')
    for ks in range(1, 5): A(f'v_add_u32 v{40+ks}, {24576*ks}, v40')
    A('v_lshlrev_b32 v8, 3, v0')
    set_exec((1 << 48) - 1)
    def ld():
        for ks in range(5): A(f'buffer_load_dwordx4 v[{48+4*ks}:{51+4*ks}], v{40+ks}, {srd("WS")}, s64 offen sc1')
    poll(ld, list(range(48, 68)), 18, regionAB=R_Q)
    tree_add(48, 4)
    for h2 in range(2): A(f'v_pk_add_f32 v[{48+2*h2}:{49+2*h2}], v[{48+2*h2}:{49+2*h2}], v[{64+2*h2}:{65+2*h2}]')
    A('v_cvt_pk_bf16_f32 v56, v48, v49'); A('v_cvt_pk_bf16_f32 v57, v50, v51')
    A(f'ds_write_b64 v8, v[56:57] offset:{QV}')
    full_exec()
    lds_set(F_Q)
    stamp(4)
    A(f's_lshl_b32 s62, s{sH}, 9'); A('v_add_u32 v14, s62, v8')
    poll(lambda: A(f'buffer_load_dwordx2 v[12:13], v14, {srd("WS")}, s64 offen sc1'), [12, 13], 15, regionAB=R_ST, sleep=2)
    A('v_and_b32 v12, 0xffff0000, v12')
    A('v_mov_b32 v16, v12')
    allreduce([16], 'v_max_f32', [15])
    A('v_sub_f32 v12, v12, v16'); A(f'v_mul_f32 v12, {LOG2E}, v12'); A('v_exp_f32 v12, v12'); A('v_mul_f32 v17, v12, v13')
    allreduce([17], 'v_add_f32', [15])
    A(f'ds_write_b64 v3, v[16:17] offset:{ML}')
    lds_set(F_ML)
    stamp(5)
    A('s_branch L_F01_PV')
    A('L_F1_T:')
    A(f's_cmp_lt_u32 s{sI}, 20'); A('s_cbranch_scc1 L_F01_PV')
    branch_if_no_role('L_F01_PV')
    get_nonce(9)
    A('v_lshlrev_b32 v8, 4, v0')
    A(f's_mov_b32 s64, {R_MF}'); A(f's_mov_b32 s72, {R_CLR}'); A(f's_mov_b32 s73, {R_MF + 4096}')
    A(f's_cmp_ge_u32 s{sI}, 26'); A('s_cbranch_scc1 L_F1_TD')
    def ld():
        A(f'buffer_load_dwordx4 v[12:15], v8, {srd("WS")}, s72 offen sc1')
        for k in range(8):
            A(f'buffer_load_dwordx4 v[{16+4*k}:{19+4*k}], v8, {srd("WS")}, {"s64" if k < 4 else "s73"} offen offset:{1024*(k%4)} sc1')
    poll(ld, [], 9, tags=[12, 13, 14, 15] + [17 + 4 * k for k in range(8)] + [19 + 4 * k for k in range(8)], sleep=8)
    for k in range(8):
        q = 16 + 4 * k
        A(f'v_and_b32 v{q+3}, 0xffff0000, v{q+2}'); A(f'v_lshlrev_b32 v{q+2}, 16, v{q+2}')
        A(f'v_and_b32 v{q+1}, 0xffff0000, v{q}'); A(f'v_lshlrev_b32 v{q}, 16, v{q}')
        if k >= 5:
            for r in range(4): A(f'v_add_f32 v{q+r}, 1.0, v{q+r}')
            rbf4(q, q)
        A(f'ds_write_b128 v8, v[{q}:{q+3}] offset:{MODV + 1024*k}')
    lds_set(F_MV)
    stamp(4)
    A('s_branch L_F01_PV')
    A('L_F1_TD:')
    d_index()
    A('v_and_b32 v10, 3, v0'); A('v_lshlrev_b32 v10, 4, v10'); A('s_lshl_b32 s62, s75, 6'); A(f's_add_u32 s64, s62, {R_MF + 7680}')
    def ld():
        A(f'buffer_load_dwordx4 v[12:15], v8, {srd("WS")}, s72 offen sc1')
        A(f'buffer_load_dwordx4 v[16:19], v10, {srd("WS")}, s64 offen sc1')
    poll(ld, [], 9, tags=[12, 13, 14, 15, 17, 19], sleep=8)
    A('v_and_b32 v19, 0xffff0000, v18'); A('v_lshlrev_b32 v18, 16, v18'); A('v_and_b32 v17, 0xffff0000, v16'); A('v_lshlrev_b32 v16, 16, v16')
    A(f'ds_write_b128 v10, v[16:19] offset:{MODV}')
    lds_set(F_MV)
    stamp(4)
    A('L_F01_PV:')
    dry_check('L_DRYRET')
    lds_wait(CNT_VD, vZ, 9, cmp_val=6)
    A(f's_mul_i32 s62, s{sR}, 24576'); A(f's_add_u32 s62, s62, {LDS_A}'); A('v_lshl_add_u32 v8, v0, 4, s62')
    for n in range(24): A(f'ds_read_b128 v[{32+4*n}:{35+4*n}], v8 offset:{1024*n}')
    A('s_waitcnt lgkmcnt(0)')
    A('s_branch L_PV')

    A('L_F2:')
    A('s_cmp_ge_u32 s2, 240'); A('s_cbranch_scc1 L_F2_NONE')
    A('s_lshr_b32 s68, s2, 2'); A('s_and_b32 s69, s2, 3')
    A('v_lshlrev_b32 v7, 3, v0'); A('s_mul_i32 s62, s69, 320')
    A(f'buffer_load_dwordx2 v[10:11], v7, {srd("C")}, s62 offen')
    dma_addr(128, 7680, 6, 8, 9)
    A(f's_mul_i32 s70, s69, {160 * 7680}'); A('s_lshl_b32 s62, s68, 7'); A('s_add_u32 s70, s70, s62')
    dma_issue(20, 'WMOD', 6, 70, 8 * 7680, None, LDS_A)
    A('s_barrier')
    A('s_waitcnt vmcnt(20)')
    unpack4(12, 10)
    A(f's_mov_b32 s62, {LOG2E | 0x80000000}')
    for r in range(4): A(f'v_mul_f32 v{16+r}, s62, v{12+r}')
    for r in range(4): A(f'v_exp_f32 v{16+r}, v{16+r}')
    for r in range(4): A(f'v_add_f32 v{16+r}, 1.0, v{16+r}')
    for r in range(4): fdiv(12 + r, 12 + r, 16 + r, 20, 21, 22, 23)
    A('v_cvt_pk_bf16_f32 v16, v12, v13'); A('v_cvt_pk_bf16_f32 v17, v14, v15')
    set_exec((1 << 40) - 1)
    A(f'ds_write_b64 v7, v[16:17] offset:{SC}')
    full_exec()
    tr_addr(128, 6, 10, 11, base_imm=LDS_A)
    A(f'v_lshrrev_b32 v10, 4, v0'); A('v_lshlrev_b32 v10, 3, v10')
    for u in range(5):
        A(f'ds_read2_b64 v[{28+4*u}:{31+4*u}], v10 offset0:{SC//8 + 8*u} offset1:{SC//8 + 8*u + 4}')
    A('v_and_b32 v11, 15, v0'); A('v_lshlrev_b32 v11, 6, v11'); A('v_lshrrev_b32 v12, 4, v0'); A('v_lshl_add_u32 v11, v12, 4, v11')
    if dry:
        A(f's_mov_b32 s{sLIVE}, 0'); A('s_mov_b64 exec, 0')
    A('L_F2_B:')
    A(f's_cbranch_execz L_F2_B1'); A('s_waitcnt vmcnt(0)'); A('L_F2_B1:')
    stamp(1)
    for u in range(5):
        for ct in range(4):
            r = 48 + (u * 4 + ct) * 4
            for hh in range(2):
                A(f'ds_read_b64_tr_b16 v[{r+2*hh}:{r+2*hh+1}], v{6+ct} offset:{(32*u+16*hh)*128}')
    for r in range(16): A(f'v_mov_b32 v{12+r}, 0')
    A('s_waitcnt lgkmcnt(0)')
    lds_inc(CNT_FREE)
    for u in range(5):
        for ct in range(4):
            r = 48 + (u * 4 + ct) * 4
            A(f'v_mfma_f32_16x16x32_bf16 v[{12+4*ct}:{15+4*ct}], v[{r}:{r+3}], v[{28+4*u}:{31+4*u}], v[{12+4*ct}:{15+4*ct}]')
    A(f's_lshl_b32 s70, s2, 9'); A(f's_add_u32 s70, s70, {R_MOD}')
    get_nonce(49)
    merge4(12, 52)
    stamp(2)
    A('v_mov_b32 v56, v52'); A('v_mov_b32 v58, v53'); A('v_mov_b32 v60, v54'); A('v_mov_b32 v62, v55')
    for r in (57, 59, 61, 63): A(f'v_mov_b32 v{r}, s{sN}')
    set_exec(0x000f000f000f000f)
    A(f'buffer_store_dwordx4 v[56:59], v11, {srd("WS")}, s70 offen sc1')
    A(f'buffer_store_dwordx4 v[60:63], v11, {srd("WS")}, s70 offen offset:256 sc1')
    full_exec()
    stamp(3)
    if dry:
        A('s_cbranch_execnz L_VSTREAM')
        A(f's_mov_b32 s{sLIVE}, -1'); A('s_mov_b64 exec, -1'); A('s_branch L_F2_B')
    A('s_branch L_VSTREAM')
    A('L_F2_NONE:')
    A('s_barrier')
    lds_inc(CNT_FREE)
    A('s_branch L_VSTREAM')

    A('L_F3:')
    A(f's_cmp_ge_u32 s{sR}, 4'); A('s_cbranch_scc1 L_F4')
    A('s_cmp_lg_u32 s2, 0'); A('s_cbranch_scc1 L_F3_B')
    A('s_memrealtime s[62:63]'); A('s_waitcnt lgkmcnt(0)'); A('s_or_b32 s62, s62, 1'); A('v_mov_b32 v8, s62')
    set_exec(1)
    A(f'buffer_store_dword v8, v3, {srd("DBG")}, 0 offen sc1')
    full_exec()
    A('L_F3_B:')
    A('v_lshlrev_b32 v7, 2, v0'); A('ds_write_b32 v7, v3')
    for k in range(3): A(f'ds_write_b32 v7, v3 offset:{OACC + 256*k}')
    A('s_waitcnt lgkmcnt(0)')
    A('s_barrier')
    set_exec(1)
    poll(lambda: A(f'buffer_load_dword v9, v3, {srd("DBG")}, 0 offen sc1'), [9], 10, sleep=NSLEEP)
    A(f'ds_write_b32 v3, v9 offset:{F_N}')
    full_exec()
    stamp(1)
    A('s_branch L_VSTREAM')
    A('L_F4:')
    A(f's_cmp_lg_u32 s{sR}, 4'); A('s_cbranch_scc1 L_F5')
    for r in range(4): A(f'v_mov_b32 v{8+r}, 0')
    kb_pi()
    A('s_mul_i32 s70, s68, 24576'); A(f's_mul_i32 s62, s{sX}, 3072'); A('s_add_u32 s70, s70, s62'); A('s_lshl_b32 s62, s69, 9'); A('s_add_u32 s70, s70, s62')
    A(f's_add_u32 s70, s70, {R_Q[0]}')
    A('v_and_b32 v12, 31, v0'); A('v_lshlrev_b32 v12, 4, v12'); A('v_lshrrev_b32 v13, 5, v0'); A(f'v_mul_u32_u24 v13, {R_Q[1]-R_Q[0]}, v13'); A('v_add_u32 v12, v12, v13')
    A(f's_cmp_ge_u32 s{sI}, 30'); A('s_cbranch_scc1 L_F4_B')
    A(f'buffer_store_dwordx4 v[8:11], v12, {srd("WS")}, s70 offen sc1')
    A('L_F4_B:')
    A(f's_lshl_b32 s62, s{sH}, 3'); A(f's_add_u32 s62, s62, s{sS}'); A('s_mul_i32 s71, s62, 768'); A('s_lshl_b32 s72, s62, 6')
    A('v_lshlrev_b32 v12, 4, v0')
    A(f's_add_u32 s73, s71, {R_O[0]}'); A('v_add_u32 v13, s73, v12')
    A(f's_add_u32 s73, s72, {R_ST[0] - 768}'); A('v_add_u32 v14, s73, v12')
    A('v_cmp_lt_u32 vcc, 47, v0'); A('v_cndmask_b32 v13, v13, v14, vcc')
    A(f's_add_u32 s73, s71, {R_O[1]}'); A('v_add_u32 v15, s73, v12')
    A(f's_add_u32 s73, s72, {R_ST[1] - 768}'); A('v_add_u32 v14, s73, v12')
    A('v_cndmask_b32 v15, v15, v14, vcc')
    A(f's_cmp_ge_u32 s{sI}, 20'); A('s_cbranch_scc1 L_F4_C')
    A(f's_and_b32 s62, s{sI}, 1'); A(f's_lshl_b32 s63, s{sX}, 1'); A('s_add_u32 s62, s62, s63'); A('s_mul_i32 s74, s62, 2560')
    A(f's_lshr_b32 s62, s{sI}, 1'); A('s_lshl_b32 s62, s62, 8'); A('s_add_u32 s74, s74, s62'); A(f's_add_u32 s74, s74, {R_Y}')
    set_exec(0xffff)
    A(f'buffer_store_dwordx4 v[8:11], v12, {srd("WS")}, s74 offen sc1')
    full_exec()
    A('s_branch L_F4_D')
    A('L_F4_C:')
    A(f's_cmp_ge_u32 s{sI}, 26'); A('s_cbranch_scc1 L_F4_D')
    A(f's_mul_i32 s75, s{sX}, 6'); A(f's_add_u32 s75, s75, s{sI}'); A('s_sub_u32 s75, s75, 20')
    A('s_and_b32 s62, s75, 1'); A('s_mul_i32 s74, s62, 3072'); A('s_lshr_b32 s62, s75, 1'); A('s_lshl_b32 s62, s62, 7'); A('s_add_u32 s74, s74, s62'); A(f's_add_u32 s74, s74, {R_HM}')
    set_exec(0xff)
    A(f'buffer_store_dwordx4 v[8:11], v12, {srd("WS")}, s74 offen sc1')
    full_exec()
    A('s_cmp_ge_u32 s75, 8'); A('s_cbranch_scc1 L_F4_D')
    A('s_mul_i32 s63, s75, 160'); A(f's_add_u32 s63, s63, {R_X2}')
    set_exec(0x3ff)
    A(f'buffer_store_dwordx4 v[8:11], v12, {srd("WS")}, s63 offen sc1')
    full_exec()
    A('L_F4_D:')
    set_exec((1 << 52) - 1)
    A(f'buffer_store_dwordx4 v[8:11], v13, {srd("WS")}, 0 offen sc1')
    set_exec((1 << 52) - 1)
    A(f'buffer_store_dwordx4 v[8:11], v15, {srd("WS")}, 0 offen sc1')
    full_exec()
    A('s_barrier')
    A('s_waitcnt vmcnt(0)')
    lds_set(F_CLR)
    stamp(1)
    get_nonce(12)
    A(f'v_mov_b32 v12, s{sN}')
    A(f's_lshl_b32 s70, s{sX}, 5'); A(f's_add_u32 s70, s70, s{sI}'); A('s_lshl_b32 s70, s70, 2'); A(f's_add_u32 s70, s70, {R_CLR}')
    set_exec(1)
    A(f'buffer_store_dword v12, v3, {srd("WS")}, s70 offen sc1')
    full_exec()
    stamp(2)
    A('s_branch L_VSTREAM')
    A('L_F5:')
    A('s_barrier')
    A(f's_cmp_lg_u32 s{sR}, 5'); A('s_cbranch_scc1 L_F6')
    A('s_cmp_ge_u32 s2, 40'); A('s_cbranch_scc1 L_F6')
    A('v_lshrrev_b32 v8, 4, v0'); A('v_lshlrev_b32 v8, 9, v8'); A('v_and_b32 v9, 15, v0'); A('v_lshlrev_b32 v9, 4, v9'); A('v_add_u32 v8, v8, v9')
    A('s_lshl_b32 s64, s2, 11'); A(f's_add_u32 s64, s64, {R_MOD + 20 * 2048}')
    A('s_lshl_b32 s72, s2, 8'); A(f's_add_u32 s72, s72, {R_MF}')
    get_nonce(10)
    def ld():
        A(f'buffer_load_dwordx4 v[12:15], v8, {srd("WS")}, s64 offen sc1')
        A(f'buffer_load_dwordx4 v[16:19], v8, {srd("WS")}, s64 offen offset:256 sc1')
    poll(ld, [], 10, tags=[13, 15, 17, 19], sleep=8)
    vals = [12, 14, 16, 18]
    for sw in ('v_permlane16_swap_b32', 'v_permlane32_swap_b32'):
        for r in vals: A(f'v_mov_b32 v{r+1}, v{r}')
        for r in vals: A(f'{sw} v{r}, v{r+1}')
        for r in vals: A(f'v_add_f32 v{r}, v{r}, v{r+1}')
    A('v_cvt_pk_bf16_f32 v20, v12, v14'); A('v_cvt_pk_bf16_f32 v22, v16, v18'); A(f'v_mov_b32 v21, s{sN}'); A(f'v_mov_b32 v23, s{sN}')
    set_exec(0xffff)
    A(f'buffer_store_dwordx4 v[20:23], v9, {srd("WS")}, s72 offen sc1')
    full_exec()
    stamp(2)
    A('L_F6:')
    if dry:
        for r in list(range(6, 48)): A(f'v_mov_b32 v{r}, 0')
        A(f's_mov_b32 s{sLIVE}, 0'); A('s_mov_b64 exec, 0')
        A(f's_cmp_eq_u32 s{sR}, 5'); A('s_cbranch_scc1 L_F5_K')
        A(f's_cmp_eq_u32 s{sR}, 6'); A('s_cbranch_scc1 L_F6_F')
        A('s_branch L_PV')
        A('L_F5_K:'); A(f's_mov_b32 s{sR}, 0'); A('s_branch L_K_DRY')
        A('L_F6_F:'); A(f's_mov_b32 s{sR}, 0'); kb_pi(); A(f's_mov_b32 s71, {LDS_B}'); A('s_branch L_F01_DRY')
        A('L_DRYRET:')
        A(f's_mov_b32 s{sLIVE}, -1'); A('s_mov_b64 exec, -1'); A(f's_and_b32 s{sR}, s{sW}, 7')
        stamp(1)
    else:
        A('L_DRYRET:')

    VD = 32
    A('L_VSTREAM:')
    A('s_waitcnt vmcnt(0)')
    A(f's_sub_u32 s68, s{sR}, 2'); A('s_cmp_ge_u32 s68, 3'); A('s_cselect_b32 s69, 1, 0')
    A('s_mul_i32 s62, s69, 3'); A('s_sub_u32 s68, s68, s62')
    A('s_mul_i32 s70, s69, 24576'); A(f's_add_u32 s71, s70, {LDS_A}'); A('s_add_u32 s70, s70, s67')
    A('s_lshl_b32 s62, s68, 13'); A('s_add_u32 s71, s71, s62')
    lds_wait(CNT_FREE, vZ, 6, cmp_val=3)
    lds_wait(KISS, vPF, 6)
    stamp(5)
    cnt = 0
    for part in range(3):
        if part < 2:
            A(f's_cmp_lg_u32 s68, {part}'); A(f's_cbranch_scc1 L_VD_{part+1}')
        for k in range(8):
            n = 8 * part + k
            off = (n // 12) * 12288 + ((n % 12) // 3) * 384 + (n % 3) * 128
            A(f's_add_u32 m0, s71, {1024*k}'); A(f's_add_u32 s62, s70, {off}')
            A(f'buffer_load_dwordx4 v2, {srd("V")}, s62 offen nt lds')
            if k + 1 >= DV: A(f's_waitcnt vmcnt({DV-1})')
        if part < 2:
            A('s_branch L_VD_E'); A(f'L_VD_{part+1}:')
    A('L_VD_E:')
    for n in range(24):
        T, tt, c = n // 12, (n % 12) // 3, n % 3
        A(f'buffer_load_dwordx4 v[{VD+4*n}:{VD+4*n+3}], v2, {srd("V")}, s{65+T} offen offset:{tt*384+c*128} nt')
        if n + 1 == VISS_AT: lds_inc(VISS)
        if n + 1 < 24: A(f's_waitcnt vmcnt({DV-1})')
        if n + 1 == DV: lds_inc(CNT_VD)
    A('L_PV:')
    A('v_and_b32 v14, 7, v0')
    A('v_and_b32 v15, 1, v14'); A('v_lshlrev_b32 v15, 4, v15'); A('v_mov_b32 v10, 0xffff'); A('v_lshlrev_b32 v15, v15, v10')
    A('v_lshrrev_b32 v14, 1, v14')
    for d in range(4):
        A(f'v_cmp_eq_u32 vcc, {d}, v14'); A(f'v_cndmask_b32 v{6+d}, 0, v15, vcc')
    for r in range(12): A(f'v_mov_b32 v{16+r}, 0')
    A('v_lshrrev_b32 v14, 3, v0'); A('v_lshlrev_b32 v14, 4, v14'); A(f's_lshl_b32 s62, s{sR}, 8'); A('v_add_u32 v14, s62, v14')
    A('v_bfe_u32 v1, v0, 4, 1'); A('v_lshlrev_b32 v1, 7, v1'); A('v_and_b32 v15, 7, v0'); A('v_lshl_add_u32 v1, v15, 2, v1')
    A('v_lshrrev_b32 v15, 5, v0'); A('v_lshl_add_u32 v1, v15, 5, v1'); A(f's_mul_i32 s62, s{sR}, 768'); A('v_add_u32 v1, s62, v1')
    A(f's_lshl_b32 s62, s{sH}, 3'); A(f's_add_u32 s62, s62, s{sS}'); A('s_mul_i32 s62, s62, 768')
    A(f's_add_u32 s72, s62, {R_O[0]}'); A(f's_add_u32 s73, s62, {R_O[1]}')
    lds_wait(PRDY, vPF, 15)
    stamp(6)
    for T in range(2):
        A(f'ds_read_b128 v[10:13], v14 offset:{PD + 128*T}')
        A('s_waitcnt lgkmcnt(0)')
        for tt in range(4):
            t = 4 * T + tt
            for d in range(4): A(f'v_and_b32 v{28+d}, v{10+tt}, v{6+d}')
            for c in range(3):
                n = 3 * t + c
                A(f's_waitcnt vmcnt({23-n})')
                A(f'v_mfma_f32_16x16x32_bf16 v[{16+4*c}:{19+4*c}], v[{VD+4*n}:{VD+4*n+3}], v[28:31], v[{16+4*c}:{19+4*c}]')
    A('v_lshlrev_b32 v14, 4, v0')
    for k in range(6): A(f'v_permlane32_swap_b32 v{16+2*k}, v{17+2*k}')
    for k in range(6): A(f'v_add_f32_dpp v{16+2*k}, v{17+2*k}, v{16+2*k} row_ror:8 row_mask:0xf bank_mask:0xf')
    set_exec(0x00ff00ff00ff00ff)
    for k in range(6): A(f'ds_write_b32 v1, v{16+2*k} offset:{RED + 256*(k//2) + 64*(k%2)}')
    set_exec(1)
    A(f'ds_add_rtn_u32 v15, v3, v4 offset:{CNT_O}')
    set_exec((1 << 48) - 1)
    for k in range(8): A(f'ds_read_b128 v[{32+4*k}:{35+4*k}], v14 offset:{RED + 768*k}')
    A('s_waitcnt lgkmcnt(8)')
    A('v_readfirstlane_b32 s62, v15')
    A('s_cbranch_execz L_VRED')
    A('s_cmp_lg_u32 s62, 7'); A('s_cbranch_scc1 L_VEND')
    A('L_VRED:')
    A('s_waitcnt lgkmcnt(0)')
    tree_add(32, 8)
    for r in range(4): A(f'v_or_b32 v{32+r}, 1, v{32+r}')
    A(f'buffer_store_dwordx4 v[32:35], v14, {srd("WS")}, s72 offen')
    A(f'buffer_store_dwordx4 v[32:35], v14, {srd("WS")}, s73 offen sc1')
    lds_set(F_ODONE)
    dry_check('L_DRYRET')
    A('L_VEND:')
    stamp(7)
    flush_stamps()
    A('s_endpgm')

    A('L_KWAVE:')
    KD = 32
    for n in range(24):
        T, tt, c = n // 12, (n % 12) // 3, n % 3
        A(f'buffer_load_dwordx4 v[{KD+4*n}:{KD+4*n+3}], v2, {srd("K")}, s{65+T} offen offset:{tt*384+c*128} nt')
        if n + 1 == DK: A('s_barrier')
        if n + 1 >= DK and n + 1 < 24: A(f's_waitcnt vmcnt({DK-1})')
    lds_set(KISS, vPF)
    stamp(1)
    A('L_K_DRY:')
    A('v_and_b32 v6, 7, v0'); A('v_lshlrev_b32 v6, 4, v6')
    A(f's_lshl_b32 s62, s{sH}, 6'); A(f's_lshl_b32 s63, s{sS}, 3'); A('s_add_u32 s62, s62, s63'); A(f's_add_u32 s62, s62, s{sR}'); A('s_lshl_b32 s62, s62, 3')
    A(f's_add_u32 s72, s62, {R_ST[0]}'); A(f's_add_u32 s73, s62, {R_ST[1]}')
    def setmask(m, s): A(f's_mov_b32 s{s}, {m}'); A(f's_mov_b32 s{s+1}, {m}')
    setmask(0xf0f0f0f0, 80); setmask(0xaaaaaaaa, 82); setmask(0xcccccccc, 84)
    lds_wait(F_Q, vZ, 7)
    stamp(2)
    for c in range(3): A(f'ds_read_b128 v[{8+4*c}:{11+4*c}], v6 offset:{QV + 128*c}')
    A('s_waitcnt lgkmcnt(0)')
    for tp in range(0, 8, 2):
        A(f's_waitcnt vmcnt({21 - 3*(tp+1)})')
        for c in range(3):
            for d in range(4):
                for t in (tp, tp + 1):
                    kr = KD + 4 * (3 * t + c) + d
                    src2 = '0' if (c == 0 and d == 0) else f'v{20+t}'
                    A(f'v_dot2_f32_bf16 v{20+t}, v{kr}, v{8+4*c+d}, {src2}')
    for j in range(4):
        A(f'v_cndmask_b32 v{8+j}, v{20+j}, v{24+j}, s[80:81]')
        A(f'v_cndmask_b32 v{12+j}, v{24+j}, v{20+j}, s[80:81]')
    for j in range(4): A(f'v_add_f32_dpp v{8+j}, v{12+j}, v{8+j} row_half_mirror row_mask:0xf bank_mask:0xf')
    for jj in (0, 1):
        A(f'v_cndmask_b32 v{12+jj}, v{8+2*jj}, v{9+2*jj}, s[82:83]')
        A(f'v_cndmask_b32 v{14+jj}, v{9+2*jj}, v{8+2*jj}, s[82:83]')
    for jj in (0, 1): A(f'v_add_f32_dpp v{12+jj}, v{14+jj}, v{12+jj} quad_perm:[1,0,3,2] row_mask:0xf bank_mask:0xf')
    A('v_cndmask_b32 v8, v12, v13, s[84:85]'); A('v_cndmask_b32 v9, v13, v12, s[84:85]')
    A('v_add_f32_dpp v8, v9, v8 quad_perm:[2,3,0,1] row_mask:0xf bank_mask:0xf')
    rbf(8, 8); A(f'v_mul_f32 v8, {SCALE}, v8'); rbf(8, 8)
    A('v_mov_b32 v9, v8')
    allreduce([9], 'v_max_f32', [10])
    A('v_sub_f32 v10, v8, v9'); A(f'v_mul_f32 v10, {LOG2E}, v10'); A('v_exp_f32 v10, v10')
    allreduce([10], 'v_add_f32', [11])
    A('v_or_b32 v12, 1, v9'); A('v_mov_b32 v13, v10')
    set_exec(1)
    A(f'buffer_store_dwordx2 v[12:13], v3, {srd("WS")}, s72 offen')
    A(f'buffer_store_dwordx2 v[12:13], v3, {srd("WS")}, s73 offen sc1')
    full_exec()
    stamp(3)
    A('v_mov_b32 v127, v8')
    A(f's_cmp_lt_u32 s{sR}, 2'); A('s_cselect_b32 s62, 8, 0'); A('v_add_u32 v126, s62, v5')
    def emit_p():
        lds_wait(F_ML, vZ, 120)
        A(f'ds_read_b64 v[120:121], v3 offset:{ML}')
        A('v_bfe_u32 v122, v0, 2, 1'); A('v_lshlrev_b32 v122, 5, v122'); A('v_lshrrev_b32 v123, 3, v0'); A('v_lshl_add_u32 v122, v123, 2, v122')
        A('v_and_b32 v123, 3, v0'); A('v_add_u32 v122, v122, v123'); A('v_lshlrev_b32 v122, 2, v122'); A(f's_lshl_b32 s62, s{sR}, 8'); A('v_add_u32 v122, s62, v122')
        A('s_waitcnt lgkmcnt(0)')
        A('v_sub_f32 v127, v127, v120'); A(f'v_mul_f32 v127, {LOG2E}, v127'); A('v_exp_f32 v127, v127')
        fdiv(127, 127, 121, 120, 123, 124, 125)
        A('v_cvt_pk_bf16_f32 v127, v127, v127')
        A(f'ds_write_b32 v122, v127 offset:{PD}')
        lds_set(PRDY, vPF)
        stamp(4)
    A(f's_cmp_lt_u32 s{sI}, 20'); A('s_cbranch_scc1 L_TW')
    A(f's_cmp_lt_u32 s{sI}, 26'); A('s_cbranch_scc1 L_TG')
    branch_if_no_role('L_TNONE')
    A('s_branch L_TD')
    A('L_TNONE:')
    emit_p()
    A('s_branch L_KEND')

    FR = 64
    def wg_common(nk, rows_per_kg):
        A(f's_and_b32 s76, s{sR}, 3'); A(f's_lshr_b32 s77, s{sR}, 2')
        A(f's_mul_i32 s78, s76, {rows_per_kg * 128}'); A(f's_add_u32 s78, s78, {LDS_T}')
        A('v_lshrrev_b32 v12, 2, v0'); A('v_lshlrev_b32 v12, 7, v12'); A('v_and_b32 v13, 3, v0'); A('v_lshl_add_u32 v12, v13, 3, v12'); A('v_add_u32 v12, s78, v12')
        A('v_bfe_u32 v13, v0, 3, 2'); A('s_lshl_b32 s62, s77, 1')
        A('v_xor_b32 v10, s62, v13'); A('v_xor_b32 v11, 1, v10')
        A('v_lshl_add_u32 v10, v10, 5, v12'); A('v_lshl_add_u32 v11, v11, 5, v12')
        A(f's_lshl_b32 s74, s{sR}, 9'); A(f's_add_u32 s74, s74, {STG}')
        A('v_lshrrev_b32 v19, 4, v0'); A('v_lshl_add_u32 v19, v19, 3, s74')
        A('v_lshrrev_b32 v18, 4, v0'); A('v_lshlrev_b32 v18, 4, v18'); A('s_lshl_b32 s62, s76, 8'); A('s_lshl_b32 s63, s77, 7'); A('s_add_u32 s62, s62, s63'); A('v_add_u32 v18, s62, v18')
        A('v_lshlrev_b32 v27, 3, v0')
        A(f's_mul_i32 s62, s77, {rows_per_kg * 64}'); A('s_add_u32 s73, s78, s62')
    def wg_fetch(nk, acc):
        for r in range(8): A(f'v_mov_b32 v{acc+r}, 0')
        A('s_waitcnt vmcnt(0)')
        lds_inc(CNT_TD)
        lds_wait(CNT_TD, vZ, 7, cmp_val=8)
        for u in range(nk):
            for ct in range(2):
                r = FR + (u * 2 + ct) * 4
                for hh in range(2): A(f'ds_read_b64_tr_b16 v[{r+2*hh}:{r+2*hh+1}], v{10+ct} offset:{(32*u+16*hh)*128}')
    def wg_mfma(nk, acc, bb):
        for u in range(nk): A(f'ds_read2_b64 v[{bb+4*u}:{bb+3+4*u}], v19 offset0:{8*u} offset1:{8*u+4}')
        for u in range(nk):
            A(f's_waitcnt lgkmcnt({nk-1-u})')
            for ct in range(2):
                r = FR + (u * 2 + ct) * 4
                A(f'v_mfma_f32_16x16x32_bf16 v[{acc+4*ct}:{acc+3+4*ct}], v[{r}:{r+3}], v[{bb+4*u}:{bb+3+4*u}], v[{acc+4*ct}:{acc+3+4*ct}]')
        set_exec(0x0001000100010001)
        for ct in range(2): A(f'ds_write_b128 v18, v[{acc+4*ct}:{acc+3+4*ct}] offset:{TRED + 64*ct}')
        A('s_waitcnt lgkmcnt(0)')
        barrier()
        A(f's_cmp_lg_u32 s{sR}, 0'); A('s_cbranch_scc1 L_KEND')
        set_exec(0xffffffff)
        for k in range(4): A(f'ds_read_b64 v[{32+2*k}:{33+2*k}], v27 offset:{TRED + 256*k}')
        A('s_waitcnt lgkmcnt(0)')
        tree2(32, 4)

    A('L_TW:')
    wg_common(3, 96)
    dma_addr(128, 1280, 6, 7, 8)
    A(f's_and_b32 s75, s{sI}, 1')
    A(f's_mul_i32 s70, s{sX}, 768'); A('s_mul_i32 s62, s75, 384'); A('s_add_u32 s70, s70, s62'); A('s_mul_i32 s62, s76, 96'); A('s_add_u32 s70, s70, s62')
    A(f's_lshl_b32 s62, s{sX}, 2'); A('s_lshl_b32 s63, s75, 1'); A('s_add_u32 s62, s62, s63'); A('s_lshr_b32 s63, s76, 1'); A('s_add_u32 s62, s62, s63'); A('s_mul_i32 s62, s62, 6144')
    A('s_and_b32 s63, s76, 1'); A('s_mul_i32 s63, s63, 384'); A('s_add_u32 s62, s62, s63')
    A('v_lshl_add_u32 v14, v0, 3, s62'); A('v_add_u32 v15, 3072, v14')
    A('s_mul_i32 s62, s77, 48'); A('s_add_u32 s70, s70, s62'); A('s_mul_i32 s70, s70, 1280')
    A(f's_lshr_b32 s62, s{sI}, 1'); A('s_lshl_b32 s62, s62, 7'); A('s_add_u32 s70, s70, s62')
    A('v_lshl_add_u32 v16, v0, 2, s74')
    A(f's_lshl_b32 s63, s{sX}, 1'); A('s_add_u32 s63, s63, s75'); A('s_mul_i32 s75, s63, 2560'); A('s_lshl_b32 s62, s62, 1'); A('s_add_u32 s75, s75, s62'); A(f's_add_u32 s75, s75, {R_Y}')
    emit_p()
    tail_gate(TW)
    dma_issue(6, 'WO', 6, 70, 8 * 1280, 73, pace=TDEPTH, pol=TPOL)
    wg_fetch(3, 112)
    stamp(5)
    lds_wait(F_ODONE, vZ, 7)
    set_exec((1 << 48) - 1)
    def ld():
        for n in range(8): A(f'buffer_load_dwordx2 v[{32+2*n}:{33+2*n}], v{14 + n//4}, {srd("WS")}, s64 offen offset:{768*(n%4)} sc1')
    poll(ld, list(range(32, 48)), 7, regionAB=R_O, sleep=0)
    stamp(6)
    tree2(32, 8)
    A('v_cvt_pk_bf16_f32 v36, v32, v33')
    A('ds_write_b32 v16, v36')
    full_exec()
    wg_mfma(3, 112, 40)
    for r in range(2): A(f'v_or_b32 v{32+r}, 1, v{32+r}')
    A(f'buffer_store_dwordx2 v[32:33], v27, {srd("WS")}, s75 offen sc1')
    A('s_branch L_KEND')

    A('L_TG:')
    A(f's_mul_i32 s75, s{sX}, 6'); A(f's_add_u32 s75, s75, s{sI}'); A('s_sub_u32 s75, s75, 20')
    wg_common(5, 160)
    A('s_bitcmp1_b32 s75, 0')
    A(f's_cselect_b32 s68, s{SRD["WU"]}, s{SRD["WG"]}'); A(f's_cselect_b32 s69, s{SRD["WU"]+1}, s{SRD["WG"]+1}')
    A(f's_mov_b32 s70, {SIZE["WG"]}'); A('s_mov_b32 s71, 0x20000'); G_SRD = 's[68:71]'
    dma_addr(128, 3072, 6, 7, 8)
    A('s_mul_i32 s72, s76, 160'); A('s_mul_i32 s62, s77, 80'); A('s_add_u32 s72, s72, s62'); A('s_mul_i32 s72, s72, 3072')
    A('s_lshr_b32 s62, s75, 1'); A('s_lshl_b32 s62, s62, 7'); A('s_add_u32 s72, s72, s62')
    A('s_and_b32 s63, s75, 1'); A('s_mul_i32 s63, s63, 3072'); A('s_add_u32 s62, s62, s63'); A(f's_add_u32 s66, s62, {R_HM}')
    A('v_min_u32 v7, 39, v0')
    A(f's_mul_i32 s62, s{sR}, 160'); A('v_lshl_add_u32 v14, v7, 2, s62')
    A(f'buffer_load_dword v28, v14, {srd("X")}, 0 offen')
    A('v_lshlrev_b32 v17, 1, v14')
    A('v_add_u32 v26, 20480, v17')
    A('s_mul_i32 s62, s76, 320'); A('v_lshl_add_u32 v30, v7, 3, s62')
    A('v_lshlrev_b32 v31, 1, v30')
    A('v_lshl_add_u32 v16, v0, 3, s74')
    A('v_lshlrev_b32 v15, 4, v0'); A('v_lshlrev_b32 v9, 2, v0')
    A('v_mov_b32 v29, 0x3acccccd'); A('v_mov_b32 v8, 0x80000000')
    emit_p()
    lds_wait(F_MV, vZ, 7)
    A(f'ds_read_b64 v[20:21], v17 offset:{MODV}')
    A(f'ds_read_b128 v[104:107], v31 offset:{MODV + 2560}'); A(f'ds_read_b128 v[108:111], v31 offset:{MODV + 5120}')
    tail_gate(TG)
    dma_issue(10, G_SRD, 6, 72, 8 * 3072, 73, pace=TDEPTH, pol=TPOL)
    wg_fetch(5, 112)
    unpack2(22, 28)
    stamp(5)
    for k in range(4): A(f's_mov_b32 s{80+k}, {R_Y + 5120*k}')
    lds_wait(F_ODONE, vZ, 7)
    set_exec((1 << 40) - 1)
    def ld():
        for n in range(16):
            A(f'buffer_load_dwordx2 v[{32+2*n}:{33+2*n}], v{17 if n < 8 else 26}, {srd("WS")}, s{80 + (n%8)//2} offen offset:{2560*(n%2)} sc1')
    poll(ld, list(range(32, 64)), 7)
    stamp(6)
    tree2(32, 16)
    rbf2(32, 32, 36)
    pk('mul', 32, 32, 20)
    rbf2(32, 32, 36)
    pk('add', 32, 32, 22)
    A('v_cvt_pk_bf16_f32 v37, v32, v33')
    A(f'ds_write_b32 v14, v37 offset:{X2P}')
    full_exec()
    A('s_waitcnt lgkmcnt(0)')
    barrier()
    A(f'ds_read_b128 v[32:35], v15 offset:{X2P}'); A(f'ds_read_b32 v36, v9 offset:{X2P+1024}')
    A(f'ds_read_b64 v[38:39], v30 offset:{X2P}')
    A(f's_cmp_lg_u32 s{sR}, s75'); A('s_cbranch_scc1 L_TG_NX')
    set_exec((1 << 40) - 1)
    A('v_cmp_eq_u32 vcc, 0, v37'); A('v_cndmask_b32 v37, v37, v8, vcc'); A(f's_mov_b32 s62, {R_X2}')
    A(f'buffer_store_dword v37, v14, {srd("WS")}, s62 offen sc1')
    full_exec()
    A('L_TG_NX:')
    A('s_waitcnt lgkmcnt(1)')
    ln_stats_pk([32, 33, 34, 35, 36], 48, 29)
    A('s_waitcnt lgkmcnt(0)')
    unpack4(44, 38)
    ln_apply_pk(44, 48)
    for h in (0, 2): pk('mul', 44 + h, 44 + h, 108 + h)
    rbf4(44, 44)
    for h in (0, 2): pk('add', 44 + h, 44 + h, 104 + h)
    A('v_cvt_pk_bf16_f32 v36, v44, v45'); A('v_cvt_pk_bf16_f32 v37, v46, v47')
    A('ds_write_b64 v16, v[36:37]')
    wg_mfma(5, 112, 40)
    A('v_cvt_pk_bf16_f32 v36, v32, v33')
    A('v_cmp_eq_u32 vcc, 0, v36'); A('v_cndmask_b32 v36, v36, v8, vcc')
    A(f'buffer_store_dword v36, v9, {srd("WS")}, s66 offen sc1')
    A('s_branch L_KEND')

    A('L_TD:')
    d_index()
    dma_addr(32, 1280, 6, 7, 8)
    A(f's_mul_i32 s77, s{sR}, {192 * 1280}'); A('s_lshl_b32 s62, s75, 5'); A('s_add_u32 s77, s77, s62')
    A(f's_mul_i32 s78, s{sR}, 6144'); A(f's_add_u32 s78, s78, {LDS_T}')
    A('v_lshl_add_u32 v10, v0, 3, s78')
    A('v_and_b32 v14, 7, v0'); A('v_lshlrev_b32 v9, 3, v14')
    A(f's_mul_i32 s62, s{sH}, 6144'); A('v_mul_u32_u24 v11, 768, v14'); A('v_add_u32 v11, s62, v11')
    A('s_lshl_b32 s62, s75, 5'); A('v_lshl_add_u32 v14, v14, 2, s62')
    A(f's_mul_i32 s62, s{sR}, 384'); A('v_lshl_add_u32 v17, v0, 3, s62')
    A(f'v_add_u32 v18, {R_X2 - R_HM}, v14')
    A('v_lshrrev_b32 v28, 4, v0'); A('v_lshlrev_b32 v28, 4, v28'); A(f's_lshl_b32 s62, s{sR}, 6'); A('v_add_u32 v28, s62, v28')
    A(f's_lshl_b32 s74, s{sR}, 9'); A(f's_add_u32 s74, s74, {STG}')
    A('v_lshl_add_u32 v16, v0, 3, s74')
    A('v_lshrrev_b32 v19, 4, v0'); A('v_lshl_add_u32 v19, v19, 3, s74')
    emit_p()
    lds_wait(F_MV, vZ, 7)
    A(f'ds_read_b64 v[20:21], v9 offset:{MODV}')
    if TD == 't':
        A(f's_cmp_lg_u32 s{sR}, 0'); A('s_cbranch_scc1 L_TD_W')
        lds_wait(F_ODONE, vZ, 7)
        set_exec(0xff)
        poll(lambda: A(f'buffer_load_dword v12, v11, {srd("WS")}, s64 offen sc1'), [12], 7, regionAB=R_O, sleep=1)
        full_exec()
        lds_set(CNT_TD)
        A('L_TD_W:')
        lds_wait(CNT_TD, vZ, 7)
    else:
        tail_gate(TD)
    dma_issue(6, 'WD', 6, 77, 32 * 1280, 78, pace=TDEPTH, pol=TPOL)
    for r in range(4): A(f'v_mov_b32 v{24+r}, 0')
    A('s_waitcnt vmcnt(0)')
    for u in range(6):
        r = FR + u * 4
        for hh in range(2): A(f'ds_read_b64_tr_b16 v[{r+2*hh}:{r+2*hh+1}], v10 offset:{(32*u+16*hh)*32}')
    stamp(5)
    A(f's_mov_b32 s64, {R_HM}')
    lds_wait(F_ODONE, vZ, 7)
    set_exec((1 << 48) - 1)
    def ld():
        A(f'buffer_load_dwordx2 v[32:33], v17, {srd("WS")}, s64 offen sc1')
        A(f'buffer_load_dwordx2 v[34:35], v17, {srd("WS")}, s64 offen offset:3072 sc1')
        A(f'buffer_load_dword v36, v18, {srd("WS")}, s64 offen sc1')
    poll(ld, [32, 33, 34, 35, 36], 7)
    stamp(6)
    unpack4(40, 32); unpack4(44, 34)
    for h in (0, 2): pk('mul', 40 + h, 40 + h, 44 + h)
    A('v_cvt_pk_bf16_f32 v32, v40, v41'); A('v_cvt_pk_bf16_f32 v33, v42, v43')
    A('ds_write_b64 v16, v[32:33]')
    full_exec()
    for u in range(6): A(f'ds_read2_b64 v[{40+4*u}:{43+4*u}], v19 offset0:{8*u} offset1:{8*u+4}')
    unpack2(38, 36)
    for u in range(6):
        r = FR + u * 4
        A(f's_waitcnt lgkmcnt({5-u})')
        A(f'v_mfma_f32_16x16x32_bf16 v[24:27], v[{r}:{r+3}], v[{40+4*u}:{43+4*u}], v[24:27]')
    set_exec(0x0001000100010001)
    A(f'ds_write_b128 v28, v[24:27] offset:{TRED}')
    A('s_waitcnt lgkmcnt(0)')
    barrier()
    A(f's_cmp_lg_u32 s{sR}, 0'); A('s_cbranch_scc1 L_KEND')
    set_exec(0xff)
    for k in range(8): A(f'ds_read_b64 v[{64+2*k}:{65+2*k}], v9 offset:{TRED + 64*k}')
    A('s_waitcnt lgkmcnt(0)')
    tree2(64, 8)
    rbf2(64, 64, 68)
    pk('mul', 64, 64, 20)
    rbf2(64, 64, 68)
    pk('add', 64, 64, 38)
    A('v_cvt_pk_bf16_f32 v68, v64, v65')
    A(f'buffer_store_dword v68, v14, {srd("OUT")}, 0 offen')
    A('L_KEND:')
    dry_check('L_DRYRET')
    stamp(7)
    flush_stamps()
    A('L_END:')
    A('s_endpgm')
    A('.section .rodata,"a"'); A('.p2align 6'); A(f'.amdhsa_kernel {NAME}_kernel')
    A('  .amdhsa_next_free_vgpr 128'); A('  .amdhsa_next_free_sgpr 102'); A('  .amdhsa_accum_offset 128')
    A('  .amdhsa_group_segment_fixed_size 0'); A('  .amdhsa_kernarg_size 112'); A('  .amdhsa_user_sgpr_count 2')
    A('  .amdhsa_user_sgpr_kernarg_segment_ptr 1'); A('  .amdhsa_system_sgpr_workgroup_id_x 1')
    A('  .amdhsa_float_denorm_mode_32 3'); A('  .amdhsa_float_denorm_mode_16_64 3')
    A('.end_amdhsa_kernel')
    return A.finish()

if __name__ == '__main__':
    import argparse
    ap = argparse.ArgumentParser()
    ap.add_argument('-o', default='cdna_kernels/' + NAME + '.s')
    ap.add_argument('--stamps', action='store_true')
    ap.add_argument('--cfg', default='')
    a = ap.parse_args()
    open(a.o, 'w').write(gen(stamps=a.stamps, **eval('dict(' + a.cfg + ')')))
```

```python
import sys
from asmfw import Asm
NAME = 'adaLN_cond__gqa_block_cached__glu_gated_bilinear__decode'
HEADER_COMMENT = open('cdna_kernels/' + NAME + '.s.ref').read().split('; Override launch')[0]

R_MOD = 0xE0000; R_Y = 0x00000; R_HM = 0x10000; R_X2 = 0x12000; R_CLR = 0x18000; R_MF = 0x1A000
R_Q = (0x20000, 0x40000); R_ST = (0x60000, 0x64000); R_O = (0x70000, 0xA0000)
R_DBG = 0x200000
F_N, F_H, F_Q, F_ML, F_CLR, CNT_O, F_ODONE, CNT_FREE, CNT_VD, F_MV, CNT_TD, F_A, CNT_B, F_YH = 0, 4, 8, 12, 16, 20, 24, 28, 32, 36, 40, 44, 48, 52
KISS, VISS, PRDY, ML = 64, 96, 128, 192
SC, HV, QV, PD, OACC = 0x100, 0x280, 0x380, 0x800, 0x1000
X2P, TRED, STG, MODV, RED = 0x1400, 0x1A00, 0x2000, 0x3000, 0x1000
ONES = 0x3f803f80
LDS_A, LDS_B, LDS_T = 0x6000, 0xB000, 0x13000
LDS_SIZE = 0x27000
SRD = dict(X=4, K=8, V=12, WQ=16, WO=20, WG=24, WU=28, WD=32, C=36, WMOD=40, OUT=44, DBG=48, WS=52)
KARG = dict(X=0, K=8, V=16, WQ=24, WO=32, WG=48, WU=56, WD=64, C=72, WMOD=80, OUT=88, DBG=96, WS=104)
SIZE = dict(X=1280, K=50331648, V=50331648, WQ=7864320, WO=7864320, WG=1966080, WU=1966080, WD=1966080, C=1280,
            WMOD=4915200, OUT=1280, DBG=256, WS=268435456)
def srd(n): return f's[{SRD[n]}:{SRD[n]+3}]'
sW, sX, sI, sH, sS, sR = 56, 57, 58, 59, 60, 61
sN, sLIVE = 79, 3
LOG2E = 0x3fb8aa3b
SCALE = 0x3d93cd3a
SPIN_MAX = 20000

def gen(DK=3, DV=4, VISS_AT=24, stamps=False, sleep_poll=1, NSLEEP=4, dry=False, TW='v', TG='v', TD='t', TDEPTH=99, TPOL='nt', VFREE=0, diagV=False, VADAPT=True, KADAPT=True, SOFT=2, FA_AT=10, FB_AT=8, KW='b', YTH=0, KVPOL='nt', FPOL='nt'):
    A = Asm()
    vZ, vONE, vPF = 3, 4, 5
    def stamp(idx):
        if stamps: A(f's_memrealtime s[{86 + 2*idx}:{87 + 2*idx}]')
    def flush_stamps():
        if not stamps: return
        A('s_waitcnt lgkmcnt(0)')
        A(f's_lshl_b32 s62, s2, 4'); A(f's_add_u32 s62, s62, s{sW}'); A('s_lshl_b32 s62, s62, 5'); A(f's_add_u32 s62, s62, {R_DBG}')
        A('s_mov_b64 exec, 1')
        for k in range(8): A(f'v_mov_b32 v{8+k}, s{86+2*k}')
        A('v_mov_b32 v1, 0')
        A(f'buffer_store_dwordx4 v[8:11], v1, {srd("WS")}, s62 offen')
        A(f'buffer_store_dwordx4 v[12:15], v1, {srd("WS")}, s62 offen offset:16')
    def set_exec(mask):
        lo, hi = mask & 0xffffffff, mask >> 32
        for nm, m in (('exec_lo', lo), ('exec_hi', hi)):
            if m == 0xffffffff: A(f's_mov_b32 {nm}, s{sLIVE}')
            elif m == 0: A(f's_mov_b32 {nm}, 0')
            else: A(f's_and_b32 {nm}, s{sLIVE}, {m}')
    def full_exec(): set_exec((1 << 64) - 1)
    def barrier():
        L = A.label('BR')
        A(f's_cbranch_execz {L}'); A('s_barrier'); A(f'{L}:')
    def lds_wait(off, vz, vt, cmp_val=None):
        L = A.label('LW'); D = A.label('LWD')
        A('s_mov_b32 s63, 0')
        A(f's_cbranch_execz {D}')
        A(f'{L}:')
        A(f'ds_read_b32 v{vt}, v{vz} offset:{off}')
        A('s_waitcnt lgkmcnt(0)')
        A(f'v_readfirstlane_b32 s62, v{vt}')
        if cmp_val is None: A('s_cmp_lg_u32 s62, 0')
        else: A(f's_cmp_ge_u32 s62, {cmp_val}')
        A(f's_cbranch_scc1 {D}')
        A('s_sleep 1')
        A('s_add_u32 s63, s63, 1'); A(f's_cmp_lt_u32 s63, {SPIN_MAX * 8}'); A(f's_cbranch_scc1 {L}')
        A(f'{D}:')
    def lds_set(off, vz=vZ): A(f'ds_write_b32 v{vz}, v{vONE} offset:{off}')
    def lds_inc(off):
        set_exec(1); A(f'ds_add_u32 v{vZ}, v{vONE} offset:{off}'); full_exec()
    def poll(loads, regs, vt, regionAB=None, sleep=None, tags=(), vt2=None):
        L = A.label('PL'); D = A.label('PD')
        A('s_mov_b32 s63, 0')
        A(f'{L}:')
        if regionAB:
            A('s_and_b32 s62, s63, 7'); A('s_cmp_eq_u32 s62, 7')
            A(f's_mov_b32 s64, {regionAB[0]}'); A(f's_cselect_b32 s64, {regionAB[1]}, s64')
        loads()
        A('s_waitcnt vmcnt(0)')
        r = list(regs); first = True
        while r:
            if first:
                if len(r) >= 3: A(f'v_min3_u32 v{vt}, v{r[0]}, v{r[1]}, v{r[2]}'); r = r[3:]
                elif len(r) == 2: A(f'v_min_u32 v{vt}, v{r[0]}, v{r[1]}'); r = []
                else: A(f'v_mov_b32 v{vt}, v{r[0]}'); r = []
                first = False
            elif len(r) >= 2: A(f'v_min3_u32 v{vt}, v{vt}, v{r[0]}, v{r[1]}'); r = r[2:]
            else: A(f'v_min_u32 v{vt}, v{vt}, v{r[0]}'); r = []
        if regs: A(f'v_cmp_eq_u32 vcc, 0, v{vt}')
        if tags:
            tg = list(tags)
            x = vt2 if regs else vt
            A(f'v_xor_b32 v{x}, s{sN}, v{tg[0]}')
            for tr in tg[1:]: A(f'v_xor_b32 v{tr}, s{sN}, v{tr}')
            rest = tg[1:]
            while rest:
                if len(rest) >= 2: A(f'v_or3_b32 v{x}, v{x}, v{rest[0]}, v{rest[1]}'); rest = rest[2:]
                else: A(f'v_or_b32 v{x}, v{x}, v{rest[0]}'); rest = []
            if regs: A(f'v_cmp_ne_u32 s[82:83], 0, v{x}'); A('s_or_b64 vcc, vcc, s[82:83]')
            else: A(f'v_cmp_ne_u32 vcc, 0, v{x}')
        A(f's_cbranch_vccz {D}')
        sl = sleep_poll if sleep is None else sleep
        if sl: A(f's_sleep {sl}')
        A('s_add_u32 s63, s63, 1'); A(f's_cmp_lt_u32 s63, {SPIN_MAX}'); A(f's_cbranch_scc1 {L}')
        A(f'{D}:')
    def rbf(dst, src):
        A(f'v_cvt_pk_bf16_f32 v{dst}, v{src}, v{src}')
        A(f'v_and_b32 v{dst}, 0xffff0000, v{dst}')
    def rbf4(dst, src):
        for h in range(2):
            A(f'v_cvt_pk_bf16_f32 v{dst+2*h+1}, v{src+2*h}, v{src+2*h+1}')
        for h in range(2):
            A(f'v_lshlrev_b32 v{dst+2*h}, 16, v{dst+2*h+1}')
            A(f'v_and_b32 v{dst+2*h+1}, 0xffff0000, v{dst+2*h+1}')
    def allreduce(regs, op, tmp):
        for pat in ('quad_perm:[1,0,3,2]', 'quad_perm:[2,3,0,1]', 'row_half_mirror', 'row_mirror'):
            for r in regs: A(f'{op}_dpp v{r}, v{r}, v{r} {pat} row_mask:0xf bank_mask:0xf')
        for sw in ('v_permlane16_swap_b32', 'v_permlane32_swap_b32'):
            for r, t in zip(regs, tmp): A(f'v_mov_b32 v{t}, v{r}')
            for r, t in zip(regs, tmp): A(f'{sw} v{r}, v{t}')
            for r, t in zip(regs, tmp): A(f'{op} v{r}, v{r}, v{t}')
    def reduce_sgpr(regs, op, sdst):
        for pat in ('quad_perm:[1,0,3,2]', 'quad_perm:[2,3,0,1]', 'row_half_mirror', 'row_mirror'):
            for r in regs: A(f'{op}_dpp v{r}, v{r}, v{r} {pat} row_mask:0xf bank_mask:0xf')
        for r in regs: A(f'{op}_dpp v{r}, v{r}, v{r} row_bcast:15 row_mask:0xa bank_mask:0xf')
        for r in regs: A(f'{op}_dpp v{r}, v{r}, v{r} row_bcast:31 row_mask:0xc bank_mask:0xf')
        for r, sd in zip(regs, sdst): A(f'v_readlane_b32 s{sd}, v{r}, 63')
    def unpack2(dst, src):
        A(f'v_lshlrev_b32 v{dst}, 16, v{src}'); A(f'v_and_b32 v{dst+1}, 0xffff0000, v{src}')
    def rbf2(dst, src, t):
        A(f'v_cvt_pk_bf16_f32 v{t}, v{src}, v{src+1}'); unpack2(dst, t)
    def pk(op, d, a, b, bcast=False, negb=False):
        m = ''
        if bcast: m += ' op_sel_hi:[1,0]'
        if negb: m += ' neg_lo:[0,1] neg_hi:[0,1]'
        A(f'v_pk_{op}_f32 v[{d}:{d+1}], v[{a}:{a+1}], v[{b}:{b+1}]{m}')
    def tree2(base, n):
        step = 1
        while step < n:
            for k in range(0, n, 2 * step): pk('add', base + 2 * k, base + 2 * k, base + 2 * (k + step))
            step *= 2
    def ln_stats_pk(xs, vm, vinv):
        a, b = vm, vm + 1
        A(f's_mov_b32 s62, {ONES}')
        for k, r in enumerate(xs):
            A(f'v_dot2_f32_bf16 v{a}, v{r}, s62, ' + ('0' if k == 0 else f'v{a}'))
            A(f'v_dot2_f32_bf16 v{b}, v{r}, v{r}, ' + ('0' if k == 0 else f'v{b}'))
        reduce_sgpr([a, b], 'v_add_f32', [62, 63])
        A(f'v_mul_f32 v{a}, s62, v{vinv}'); A(f'v_mul_f32 v{b}, s63, v{vinv}')
        A(f'v_fma_f32 v{b}, -v{a}, v{a}, v{b}')
        A(f'v_max_f32 v{b}, 0, v{b}')
        rbf2(a, a, vm + 3)
        A(f'v_add_f32 v{b}, 0x3727c5ac, v{b}')
        rbf(b, b)
        A(f'v_sqrt_f32 v{b}, v{b}')
        rbf(b, b)
        A(f'v_rcp_f32 v{vm+2}, v{b}')
    def ln_apply_pk(b4, vm):
        for h in (0, 2): pk('add', b4 + h, b4 + h, vm, bcast=True, negb=True)
        rbf4(b4, b4)
        for h in (0, 2): pk('mul', b4 + h, b4 + h, vm + 2, bcast=True)
        rbf4(b4, b4)
    def tr_addr(RS, vdst, vt0, vt1, base_sgpr=None, base_imm=0):
        T = RS // 32
        A(f'v_lshrrev_b32 v{vt0}, 2, v0'); A(f'v_mul_u32_u24 v{vt0}, {RS}, v{vt0}')
        A(f'v_and_b32 v{vt1}, 3, v0'); A(f'v_lshl_add_u32 v{vt0}, v{vt1}, 3, v{vt0}')
        if base_sgpr is not None: A(f'v_add_u32 v{vt0}, s{base_sgpr}, v{vt0}')
        if base_imm: A(f'v_add_u32 v{vt0}, {base_imm}, v{vt0}')
        if RS == 128: A(f'v_bfe_u32 v{vt1}, v0, 3, 2')
        elif RS == 64: A(f'v_bfe_u32 v{vt1}, v0, 4, 1')
        for ct in range(T):
            A(f'v_xor_b32 v{vdst+ct}, {ct}, v{vt1}')
            A(f'v_lshl_add_u32 v{vdst+ct}, v{vdst+ct}, 5, v{vt0}')
    def dma_addr(RS, rowstride, vdst, vt0, vt1):
        cpr = RS // 16; lg = cpr.bit_length() - 1
        A(f'v_lshrrev_b32 v{vt0}, {lg}, v0'); A(f'v_and_b32 v{vt1}, {cpr - 1}, v0')
        if RS == 128:
            A(f'v_bfe_u32 v{vdst}, v{vt0}, 1, 2'); A(f'v_lshlrev_b32 v{vdst}, 1, v{vdst}'); A(f'v_xor_b32 v{vt1}, v{vt1}, v{vdst}')
        elif RS == 64:
            A(f'v_bfe_u32 v{vdst}, v{vt0}, 2, 1'); A(f'v_lshlrev_b32 v{vdst}, 1, v{vdst}'); A(f'v_xor_b32 v{vt1}, v{vt1}, v{vdst}')
        A(f'v_mul_u32_u24 v{vt0}, {rowstride}, v{vt0}')
        A(f'v_lshl_add_u32 v{vdst}, v{vt1}, 4, v{vt0}')
    def dma_issue(n, sr, vaddr, s_goff, gstep, s_lds, lds_imm=0, pace=0, pol='nt'):
        sr = srd(sr) if sr in SRD else sr
        L = A.label('DS')
        A(f's_cbranch_execz {L}')
        for k in range(n):
            if s_lds is None: A(f's_mov_b32 m0, {lds_imm + 1024 * k}')
            else: A(f's_add_u32 m0, s{s_lds}, {lds_imm + 1024 * k}')
            A(f'buffer_load_dwordx4 v{vaddr}, {sr}, s{s_goff} offen {pol} lds')
            if k + 1 < n: A(f's_add_u32 s{s_goff}, s{s_goff}, {gstep}')
            if pace and k + 1 >= pace and k + 1 < n: A(f's_waitcnt vmcnt({pace-1})')
        A(f'{L}:')
    def tail_gate(mode):
        if mode == 'v': lds_wait(VISS, vZ, 7, cmp_val=6)
        elif mode == 'o': lds_wait(F_ODONE, vZ, 7)
    def y_hint(th, tag):
        if not th: return
        A(f's_cmp_lg_u32 s{sR}, 0'); A(f's_cbranch_scc1 L_YH_{tag}')
        L = A.label('YH'); D = A.label('YHD')
        set_exec(1)
        A('s_mov_b32 s63, 0')
        A(f'{L}:')
        A(f'buffer_load_dword v7, v3, {srd("DBG")}, 0 offen offset:128 sc1')
        A('s_waitcnt vmcnt(0)')
        A('v_readfirstlane_b32 s62, v7'); A(f's_cmp_ge_u32 s62, {th}'); A(f's_cbranch_scc1 {D}')
        A('s_sleep 2')
        A('s_add_u32 s63, s63, 1'); A(f's_cmp_lt_u32 s63, {SPIN_MAX}'); A(f's_cbranch_scc1 {L}')
        A(f'{D}:')
        full_exec()
        lds_set(F_YH)
        A(f'L_YH_{tag}:')
        lds_wait(F_YH, vZ, 7)
    def merge4(acc, dst):
        for r in range(4): A(f'v_mov_b32 v{dst+r}, v{acc+r}')
        for ct in (1, 2, 3):
            m = 0x00010001 << ct
            A(f's_mov_b32 s80, {m}'); A(f's_mov_b32 s81, {m}')
            for r in range(4): A(f'v_cndmask_b32 v{dst+r}, v{dst+r}, v{acc+4*ct+r}, s[80:81]')
    def mod_addr(vdst, vcol, vt):
        A(f'v_lshrrev_b32 v{vt}, 6, v{vcol}'); A(f'v_lshlrev_b32 v{vt}, 11, v{vt}')
        A(f'v_and_b32 v{vdst}, 63, v{vcol}'); A(f'v_lshl_add_u32 v{vdst}, v{vdst}, 2, v{vt}')
    def mod_loads(vaddr, quads, nks, so='s64'):
        for ks in range(nks):
            for hf in range(2):
                q = quads[2 * ks + hf]
                A(f'buffer_load_dwordx4 v[{q}:{q+3}], v{vaddr}, {srd("WS")}, {so} offen offset:{512*ks+256*hf} sc1')
    def mod_tags(quads): return [q + 1 for q in quads] + [q + 3 for q in quads]
    def mod_sum(dst, quads, nks):
        for hf in range(2):
            for e in range(2):
                r = [quads[2 * ks + hf] + 2 * e for ks in range(nks)]
                d = dst + 2 * hf + e
                if nks == 2: A(f'v_add_f32 v{d}, v{r[0]}, v{r[1]}')
                else:
                    A(f'v_add_f32 v{r[0]}, v{r[0]}, v{r[1]}'); A(f'v_add_f32 v{r[2]}, v{r[2]}, v{r[3]}'); A(f'v_add_f32 v{d}, v{r[0]}, v{r[2]}')
    def get_nonce(vt):
        lds_wait(F_N, vZ, vt); A(f's_mov_b32 s{sN}, s62')
    def tree_add(base, n):
        step = 1
        while step < n:
            for k in range(0, n, 2 * step):
                for h2 in range(2):
                    a = base + 4 * k + 2 * h2; b = base + 4 * (k + step) + 2 * h2
                    A(f'v_pk_add_f32 v[{a}:{a+1}], v[{a}:{a+1}], v[{b}:{b+1}]')
            step *= 2
    def half_swap_add(base, tmp):
        for r in range(4): A(f'v_mov_b32 v{tmp+r}, v{base+r}')
        for r in range(4): A(f'v_permlane32_swap_b32 v{base+r}, v{tmp+r}')
        for h2 in range(2): A(f'v_pk_add_f32 v[{base+2*h2}:{base+1+2*h2}], v[{base+2*h2}:{base+1+2*h2}], v[{tmp+2*h2}:{tmp+1+2*h2}]')
    def fdiv(dst, num, den, t0, t1, t2, t3):
        A(f'v_rcp_f32 v{t0}, v{den}')
        A(f'v_mul_f32 v{t1}, v{num}, v{t0}')
        A(f'v_fma_f32 v{t2}, -v{t1}, v{den}, v{num}')
        A(f'v_fma_f32 v{t3}, v{t2}, v{t0}, v{t1}')
        A(f'v_cmp_o_f32 vcc, v{t3}, v{t3}')
        A(f'v_cndmask_b32 v{dst}, v{t1}, v{t3}, vcc')
    def ln_stats(xs, vm, vs, t0, t1):
        A(f'v_readfirstlane_b32 s62, v{xs[0]}')
        for r in xs: A(f'v_subrev_f32 v{r}, s62, v{r}')
        A(f'v_add_f32 v{vm}, v{xs[0]}, v{xs[1]}'); A(f'v_mul_f32 v{vs}, v{xs[0]}, v{xs[0]}')
        for k, r in enumerate(xs):
            if k >= 2: A(f'v_add_f32 v{vm}, v{vm}, v{r}')
            if k >= 1: A(f'v_fmac_f32 v{vs}, v{r}, v{r}')
        allreduce([vm, vs], 'v_add_f32', [t0, t1])
        inv = 0x3acccccd
        A(f'v_mul_f32 v{vm}, {inv}, v{vm}'); A(f'v_mul_f32 v{vs}, {inv}, v{vs}')
        A(f'v_fma_f32 v{vs}, -v{vm}, v{vm}, v{vs}')
        A(f'v_max_f32 v{vs}, 0, v{vs}')
        A(f'v_add_f32 v{vm}, s62, v{vm}')
        rbf(vm, vm); rbf(vs, vs)
        A(f'v_add_f32 v{vs}, 0x3727c5ac, v{vs}')
        rbf(vs, vs)
        A(f'v_sqrt_f32 v{vs}, v{vs}')
        rbf(vs, vs)
        A(f'v_rcp_f32 v{vs}, v{vs}')
    def ln_apply(b4, vm, vs):
        for r in range(4): A(f'v_sub_f32 v{b4+r}, v{b4+r}, v{vm}')
        rbf4(b4, b4)
        for r in range(4): A(f'v_mul_f32 v{b4+r}, v{b4+r}, v{vs}')
        rbf4(b4, b4)
    def unpack4(dst, src):
        A(f'v_lshlrev_b32 v{dst}, 16, v{src}'); A(f'v_and_b32 v{dst+1}, 0xffff0000, v{src}')
        A(f'v_lshlrev_b32 v{dst+2}, 16, v{src+1}'); A(f'v_and_b32 v{dst+3}, 0xffff0000, v{src+1}')
    def dry_check(ret):
        A(f's_cbranch_execz {ret}')
    def d_index():
        A(f's_lshl_b32 s75, s{sX}, 2'); A(f's_add_u32 s75, s75, s{sI}'); A('s_sub_u32 s75, s75, 26')
        A(f's_lshl_b32 s62, s{sX}, 1'); A(f's_add_u32 s62, s62, s{sI}'); A('s_add_u32 s62, s62, 2')
        A(f's_cmp_ge_u32 s{sI}, 30'); A('s_cselect_b32 s75, s62, s75')
    def branch_if_no_role(label):
        L = A.label('NR')
        A(f's_cmp_lt_u32 s{sI}, 30'); A(f's_cbranch_scc1 {L}')
        A(f's_cmp_ge_u32 s{sX}, 4'); A(f's_cbranch_scc1 {label}')
        A(f'{L}:')
    def kb_pi():
        A(f's_mul_i32 s68, s{sI}, 43'); A('s_lshr_b32 s68, s68, 8'); A('s_mul_i32 s62, s68, 6'); A(f's_sub_u32 s69, s{sI}, s62')

    A(HEADER_COMMENT.rstrip())
    A(f'; @launch grid=(256,1,1) block=(1024,1,1) lds={LDS_SIZE}')
    A('.amdgcn_target "amdgcn-amd-amdhsa--gfx950"')
    A('.text'); A(f'.globl {NAME}_kernel'); A('.p2align 8'); A(f'.type {NAME}_kernel,@function'); A(f'{NAME}_kernel:')
    for n in ('K', 'WMOD', 'WQ', 'WS', 'C', 'X', 'V', 'DBG', 'WO', 'WG', 'WU', 'WD', 'OUT'):
        A(f's_load_dwordx2 s[{SRD[n]}:{SRD[n]+1}], s[0:1], {KARG[n]}')
    if stamps:
        for k in range(1, 8): A(f's_mov_b32 s{86+2*k}, 0')
    stamp(0)
    A('v_lshrrev_b32 v1, 6, v0'); A('v_and_b32 v0, 63, v0')
    A(f'v_readfirstlane_b32 s{sW}, v1')
    for n in SRD:
        A(f's_mov_b32 s{SRD[n]+2}, {SIZE[n]}'); A(f's_mov_b32 s{SRD[n]+3}, 0x20000')
    A(f's_mov_b32 s{sLIVE}, -1'); A(f's_mov_b32 s{sN}, 0')
    A('s_cmp_ge_u32 s2, 256'); A('s_cbranch_scc1 L_END')
    A(f's_and_b32 s{sX}, s2, 7'); A(f's_lshr_b32 s{sI}, s2, 3')
    A(f's_lshr_b32 s{sH}, s{sI}, 3'); A(f's_lshl_b32 s62, s{sX}, 2'); A(f's_add_u32 s{sH}, s{sH}, s62')
    A(f's_and_b32 s{sS}, s{sI}, 7'); A(f's_and_b32 s{sR}, s{sW}, 7')
    A('v_lshrrev_b32 v1, 3, v0'); A('v_mul_u32_u24 v1, 1536, v1'); A('v_and_b32 v2, 7, v0'); A('v_lshl_add_u32 v2, v2, 4, v1')
    A('v_mov_b32 v3, 0'); A('v_mov_b32 v4, 1')
    A(f's_lshl_b32 s67, s{sH}, 12'); A(f's_lshl_b32 s62, s{sS}, 9'); A('s_add_u32 s67, s67, s62'); A('s_mul_i32 s67, s67, 384')
    A(f's_mul_i32 s65, s{sR}, 24576'); A('s_add_u32 s65, s65, s67'); A('s_add_u32 s66, s65, 12288')
    A(f's_lshl_b32 s62, s{sR}, 2'); A('v_mov_b32 v5, s62')
    A('s_waitcnt lgkmcnt(0)')
    A(f's_cmp_ge_u32 s{sW}, 8'); A('s_cbranch_scc1 L_KWAVE')
    A(f's_cmp_eq_u32 s{sR}, 2'); A('s_cbranch_scc1 L_F2')
    A(f's_cmp_ge_u32 s{sR}, 3'); A('s_cbranch_scc1 L_F3')

    kb_pi()
    A(f's_lshl_b32 s71, s{sR}, 14'); A(f's_add_u32 s71, s71, {LDS_B}')
    A('v_lshlrev_b32 v7, 2, v0')
    for j in range(5): A(f'buffer_load_dword v{10+j}, v7, {srd("X")}, 0 offen offset:{256*j}')
    A('v_and_b32 v8, 31, v0'); A('v_lshlrev_b32 v8, 3, v8'); A('s_lshl_b32 s62, s68, 8')
    A(f'buffer_load_dwordx2 v[16:17], v8, {srd("X")}, s62 offen')
    if SOFT: A('s_barrier')
    A(f's_cmp_ge_u32 s{sI}, 30'); A('s_cbranch_scc1 L_F01_NODMA')
    dma_addr(128, 12288, 6, 7, 8)
    A(f's_mul_i32 s70, s68, {128 * 12288}'); A(f's_mul_i32 s62, s{sX}, 1536'); A('s_add_u32 s70, s70, s62')
    A('s_lshl_b32 s62, s69, 8'); A('s_add_u32 s70, s70, s62'); A(f's_lshl_b32 s62, s{sR}, 7'); A('s_add_u32 s70, s70, s62')
    if SOFT: lds_wait(F_A, vZ, 9)
    dma_issue(16, 'WQ', 6, 70, 8 * 12288, 71, pol=FPOL)
    A(f's_waitcnt vmcnt({FB_AT})')
    A('L_F01_NODMA:')
    lds_inc(CNT_B)
    if not SOFT: A('s_barrier')
    A('L_F01_DRY:')
    A('s_waitcnt vmcnt(0)')
    A(f's_cmp_ge_u32 s{sI}, 30'); A('s_cbranch_scc1 L_F01_SKIPB')
    tr_addr(128, 40, 44, 45, base_sgpr=71)
    for u in range(4):
        for ct in range(4):
            r = 64 + (u * 4 + ct) * 4
            for hh in range(2):
                A(f'ds_read_b64_tr_b16 v[{r+2*hh}:{r+2*hh+1}], v{40+ct} offset:{(32*u+16*hh)*128}')
    A(f'v_lshrrev_b32 v46, 4, v0'); A('v_lshlrev_b32 v46, 3, v46')
    A('s_waitcnt lgkmcnt(0)')
    lds_inc(CNT_FREE)
    A(f's_cmp_eq_u32 s{sR}, 1'); A('s_cbranch_scc1 L_F1_WAITH')
    A('v_mov_b32 v29, 0x3acccccd')
    ln_stats_pk([10, 11, 12, 13, 14], 30, 29)
    unpack4(34, 16)
    ln_apply_pk(34, 30)
    A('v_and_b32 v8, 31, v0'); A('v_lshlrev_b32 v8, 2, v8'); A('v_lshrrev_b32 v9, 5, v0'); A('v_mul_u32_u24 v9, 640, v9'); A('v_add_u32 v8, v8, v9')
    A('s_lshl_b32 s62, s68, 7'); A('v_add_u32 v8, s62, v8')
    mod_addr(8, 8, 9)
    get_nonce(9)
    stamp(1)
    A(f's_mov_b32 s64, {R_MOD}')
    Q = [10, 14, 18, 22, 48, 52, 56, 60]
    A('v_and_b32 v38, 31, v0'); A('v_lshlrev_b32 v38, 2, v38'); A(f's_lshl_b32 s72, s{sX}, 7'); A(f's_add_u32 s72, s72, {R_CLR}')
    poll(lambda: (mod_loads(8, Q, 4), A(f'buffer_load_dword v39, v38, {srd("WS")}, s72 offen sc1')), [], 9, tags=mod_tags(Q) + [39])
    stamp(2)
    mod_sum(26, Q, 4)
    rbf4(48, 26)
    for r in range(4): A(f'v_mov_b32 v{52+r}, v{48+r}')
    for r in range(4): A(f'v_permlane32_swap_b32 v{48+r}, v{52+r}')
    for r in range(4): A(f'v_add_f32 v{52+r}, 1.0, v{52+r}')
    rbf4(52, 52)
    for r in range(4): A(f'v_mul_f32 v{52+r}, v{34+r}, v{52+r}')
    rbf4(52, 52)
    for r in range(4): A(f'v_add_f32 v{52+r}, v{52+r}, v{48+r}')
    A('v_cvt_pk_bf16_f32 v56, v52, v53'); A('v_cvt_pk_bf16_f32 v57, v54, v55')
    A('v_and_b32 v8, 31, v0'); A('v_lshlrev_b32 v8, 3, v8')
    A(f'ds_write_b64 v8, v[56:57] offset:{HV}')
    lds_set(F_H)
    A('s_branch L_F01_C')
    A('L_F1_WAITH:')
    lds_wait(F_H, vZ, 18)
    A('L_F01_C:')
    for u in range(4):
        A(f'ds_read2_b64 v[{48+4*u}:{51+4*u}], v46 offset0:{HV//8 + 8*u} offset1:{HV//8 + 8*u + 4}')
    for r in range(16): A(f'v_mov_b32 v{20+r}, 0')
    A('v_and_b32 v8, 15, v0'); A('v_lshlrev_b32 v8, 6, v8'); A('v_lshrrev_b32 v9, 4, v0'); A('v_lshl_add_u32 v8, v9, 4, v8')
    A('s_mul_i32 s70, s68, 24576'); A(f's_mul_i32 s62, s{sX}, 3072'); A('s_add_u32 s70, s70, s62'); A('s_lshl_b32 s62, s69, 9'); A('s_add_u32 s70, s70, s62')
    A(f's_lshl_b32 s62, s{sR}, 8'); A('s_add_u32 s70, s70, s62')
    A(f's_add_u32 s72, s70, {R_Q[0]}'); A(f's_add_u32 s73, s70, {R_Q[1]}')
    A('s_waitcnt lgkmcnt(0)')
    for u in range(4):
        for ct in range(4):
            r = 64 + (u * 4 + ct) * 4
            A(f'v_mfma_f32_16x16x32_bf16 v[{20+4*ct}:{23+4*ct}], v[{r}:{r+3}], v[{48+4*u}:{51+4*u}], v[{20+4*ct}:{23+4*ct}]')
    lds_wait(F_CLR, vZ, 9)
    merge4(20, 36)
    for r in range(4): A(f'v_or_b32 v{36+r}, 1, v{36+r}')
    set_exec(0x000f000f000f000f)
    A(f'buffer_store_dwordx4 v[36:39], v8, {srd("WS")}, s72 offen')
    A(f'buffer_store_dwordx4 v[36:39], v8, {srd("WS")}, s73 offen sc1')
    full_exec()
    stamp(3)
    A('s_branch L_F01_D')
    A('L_F01_SKIPB:')
    lds_inc(CNT_FREE)
    get_nonce(9)
    lds_wait(F_CLR, vZ, 9)
    A('L_F01_D:')
    A(f's_cmp_eq_u32 s{sR}, 1'); A('s_cbranch_scc1 L_F1_T')
    A(f's_cmp_lt_u32 s{sI}, 30'); A('s_cbranch_scc1 L_F0_QG')
    A('v_and_b32 v8, 31, v0'); A('v_lshlrev_b32 v8, 2, v8'); A(f's_lshl_b32 s64, s{sX}, 7'); A(f's_add_u32 s64, s64, {R_CLR}')
    poll(lambda: A(f'buffer_load_dword v10, v8, {srd("WS")}, s64 offen sc1'), [], 9, tags=[10], sleep=8)
    A('L_F0_QG:')
    A('v_lshlrev_b32 v40, 4, v0'); A(f's_mul_i32 s62, s{sH}, 768'); A('v_add_u32 v40, s62, v40')
    for ks in range(1, 5): A(f'v_add_u32 v{40+ks}, {24576*ks}, v40')
    A('v_lshlrev_b32 v8, 3, v0')
    set_exec((1 << 48) - 1)
    def ld():
        for ks in range(5): A(f'buffer_load_dwordx4 v[{48+4*ks}:{51+4*ks}], v{40+ks}, {srd("WS")}, s64 offen sc1')
    poll(ld, list(range(48, 68)), 18, regionAB=R_Q)
    tree_add(48, 4)
    for h2 in range(2): A(f'v_pk_add_f32 v[{48+2*h2}:{49+2*h2}], v[{48+2*h2}:{49+2*h2}], v[{64+2*h2}:{65+2*h2}]')
    A('v_cvt_pk_bf16_f32 v56, v48, v49'); A('v_cvt_pk_bf16_f32 v57, v50, v51')
    A(f'ds_write_b64 v8, v[56:57] offset:{QV}')
    full_exec()
    lds_set(F_Q)
    stamp(4)
    A(f's_lshl_b32 s62, s{sH}, 9'); A('v_add_u32 v14, s62, v8')
    poll(lambda: A(f'buffer_load_dwordx2 v[12:13], v14, {srd("WS")}, s64 offen sc1'), [12, 13], 15, regionAB=R_ST, sleep=2)
    A('v_and_b32 v12, 0xffff0000, v12')
    A('v_mov_b32 v16, v12')
    allreduce([16], 'v_max_f32', [15])
    A('v_sub_f32 v12, v12, v16'); A(f'v_mul_f32 v12, {LOG2E}, v12'); A('v_exp_f32 v12, v12'); A('v_mul_f32 v17, v12, v13')
    allreduce([17], 'v_add_f32', [15])
    A(f'ds_write_b64 v3, v[16:17] offset:{ML}')
    lds_set(F_ML)
    stamp(5)
    A('s_branch L_F01_PV')
    A('L_F1_T:')
    A(f's_cmp_lt_u32 s{sI}, 20'); A('s_cbranch_scc1 L_F01_PV')
    branch_if_no_role('L_F01_PV')
    get_nonce(9)
    A('v_lshlrev_b32 v8, 4, v0')
    A(f's_mov_b32 s64, {R_MF}'); A(f's_mov_b32 s72, {R_CLR}'); A(f's_mov_b32 s73, {R_MF + 4096}')
    A(f's_cmp_ge_u32 s{sI}, 26'); A('s_cbranch_scc1 L_F1_TD')
    def ld():
        A(f'buffer_load_dwordx4 v[12:15], v8, {srd("WS")}, s72 offen sc1')
        for k in range(8):
            A(f'buffer_load_dwordx4 v[{16+4*k}:{19+4*k}], v8, {srd("WS")}, {"s64" if k < 4 else "s73"} offen offset:{1024*(k%4)} sc1')
    poll(ld, [], 9, tags=[12, 13, 14, 15] + [17 + 4 * k for k in range(8)] + [19 + 4 * k for k in range(8)], sleep=8)
    for k in range(8):
        q = 16 + 4 * k
        A(f'v_and_b32 v{q+3}, 0xffff0000, v{q+2}'); A(f'v_lshlrev_b32 v{q+2}, 16, v{q+2}')
        A(f'v_and_b32 v{q+1}, 0xffff0000, v{q}'); A(f'v_lshlrev_b32 v{q}, 16, v{q}')
        if k >= 5:
            for r in range(4): A(f'v_add_f32 v{q+r}, 1.0, v{q+r}')
            rbf4(q, q)
        A(f'ds_write_b128 v8, v[{q}:{q+3}] offset:{MODV + 1024*k}')
    lds_set(F_MV)
    stamp(4)
    A('s_branch L_F01_PV')
    A('L_F1_TD:')
    d_index()
    A('v_and_b32 v10, 3, v0'); A('v_lshlrev_b32 v10, 4, v10'); A('s_lshl_b32 s62, s75, 6'); A(f's_add_u32 s64, s62, {R_MF + 7680}')
    def ld():
        A(f'buffer_load_dwordx4 v[12:15], v8, {srd("WS")}, s72 offen sc1')
        A(f'buffer_load_dwordx4 v[16:19], v10, {srd("WS")}, s64 offen sc1')
    poll(ld, [], 9, tags=[12, 13, 14, 15, 17, 19], sleep=8)
    A('v_and_b32 v19, 0xffff0000, v18'); A('v_lshlrev_b32 v18, 16, v18'); A('v_and_b32 v17, 0xffff0000, v16'); A('v_lshlrev_b32 v16, 16, v16')
    A(f'ds_write_b128 v10, v[16:19] offset:{MODV}')
    lds_set(F_MV)
    stamp(4)
    A('L_F01_PV:')
    dry_check('L_DRYRET')
    lds_wait(CNT_VD, vZ, 9, cmp_val=6)
    A(f's_mul_i32 s62, s{sR}, 24576'); A(f's_add_u32 s62, s62, {LDS_A}'); A('v_lshl_add_u32 v8, v0, 4, s62')
    for n in range(24): A(f'ds_read_b128 v[{32+4*n}:{35+4*n}], v8 offset:{1024*n}')
    A('s_waitcnt lgkmcnt(0)')
    A('s_branch L_PV')

    A('L_F2:')
    A('s_cmp_ge_u32 s2, 240'); A('s_cbranch_scc1 L_F2_NONE')
    A('s_lshr_b32 s68, s2, 2'); A('s_and_b32 s69, s2, 3')
    A('v_lshlrev_b32 v7, 3, v0'); A('s_mul_i32 s62, s69, 320')
    A(f'buffer_load_dwordx2 v[10:11], v7, {srd("C")}, s62 offen')
    dma_addr(128, 7680, 6, 8, 9)
    A(f's_mul_i32 s70, s69, {160 * 7680}'); A('s_lshl_b32 s62, s68, 7'); A('s_add_u32 s70, s70, s62')
    dma_issue(20, 'WMOD', 6, 70, 8 * 7680, None, LDS_A, pol=FPOL)
    A('s_barrier')
    A('s_waitcnt vmcnt(20)')
    unpack4(12, 10)
    A(f's_mov_b32 s62, {LOG2E | 0x80000000}')
    for r in range(4): A(f'v_mul_f32 v{16+r}, s62, v{12+r}')
    for r in range(4): A(f'v_exp_f32 v{16+r}, v{16+r}')
    for r in range(4): A(f'v_add_f32 v{16+r}, 1.0, v{16+r}')
    for r in range(4): fdiv(12 + r, 12 + r, 16 + r, 20, 21, 22, 23)
    A('v_cvt_pk_bf16_f32 v16, v12, v13'); A('v_cvt_pk_bf16_f32 v17, v14, v15')
    set_exec((1 << 40) - 1)
    A(f'ds_write_b64 v7, v[16:17] offset:{SC}')
    full_exec()
    tr_addr(128, 6, 10, 11, base_imm=LDS_A)
    A(f'v_lshrrev_b32 v10, 4, v0'); A('v_lshlrev_b32 v10, 3, v10')
    for u in range(5):
        A(f'ds_read2_b64 v[{28+4*u}:{31+4*u}], v10 offset0:{SC//8 + 8*u} offset1:{SC//8 + 8*u + 4}')
    A('v_and_b32 v11, 15, v0'); A('v_lshlrev_b32 v11, 6, v11'); A('v_lshrrev_b32 v12, 4, v0'); A('v_lshl_add_u32 v11, v12, 4, v11')
    if dry:
        A(f's_mov_b32 s{sLIVE}, 0'); A('s_mov_b64 exec, 0')
    A('L_F2_B:')
    A(f's_cbranch_execz L_F2_B1'); A(f's_waitcnt vmcnt({FA_AT})'); lds_set(F_A); A('s_waitcnt vmcnt(0)'); A('L_F2_B1:')
    stamp(1)
    for u in range(5):
        for ct in range(4):
            r = 48 + (u * 4 + ct) * 4
            for hh in range(2):
                A(f'ds_read_b64_tr_b16 v[{r+2*hh}:{r+2*hh+1}], v{6+ct} offset:{(32*u+16*hh)*128}')
    for r in range(16): A(f'v_mov_b32 v{12+r}, 0')
    A('s_waitcnt lgkmcnt(0)')
    lds_inc(CNT_FREE)
    for u in range(5):
        for ct in range(4):
            r = 48 + (u * 4 + ct) * 4
            A(f'v_mfma_f32_16x16x32_bf16 v[{12+4*ct}:{15+4*ct}], v[{r}:{r+3}], v[{28+4*u}:{31+4*u}], v[{12+4*ct}:{15+4*ct}]')
    A(f's_lshl_b32 s70, s2, 9'); A(f's_add_u32 s70, s70, {R_MOD}')
    get_nonce(49)
    merge4(12, 52)
    stamp(2)
    A('v_mov_b32 v56, v52'); A('v_mov_b32 v58, v53'); A('v_mov_b32 v60, v54'); A('v_mov_b32 v62, v55')
    for r in (57, 59, 61, 63): A(f'v_mov_b32 v{r}, s{sN}')
    set_exec(0x000f000f000f000f)
    A(f'buffer_store_dwordx4 v[56:59], v11, {srd("WS")}, s70 offen sc1')
    A(f'buffer_store_dwordx4 v[60:63], v11, {srd("WS")}, s70 offen offset:256 sc1')
    full_exec()
    stamp(3)
    if dry:
        A('s_cbranch_execnz L_VSTREAM')
        A(f's_mov_b32 s{sLIVE}, -1'); A('s_mov_b64 exec, -1'); A('s_branch L_F2_B')
    A('s_branch L_VSTREAM')
    A('L_F2_NONE:')
    A('s_barrier')
    lds_set(F_A)
    lds_inc(CNT_FREE)
    A('s_branch L_VSTREAM')

    A('L_F3:')
    A(f's_cmp_ge_u32 s{sR}, 4'); A('s_cbranch_scc1 L_F4')
    A('s_cmp_lg_u32 s2, 0'); A('s_cbranch_scc1 L_F3_B')
    A('s_memrealtime s[62:63]'); A('s_waitcnt lgkmcnt(0)'); A('s_or_b32 s62, s62, 1'); A('v_mov_b32 v8, s62')
    set_exec(1)
    A('v_mov_b32 v9, 0')
    A(f'buffer_atomic_cmpswap v[8:9], v3, {srd("DBG")}, 0 offen sc1')
    full_exec()
    A('L_F3_B:')
    A('v_lshlrev_b32 v7, 2, v0'); A('ds_write_b32 v7, v3')
    for k in range(3): A(f'ds_write_b32 v7, v3 offset:{OACC + 256*k}')
    A('s_waitcnt lgkmcnt(0)')
    A('s_barrier')
    set_exec(1)
    poll(lambda: A(f'buffer_load_dword v9, v3, {srd("DBG")}, 0 offen sc1'), [9], 10, sleep=NSLEEP)
    A(f'ds_write_b32 v3, v9 offset:{F_N}')
    full_exec()
    stamp(1)
    A('s_branch L_VSTREAM')
    A('L_F4:')
    A(f's_cmp_lg_u32 s{sR}, 4'); A('s_cbranch_scc1 L_F5')
    for r in range(4): A(f'v_mov_b32 v{8+r}, 0')
    kb_pi()
    A('s_mul_i32 s70, s68, 24576'); A(f's_mul_i32 s62, s{sX}, 3072'); A('s_add_u32 s70, s70, s62'); A('s_lshl_b32 s62, s69, 9'); A('s_add_u32 s70, s70, s62')
    A(f's_add_u32 s70, s70, {R_Q[0]}')
    A('v_and_b32 v12, 31, v0'); A('v_lshlrev_b32 v12, 4, v12'); A('v_lshrrev_b32 v13, 5, v0'); A(f'v_mul_u32_u24 v13, {R_Q[1]-R_Q[0]}, v13'); A('v_add_u32 v12, v12, v13')
    A(f's_cmp_ge_u32 s{sI}, 30'); A('s_cbranch_scc1 L_F4_B')
    A(f'buffer_store_dwordx4 v[8:11], v12, {srd("WS")}, s70 offen sc1')
    A('L_F4_B:')
    A(f's_lshl_b32 s62, s{sH}, 3'); A(f's_add_u32 s62, s62, s{sS}'); A('s_mul_i32 s71, s62, 768'); A('s_lshl_b32 s72, s62, 6')
    A('v_lshlrev_b32 v12, 4, v0')
    A(f's_add_u32 s73, s71, {R_O[0]}'); A('v_add_u32 v13, s73, v12')
    A(f's_add_u32 s73, s72, {R_ST[0] - 768}'); A('v_add_u32 v14, s73, v12')
    A('v_cmp_lt_u32 vcc, 47, v0'); A('v_cndmask_b32 v13, v13, v14, vcc')
    A(f's_add_u32 s73, s71, {R_O[1]}'); A('v_add_u32 v15, s73, v12')
    A(f's_add_u32 s73, s72, {R_ST[1] - 768}'); A('v_add_u32 v14, s73, v12')
    A('v_cndmask_b32 v15, v15, v14, vcc')
    A(f's_cmp_ge_u32 s{sI}, 20'); A('s_cbranch_scc1 L_F4_C')
    A(f's_and_b32 s62, s{sI}, 1'); A(f's_lshl_b32 s63, s{sX}, 1'); A('s_add_u32 s62, s62, s63'); A('s_mul_i32 s74, s62, 2560')
    A(f's_lshr_b32 s62, s{sI}, 1'); A('s_lshl_b32 s62, s62, 8'); A('s_add_u32 s74, s74, s62'); A(f's_add_u32 s74, s74, {R_Y}')
    set_exec(0xffff)
    A(f'buffer_store_dwordx4 v[8:11], v12, {srd("WS")}, s74 offen sc1')
    full_exec()
    A('s_branch L_F4_D')
    A('L_F4_C:')
    A(f's_cmp_ge_u32 s{sI}, 26'); A('s_cbranch_scc1 L_F4_D')
    A(f's_mul_i32 s75, s{sX}, 6'); A(f's_add_u32 s75, s75, s{sI}'); A('s_sub_u32 s75, s75, 20')
    A('s_and_b32 s62, s75, 1'); A('s_mul_i32 s74, s62, 3072'); A('s_lshr_b32 s62, s75, 1'); A('s_lshl_b32 s62, s62, 7'); A('s_add_u32 s74, s74, s62'); A(f's_add_u32 s74, s74, {R_HM}')
    set_exec(0xff)
    A(f'buffer_store_dwordx4 v[8:11], v12, {srd("WS")}, s74 offen sc1')
    full_exec()
    A('s_cmp_ge_u32 s75, 8'); A('s_cbranch_scc1 L_F4_D')
    A('s_mul_i32 s63, s75, 160'); A(f's_add_u32 s63, s63, {R_X2}')
    set_exec(0x3ff)
    A(f'buffer_store_dwordx4 v[8:11], v12, {srd("WS")}, s63 offen sc1')
    full_exec()
    A('L_F4_D:')
    set_exec((1 << 52) - 1)
    A(f'buffer_store_dwordx4 v[8:11], v13, {srd("WS")}, 0 offen sc1')
    set_exec((1 << 52) - 1)
    A(f'buffer_store_dwordx4 v[8:11], v15, {srd("WS")}, 0 offen sc1')
    full_exec()
    A('s_barrier')
    A('s_waitcnt vmcnt(0)')
    lds_set(F_CLR)
    stamp(1)
    get_nonce(12)
    A(f'v_mov_b32 v12, s{sN}')
    A(f's_lshl_b32 s70, s{sX}, 5'); A(f's_add_u32 s70, s70, s{sI}'); A('s_lshl_b32 s70, s70, 2'); A(f's_add_u32 s70, s70, {R_CLR}')
    set_exec(1)
    A(f'buffer_store_dword v12, v3, {srd("WS")}, s70 offen sc1')
    full_exec()
    stamp(2)
    A('s_branch L_VSTREAM')
    A('L_F5:')
    A('s_barrier')
    A(f's_cmp_lg_u32 s{sR}, 5'); A('s_cbranch_scc1 L_F6')
    A('s_cmp_ge_u32 s2, 40'); A('s_cbranch_scc1 L_F6')
    A('v_lshrrev_b32 v8, 4, v0'); A('v_lshlrev_b32 v8, 9, v8'); A('v_and_b32 v9, 15, v0'); A('v_lshlrev_b32 v9, 4, v9'); A('v_add_u32 v8, v8, v9')
    A('s_lshl_b32 s64, s2, 11'); A(f's_add_u32 s64, s64, {R_MOD + 20 * 2048}')
    A('s_lshl_b32 s72, s2, 8'); A(f's_add_u32 s72, s72, {R_MF}')
    get_nonce(10)
    def ld():
        A(f'buffer_load_dwordx4 v[12:15], v8, {srd("WS")}, s64 offen sc1')
        A(f'buffer_load_dwordx4 v[16:19], v8, {srd("WS")}, s64 offen offset:256 sc1')
    poll(ld, [], 10, tags=[13, 15, 17, 19], sleep=8)
    vals = [12, 14, 16, 18]
    for sw in ('v_permlane16_swap_b32', 'v_permlane32_swap_b32'):
        for r in vals: A(f'v_mov_b32 v{r+1}, v{r}')
        for r in vals: A(f'{sw} v{r}, v{r+1}')
        for r in vals: A(f'v_add_f32 v{r}, v{r}, v{r+1}')
    A('v_cvt_pk_bf16_f32 v20, v12, v14'); A('v_cvt_pk_bf16_f32 v22, v16, v18'); A(f'v_mov_b32 v21, s{sN}'); A(f'v_mov_b32 v23, s{sN}')
    set_exec(0xffff)
    A(f'buffer_store_dwordx4 v[20:23], v9, {srd("WS")}, s72 offen sc1')
    full_exec()
    stamp(2)
    A('L_F6:')
    if dry:
        for r in list(range(6, 48)): A(f'v_mov_b32 v{r}, 0')
        A(f's_mov_b32 s{sLIVE}, 0'); A('s_mov_b64 exec, 0')
        A(f's_cmp_eq_u32 s{sR}, 5'); A('s_cbranch_scc1 L_F5_K')
        A(f's_cmp_eq_u32 s{sR}, 6'); A('s_cbranch_scc1 L_F6_F')
        A('s_branch L_PV')
        A('L_F5_K:'); A(f's_mov_b32 s{sR}, 0'); A('s_branch L_K_DRY')
        A('L_F6_F:'); A(f's_mov_b32 s{sR}, 0'); kb_pi(); A(f's_mov_b32 s71, {LDS_B}'); A('s_branch L_F01_DRY')
        A('L_DRYRET:')
        A(f's_mov_b32 s{sLIVE}, -1'); A('s_mov_b64 exec, -1'); A(f's_and_b32 s{sR}, s{sW}, 7')
        stamp(1)
    else:
        A('L_DRYRET:')

    VD = 32
    A('L_VSTREAM:')
    A('s_waitcnt vmcnt(0)')
    A(f's_sub_u32 s68, s{sR}, 2'); A('s_cmp_ge_u32 s68, 3'); A('s_cselect_b32 s69, 1, 0')
    A('s_mul_i32 s62, s69, 3'); A('s_sub_u32 s68, s68, s62')
    A('s_mul_i32 s70, s69, 24576'); A(f's_add_u32 s71, s70, {LDS_A}'); A('s_add_u32 s70, s70, s67')
    A('s_lshl_b32 s62, s68, 13'); A('s_add_u32 s71, s71, s62')
    lds_wait(CNT_FREE, vZ, 6, cmp_val=3)
    lds_wait(KISS, vPF, 6)
    stamp(5)
    cnt = 0
    for part in range(3):
        if part < 2:
            A(f's_cmp_lg_u32 s68, {part}'); A(f's_cbranch_scc1 L_VD_{part+1}')
        for k in range(8):
            n = 8 * part + k
            off = (n // 12) * 12288 + ((n % 12) // 3) * 384 + (n % 3) * 128
            A(f's_add_u32 m0, s71, {1024*k}'); A(f's_add_u32 s62, s70, {off}')
            A(f'buffer_load_dwordx4 v2, {srd("V")}, s62 offen {KVPOL} lds')
            if k + 1 >= DV: A(f's_waitcnt vmcnt({DV-1})')
        if part < 2:
            A('s_branch L_VD_E'); A(f'L_VD_{part+1}:')
    A('L_VD_E:')
    def vload(n):
        T, tt, c = n // 12, (n % 12) // 3, n % 3
        A(f'buffer_load_dwordx4 v[{VD+4*n}:{VD+4*n+3}], v2, {srd("V")}, s{65+T} offen offset:{tt*384+c*128} {KVPOL}')
    for n in range(24):
        vload(n)
        if n + 1 < 24 - VFREE:
            if VADAPT and n + 1 > DV:
                A(f'ds_read_b32 v6, v{vPF} offset:{PRDY}')
                A(f's_waitcnt vmcnt({DV-1}) lgkmcnt(0)')
                A('v_readfirstlane_b32 s62, v6'); A('s_cmp_lg_u32 s62, 0'); A(f's_cbranch_scc1 L_VF_{n+1}')
            else:
                A(f's_waitcnt vmcnt({DV-1})')
        if n + 1 == DV: lds_inc(CNT_VD)
    if VADAPT:
        A('s_branch L_VF_E')
        for n in range(DV + 1, 24):
            A(f'L_VF_{n}:'); vload(n)
        A('L_VF_E:')
    lds_inc(VISS)
    if diagV:
        stamp(3); A('s_waitcnt vmcnt(0)'); stamp(4)
    A('L_PV:')
    A('v_and_b32 v14, 7, v0')
    A('v_and_b32 v15, 1, v14'); A('v_lshlrev_b32 v15, 4, v15'); A('v_mov_b32 v10, 0xffff'); A('v_lshlrev_b32 v15, v15, v10')
    A('v_lshrrev_b32 v14, 1, v14')
    for d in range(4):
        A(f'v_cmp_eq_u32 vcc, {d}, v14'); A(f'v_cndmask_b32 v{6+d}, 0, v15, vcc')
    for r in range(12): A(f'v_mov_b32 v{16+r}, 0')
    A('v_lshrrev_b32 v14, 3, v0'); A('v_lshlrev_b32 v14, 4, v14'); A(f's_lshl_b32 s62, s{sR}, 8'); A('v_add_u32 v14, s62, v14')
    A('v_bfe_u32 v1, v0, 4, 1'); A('v_lshlrev_b32 v1, 7, v1'); A('v_and_b32 v15, 7, v0'); A('v_lshl_add_u32 v1, v15, 2, v1')
    A('v_lshrrev_b32 v15, 5, v0'); A('v_lshl_add_u32 v1, v15, 5, v1'); A(f's_mul_i32 s62, s{sR}, 768'); A('v_add_u32 v1, s62, v1')
    A(f's_lshl_b32 s62, s{sH}, 3'); A(f's_add_u32 s62, s62, s{sS}'); A('s_mul_i32 s62, s62, 768')
    A(f's_add_u32 s72, s62, {R_O[0]}'); A(f's_add_u32 s73, s62, {R_O[1]}')
    lds_wait(PRDY, vPF, 15)
    stamp(6)
    for T in range(2):
        A(f'ds_read_b128 v[10:13], v14 offset:{PD + 128*T}')
        A('s_waitcnt lgkmcnt(0)')
        for tt in range(4):
            t = 4 * T + tt
            for d in range(4): A(f'v_and_b32 v{28+d}, v{10+tt}, v{6+d}')
            for c in range(3):
                n = 3 * t + c
                A(f's_waitcnt vmcnt({23-n})')
                A(f'v_mfma_f32_16x16x32_bf16 v[{16+4*c}:{19+4*c}], v[{VD+4*n}:{VD+4*n+3}], v[28:31], v[{16+4*c}:{19+4*c}]')
    A('v_lshlrev_b32 v14, 4, v0')
    for k in range(6): A(f'v_permlane32_swap_b32 v{16+2*k}, v{17+2*k}')
    for k in range(6): A(f'v_add_f32_dpp v{16+2*k}, v{17+2*k}, v{16+2*k} row_ror:8 row_mask:0xf bank_mask:0xf')
    set_exec(0x00ff00ff00ff00ff)
    for k in range(6): A(f'ds_write_b32 v1, v{16+2*k} offset:{RED + 256*(k//2) + 64*(k%2)}')
    set_exec(1)
    A(f'ds_add_rtn_u32 v15, v3, v4 offset:{CNT_O}')
    set_exec((1 << 48) - 1)
    for k in range(8): A(f'ds_read_b128 v[{32+4*k}:{35+4*k}], v14 offset:{RED + 768*k}')
    A('s_waitcnt lgkmcnt(8)')
    A('v_readfirstlane_b32 s62, v15')
    A('s_cbranch_execz L_VRED')
    A('s_cmp_lg_u32 s62, 7'); A('s_cbranch_scc1 L_VEND')
    A('L_VRED:')
    A('s_waitcnt lgkmcnt(0)')
    tree_add(32, 8)
    for r in range(4): A(f'v_or_b32 v{32+r}, 1, v{32+r}')
    A(f'buffer_store_dwordx4 v[32:35], v14, {srd("WS")}, s72 offen')
    A(f'buffer_store_dwordx4 v[32:35], v14, {srd("WS")}, s73 offen sc1')
    lds_set(F_ODONE)
    dry_check('L_DRYRET')
    A('L_VEND:')
    stamp(7)
    flush_stamps()
    A('s_endpgm')

    A('L_KWAVE:')
    KD = 32
    def kload(n):
        T, tt, c = n // 12, (n % 12) // 3, n % 3
        A(f'buffer_load_dwordx4 v[{KD+4*n}:{KD+4*n+3}], v2, {srd("K")}, s{65+T} offen offset:{tt*384+c*128} {KVPOL}')
    KA0 = 12
    for n in range(24):
        kload(n)
        if n + 1 == (SOFT or DK):
            A('s_barrier')
            if SOFT and KW == 'a': lds_wait(F_A, vZ, 6)
            if SOFT and KW == 'b': lds_wait(CNT_B, vZ, 6, cmp_val=2)
        if n + 1 >= DK and n + 1 < 24:
            if KADAPT and n + 1 >= KA0:
                A(f'ds_read_b32 v6, v{vZ} offset:{F_Q}')
                A(f's_waitcnt vmcnt({DK-1}) lgkmcnt(0)')
                A('v_readfirstlane_b32 s62, v6'); A('s_cmp_lg_u32 s62, 0'); A(f's_cbranch_scc1 L_KF_{n+1}')
            else:
                A(f's_waitcnt vmcnt({DK-1})')
    if KADAPT:
        A('s_branch L_KF_E')
        for n in range(KA0, 24):
            A(f'L_KF_{n}:'); kload(n)
        A('L_KF_E:')
    lds_set(KISS, vPF)
    stamp(1)
    A('L_K_DRY:')
    A('v_and_b32 v6, 7, v0'); A('v_lshlrev_b32 v6, 4, v6')
    A(f's_lshl_b32 s62, s{sH}, 6'); A(f's_lshl_b32 s63, s{sS}, 3'); A('s_add_u32 s62, s62, s63'); A(f's_add_u32 s62, s62, s{sR}'); A('s_lshl_b32 s62, s62, 3')
    A(f's_add_u32 s72, s62, {R_ST[0]}'); A(f's_add_u32 s73, s62, {R_ST[1]}')
    def setmask(m, s): A(f's_mov_b32 s{s}, {m}'); A(f's_mov_b32 s{s+1}, {m}')
    setmask(0xf0f0f0f0, 80); setmask(0xaaaaaaaa, 82); setmask(0xcccccccc, 84)
    lds_wait(F_Q, vZ, 7)
    stamp(2)
    for c in range(3): A(f'ds_read_b128 v[{8+4*c}:{11+4*c}], v6 offset:{QV + 128*c}')
    A('s_waitcnt lgkmcnt(0)')
    for tp in range(0, 8, 2):
        A(f's_waitcnt vmcnt({21 - 3*(tp+1)})')
        for c in range(3):
            for d in range(4):
                for t in (tp, tp + 1):
                    kr = KD + 4 * (3 * t + c) + d
                    src2 = '0' if (c == 0 and d == 0) else f'v{20+t}'
                    A(f'v_dot2_f32_bf16 v{20+t}, v{kr}, v{8+4*c+d}, {src2}')
    for j in range(4):
        A(f'v_cndmask_b32 v{8+j}, v{20+j}, v{24+j}, s[80:81]')
        A(f'v_cndmask_b32 v{12+j}, v{24+j}, v{20+j}, s[80:81]')
    for j in range(4): A(f'v_add_f32_dpp v{8+j}, v{12+j}, v{8+j} row_half_mirror row_mask:0xf bank_mask:0xf')
    for jj in (0, 1):
        A(f'v_cndmask_b32 v{12+jj}, v{8+2*jj}, v{9+2*jj}, s[82:83]')
        A(f'v_cndmask_b32 v{14+jj}, v{9+2*jj}, v{8+2*jj}, s[82:83]')
    for jj in (0, 1): A(f'v_add_f32_dpp v{12+jj}, v{14+jj}, v{12+jj} quad_perm:[1,0,3,2] row_mask:0xf bank_mask:0xf')
    A('v_cndmask_b32 v8, v12, v13, s[84:85]'); A('v_cndmask_b32 v9, v13, v12, s[84:85]')
    A('v_add_f32_dpp v8, v9, v8 quad_perm:[2,3,0,1] row_mask:0xf bank_mask:0xf')
    rbf(8, 8); A(f'v_mul_f32 v8, {SCALE}, v8'); rbf(8, 8)
    A('v_mov_b32 v9, v8')
    allreduce([9], 'v_max_f32', [10])
    A('v_sub_f32 v10, v8, v9'); A(f'v_mul_f32 v10, {LOG2E}, v10'); A('v_exp_f32 v10, v10')
    allreduce([10], 'v_add_f32', [11])
    A('v_or_b32 v12, 1, v9'); A('v_mov_b32 v13, v10')
    set_exec(1)
    A(f'buffer_store_dwordx2 v[12:13], v3, {srd("WS")}, s72 offen')
    A(f'buffer_store_dwordx2 v[12:13], v3, {srd("WS")}, s73 offen sc1')
    full_exec()
    stamp(3)
    A('v_mov_b32 v127, v8')
    A(f's_cmp_lt_u32 s{sR}, 2'); A('s_cselect_b32 s62, 8, 0'); A('v_add_u32 v126, s62, v5')
    def emit_p():
        lds_wait(F_ML, vZ, 120)
        A(f'ds_read_b64 v[120:121], v3 offset:{ML}')
        A('v_bfe_u32 v122, v0, 2, 1'); A('v_lshlrev_b32 v122, 5, v122'); A('v_lshrrev_b32 v123, 3, v0'); A('v_lshl_add_u32 v122, v123, 2, v122')
        A('v_and_b32 v123, 3, v0'); A('v_add_u32 v122, v122, v123'); A('v_lshlrev_b32 v122, 2, v122'); A(f's_lshl_b32 s62, s{sR}, 8'); A('v_add_u32 v122, s62, v122')
        A('s_waitcnt lgkmcnt(0)')
        A('v_sub_f32 v127, v127, v120'); A(f'v_mul_f32 v127, {LOG2E}, v127'); A('v_exp_f32 v127, v127')
        fdiv(127, 127, 121, 120, 123, 124, 125)
        A('v_cvt_pk_bf16_f32 v127, v127, v127')
        A(f'ds_write_b32 v122, v127 offset:{PD}')
        lds_set(PRDY, vPF)
        stamp(4)
    A(f's_cmp_lt_u32 s{sI}, 20'); A('s_cbranch_scc1 L_TW')
    A(f's_cmp_lt_u32 s{sI}, 26'); A('s_cbranch_scc1 L_TG')
    branch_if_no_role('L_TNONE')
    A('s_branch L_TD')
    A('L_TNONE:')
    emit_p()
    A('s_branch L_KEND')

    FR = 64
    def wg_common(nk, rows_per_kg):
        A(f's_and_b32 s76, s{sR}, 3'); A(f's_lshr_b32 s77, s{sR}, 2')
        A(f's_mul_i32 s78, s76, {rows_per_kg * 128}'); A(f's_add_u32 s78, s78, {LDS_T}')
        A('v_lshrrev_b32 v12, 2, v0'); A('v_lshlrev_b32 v12, 7, v12'); A('v_and_b32 v13, 3, v0'); A('v_lshl_add_u32 v12, v13, 3, v12'); A('v_add_u32 v12, s78, v12')
        A('v_bfe_u32 v13, v0, 3, 2'); A('s_lshl_b32 s62, s77, 1')
        A('v_xor_b32 v10, s62, v13'); A('v_xor_b32 v11, 1, v10')
        A('v_lshl_add_u32 v10, v10, 5, v12'); A('v_lshl_add_u32 v11, v11, 5, v12')
        A(f's_lshl_b32 s74, s{sR}, 9'); A(f's_add_u32 s74, s74, {STG}')
        A('v_lshrrev_b32 v19, 4, v0'); A('v_lshl_add_u32 v19, v19, 3, s74')
        A('v_lshrrev_b32 v18, 4, v0'); A('v_lshlrev_b32 v18, 4, v18'); A('s_lshl_b32 s62, s76, 8'); A('s_lshl_b32 s63, s77, 7'); A('s_add_u32 s62, s62, s63'); A('v_add_u32 v18, s62, v18')
        A('v_lshlrev_b32 v27, 3, v0')
        A(f's_mul_i32 s62, s77, {rows_per_kg * 64}'); A('s_add_u32 s73, s78, s62')
    def wg_fetch(nk, acc):
        for r in range(8): A(f'v_mov_b32 v{acc+r}, 0')
        A('s_waitcnt vmcnt(0)')
        lds_inc(CNT_TD)
        lds_wait(CNT_TD, vZ, 7, cmp_val=8)
        for u in range(nk):
            for ct in range(2):
                r = FR + (u * 2 + ct) * 4
                for hh in range(2): A(f'ds_read_b64_tr_b16 v[{r+2*hh}:{r+2*hh+1}], v{10+ct} offset:{(32*u+16*hh)*128}')
    def wg_mfma(nk, acc, bb):
        for u in range(nk): A(f'ds_read2_b64 v[{bb+4*u}:{bb+3+4*u}], v19 offset0:{8*u} offset1:{8*u+4}')
        for u in range(nk):
            A(f's_waitcnt lgkmcnt({nk-1-u})')
            for ct in range(2):
                r = FR + (u * 2 + ct) * 4
                A(f'v_mfma_f32_16x16x32_bf16 v[{acc+4*ct}:{acc+3+4*ct}], v[{r}:{r+3}], v[{bb+4*u}:{bb+3+4*u}], v[{acc+4*ct}:{acc+3+4*ct}]')
        set_exec(0x0001000100010001)
        for ct in range(2): A(f'ds_write_b128 v18, v[{acc+4*ct}:{acc+3+4*ct}] offset:{TRED + 64*ct}')
        A('s_waitcnt lgkmcnt(0)')
        barrier()
        A(f's_cmp_lg_u32 s{sR}, 0'); A('s_cbranch_scc1 L_KEND')
        set_exec(0xffffffff)
        for k in range(4): A(f'ds_read_b64 v[{32+2*k}:{33+2*k}], v27 offset:{TRED + 256*k}')
        A('s_waitcnt lgkmcnt(0)')
        tree2(32, 4)

    A('L_TW:')
    wg_common(3, 96)
    dma_addr(128, 1280, 6, 7, 8)
    A(f's_and_b32 s75, s{sI}, 1')
    A(f's_mul_i32 s70, s{sX}, 768'); A('s_mul_i32 s62, s75, 384'); A('s_add_u32 s70, s70, s62'); A('s_mul_i32 s62, s76, 96'); A('s_add_u32 s70, s70, s62')
    A(f's_lshl_b32 s62, s{sX}, 2'); A('s_lshl_b32 s63, s75, 1'); A('s_add_u32 s62, s62, s63'); A('s_lshr_b32 s63, s76, 1'); A('s_add_u32 s62, s62, s63'); A('s_mul_i32 s62, s62, 6144')
    A('s_and_b32 s63, s76, 1'); A('s_mul_i32 s63, s63, 384'); A('s_add_u32 s62, s62, s63')
    A('v_lshl_add_u32 v14, v0, 3, s62'); A('v_add_u32 v15, 3072, v14')
    A('s_mul_i32 s62, s77, 48'); A('s_add_u32 s70, s70, s62'); A('s_mul_i32 s70, s70, 1280')
    A(f's_lshr_b32 s62, s{sI}, 1'); A('s_lshl_b32 s62, s62, 7'); A('s_add_u32 s70, s70, s62')
    A('v_lshl_add_u32 v16, v0, 2, s74')
    A(f's_lshl_b32 s63, s{sX}, 1'); A('s_add_u32 s63, s63, s75'); A('s_mul_i32 s75, s63, 2560'); A('s_lshl_b32 s62, s62, 1'); A('s_add_u32 s75, s75, s62'); A(f's_add_u32 s75, s75, {R_Y}')
    emit_p()
    tail_gate(TW)
    dma_issue(6, 'WO', 6, 70, 8 * 1280, 73, pace=TDEPTH, pol=TPOL)
    wg_fetch(3, 112)
    stamp(5)
    lds_wait(F_ODONE, vZ, 7)
    set_exec((1 << 48) - 1)
    def ld():
        for n in range(8): A(f'buffer_load_dwordx2 v[{32+2*n}:{33+2*n}], v{14 + n//4}, {srd("WS")}, s64 offen offset:{768*(n%4)} sc1')
    poll(ld, list(range(32, 48)), 7, regionAB=R_O, sleep=0)
    stamp(6)
    tree2(32, 8)
    A('v_cvt_pk_bf16_f32 v36, v32, v33')
    A('ds_write_b32 v16, v36')
    full_exec()
    wg_mfma(3, 112, 40)
    for r in range(2): A(f'v_or_b32 v{32+r}, 1, v{32+r}')
    A(f'buffer_store_dwordx2 v[32:33], v27, {srd("WS")}, s75 offen sc1')
    if YTH:
        set_exec(1)
        A(f'buffer_atomic_add v4, v3, {srd("DBG")}, 0 offen offset:128 sc1')
    A('s_branch L_KEND')

    A('L_TG:')
    A(f's_mul_i32 s75, s{sX}, 6'); A(f's_add_u32 s75, s75, s{sI}'); A('s_sub_u32 s75, s75, 20')
    wg_common(5, 160)
    A('s_bitcmp1_b32 s75, 0')
    A(f's_cselect_b32 s68, s{SRD["WU"]}, s{SRD["WG"]}'); A(f's_cselect_b32 s69, s{SRD["WU"]+1}, s{SRD["WG"]+1}')
    A(f's_mov_b32 s70, {SIZE["WG"]}'); A('s_mov_b32 s71, 0x20000'); G_SRD = 's[68:71]'
    dma_addr(128, 3072, 6, 7, 8)
    A('s_mul_i32 s72, s76, 160'); A('s_mul_i32 s62, s77, 80'); A('s_add_u32 s72, s72, s62'); A('s_mul_i32 s72, s72, 3072')
    A('s_lshr_b32 s62, s75, 1'); A('s_lshl_b32 s62, s62, 7'); A('s_add_u32 s72, s72, s62')
    A('s_and_b32 s63, s75, 1'); A('s_mul_i32 s63, s63, 3072'); A('s_add_u32 s62, s62, s63'); A(f's_add_u32 s84, s62, {R_HM}')
    A('v_min_u32 v7, 39, v0')
    A(f's_mul_i32 s62, s{sR}, 160'); A('v_lshl_add_u32 v14, v7, 2, s62')
    A(f'buffer_load_dword v28, v14, {srd("X")}, 0 offen')
    A('v_lshlrev_b32 v17, 1, v14')
    A('v_add_u32 v26, 20480, v17')
    A('s_mul_i32 s62, s76, 320'); A('v_lshl_add_u32 v30, v7, 3, s62')
    A('v_lshlrev_b32 v31, 1, v30')
    A('v_lshl_add_u32 v16, v0, 3, s74')
    A('v_lshlrev_b32 v15, 4, v0'); A('v_lshlrev_b32 v9, 2, v0')
    A('v_mov_b32 v29, 0x3acccccd'); A('v_mov_b32 v8, 0x80000000')
    emit_p()
    lds_wait(F_MV, vZ, 7)
    A(f'ds_read_b64 v[20:21], v17 offset:{MODV}')
    A(f'ds_read_b128 v[104:107], v31 offset:{MODV + 2560}'); A(f'ds_read_b128 v[108:111], v31 offset:{MODV + 5120}')
    tail_gate(TG)
    dma_issue(10, G_SRD, 6, 72, 8 * 3072, 73, pace=TDEPTH, pol=TPOL)
    wg_fetch(5, 112)
    unpack2(22, 28)
    stamp(5)
    for k in range(4): A(f's_mov_b32 s{80+k}, {R_Y + 5120*k}')
    lds_wait(F_ODONE, vZ, 7)
    y_hint(YTH, 'G')
    set_exec((1 << 40) - 1)
    def ld():
        for n in range(16):
            A(f'buffer_load_dwordx2 v[{32+2*n}:{33+2*n}], v{17 if n < 8 else 26}, {srd("WS")}, s{80 + (n%8)//2} offen offset:{2560*(n%2)} sc1')
    poll(ld, list(range(32, 64)), 7)
    stamp(6)
    tree2(32, 16)
    rbf2(32, 32, 36)
    pk('mul', 32, 32, 20)
    rbf2(32, 32, 36)
    pk('add', 32, 32, 22)
    A('v_cvt_pk_bf16_f32 v37, v32, v33')
    A(f'ds_write_b32 v14, v37 offset:{X2P}')
    full_exec()
    A('s_waitcnt lgkmcnt(0)')
    barrier()
    A(f'ds_read_b128 v[32:35], v15 offset:{X2P}'); A(f'ds_read_b32 v36, v9 offset:{X2P+1024}')
    A(f'ds_read_b64 v[38:39], v30 offset:{X2P}')
    A(f's_cmp_lg_u32 s{sR}, s75'); A('s_cbranch_scc1 L_TG_NX')
    set_exec((1 << 40) - 1)
    A('v_cmp_eq_u32 vcc, 0, v37'); A('v_cndmask_b32 v37, v37, v8, vcc'); A(f's_mov_b32 s62, {R_X2}')
    A(f'buffer_store_dword v37, v14, {srd("WS")}, s62 offen sc1')
    full_exec()
    A('L_TG_NX:')
    A('s_waitcnt lgkmcnt(1)')
    ln_stats_pk([32, 33, 34, 35, 36], 48, 29)
    A('s_waitcnt lgkmcnt(0)')
    unpack4(44, 38)
    ln_apply_pk(44, 48)
    for h in (0, 2): pk('mul', 44 + h, 44 + h, 108 + h)
    rbf4(44, 44)
    for h in (0, 2): pk('add', 44 + h, 44 + h, 104 + h)
    A('v_cvt_pk_bf16_f32 v36, v44, v45'); A('v_cvt_pk_bf16_f32 v37, v46, v47')
    A('ds_write_b64 v16, v[36:37]')
    wg_mfma(5, 112, 40)
    A('v_cvt_pk_bf16_f32 v36, v32, v33')
    A('v_cmp_eq_u32 vcc, 0, v36'); A('v_cndmask_b32 v36, v36, v8, vcc')
    A(f'buffer_store_dword v36, v9, {srd("WS")}, s84 offen sc1')
    A('s_branch L_KEND')

    A('L_TD:')
    d_index()
    dma_addr(32, 1280, 6, 7, 8)
    A(f's_mul_i32 s77, s{sR}, {192 * 1280}'); A('s_lshl_b32 s62, s75, 5'); A('s_add_u32 s77, s77, s62')
    A(f's_mul_i32 s78, s{sR}, 6144'); A(f's_add_u32 s78, s78, {LDS_T}')
    A('v_lshl_add_u32 v10, v0, 3, s78')
    A('v_and_b32 v14, 7, v0'); A('v_lshlrev_b32 v9, 3, v14')
    A(f's_mul_i32 s62, s{sH}, 6144'); A('v_mul_u32_u24 v11, 768, v14'); A('v_add_u32 v11, s62, v11')
    A('s_lshl_b32 s62, s75, 5'); A('v_lshl_add_u32 v14, v14, 2, s62')
    A(f's_mul_i32 s62, s{sR}, 384'); A('v_lshl_add_u32 v17, v0, 3, s62')
    A(f'v_add_u32 v18, {R_X2 - R_HM}, v14')
    A('v_lshrrev_b32 v28, 4, v0'); A('v_lshlrev_b32 v28, 4, v28'); A(f's_lshl_b32 s62, s{sR}, 6'); A('v_add_u32 v28, s62, v28')
    A(f's_lshl_b32 s74, s{sR}, 9'); A(f's_add_u32 s74, s74, {STG}')
    A('v_lshl_add_u32 v16, v0, 3, s74')
    A('v_lshrrev_b32 v19, 4, v0'); A('v_lshl_add_u32 v19, v19, 3, s74')
    emit_p()
    lds_wait(F_MV, vZ, 7)
    A(f'ds_read_b64 v[20:21], v9 offset:{MODV}')
    if TD == 't':
        A(f's_cmp_lg_u32 s{sR}, 0'); A('s_cbranch_scc1 L_TD_W')
        lds_wait(F_ODONE, vZ, 7)
        set_exec(0xff)
        poll(lambda: A(f'buffer_load_dword v12, v11, {srd("WS")}, s64 offen sc1'), [12], 7, regionAB=R_O, sleep=1)
        full_exec()
        lds_set(CNT_TD)
        A('L_TD_W:')
        lds_wait(CNT_TD, vZ, 7)
    else:
        tail_gate(TD)
    dma_issue(6, 'WD', 6, 77, 32 * 1280, 78, pace=TDEPTH, pol=TPOL)
    for r in range(4): A(f'v_mov_b32 v{24+r}, 0')
    A('s_waitcnt vmcnt(0)')
    for u in range(6):
        r = FR + u * 4
        for hh in range(2): A(f'ds_read_b64_tr_b16 v[{r+2*hh}:{r+2*hh+1}], v10 offset:{(32*u+16*hh)*32}')
    stamp(5)
    lds_wait(F_ODONE, vZ, 7)
    y_hint(160 if YTH else 0, 'D')
    A(f's_mov_b32 s64, {R_HM}')
    set_exec((1 << 48) - 1)
    def ld():
        A(f'buffer_load_dwordx2 v[32:33], v17, {srd("WS")}, s64 offen sc1')
        A(f'buffer_load_dwordx2 v[34:35], v17, {srd("WS")}, s64 offen offset:3072 sc1')
        A(f'buffer_load_dword v36, v18, {srd("WS")}, s64 offen sc1')
    poll(ld, [32, 33, 34, 35, 36], 7)
    stamp(6)
    unpack4(40, 32); unpack4(44, 34)
    for h in (0, 2): pk('mul', 40 + h, 40 + h, 44 + h)
    A('v_cvt_pk_bf16_f32 v32, v40, v41'); A('v_cvt_pk_bf16_f32 v33, v42, v43')
    A('ds_write_b64 v16, v[32:33]')
    full_exec()
    for u in range(6): A(f'ds_read2_b64 v[{40+4*u}:{43+4*u}], v19 offset0:{8*u} offset1:{8*u+4}')
    unpack2(38, 36)
    for u in range(6):
        r = FR + u * 4
        A(f's_waitcnt lgkmcnt({5-u})')
        A(f'v_mfma_f32_16x16x32_bf16 v[24:27], v[{r}:{r+3}], v[{40+4*u}:{43+4*u}], v[24:27]')
    set_exec(0x0001000100010001)
    A(f'ds_write_b128 v28, v[24:27] offset:{TRED}')
    A('s_waitcnt lgkmcnt(0)')
    barrier()
    A(f's_cmp_lg_u32 s{sR}, 0'); A('s_cbranch_scc1 L_KEND')
    set_exec(0xff)
    for k in range(8): A(f'ds_read_b64 v[{64+2*k}:{65+2*k}], v9 offset:{TRED + 64*k}')
    A('s_waitcnt lgkmcnt(0)')
    tree2(64, 8)
    rbf2(64, 64, 68)
    pk('mul', 64, 64, 20)
    rbf2(64, 64, 68)
    pk('add', 64, 64, 38)
    A('v_cvt_pk_bf16_f32 v68, v64, v65')
    A(f'buffer_store_dword v68, v14, {srd("OUT")}, 0 offen')
    A('L_KEND:')
    dry_check('L_DRYRET')
    stamp(7)
    flush_stamps()
    A('L_END:')
    A('s_endpgm')
    A('.section .rodata,"a"'); A('.p2align 6'); A(f'.amdhsa_kernel {NAME}_kernel')
    A('  .amdhsa_next_free_vgpr 128'); A('  .amdhsa_next_free_sgpr 102'); A('  .amdhsa_accum_offset 128')
    A('  .amdhsa_group_segment_fixed_size 0'); A('  .amdhsa_kernarg_size 112'); A('  .amdhsa_user_sgpr_count 2')
    A('  .amdhsa_user_sgpr_kernarg_segment_ptr 1'); A('  .amdhsa_system_sgpr_workgroup_id_x 1')
    A('  .amdhsa_float_denorm_mode_32 3'); A('  .amdhsa_float_denorm_mode_16_64 3')
    A('.end_amdhsa_kernel')
    return A.finish()

if __name__ == '__main__':
    import argparse
    ap = argparse.ArgumentParser()
    ap.add_argument('-o', default='cdna_kernels/' + NAME + '.s')
    ap.add_argument('--stamps', action='store_true')
    ap.add_argument('--cfg', default='')
    a = ap.parse_args()
    open(a.o, 'w').write(gen(stamps=a.stamps, **eval('dict(' + a.cfg + ')')))
```

```python
import sys
from asmfw import Asm
NAME = 'adaLN_cond__gqa_block_cached__glu_gated_bilinear__decode'
HEADER_COMMENT = open('cdna_kernels/' + NAME + '.s.ref').read().split('; Override launch')[0]

R_MOD = 0xE0000; R_Y = 0x00000; R_HM = 0x10000; R_X2 = 0x12000; R_CLR = 0x18000; R_MF = 0x1A000
R_Q = (0x20000, 0x40000); R_ST = (0x60000, 0x64000); R_O = (0x70000, 0xA0000)
R_DBG = 0x200000
F_N, F_H, F_Q, F_ML, F_CLR, CNT_O, F_ODONE, CNT_FREE, CNT_VD, F_MV, CNT_TD, F_A, CNT_B, F_YH = 0, 4, 8, 12, 16, 20, 24, 28, 32, 36, 40, 44, 48, 52
KISS, VISS, PRDY, ML = 64, 96, 128, 192
SC, HV, QV, PD, OACC = 0x100, 0x280, 0x380, 0x800, 0x1000
X2P, TRED, STG, MODV, RED = 0x1400, 0x1A00, 0x2000, 0x3000, 0x1000
ONES = 0x3f803f80
LDS_A, LDS_B, LDS_T = 0x6000, 0xB000, 0x13000
LDS_SIZE = 0x27000
SRD = dict(X=4, K=8, V=12, WQ=16, WO=20, WG=24, WU=28, WD=32, C=36, WMOD=40, OUT=44, DBG=48, WS=52)
KARG = dict(X=0, K=8, V=16, WQ=24, WO=32, WG=48, WU=56, WD=64, C=72, WMOD=80, OUT=88, DBG=96, WS=104)
SIZE = dict(X=1280, K=50331648, V=50331648, WQ=7864320, WO=7864320, WG=1966080, WU=1966080, WD=1966080, C=1280,
            WMOD=4915200, OUT=1280, DBG=256, WS=268435456)
def srd(n): return f's[{SRD[n]}:{SRD[n]+3}]'
sW, sX, sI, sH, sS, sR = 56, 57, 58, 59, 60, 61
sN, sLIVE = 79, 3
LOG2E = 0x3fb8aa3b
SCALE = 0x3d93cd3a
SPIN_MAX = 20000

def gen(DK=3, DV=4, VISS_AT=24, stamps=False, sleep_poll=1, NSLEEP=4, dry=False, TW='v', TG='v', TD='t', TDEPTH=99, TPOL='nt', VFREE=0, diagV=False, VADAPT=True, KADAPT=True, SOFT=2, FA_AT=10, FB_AT=8, KW='b', YTH=0, KVPOL='nt', FPOL='nt', dbg=False):
    A = Asm()
    vZ, vONE, vPF = 3, 4, 5
    def stamp(idx):
        if stamps: A(f's_memrealtime s[{86 + 2*idx}:{87 + 2*idx}]')
    def flush_stamps():
        if not stamps: return
        A('s_waitcnt lgkmcnt(0)')
        A(f's_lshl_b32 s62, s2, 4'); A(f's_add_u32 s62, s62, s{sW}'); A('s_lshl_b32 s62, s62, 5'); A(f's_add_u32 s62, s62, {R_DBG}')
        A('s_mov_b64 exec, 1')
        for k in range(8): A(f'v_mov_b32 v{8+k}, s{86+2*k}')
        A('v_mov_b32 v1, 0')
        A(f'buffer_store_dwordx4 v[8:11], v1, {srd("WS")}, s62 offen')
        A(f'buffer_store_dwordx4 v[12:15], v1, {srd("WS")}, s62 offen offset:16')
    def dstamp(slot, wg, wave=None, vt=(1, 125)):
        if not dbg: return
        L = A.label('DS')
        A(f's_cmp_lg_u32 s2, {wg}'); A(f's_cbranch_scc1 {L}')
        if wave is not None: A(f's_cmp_lg_u32 s{sW}, {wave}'); A(f's_cbranch_scc1 {L}')
        A('s_mov_b64 s[98:99], exec'); A('s_mov_b64 exec, 1')
        A('s_memrealtime s[96:97]')
        A(f'ds_read_b32 v{vt[1]}, v3 offset:{F_N}')
        A('s_waitcnt lgkmcnt(0)')
        A(f'v_sub_u32 v{vt[1]}, s96, v{vt[1]}')
        A(f'buffer_store_dword v{vt[1]}, v3, {srd("DBG")}, 0 offen offset:{4*slot} sc1')
        A('s_mov_b64 exec, s[98:99]')
        A(f'{L}:')
    def set_exec(mask):
        lo, hi = mask & 0xffffffff, mask >> 32
        for nm, m in (('exec_lo', lo), ('exec_hi', hi)):
            if m == 0xffffffff: A(f's_mov_b32 {nm}, s{sLIVE}')
            elif m == 0: A(f's_mov_b32 {nm}, 0')
            else: A(f's_and_b32 {nm}, s{sLIVE}, {m}')
    def full_exec(): set_exec((1 << 64) - 1)
    def barrier():
        L = A.label('BR')
        A(f's_cbranch_execz {L}'); A('s_barrier'); A(f'{L}:')
    def lds_wait(off, vz, vt, cmp_val=None):
        L = A.label('LW'); D = A.label('LWD')
        A('s_mov_b32 s63, 0')
        A(f's_cbranch_execz {D}')
        A(f'{L}:')
        A(f'ds_read_b32 v{vt}, v{vz} offset:{off}')
        A('s_waitcnt lgkmcnt(0)')
        A(f'v_readfirstlane_b32 s62, v{vt}')
        if cmp_val is None: A('s_cmp_lg_u32 s62, 0')
        else: A(f's_cmp_ge_u32 s62, {cmp_val}')
        A(f's_cbranch_scc1 {D}')
        A('s_sleep 1')
        A('s_add_u32 s63, s63, 1'); A(f's_cmp_lt_u32 s63, {SPIN_MAX * 8}'); A(f's_cbranch_scc1 {L}')
        A(f'{D}:')
    def lds_set(off, vz=vZ): A(f'ds_write_b32 v{vz}, v{vONE} offset:{off}')
    def lds_inc(off):
        set_exec(1); A(f'ds_add_u32 v{vZ}, v{vONE} offset:{off}'); full_exec()
    def poll(loads, regs, vt, regionAB=None, sleep=None, tags=(), vt2=None):
        L = A.label('PL'); D = A.label('PD')
        A('s_mov_b32 s63, 0')
        A(f'{L}:')
        if regionAB:
            A('s_and_b32 s62, s63, 7'); A('s_cmp_eq_u32 s62, 7')
            A(f's_mov_b32 s64, {regionAB[0]}'); A(f's_cselect_b32 s64, {regionAB[1]}, s64')
        loads()
        A('s_waitcnt vmcnt(0)')
        r = list(regs); first = True
        while r:
            if first:
                if len(r) >= 3: A(f'v_min3_u32 v{vt}, v{r[0]}, v{r[1]}, v{r[2]}'); r = r[3:]
                elif len(r) == 2: A(f'v_min_u32 v{vt}, v{r[0]}, v{r[1]}'); r = []
                else: A(f'v_mov_b32 v{vt}, v{r[0]}'); r = []
                first = False
            elif len(r) >= 2: A(f'v_min3_u32 v{vt}, v{vt}, v{r[0]}, v{r[1]}'); r = r[2:]
            else: A(f'v_min_u32 v{vt}, v{vt}, v{r[0]}'); r = []
        if regs: A(f'v_cmp_eq_u32 vcc, 0, v{vt}')
        if tags:
            tg = list(tags)
            x = vt2 if regs else vt
            A(f'v_xor_b32 v{x}, s{sN}, v{tg[0]}')
            for tr in tg[1:]: A(f'v_xor_b32 v{tr}, s{sN}, v{tr}')
            rest = tg[1:]
            while rest:
                if len(rest) >= 2: A(f'v_or3_b32 v{x}, v{x}, v{rest[0]}, v{rest[1]}'); rest = rest[2:]
                else: A(f'v_or_b32 v{x}, v{x}, v{rest[0]}'); rest = []
            if regs: A(f'v_cmp_ne_u32 s[82:83], 0, v{x}'); A('s_or_b64 vcc, vcc, s[82:83]')
            else: A(f'v_cmp_ne_u32 vcc, 0, v{x}')
        A(f's_cbranch_vccz {D}')
        sl = sleep_poll if sleep is None else sleep
        if sl: A(f's_sleep {sl}')
        A('s_add_u32 s63, s63, 1'); A(f's_cmp_lt_u32 s63, {SPIN_MAX}'); A(f's_cbranch_scc1 {L}')
        A(f'{D}:')
    def rbf(dst, src):
        A(f'v_cvt_pk_bf16_f32 v{dst}, v{src}, v{src}')
        A(f'v_and_b32 v{dst}, 0xffff0000, v{dst}')
    def rbf4(dst, src):
        for h in range(2):
            A(f'v_cvt_pk_bf16_f32 v{dst+2*h+1}, v{src+2*h}, v{src+2*h+1}')
        for h in range(2):
            A(f'v_lshlrev_b32 v{dst+2*h}, 16, v{dst+2*h+1}')
            A(f'v_and_b32 v{dst+2*h+1}, 0xffff0000, v{dst+2*h+1}')
    def allreduce(regs, op, tmp):
        for pat in ('quad_perm:[1,0,3,2]', 'quad_perm:[2,3,0,1]', 'row_half_mirror', 'row_mirror'):
            for r in regs: A(f'{op}_dpp v{r}, v{r}, v{r} {pat} row_mask:0xf bank_mask:0xf')
        for sw in ('v_permlane16_swap_b32', 'v_permlane32_swap_b32'):
            for r, t in zip(regs, tmp): A(f'v_mov_b32 v{t}, v{r}')
            for r, t in zip(regs, tmp): A(f'{sw} v{r}, v{t}')
            for r, t in zip(regs, tmp): A(f'{op} v{r}, v{r}, v{t}')
    def reduce_sgpr(regs, op, sdst):
        for pat in ('quad_perm:[1,0,3,2]', 'quad_perm:[2,3,0,1]', 'row_half_mirror', 'row_mirror'):
            for r in regs: A(f'{op}_dpp v{r}, v{r}, v{r} {pat} row_mask:0xf bank_mask:0xf')
        for r in regs: A(f'{op}_dpp v{r}, v{r}, v{r} row_bcast:15 row_mask:0xa bank_mask:0xf')
        for r in regs: A(f'{op}_dpp v{r}, v{r}, v{r} row_bcast:31 row_mask:0xc bank_mask:0xf')
        for r, sd in zip(regs, sdst): A(f'v_readlane_b32 s{sd}, v{r}, 63')
    def unpack2(dst, src):
        A(f'v_lshlrev_b32 v{dst}, 16, v{src}'); A(f'v_and_b32 v{dst+1}, 0xffff0000, v{src}')
    def rbf2(dst, src, t):
        A(f'v_cvt_pk_bf16_f32 v{t}, v{src}, v{src+1}'); unpack2(dst, t)
    def pk(op, d, a, b, bcast=False, negb=False):
        m = ''
        if bcast: m += ' op_sel_hi:[1,0]'
        if negb: m += ' neg_lo:[0,1] neg_hi:[0,1]'
        A(f'v_pk_{op}_f32 v[{d}:{d+1}], v[{a}:{a+1}], v[{b}:{b+1}]{m}')
    def tree2(base, n):
        step = 1
        while step < n:
            for k in range(0, n, 2 * step): pk('add', base + 2 * k, base + 2 * k, base + 2 * (k + step))
            step *= 2
    def ln_stats_pk(xs, vm, vinv):
        a, b = vm, vm + 1
        A(f's_mov_b32 s62, {ONES}')
        for k, r in enumerate(xs):
            A(f'v_dot2_f32_bf16 v{a}, v{r}, s62, ' + ('0' if k == 0 else f'v{a}'))
            A(f'v_dot2_f32_bf16 v{b}, v{r}, v{r}, ' + ('0' if k == 0 else f'v{b}'))
        reduce_sgpr([a, b], 'v_add_f32', [62, 63])
        A(f'v_mul_f32 v{a}, s62, v{vinv}'); A(f'v_mul_f32 v{b}, s63, v{vinv}')
        A(f'v_fma_f32 v{b}, -v{a}, v{a}, v{b}')
        A(f'v_max_f32 v{b}, 0, v{b}')
        rbf2(a, a, vm + 3)
        A(f'v_add_f32 v{b}, 0x3727c5ac, v{b}')
        rbf(b, b)
        A(f'v_sqrt_f32 v{b}, v{b}')
        rbf(b, b)
        A(f'v_rcp_f32 v{vm+2}, v{b}')
    def ln_apply_pk(b4, vm):
        for h in (0, 2): pk('add', b4 + h, b4 + h, vm, bcast=True, negb=True)
        rbf4(b4, b4)
        for h in (0, 2): pk('mul', b4 + h, b4 + h, vm + 2, bcast=True)
        rbf4(b4, b4)
    def tr_addr(RS, vdst, vt0, vt1, base_sgpr=None, base_imm=0):
        T = RS // 32
        A(f'v_lshrrev_b32 v{vt0}, 2, v0'); A(f'v_mul_u32_u24 v{vt0}, {RS}, v{vt0}')
        A(f'v_and_b32 v{vt1}, 3, v0'); A(f'v_lshl_add_u32 v{vt0}, v{vt1}, 3, v{vt0}')
        if base_sgpr is not None: A(f'v_add_u32 v{vt0}, s{base_sgpr}, v{vt0}')
        if base_imm: A(f'v_add_u32 v{vt0}, {base_imm}, v{vt0}')
        if RS == 128: A(f'v_bfe_u32 v{vt1}, v0, 3, 2')
        elif RS == 64: A(f'v_bfe_u32 v{vt1}, v0, 4, 1')
        for ct in range(T):
            A(f'v_xor_b32 v{vdst+ct}, {ct}, v{vt1}')
            A(f'v_lshl_add_u32 v{vdst+ct}, v{vdst+ct}, 5, v{vt0}')
    def dma_addr(RS, rowstride, vdst, vt0, vt1):
        cpr = RS // 16; lg = cpr.bit_length() - 1
        A(f'v_lshrrev_b32 v{vt0}, {lg}, v0'); A(f'v_and_b32 v{vt1}, {cpr - 1}, v0')
        if RS == 128:
            A(f'v_bfe_u32 v{vdst}, v{vt0}, 1, 2'); A(f'v_lshlrev_b32 v{vdst}, 1, v{vdst}'); A(f'v_xor_b32 v{vt1}, v{vt1}, v{vdst}')
        elif RS == 64:
            A(f'v_bfe_u32 v{vdst}, v{vt0}, 2, 1'); A(f'v_lshlrev_b32 v{vdst}, 1, v{vdst}'); A(f'v_xor_b32 v{vt1}, v{vt1}, v{vdst}')
        A(f'v_mul_u32_u24 v{vt0}, {rowstride}, v{vt0}')
        A(f'v_lshl_add_u32 v{vdst}, v{vt1}, 4, v{vt0}')
    def dma_issue(n, sr, vaddr, s_goff, gstep, s_lds, lds_imm=0, pace=0, pol='nt'):
        sr = srd(sr) if sr in SRD else sr
        L = A.label('DS')
        A(f's_cbranch_execz {L}')
        for k in range(n):
            if s_lds is None: A(f's_mov_b32 m0, {lds_imm + 1024 * k}')
            else: A(f's_add_u32 m0, s{s_lds}, {lds_imm + 1024 * k}')
            A(f'buffer_load_dwordx4 v{vaddr}, {sr}, s{s_goff} offen {pol} lds')
            if k + 1 < n: A(f's_add_u32 s{s_goff}, s{s_goff}, {gstep}')
            if pace and k + 1 >= pace and k + 1 < n: A(f's_waitcnt vmcnt({pace-1})')
        A(f'{L}:')
    def tail_gate(mode):
        if mode == 'v': lds_wait(VISS, vZ, 7, cmp_val=6)
        elif mode == 'o': lds_wait(F_ODONE, vZ, 7)
    def y_hint(th, tag):
        if not th: return
        A(f's_cmp_lg_u32 s{sR}, 0'); A(f's_cbranch_scc1 L_YH_{tag}')
        L = A.label('YH'); D = A.label('YHD')
        set_exec(1)
        A('s_mov_b32 s63, 0')
        A(f'{L}:')
        A(f'buffer_load_dword v7, v3, {srd("DBG")}, 0 offen offset:128 sc1')
        A('s_waitcnt vmcnt(0)')
        A('v_readfirstlane_b32 s62, v7'); A(f's_cmp_ge_u32 s62, {th}'); A(f's_cbranch_scc1 {D}')
        A('s_sleep 2')
        A('s_add_u32 s63, s63, 1'); A(f's_cmp_lt_u32 s63, {SPIN_MAX}'); A(f's_cbranch_scc1 {L}')
        A(f'{D}:')
        full_exec()
        lds_set(F_YH)
        A(f'L_YH_{tag}:')
        lds_wait(F_YH, vZ, 7)
    def merge4(acc, dst):
        for r in range(4): A(f'v_mov_b32 v{dst+r}, v{acc+r}')
        for ct in (1, 2, 3):
            m = 0x00010001 << ct
            A(f's_mov_b32 s80, {m}'); A(f's_mov_b32 s81, {m}')
            for r in range(4): A(f'v_cndmask_b32 v{dst+r}, v{dst+r}, v{acc+4*ct+r}, s[80:81]')
    def mod_addr(vdst, vcol, vt):
        A(f'v_lshrrev_b32 v{vt}, 6, v{vcol}'); A(f'v_lshlrev_b32 v{vt}, 11, v{vt}')
        A(f'v_and_b32 v{vdst}, 63, v{vcol}'); A(f'v_lshl_add_u32 v{vdst}, v{vdst}, 2, v{vt}')
    def mod_loads(vaddr, quads, nks, so='s64'):
        for ks in range(nks):
            for hf in range(2):
                q = quads[2 * ks + hf]
                A(f'buffer_load_dwordx4 v[{q}:{q+3}], v{vaddr}, {srd("WS")}, {so} offen offset:{512*ks+256*hf} sc1')
    def mod_tags(quads): return [q + 1 for q in quads] + [q + 3 for q in quads]
    def mod_sum(dst, quads, nks):
        for hf in range(2):
            for e in range(2):
                r = [quads[2 * ks + hf] + 2 * e for ks in range(nks)]
                d = dst + 2 * hf + e
                if nks == 2: A(f'v_add_f32 v{d}, v{r[0]}, v{r[1]}')
                else:
                    A(f'v_add_f32 v{r[0]}, v{r[0]}, v{r[1]}'); A(f'v_add_f32 v{r[2]}, v{r[2]}, v{r[3]}'); A(f'v_add_f32 v{d}, v{r[0]}, v{r[2]}')
    def get_nonce(vt):
        lds_wait(F_N, vZ, vt); A(f's_mov_b32 s{sN}, s62')
    def tree_add(base, n):
        step = 1
        while step < n:
            for k in range(0, n, 2 * step):
                for h2 in range(2):
                    a = base + 4 * k + 2 * h2; b = base + 4 * (k + step) + 2 * h2
                    A(f'v_pk_add_f32 v[{a}:{a+1}], v[{a}:{a+1}], v[{b}:{b+1}]')
            step *= 2
    def half_swap_add(base, tmp):
        for r in range(4): A(f'v_mov_b32 v{tmp+r}, v{base+r}')
        for r in range(4): A(f'v_permlane32_swap_b32 v{base+r}, v{tmp+r}')
        for h2 in range(2): A(f'v_pk_add_f32 v[{base+2*h2}:{base+1+2*h2}], v[{base+2*h2}:{base+1+2*h2}], v[{tmp+2*h2}:{tmp+1+2*h2}]')
    def fdiv(dst, num, den, t0, t1, t2, t3):
        A(f'v_rcp_f32 v{t0}, v{den}')
        A(f'v_mul_f32 v{t1}, v{num}, v{t0}')
        A(f'v_fma_f32 v{t2}, -v{t1}, v{den}, v{num}')
        A(f'v_fma_f32 v{t3}, v{t2}, v{t0}, v{t1}')
        A(f'v_cmp_o_f32 vcc, v{t3}, v{t3}')
        A(f'v_cndmask_b32 v{dst}, v{t1}, v{t3}, vcc')
    def ln_stats(xs, vm, vs, t0, t1):
        A(f'v_readfirstlane_b32 s62, v{xs[0]}')
        for r in xs: A(f'v_subrev_f32 v{r}, s62, v{r}')
        A(f'v_add_f32 v{vm}, v{xs[0]}, v{xs[1]}'); A(f'v_mul_f32 v{vs}, v{xs[0]}, v{xs[0]}')
        for k, r in enumerate(xs):
            if k >= 2: A(f'v_add_f32 v{vm}, v{vm}, v{r}')
            if k >= 1: A(f'v_fmac_f32 v{vs}, v{r}, v{r}')
        allreduce([vm, vs], 'v_add_f32', [t0, t1])
        inv = 0x3acccccd
        A(f'v_mul_f32 v{vm}, {inv}, v{vm}'); A(f'v_mul_f32 v{vs}, {inv}, v{vs}')
        A(f'v_fma_f32 v{vs}, -v{vm}, v{vm}, v{vs}')
        A(f'v_max_f32 v{vs}, 0, v{vs}')
        A(f'v_add_f32 v{vm}, s62, v{vm}')
        rbf(vm, vm); rbf(vs, vs)
        A(f'v_add_f32 v{vs}, 0x3727c5ac, v{vs}')
        rbf(vs, vs)
        A(f'v_sqrt_f32 v{vs}, v{vs}')
        rbf(vs, vs)
        A(f'v_rcp_f32 v{vs}, v{vs}')
    def ln_apply(b4, vm, vs):
        for r in range(4): A(f'v_sub_f32 v{b4+r}, v{b4+r}, v{vm}')
        rbf4(b4, b4)
        for r in range(4): A(f'v_mul_f32 v{b4+r}, v{b4+r}, v{vs}')
        rbf4(b4, b4)
    def unpack4(dst, src):
        A(f'v_lshlrev_b32 v{dst}, 16, v{src}'); A(f'v_and_b32 v{dst+1}, 0xffff0000, v{src}')
        A(f'v_lshlrev_b32 v{dst+2}, 16, v{src+1}'); A(f'v_and_b32 v{dst+3}, 0xffff0000, v{src+1}')
    def dry_check(ret):
        A(f's_cbranch_execz {ret}')
    def d_index():
        A(f's_lshl_b32 s75, s{sX}, 2'); A(f's_add_u32 s75, s75, s{sI}'); A('s_sub_u32 s75, s75, 26')
        A(f's_lshl_b32 s62, s{sX}, 1'); A(f's_add_u32 s62, s62, s{sI}'); A('s_add_u32 s62, s62, 2')
        A(f's_cmp_ge_u32 s{sI}, 30'); A('s_cselect_b32 s75, s62, s75')
    def branch_if_no_role(label):
        L = A.label('NR')
        A(f's_cmp_lt_u32 s{sI}, 30'); A(f's_cbranch_scc1 {L}')
        A(f's_cmp_ge_u32 s{sX}, 4'); A(f's_cbranch_scc1 {label}')
        A(f'{L}:')
    def kb_pi():
        A(f's_mul_i32 s68, s{sI}, 43'); A('s_lshr_b32 s68, s68, 8'); A('s_mul_i32 s62, s68, 6'); A(f's_sub_u32 s69, s{sI}, s62')

    A(HEADER_COMMENT.rstrip())
    A(f'; @launch grid=(256,1,1) block=(1024,1,1) lds={LDS_SIZE}')
    A('.amdgcn_target "amdgcn-amd-amdhsa--gfx950"')
    A('.text'); A(f'.globl {NAME}_kernel'); A('.p2align 8'); A(f'.type {NAME}_kernel,@function'); A(f'{NAME}_kernel:')
    for n in ('K', 'WMOD', 'WQ', 'WS', 'C', 'X', 'V', 'DBG', 'WO', 'WG', 'WU', 'WD', 'OUT'):
        A(f's_load_dwordx2 s[{SRD[n]}:{SRD[n]+1}], s[0:1], {KARG[n]}')
    if stamps:
        for k in range(1, 8): A(f's_mov_b32 s{86+2*k}, 0')
    stamp(0)
    A('v_lshrrev_b32 v1, 6, v0'); A('v_and_b32 v0, 63, v0')
    A(f'v_readfirstlane_b32 s{sW}, v1')
    for n in SRD:
        A(f's_mov_b32 s{SRD[n]+2}, {SIZE[n]}'); A(f's_mov_b32 s{SRD[n]+3}, 0x20000')
    A(f's_mov_b32 s{sLIVE}, -1'); A(f's_mov_b32 s{sN}, 0')
    A('s_cmp_ge_u32 s2, 256'); A('s_cbranch_scc1 L_END')
    A(f's_and_b32 s{sX}, s2, 7'); A(f's_lshr_b32 s{sI}, s2, 3')
    A(f's_lshr_b32 s{sH}, s{sI}, 3'); A(f's_lshl_b32 s62, s{sX}, 2'); A(f's_add_u32 s{sH}, s{sH}, s62')
    A(f's_and_b32 s{sS}, s{sI}, 7'); A(f's_and_b32 s{sR}, s{sW}, 7')
    A('v_lshrrev_b32 v1, 3, v0'); A('v_mul_u32_u24 v1, 1536, v1'); A('v_and_b32 v2, 7, v0'); A('v_lshl_add_u32 v2, v2, 4, v1')
    A('v_mov_b32 v3, 0'); A('v_mov_b32 v4, 1')
    A(f's_lshl_b32 s67, s{sH}, 12'); A(f's_lshl_b32 s62, s{sS}, 9'); A('s_add_u32 s67, s67, s62'); A('s_mul_i32 s67, s67, 384')
    A(f's_mul_i32 s65, s{sR}, 24576'); A('s_add_u32 s65, s65, s67'); A('s_add_u32 s66, s65, 12288')
    A(f's_lshl_b32 s62, s{sR}, 2'); A('v_mov_b32 v5, s62')
    A('s_waitcnt lgkmcnt(0)')
    A(f's_cmp_ge_u32 s{sW}, 8'); A('s_cbranch_scc1 L_KWAVE')
    A(f's_cmp_eq_u32 s{sR}, 2'); A('s_cbranch_scc1 L_F2')
    A(f's_cmp_ge_u32 s{sR}, 3'); A('s_cbranch_scc1 L_F3')

    kb_pi()
    A(f's_lshl_b32 s71, s{sR}, 14'); A(f's_add_u32 s71, s71, {LDS_B}')
    A('v_lshlrev_b32 v7, 2, v0')
    for j in range(5): A(f'buffer_load_dword v{10+j}, v7, {srd("X")}, 0 offen offset:{256*j}')
    A('v_and_b32 v8, 31, v0'); A('v_lshlrev_b32 v8, 3, v8'); A('s_lshl_b32 s62, s68, 8')
    A(f'buffer_load_dwordx2 v[16:17], v8, {srd("X")}, s62 offen')
    if SOFT: A('s_barrier')
    A(f's_cmp_ge_u32 s{sI}, 30'); A('s_cbranch_scc1 L_F01_NODMA')
    dma_addr(128, 12288, 6, 7, 8)
    A(f's_mul_i32 s70, s68, {128 * 12288}'); A(f's_mul_i32 s62, s{sX}, 1536'); A('s_add_u32 s70, s70, s62')
    A('s_lshl_b32 s62, s69, 8'); A('s_add_u32 s70, s70, s62'); A(f's_lshl_b32 s62, s{sR}, 7'); A('s_add_u32 s70, s70, s62')
    if SOFT: lds_wait(F_A, vZ, 9)
    dma_issue(16, 'WQ', 6, 70, 8 * 12288, 71, pol=FPOL)
    A(f's_waitcnt vmcnt({FB_AT})')
    A('L_F01_NODMA:')
    lds_inc(CNT_B)
    if not SOFT: A('s_barrier')
    A('L_F01_DRY:')
    A('s_waitcnt vmcnt(0)')
    A(f's_cmp_ge_u32 s{sI}, 30'); A('s_cbranch_scc1 L_F01_SKIPB')
    tr_addr(128, 40, 44, 45, base_sgpr=71)
    for u in range(4):
        for ct in range(4):
            r = 64 + (u * 4 + ct) * 4
            for hh in range(2):
                A(f'ds_read_b64_tr_b16 v[{r+2*hh}:{r+2*hh+1}], v{40+ct} offset:{(32*u+16*hh)*128}')
    A(f'v_lshrrev_b32 v46, 4, v0'); A('v_lshlrev_b32 v46, 3, v46')
    A('s_waitcnt lgkmcnt(0)')
    lds_inc(CNT_FREE)
    A(f's_cmp_eq_u32 s{sR}, 1'); A('s_cbranch_scc1 L_F1_WAITH')
    A('v_mov_b32 v29, 0x3acccccd')
    ln_stats_pk([10, 11, 12, 13, 14], 30, 29)
    unpack4(34, 16)
    ln_apply_pk(34, 30)
    A('v_and_b32 v8, 31, v0'); A('v_lshlrev_b32 v8, 2, v8'); A('v_lshrrev_b32 v9, 5, v0'); A('v_mul_u32_u24 v9, 640, v9'); A('v_add_u32 v8, v8, v9')
    A('s_lshl_b32 s62, s68, 7'); A('v_add_u32 v8, s62, v8')
    mod_addr(8, 8, 9)
    get_nonce(9)
    stamp(1)
    A(f's_mov_b32 s64, {R_MOD}')
    Q = [10, 14, 18, 22, 48, 52, 56, 60]
    A('v_and_b32 v38, 31, v0'); A('v_lshlrev_b32 v38, 2, v38'); A(f's_lshl_b32 s72, s{sX}, 7'); A(f's_add_u32 s72, s72, {R_CLR}')
    poll(lambda: (mod_loads(8, Q, 4), A(f'buffer_load_dword v39, v38, {srd("WS")}, s72 offen sc1')), [], 9, tags=mod_tags(Q) + [39])
    stamp(2)
    mod_sum(26, Q, 4)
    rbf4(48, 26)
    for r in range(4): A(f'v_mov_b32 v{52+r}, v{48+r}')
    for r in range(4): A(f'v_permlane32_swap_b32 v{48+r}, v{52+r}')
    for r in range(4): A(f'v_add_f32 v{52+r}, 1.0, v{52+r}')
    rbf4(52, 52)
    for r in range(4): A(f'v_mul_f32 v{52+r}, v{34+r}, v{52+r}')
    rbf4(52, 52)
    for r in range(4): A(f'v_add_f32 v{52+r}, v{52+r}, v{48+r}')
    A('v_cvt_pk_bf16_f32 v56, v52, v53'); A('v_cvt_pk_bf16_f32 v57, v54, v55')
    A('v_and_b32 v8, 31, v0'); A('v_lshlrev_b32 v8, 3, v8')
    A(f'ds_write_b64 v8, v[56:57] offset:{HV}')
    lds_set(F_H)
    dstamp(2, 8, vt=(1, 47))
    A('s_branch L_F01_C')
    A('L_F1_WAITH:')
    lds_wait(F_H, vZ, 18)
    A('L_F01_C:')
    for u in range(4):
        A(f'ds_read2_b64 v[{48+4*u}:{51+4*u}], v46 offset0:{HV//8 + 8*u} offset1:{HV//8 + 8*u + 4}')
    for r in range(16): A(f'v_mov_b32 v{20+r}, 0')
    A('v_and_b32 v8, 15, v0'); A('v_lshlrev_b32 v8, 6, v8'); A('v_lshrrev_b32 v9, 4, v0'); A('v_lshl_add_u32 v8, v9, 4, v8')
    A('s_mul_i32 s70, s68, 24576'); A(f's_mul_i32 s62, s{sX}, 3072'); A('s_add_u32 s70, s70, s62'); A('s_lshl_b32 s62, s69, 9'); A('s_add_u32 s70, s70, s62')
    A(f's_lshl_b32 s62, s{sR}, 8'); A('s_add_u32 s70, s70, s62')
    A(f's_add_u32 s72, s70, {R_Q[0]}'); A(f's_add_u32 s73, s70, {R_Q[1]}')
    A('s_waitcnt lgkmcnt(0)')
    for u in range(4):
        for ct in range(4):
            r = 64 + (u * 4 + ct) * 4
            A(f'v_mfma_f32_16x16x32_bf16 v[{20+4*ct}:{23+4*ct}], v[{r}:{r+3}], v[{48+4*u}:{51+4*u}], v[{20+4*ct}:{23+4*ct}]')
    lds_wait(F_CLR, vZ, 9)
    merge4(20, 36)
    for r in range(4): A(f'v_or_b32 v{36+r}, 1, v{36+r}')
    set_exec(0x000f000f000f000f)
    A(f'buffer_store_dwordx4 v[36:39], v8, {srd("WS")}, s72 offen')
    A(f'buffer_store_dwordx4 v[36:39], v8, {srd("WS")}, s73 offen sc1')
    full_exec()
    stamp(3)
    A('s_branch L_F01_D')
    A('L_F01_SKIPB:')
    lds_inc(CNT_FREE)
    get_nonce(9)
    lds_wait(F_CLR, vZ, 9)
    A('L_F01_D:')
    A(f's_cmp_eq_u32 s{sR}, 1'); A('s_cbranch_scc1 L_F1_T')
    A(f's_cmp_lt_u32 s{sI}, 30'); A('s_cbranch_scc1 L_F0_QG')
    A('v_and_b32 v8, 31, v0'); A('v_lshlrev_b32 v8, 2, v8'); A(f's_lshl_b32 s64, s{sX}, 7'); A(f's_add_u32 s64, s64, {R_CLR}')
    poll(lambda: A(f'buffer_load_dword v10, v8, {srd("WS")}, s64 offen sc1'), [], 9, tags=[10], sleep=8)
    A('L_F0_QG:')
    A('v_lshlrev_b32 v40, 4, v0'); A(f's_mul_i32 s62, s{sH}, 768'); A('v_add_u32 v40, s62, v40')
    for ks in range(1, 5): A(f'v_add_u32 v{40+ks}, {24576*ks}, v40')
    A('v_lshlrev_b32 v8, 3, v0')
    set_exec((1 << 48) - 1)
    def ld():
        for ks in range(5): A(f'buffer_load_dwordx4 v[{48+4*ks}:{51+4*ks}], v{40+ks}, {srd("WS")}, s64 offen sc1')
    poll(ld, list(range(48, 68)), 18, regionAB=R_Q)
    tree_add(48, 4)
    for h2 in range(2): A(f'v_pk_add_f32 v[{48+2*h2}:{49+2*h2}], v[{48+2*h2}:{49+2*h2}], v[{64+2*h2}:{65+2*h2}]')
    A('v_cvt_pk_bf16_f32 v56, v48, v49'); A('v_cvt_pk_bf16_f32 v57, v50, v51')
    A(f'ds_write_b64 v8, v[56:57] offset:{QV}')
    full_exec()
    lds_set(F_Q)
    dstamp(3, 8, vt=(1, 47))
    stamp(4)
    A(f's_lshl_b32 s62, s{sH}, 9'); A('v_add_u32 v14, s62, v8')
    poll(lambda: A(f'buffer_load_dwordx2 v[12:13], v14, {srd("WS")}, s64 offen sc1'), [12, 13], 15, regionAB=R_ST, sleep=2)
    A('v_and_b32 v12, 0xffff0000, v12')
    A('v_mov_b32 v16, v12')
    allreduce([16], 'v_max_f32', [15])
    A('v_sub_f32 v12, v12, v16'); A(f'v_mul_f32 v12, {LOG2E}, v12'); A('v_exp_f32 v12, v12'); A('v_mul_f32 v17, v12, v13')
    allreduce([17], 'v_add_f32', [15])
    A(f'ds_write_b64 v3, v[16:17] offset:{ML}')
    lds_set(F_ML)
    dstamp(5, 8, vt=(1, 47))
    stamp(5)
    A('s_branch L_F01_PV')
    A('L_F1_T:')
    A(f's_cmp_lt_u32 s{sI}, 20'); A('s_cbranch_scc1 L_F01_PV')
    branch_if_no_role('L_F01_PV')
    get_nonce(9)
    A('v_lshlrev_b32 v8, 4, v0')
    A(f's_mov_b32 s64, {R_MF}'); A(f's_mov_b32 s72, {R_CLR}'); A(f's_mov_b32 s73, {R_MF + 4096}')
    A(f's_cmp_ge_u32 s{sI}, 26'); A('s_cbranch_scc1 L_F1_TD')
    def ld():
        A(f'buffer_load_dwordx4 v[12:15], v8, {srd("WS")}, s72 offen sc1')
        for k in range(8):
            A(f'buffer_load_dwordx4 v[{16+4*k}:{19+4*k}], v8, {srd("WS")}, {"s64" if k < 4 else "s73"} offen offset:{1024*(k%4)} sc1')
    poll(ld, [], 9, tags=[12, 13, 14, 15] + [17 + 4 * k for k in range(8)] + [19 + 4 * k for k in range(8)], sleep=8)
    for k in range(8):
        q = 16 + 4 * k
        A(f'v_and_b32 v{q+3}, 0xffff0000, v{q+2}'); A(f'v_lshlrev_b32 v{q+2}, 16, v{q+2}')
        A(f'v_and_b32 v{q+1}, 0xffff0000, v{q}'); A(f'v_lshlrev_b32 v{q}, 16, v{q}')
        if k >= 5:
            for r in range(4): A(f'v_add_f32 v{q+r}, 1.0, v{q+r}')
            rbf4(q, q)
        A(f'ds_write_b128 v8, v[{q}:{q+3}] offset:{MODV + 1024*k}')
    lds_set(F_MV)
    stamp(4)
    A('s_branch L_F01_PV')
    A('L_F1_TD:')
    d_index()
    A('v_and_b32 v10, 3, v0'); A('v_lshlrev_b32 v10, 4, v10'); A('s_lshl_b32 s62, s75, 6'); A(f's_add_u32 s64, s62, {R_MF + 7680}')
    def ld():
        A(f'buffer_load_dwordx4 v[12:15], v8, {srd("WS")}, s72 offen sc1')
        A(f'buffer_load_dwordx4 v[16:19], v10, {srd("WS")}, s64 offen sc1')
    poll(ld, [], 9, tags=[12, 13, 14, 15, 17, 19], sleep=8)
    A('v_and_b32 v19, 0xffff0000, v18'); A('v_lshlrev_b32 v18, 16, v18'); A('v_and_b32 v17, 0xffff0000, v16'); A('v_lshlrev_b32 v16, 16, v16')
    A(f'ds_write_b128 v10, v[16:19] offset:{MODV}')
    lds_set(F_MV)
    stamp(4)
    A('L_F01_PV:')
    dry_check('L_DRYRET')
    lds_wait(CNT_VD, vZ, 9, cmp_val=6)
    A(f's_mul_i32 s62, s{sR}, 24576'); A(f's_add_u32 s62, s62, {LDS_A}'); A('v_lshl_add_u32 v8, v0, 4, s62')
    for n in range(24): A(f'ds_read_b128 v[{32+4*n}:{35+4*n}], v8 offset:{1024*n}')
    A('s_waitcnt lgkmcnt(0)')
    A('s_branch L_PV')

    A('L_F2:')
    A('s_cmp_ge_u32 s2, 240'); A('s_cbranch_scc1 L_F2_NONE')
    A('s_lshr_b32 s68, s2, 2'); A('s_and_b32 s69, s2, 3')
    A('v_lshlrev_b32 v7, 3, v0'); A('s_mul_i32 s62, s69, 320')
    A(f'buffer_load_dwordx2 v[10:11], v7, {srd("C")}, s62 offen')
    dma_addr(128, 7680, 6, 8, 9)
    A(f's_mul_i32 s70, s69, {160 * 7680}'); A('s_lshl_b32 s62, s68, 7'); A('s_add_u32 s70, s70, s62')
    dma_issue(20, 'WMOD', 6, 70, 8 * 7680, None, LDS_A, pol=FPOL)
    A('s_barrier')
    A('s_waitcnt vmcnt(20)')
    unpack4(12, 10)
    A(f's_mov_b32 s62, {LOG2E | 0x80000000}')
    for r in range(4): A(f'v_mul_f32 v{16+r}, s62, v{12+r}')
    for r in range(4): A(f'v_exp_f32 v{16+r}, v{16+r}')
    for r in range(4): A(f'v_add_f32 v{16+r}, 1.0, v{16+r}')
    for r in range(4): fdiv(12 + r, 12 + r, 16 + r, 20, 21, 22, 23)
    A('v_cvt_pk_bf16_f32 v16, v12, v13'); A('v_cvt_pk_bf16_f32 v17, v14, v15')
    set_exec((1 << 40) - 1)
    A(f'ds_write_b64 v7, v[16:17] offset:{SC}')
    full_exec()
    tr_addr(128, 6, 10, 11, base_imm=LDS_A)
    A(f'v_lshrrev_b32 v10, 4, v0'); A('v_lshlrev_b32 v10, 3, v10')
    for u in range(5):
        A(f'ds_read2_b64 v[{28+4*u}:{31+4*u}], v10 offset0:{SC//8 + 8*u} offset1:{SC//8 + 8*u + 4}')
    A('v_and_b32 v11, 15, v0'); A('v_lshlrev_b32 v11, 6, v11'); A('v_lshrrev_b32 v12, 4, v0'); A('v_lshl_add_u32 v11, v12, 4, v11')
    if dry:
        A(f's_mov_b32 s{sLIVE}, 0'); A('s_mov_b64 exec, 0')
    A('L_F2_B:')
    A(f's_cbranch_execz L_F2_B1'); A(f's_waitcnt vmcnt({FA_AT})'); lds_set(F_A); A('s_waitcnt vmcnt(0)'); A('L_F2_B1:')
    stamp(1)
    for u in range(5):
        for ct in range(4):
            r = 48 + (u * 4 + ct) * 4
            for hh in range(2):
                A(f'ds_read_b64_tr_b16 v[{r+2*hh}:{r+2*hh+1}], v{6+ct} offset:{(32*u+16*hh)*128}')
    for r in range(16): A(f'v_mov_b32 v{12+r}, 0')
    A('s_waitcnt lgkmcnt(0)')
    lds_inc(CNT_FREE)
    for u in range(5):
        for ct in range(4):
            r = 48 + (u * 4 + ct) * 4
            A(f'v_mfma_f32_16x16x32_bf16 v[{12+4*ct}:{15+4*ct}], v[{r}:{r+3}], v[{28+4*u}:{31+4*u}], v[{12+4*ct}:{15+4*ct}]')
    A(f's_lshl_b32 s70, s2, 9'); A(f's_add_u32 s70, s70, {R_MOD}')
    get_nonce(49)
    merge4(12, 52)
    stamp(2)
    A('v_mov_b32 v56, v52'); A('v_mov_b32 v58, v53'); A('v_mov_b32 v60, v54'); A('v_mov_b32 v62, v55')
    for r in (57, 59, 61, 63): A(f'v_mov_b32 v{r}, s{sN}')
    set_exec(0x000f000f000f000f)
    A(f'buffer_store_dwordx4 v[56:59], v11, {srd("WS")}, s70 offen sc1')
    A(f'buffer_store_dwordx4 v[60:63], v11, {srd("WS")}, s70 offen offset:256 sc1')
    full_exec()
    dstamp(1, 8, vt=(1, 47))
    stamp(3)
    if dry:
        A('s_cbranch_execnz L_VSTREAM')
        A(f's_mov_b32 s{sLIVE}, -1'); A('s_mov_b64 exec, -1'); A('s_branch L_F2_B')
    A('s_branch L_VSTREAM')
    A('L_F2_NONE:')
    A('s_barrier')
    lds_set(F_A)
    lds_inc(CNT_FREE)
    A('s_branch L_VSTREAM')

    A('L_F3:')
    A(f's_cmp_ge_u32 s{sR}, 4'); A('s_cbranch_scc1 L_F4')
    A('s_cmp_lg_u32 s2, 0'); A('s_cbranch_scc1 L_F3_B')
    A('s_memrealtime s[62:63]'); A('s_waitcnt lgkmcnt(0)'); A('s_or_b32 s62, s62, 1'); A('v_mov_b32 v8, s62')
    set_exec(1)
    A('v_mov_b32 v9, 0')
    A(f'buffer_atomic_cmpswap v[8:9], v3, {srd("DBG")}, 0 offen sc1')
    full_exec()
    A('L_F3_B:')
    A('v_lshlrev_b32 v7, 2, v0'); A('ds_write_b32 v7, v3')
    for k in range(3): A(f'ds_write_b32 v7, v3 offset:{OACC + 256*k}')
    A('s_waitcnt lgkmcnt(0)')
    A('s_barrier')
    set_exec(1)
    poll(lambda: A(f'buffer_load_dword v9, v3, {srd("DBG")}, 0 offen sc1'), [9], 10, sleep=NSLEEP)
    A(f'ds_write_b32 v3, v9 offset:{F_N}')
    full_exec()
    stamp(1)
    A('s_branch L_VSTREAM')
    A('L_F4:')
    A(f's_cmp_lg_u32 s{sR}, 4'); A('s_cbranch_scc1 L_F5')
    for r in range(4): A(f'v_mov_b32 v{8+r}, 0')
    kb_pi()
    A('s_mul_i32 s70, s68, 24576'); A(f's_mul_i32 s62, s{sX}, 3072'); A('s_add_u32 s70, s70, s62'); A('s_lshl_b32 s62, s69, 9'); A('s_add_u32 s70, s70, s62')
    A(f's_add_u32 s70, s70, {R_Q[0]}')
    A('v_and_b32 v12, 31, v0'); A('v_lshlrev_b32 v12, 4, v12'); A('v_lshrrev_b32 v13, 5, v0'); A(f'v_mul_u32_u24 v13, {R_Q[1]-R_Q[0]}, v13'); A('v_add_u32 v12, v12, v13')
    A(f's_cmp_ge_u32 s{sI}, 30'); A('s_cbranch_scc1 L_F4_B')
    A(f'buffer_store_dwordx4 v[8:11], v12, {srd("WS")}, s70 offen sc1')
    A('L_F4_B:')
    A(f's_lshl_b32 s62, s{sH}, 3'); A(f's_add_u32 s62, s62, s{sS}'); A('s_mul_i32 s71, s62, 768'); A('s_lshl_b32 s72, s62, 6')
    A('v_lshlrev_b32 v12, 4, v0')
    A(f's_add_u32 s73, s71, {R_O[0]}'); A('v_add_u32 v13, s73, v12')
    A(f's_add_u32 s73, s72, {R_ST[0] - 768}'); A('v_add_u32 v14, s73, v12')
    A('v_cmp_lt_u32 vcc, 47, v0'); A('v_cndmask_b32 v13, v13, v14, vcc')
    A(f's_add_u32 s73, s71, {R_O[1]}'); A('v_add_u32 v15, s73, v12')
    A(f's_add_u32 s73, s72, {R_ST[1] - 768}'); A('v_add_u32 v14, s73, v12')
    A('v_cndmask_b32 v15, v15, v14, vcc')
    A(f's_cmp_ge_u32 s{sI}, 20'); A('s_cbranch_scc1 L_F4_C')
    A(f's_and_b32 s62, s{sI}, 1'); A(f's_lshl_b32 s63, s{sX}, 1'); A('s_add_u32 s62, s62, s63'); A('s_mul_i32 s74, s62, 2560')
    A(f's_lshr_b32 s62, s{sI}, 1'); A('s_lshl_b32 s62, s62, 8'); A('s_add_u32 s74, s74, s62'); A(f's_add_u32 s74, s74, {R_Y}')
    set_exec(0xffff)
    A(f'buffer_store_dwordx4 v[8:11], v12, {srd("WS")}, s74 offen sc1')
    full_exec()
    A('s_branch L_F4_D')
    A('L_F4_C:')
    A(f's_cmp_ge_u32 s{sI}, 26'); A('s_cbranch_scc1 L_F4_D')
    A(f's_mul_i32 s75, s{sX}, 6'); A(f's_add_u32 s75, s75, s{sI}'); A('s_sub_u32 s75, s75, 20')
    A('s_and_b32 s62, s75, 1'); A('s_mul_i32 s74, s62, 3072'); A('s_lshr_b32 s62, s75, 1'); A('s_lshl_b32 s62, s62, 7'); A('s_add_u32 s74, s74, s62'); A(f's_add_u32 s74, s74, {R_HM}')
    set_exec(0xff)
    A(f'buffer_store_dwordx4 v[8:11], v12, {srd("WS")}, s74 offen sc1')
    full_exec()
    A('s_cmp_ge_u32 s75, 8'); A('s_cbranch_scc1 L_F4_D')
    A('s_mul_i32 s63, s75, 160'); A(f's_add_u32 s63, s63, {R_X2}')
    set_exec(0x3ff)
    A(f'buffer_store_dwordx4 v[8:11], v12, {srd("WS")}, s63 offen sc1')
    full_exec()
    A('L_F4_D:')
    set_exec((1 << 52) - 1)
    A(f'buffer_store_dwordx4 v[8:11], v13, {srd("WS")}, 0 offen sc1')
    set_exec((1 << 52) - 1)
    A(f'buffer_store_dwordx4 v[8:11], v15, {srd("WS")}, 0 offen sc1')
    full_exec()
    A('s_barrier')
    A('s_waitcnt vmcnt(0)')
    lds_set(F_CLR)
    stamp(1)
    get_nonce(12)
    A(f'v_mov_b32 v12, s{sN}')
    A(f's_lshl_b32 s70, s{sX}, 5'); A(f's_add_u32 s70, s70, s{sI}'); A('s_lshl_b32 s70, s70, 2'); A(f's_add_u32 s70, s70, {R_CLR}')
    set_exec(1)
    A(f'buffer_store_dword v12, v3, {srd("WS")}, s70 offen sc1')
    full_exec()
    stamp(2)
    A('s_branch L_VSTREAM')
    A('L_F5:')
    A('s_barrier')
    A(f's_cmp_lg_u32 s{sR}, 5'); A('s_cbranch_scc1 L_F6')
    A('s_cmp_ge_u32 s2, 40'); A('s_cbranch_scc1 L_F6')
    A('v_lshrrev_b32 v8, 4, v0'); A('v_lshlrev_b32 v8, 9, v8'); A('v_and_b32 v9, 15, v0'); A('v_lshlrev_b32 v9, 4, v9'); A('v_add_u32 v8, v8, v9')
    A('s_lshl_b32 s64, s2, 11'); A(f's_add_u32 s64, s64, {R_MOD + 20 * 2048}')
    A('s_lshl_b32 s72, s2, 8'); A(f's_add_u32 s72, s72, {R_MF}')
    get_nonce(10)
    def ld():
        A(f'buffer_load_dwordx4 v[12:15], v8, {srd("WS")}, s64 offen sc1')
        A(f'buffer_load_dwordx4 v[16:19], v8, {srd("WS")}, s64 offen offset:256 sc1')
    poll(ld, [], 10, tags=[13, 15, 17, 19], sleep=8)
    vals = [12, 14, 16, 18]
    for sw in ('v_permlane16_swap_b32', 'v_permlane32_swap_b32'):
        for r in vals: A(f'v_mov_b32 v{r+1}, v{r}')
        for r in vals: A(f'{sw} v{r}, v{r+1}')
        for r in vals: A(f'v_add_f32 v{r}, v{r}, v{r+1}')
    A('v_cvt_pk_bf16_f32 v20, v12, v14'); A('v_cvt_pk_bf16_f32 v22, v16, v18'); A(f'v_mov_b32 v21, s{sN}'); A(f'v_mov_b32 v23, s{sN}')
    set_exec(0xffff)
    A(f'buffer_store_dwordx4 v[20:23], v9, {srd("WS")}, s72 offen sc1')
    full_exec()
    stamp(2)
    A('L_F6:')
    if dry:
        for r in list(range(6, 48)): A(f'v_mov_b32 v{r}, 0')
        A(f's_mov_b32 s{sLIVE}, 0'); A('s_mov_b64 exec, 0')
        A(f's_cmp_eq_u32 s{sR}, 5'); A('s_cbranch_scc1 L_F5_K')
        A(f's_cmp_eq_u32 s{sR}, 6'); A('s_cbranch_scc1 L_F6_F')
        A('s_branch L_PV')
        A('L_F5_K:'); A(f's_mov_b32 s{sR}, 0'); A('s_branch L_K_DRY')
        A('L_F6_F:'); A(f's_mov_b32 s{sR}, 0'); kb_pi(); A(f's_mov_b32 s71, {LDS_B}'); A('s_branch L_F01_DRY')
        A('L_DRYRET:')
        A(f's_mov_b32 s{sLIVE}, -1'); A('s_mov_b64 exec, -1'); A(f's_and_b32 s{sR}, s{sW}, 7')
        stamp(1)
    else:
        A('L_DRYRET:')

    VD = 32
    A('L_VSTREAM:')
    A('s_waitcnt vmcnt(0)')
    A(f's_sub_u32 s68, s{sR}, 2'); A('s_cmp_ge_u32 s68, 3'); A('s_cselect_b32 s69, 1, 0')
    A('s_mul_i32 s62, s69, 3'); A('s_sub_u32 s68, s68, s62')
    A('s_mul_i32 s70, s69, 24576'); A(f's_add_u32 s71, s70, {LDS_A}'); A('s_add_u32 s70, s70, s67')
    A('s_lshl_b32 s62, s68, 13'); A('s_add_u32 s71, s71, s62')
    lds_wait(CNT_FREE, vZ, 6, cmp_val=3)
    lds_wait(KISS, vPF, 6)
    stamp(5)
    cnt = 0
    for part in range(3):
        if part < 2:
            A(f's_cmp_lg_u32 s68, {part}'); A(f's_cbranch_scc1 L_VD_{part+1}')
        for k in range(8):
            n = 8 * part + k
            off = (n // 12) * 12288 + ((n % 12) // 3) * 384 + (n % 3) * 128
            A(f's_add_u32 m0, s71, {1024*k}'); A(f's_add_u32 s62, s70, {off}')
            A(f'buffer_load_dwordx4 v2, {srd("V")}, s62 offen {KVPOL} lds')
            if k + 1 >= DV: A(f's_waitcnt vmcnt({DV-1})')
        if part < 2:
            A('s_branch L_VD_E'); A(f'L_VD_{part+1}:')
    A('L_VD_E:')
    def vload(n):
        T, tt, c = n // 12, (n % 12) // 3, n % 3
        A(f'buffer_load_dwordx4 v[{VD+4*n}:{VD+4*n+3}], v2, {srd("V")}, s{65+T} offen offset:{tt*384+c*128} {KVPOL}')
    for n in range(24):
        vload(n)
        if n + 1 < 24 - VFREE:
            if VADAPT and n + 1 > DV:
                A(f'ds_read_b32 v6, v{vPF} offset:{PRDY}')
                A(f's_waitcnt vmcnt({DV-1}) lgkmcnt(0)')
                A('v_readfirstlane_b32 s62, v6'); A('s_cmp_lg_u32 s62, 0'); A(f's_cbranch_scc1 L_VF_{n+1}')
            else:
                A(f's_waitcnt vmcnt({DV-1})')
        if n + 1 == DV: lds_inc(CNT_VD)
    if VADAPT:
        A('s_branch L_VF_E')
        for n in range(DV + 1, 24):
            A(f'L_VF_{n}:'); vload(n)
        A('L_VF_E:')
    lds_inc(VISS)
    if diagV:
        stamp(3); A('s_waitcnt vmcnt(0)'); stamp(4)
    A('L_PV:')
    A('v_and_b32 v14, 7, v0')
    A('v_and_b32 v15, 1, v14'); A('v_lshlrev_b32 v15, 4, v15'); A('v_mov_b32 v10, 0xffff'); A('v_lshlrev_b32 v15, v15, v10')
    A('v_lshrrev_b32 v14, 1, v14')
    for d in range(4):
        A(f'v_cmp_eq_u32 vcc, {d}, v14'); A(f'v_cndmask_b32 v{6+d}, 0, v15, vcc')
    for r in range(12): A(f'v_mov_b32 v{16+r}, 0')
    A('v_lshrrev_b32 v14, 3, v0'); A('v_lshlrev_b32 v14, 4, v14'); A(f's_lshl_b32 s62, s{sR}, 8'); A('v_add_u32 v14, s62, v14')
    A('v_bfe_u32 v1, v0, 4, 1'); A('v_lshlrev_b32 v1, 7, v1'); A('v_and_b32 v15, 7, v0'); A('v_lshl_add_u32 v1, v15, 2, v1')
    A('v_lshrrev_b32 v15, 5, v0'); A('v_lshl_add_u32 v1, v15, 5, v1'); A(f's_mul_i32 s62, s{sR}, 768'); A('v_add_u32 v1, s62, v1')
    A(f's_lshl_b32 s62, s{sH}, 3'); A(f's_add_u32 s62, s62, s{sS}'); A('s_mul_i32 s62, s62, 768')
    A(f's_add_u32 s72, s62, {R_O[0]}'); A(f's_add_u32 s73, s62, {R_O[1]}')
    lds_wait(PRDY, vPF, 15)
    stamp(6)
    for T in range(2):
        A(f'ds_read_b128 v[10:13], v14 offset:{PD + 128*T}')
        A('s_waitcnt lgkmcnt(0)')
        for tt in range(4):
            t = 4 * T + tt
            for d in range(4): A(f'v_and_b32 v{28+d}, v{10+tt}, v{6+d}')
            for c in range(3):
                n = 3 * t + c
                A(f's_waitcnt vmcnt({23-n})')
                A(f'v_mfma_f32_16x16x32_bf16 v[{16+4*c}:{19+4*c}], v[{VD+4*n}:{VD+4*n+3}], v[28:31], v[{16+4*c}:{19+4*c}]')
    A('v_lshlrev_b32 v14, 4, v0')
    for k in range(6): A(f'v_permlane32_swap_b32 v{16+2*k}, v{17+2*k}')
    for k in range(6): A(f'v_add_f32_dpp v{16+2*k}, v{17+2*k}, v{16+2*k} row_ror:8 row_mask:0xf bank_mask:0xf')
    set_exec(0x00ff00ff00ff00ff)
    for k in range(6): A(f'ds_write_b32 v1, v{16+2*k} offset:{RED + 256*(k//2) + 64*(k%2)}')
    set_exec(1)
    A(f'ds_add_rtn_u32 v15, v3, v4 offset:{CNT_O}')
    set_exec((1 << 48) - 1)
    for k in range(8): A(f'ds_read_b128 v[{32+4*k}:{35+4*k}], v14 offset:{RED + 768*k}')
    A('s_waitcnt lgkmcnt(8)')
    A('v_readfirstlane_b32 s62, v15')
    A('s_cbranch_execz L_VRED')
    A('s_cmp_lg_u32 s62, 7'); A('s_cbranch_scc1 L_VEND')
    A('L_VRED:')
    A('s_waitcnt lgkmcnt(0)')
    tree_add(32, 8)
    for r in range(4): A(f'v_or_b32 v{32+r}, 1, v{32+r}')
    A(f'buffer_store_dwordx4 v[32:35], v14, {srd("WS")}, s72 offen')
    A(f'buffer_store_dwordx4 v[32:35], v14, {srd("WS")}, s73 offen sc1')
    lds_set(F_ODONE)
    dstamp(6, 8, vt=(1, 47))
    dry_check('L_DRYRET')
    A('L_VEND:')
    stamp(7)
    flush_stamps()
    A('s_endpgm')

    A('L_KWAVE:')
    KD = 32
    def kload(n):
        T, tt, c = n // 12, (n % 12) // 3, n % 3
        A(f'buffer_load_dwordx4 v[{KD+4*n}:{KD+4*n+3}], v2, {srd("K")}, s{65+T} offen offset:{tt*384+c*128} {KVPOL}')
    KA0 = 12
    for n in range(24):
        kload(n)
        if n + 1 == (SOFT or DK):
            A('s_barrier')
            if SOFT and KW == 'a': lds_wait(F_A, vZ, 6)
            if SOFT and KW == 'b': lds_wait(CNT_B, vZ, 6, cmp_val=2)
        if n + 1 >= DK and n + 1 < 24:
            if KADAPT and n + 1 >= KA0:
                A(f'ds_read_b32 v6, v{vZ} offset:{F_Q}')
                A(f's_waitcnt vmcnt({DK-1}) lgkmcnt(0)')
                A('v_readfirstlane_b32 s62, v6'); A('s_cmp_lg_u32 s62, 0'); A(f's_cbranch_scc1 L_KF_{n+1}')
            else:
                A(f's_waitcnt vmcnt({DK-1})')
    if KADAPT:
        A('s_branch L_KF_E')
        for n in range(KA0, 24):
            A(f'L_KF_{n}:'); kload(n)
        A('L_KF_E:')
    lds_set(KISS, vPF)
    dstamp(4, 8, 8, vt=(1, 7))
    stamp(1)
    A('L_K_DRY:')
    A('v_and_b32 v6, 7, v0'); A('v_lshlrev_b32 v6, 4, v6')
    A(f's_lshl_b32 s62, s{sH}, 6'); A(f's_lshl_b32 s63, s{sS}, 3'); A('s_add_u32 s62, s62, s63'); A(f's_add_u32 s62, s62, s{sR}'); A('s_lshl_b32 s62, s62, 3')
    A(f's_add_u32 s72, s62, {R_ST[0]}'); A(f's_add_u32 s73, s62, {R_ST[1]}')
    def setmask(m, s): A(f's_mov_b32 s{s}, {m}'); A(f's_mov_b32 s{s+1}, {m}')
    setmask(0xf0f0f0f0, 80); setmask(0xaaaaaaaa, 82); setmask(0xcccccccc, 84)
    lds_wait(F_Q, vZ, 7)
    stamp(2)
    for c in range(3): A(f'ds_read_b128 v[{8+4*c}:{11+4*c}], v6 offset:{QV + 128*c}')
    A('s_waitcnt lgkmcnt(0)')
    for tp in range(0, 8, 2):
        A(f's_waitcnt vmcnt({21 - 3*(tp+1)})')
        for c in range(3):
            for d in range(4):
                for t in (tp, tp + 1):
                    kr = KD + 4 * (3 * t + c) + d
                    src2 = '0' if (c == 0 and d == 0) else f'v{20+t}'
                    A(f'v_dot2_f32_bf16 v{20+t}, v{kr}, v{8+4*c+d}, {src2}')
    for j in range(4):
        A(f'v_cndmask_b32 v{8+j}, v{20+j}, v{24+j}, s[80:81]')
        A(f'v_cndmask_b32 v{12+j}, v{24+j}, v{20+j}, s[80:81]')
    for j in range(4): A(f'v_add_f32_dpp v{8+j}, v{12+j}, v{8+j} row_half_mirror row_mask:0xf bank_mask:0xf')
    for jj in (0, 1):
        A(f'v_cndmask_b32 v{12+jj}, v{8+2*jj}, v{9+2*jj}, s[82:83]')
        A(f'v_cndmask_b32 v{14+jj}, v{9+2*jj}, v{8+2*jj}, s[82:83]')
    for jj in (0, 1): A(f'v_add_f32_dpp v{12+jj}, v{14+jj}, v{12+jj} quad_perm:[1,0,3,2] row_mask:0xf bank_mask:0xf')
    A('v_cndmask_b32 v8, v12, v13, s[84:85]'); A('v_cndmask_b32 v9, v13, v12, s[84:85]')
    A('v_add_f32_dpp v8, v9, v8 quad_perm:[2,3,0,1] row_mask:0xf bank_mask:0xf')
    rbf(8, 8); A(f'v_mul_f32 v8, {SCALE}, v8'); rbf(8, 8)
    A('v_mov_b32 v9, v8')
    allreduce([9], 'v_max_f32', [10])
    A('v_sub_f32 v10, v8, v9'); A(f'v_mul_f32 v10, {LOG2E}, v10'); A('v_exp_f32 v10, v10')
    allreduce([10], 'v_add_f32', [11])
    A('v_or_b32 v12, 1, v9'); A('v_mov_b32 v13, v10')
    set_exec(1)
    A(f'buffer_store_dwordx2 v[12:13], v3, {srd("WS")}, s72 offen')
    A(f'buffer_store_dwordx2 v[12:13], v3, {srd("WS")}, s73 offen sc1')
    full_exec()
    stamp(3)
    A('v_mov_b32 v127, v8')
    A(f's_cmp_lt_u32 s{sR}, 2'); A('s_cselect_b32 s62, 8, 0'); A('v_add_u32 v126, s62, v5')
    def emit_p():
        lds_wait(F_ML, vZ, 120)
        A(f'ds_read_b64 v[120:121], v3 offset:{ML}')
        A('v_bfe_u32 v122, v0, 2, 1'); A('v_lshlrev_b32 v122, 5, v122'); A('v_lshrrev_b32 v123, 3, v0'); A('v_lshl_add_u32 v122, v123, 2, v122')
        A('v_and_b32 v123, 3, v0'); A('v_add_u32 v122, v122, v123'); A('v_lshlrev_b32 v122, 2, v122'); A(f's_lshl_b32 s62, s{sR}, 8'); A('v_add_u32 v122, s62, v122')
        A('s_waitcnt lgkmcnt(0)')
        A('v_sub_f32 v127, v127, v120'); A(f'v_mul_f32 v127, {LOG2E}, v127'); A('v_exp_f32 v127, v127')
        fdiv(127, 127, 121, 120, 123, 124, 125)
        A('v_cvt_pk_bf16_f32 v127, v127, v127')
        A(f'ds_write_b32 v122, v127 offset:{PD}')
        lds_set(PRDY, vPF)
        stamp(4)
    A(f's_cmp_lt_u32 s{sI}, 20'); A('s_cbranch_scc1 L_TW')
    A(f's_cmp_lt_u32 s{sI}, 26'); A('s_cbranch_scc1 L_TG')
    branch_if_no_role('L_TNONE')
    A('s_branch L_TD')
    A('L_TNONE:')
    emit_p()
    A('s_branch L_KEND')

    FR = 64
    def wg_common(nk, rows_per_kg):
        A(f's_and_b32 s76, s{sR}, 3'); A(f's_lshr_b32 s77, s{sR}, 2')
        A(f's_mul_i32 s78, s76, {rows_per_kg * 128}'); A(f's_add_u32 s78, s78, {LDS_T}')
        A('v_lshrrev_b32 v12, 2, v0'); A('v_lshlrev_b32 v12, 7, v12'); A('v_and_b32 v13, 3, v0'); A('v_lshl_add_u32 v12, v13, 3, v12'); A('v_add_u32 v12, s78, v12')
        A('v_bfe_u32 v13, v0, 3, 2'); A('s_lshl_b32 s62, s77, 1')
        A('v_xor_b32 v10, s62, v13'); A('v_xor_b32 v11, 1, v10')
        A('v_lshl_add_u32 v10, v10, 5, v12'); A('v_lshl_add_u32 v11, v11, 5, v12')
        A(f's_lshl_b32 s74, s{sR}, 9'); A(f's_add_u32 s74, s74, {STG}')
        A('v_lshrrev_b32 v19, 4, v0'); A('v_lshl_add_u32 v19, v19, 3, s74')
        A('v_lshrrev_b32 v18, 4, v0'); A('v_lshlrev_b32 v18, 4, v18'); A('s_lshl_b32 s62, s76, 8'); A('s_lshl_b32 s63, s77, 7'); A('s_add_u32 s62, s62, s63'); A('v_add_u32 v18, s62, v18')
        A('v_lshlrev_b32 v27, 3, v0')
        A(f's_mul_i32 s62, s77, {rows_per_kg * 64}'); A('s_add_u32 s73, s78, s62')
    def wg_fetch(nk, acc):
        for r in range(8): A(f'v_mov_b32 v{acc+r}, 0')
        A('s_waitcnt vmcnt(0)')
        lds_inc(CNT_TD)
        lds_wait(CNT_TD, vZ, 7, cmp_val=8)
        for u in range(nk):
            for ct in range(2):
                r = FR + (u * 2 + ct) * 4
                for hh in range(2): A(f'ds_read_b64_tr_b16 v[{r+2*hh}:{r+2*hh+1}], v{10+ct} offset:{(32*u+16*hh)*128}')
    def wg_mfma(nk, acc, bb):
        for u in range(nk): A(f'ds_read2_b64 v[{bb+4*u}:{bb+3+4*u}], v19 offset0:{8*u} offset1:{8*u+4}')
        for u in range(nk):
            A(f's_waitcnt lgkmcnt({nk-1-u})')
            for ct in range(2):
                r = FR + (u * 2 + ct) * 4
                A(f'v_mfma_f32_16x16x32_bf16 v[{acc+4*ct}:{acc+3+4*ct}], v[{r}:{r+3}], v[{bb+4*u}:{bb+3+4*u}], v[{acc+4*ct}:{acc+3+4*ct}]')
        set_exec(0x0001000100010001)
        for ct in range(2): A(f'ds_write_b128 v18, v[{acc+4*ct}:{acc+3+4*ct}] offset:{TRED + 64*ct}')
        A('s_waitcnt lgkmcnt(0)')
        barrier()
        A(f's_cmp_lg_u32 s{sR}, 0'); A('s_cbranch_scc1 L_KEND')
        set_exec(0xffffffff)
        for k in range(4): A(f'ds_read_b64 v[{32+2*k}:{33+2*k}], v27 offset:{TRED + 256*k}')
        A('s_waitcnt lgkmcnt(0)')
        tree2(32, 4)

    A('L_TW:')
    wg_common(3, 96)
    dma_addr(128, 1280, 6, 7, 8)
    A(f's_and_b32 s75, s{sI}, 1')
    A(f's_mul_i32 s70, s{sX}, 768'); A('s_mul_i32 s62, s75, 384'); A('s_add_u32 s70, s70, s62'); A('s_mul_i32 s62, s76, 96'); A('s_add_u32 s70, s70, s62')
    A(f's_lshl_b32 s62, s{sX}, 2'); A('s_lshl_b32 s63, s75, 1'); A('s_add_u32 s62, s62, s63'); A('s_lshr_b32 s63, s76, 1'); A('s_add_u32 s62, s62, s63'); A('s_mul_i32 s62, s62, 6144')
    A('s_and_b32 s63, s76, 1'); A('s_mul_i32 s63, s63, 384'); A('s_add_u32 s62, s62, s63')
    A('v_lshl_add_u32 v14, v0, 3, s62'); A('v_add_u32 v15, 3072, v14')
    A('s_mul_i32 s62, s77, 48'); A('s_add_u32 s70, s70, s62'); A('s_mul_i32 s70, s70, 1280')
    A(f's_lshr_b32 s62, s{sI}, 1'); A('s_lshl_b32 s62, s62, 7'); A('s_add_u32 s70, s70, s62')
    A('v_lshl_add_u32 v16, v0, 2, s74')
    A(f's_lshl_b32 s63, s{sX}, 1'); A('s_add_u32 s63, s63, s75'); A('s_mul_i32 s75, s63, 2560'); A('s_lshl_b32 s62, s62, 1'); A('s_add_u32 s75, s75, s62'); A(f's_add_u32 s75, s75, {R_Y}')
    emit_p()
    tail_gate(TW)
    dma_issue(6, 'WO', 6, 70, 8 * 1280, 73, pace=TDEPTH, pol=TPOL)
    wg_fetch(3, 112)
    stamp(5)
    lds_wait(F_ODONE, vZ, 7)
    set_exec((1 << 48) - 1)
    def ld():
        for n in range(8): A(f'buffer_load_dwordx2 v[{32+2*n}:{33+2*n}], v{14 + n//4}, {srd("WS")}, s64 offen offset:{768*(n%4)} sc1')
    poll(ld, list(range(32, 48)), 7, regionAB=R_O, sleep=0)
    stamp(6)
    tree2(32, 8)
    A('v_cvt_pk_bf16_f32 v36, v32, v33')
    A('ds_write_b32 v16, v36')
    full_exec()
    wg_mfma(3, 112, 40)
    for r in range(2): A(f'v_or_b32 v{32+r}, 1, v{32+r}')
    A(f'buffer_store_dwordx2 v[32:33], v27, {srd("WS")}, s75 offen sc1')
    dstamp(7, 8); dstamp(8, 13)
    if YTH:
        set_exec(1)
        A(f'buffer_atomic_add v4, v3, {srd("DBG")}, 0 offen offset:128 sc1')
    A('s_branch L_KEND')

    A('L_TG:')
    A(f's_mul_i32 s75, s{sX}, 6'); A(f's_add_u32 s75, s75, s{sI}'); A('s_sub_u32 s75, s75, 20')
    wg_common(5, 160)
    A('s_bitcmp1_b32 s75, 0')
    A(f's_cselect_b32 s68, s{SRD["WU"]}, s{SRD["WG"]}'); A(f's_cselect_b32 s69, s{SRD["WU"]+1}, s{SRD["WG"]+1}')
    A(f's_mov_b32 s70, {SIZE["WG"]}'); A('s_mov_b32 s71, 0x20000'); G_SRD = 's[68:71]'
    dma_addr(128, 3072, 6, 7, 8)
    A('s_mul_i32 s72, s76, 160'); A('s_mul_i32 s62, s77, 80'); A('s_add_u32 s72, s72, s62'); A('s_mul_i32 s72, s72, 3072')
    A('s_lshr_b32 s62, s75, 1'); A('s_lshl_b32 s62, s62, 7'); A('s_add_u32 s72, s72, s62')
    A('s_and_b32 s63, s75, 1'); A('s_mul_i32 s63, s63, 3072'); A('s_add_u32 s62, s62, s63'); A(f's_add_u32 s84, s62, {R_HM}')
    A('v_min_u32 v7, 39, v0')
    A(f's_mul_i32 s62, s{sR}, 160'); A('v_lshl_add_u32 v14, v7, 2, s62')
    A(f'buffer_load_dword v28, v14, {srd("X")}, 0 offen')
    A('v_lshlrev_b32 v17, 1, v14')
    A('v_add_u32 v26, 20480, v17')
    A('s_mul_i32 s62, s76, 320'); A('v_lshl_add_u32 v30, v7, 3, s62')
    A('v_lshlrev_b32 v31, 1, v30')
    A('v_lshl_add_u32 v16, v0, 3, s74')
    A('v_lshlrev_b32 v15, 4, v0'); A('v_lshlrev_b32 v9, 2, v0')
    A('v_mov_b32 v29, 0x3acccccd'); A('v_mov_b32 v8, 0x80000000')
    emit_p()
    lds_wait(F_MV, vZ, 7)
    A(f'ds_read_b64 v[20:21], v17 offset:{MODV}')
    A(f'ds_read_b128 v[104:107], v31 offset:{MODV + 2560}'); A(f'ds_read_b128 v[108:111], v31 offset:{MODV + 5120}')
    tail_gate(TG)
    dma_issue(10, G_SRD, 6, 72, 8 * 3072, 73, pace=TDEPTH, pol=TPOL)
    wg_fetch(5, 112)
    unpack2(22, 28)
    stamp(5)
    for k in range(4): A(f's_mov_b32 s{80+k}, {R_Y + 5120*k}')
    lds_wait(F_ODONE, vZ, 7)
    y_hint(YTH, 'G')
    set_exec((1 << 40) - 1)
    def ld():
        for n in range(16):
            A(f'buffer_load_dwordx2 v[{32+2*n}:{33+2*n}], v{17 if n < 8 else 26}, {srd("WS")}, s{80 + (n%8)//2} offen offset:{2560*(n%2)} sc1')
    poll(ld, list(range(32, 64)), 7)
    stamp(6)
    tree2(32, 16)
    rbf2(32, 32, 36)
    pk('mul', 32, 32, 20)
    rbf2(32, 32, 36)
    pk('add', 32, 32, 22)
    A('v_cvt_pk_bf16_f32 v37, v32, v33')
    A(f'ds_write_b32 v14, v37 offset:{X2P}')
    full_exec()
    A('s_waitcnt lgkmcnt(0)')
    barrier()
    A(f'ds_read_b128 v[32:35], v15 offset:{X2P}'); A(f'ds_read_b32 v36, v9 offset:{X2P+1024}')
    A(f'ds_read_b64 v[38:39], v30 offset:{X2P}')
    A(f's_cmp_lg_u32 s{sR}, s75'); A('s_cbranch_scc1 L_TG_NX')
    set_exec((1 << 40) - 1)
    A('v_cmp_eq_u32 vcc, 0, v37'); A('v_cndmask_b32 v37, v37, v8, vcc'); A(f's_mov_b32 s62, {R_X2}')
    A(f'buffer_store_dword v37, v14, {srd("WS")}, s62 offen sc1')
    full_exec()
    A('L_TG_NX:')
    dstamp(9, 160, 8)
    A('s_waitcnt lgkmcnt(1)')
    ln_stats_pk([32, 33, 34, 35, 36], 48, 29)
    A('s_waitcnt lgkmcnt(0)')
    unpack4(44, 38)
    ln_apply_pk(44, 48)
    for h in (0, 2): pk('mul', 44 + h, 44 + h, 108 + h)
    rbf4(44, 44)
    for h in (0, 2): pk('add', 44 + h, 44 + h, 104 + h)
    A('v_cvt_pk_bf16_f32 v36, v44, v45'); A('v_cvt_pk_bf16_f32 v37, v46, v47')
    A('ds_write_b64 v16, v[36:37]')
    wg_mfma(5, 112, 40)
    A('v_cvt_pk_bf16_f32 v36, v32, v33')
    A('v_cmp_eq_u32 vcc, 0, v36'); A('v_cndmask_b32 v36, v36, v8, vcc')
    A(f'buffer_store_dword v36, v9, {srd("WS")}, s84 offen sc1')
    dstamp(10, 160)
    A('s_branch L_KEND')

    A('L_TD:')
    d_index()
    dma_addr(32, 1280, 6, 7, 8)
    A(f's_mul_i32 s77, s{sR}, {192 * 1280}'); A('s_lshl_b32 s62, s75, 5'); A('s_add_u32 s77, s77, s62')
    A(f's_mul_i32 s78, s{sR}, 6144'); A(f's_add_u32 s78, s78, {LDS_T}')
    A('v_lshl_add_u32 v10, v0, 3, s78')
    A('v_and_b32 v14, 7, v0'); A('v_lshlrev_b32 v9, 3, v14')
    A(f's_mul_i32 s62, s{sH}, 6144'); A('v_mul_u32_u24 v11, 768, v14'); A('v_add_u32 v11, s62, v11')
    A('s_lshl_b32 s62, s75, 5'); A('v_lshl_add_u32 v14, v14, 2, s62')
    A(f's_mul_i32 s62, s{sR}, 384'); A('v_lshl_add_u32 v17, v0, 3, s62')
    A(f'v_add_u32 v18, {R_X2 - R_HM}, v14')
    A('v_lshrrev_b32 v28, 4, v0'); A('v_lshlrev_b32 v28, 4, v28'); A(f's_lshl_b32 s62, s{sR}, 6'); A('v_add_u32 v28, s62, v28')
    A(f's_lshl_b32 s74, s{sR}, 9'); A(f's_add_u32 s74, s74, {STG}')
    A('v_lshl_add_u32 v16, v0, 3, s74')
    A('v_lshrrev_b32 v19, 4, v0'); A('v_lshl_add_u32 v19, v19, 3, s74')
    emit_p()
    lds_wait(F_MV, vZ, 7)
    A(f'ds_read_b64 v[20:21], v9 offset:{MODV}')
    if TD == 't':
        A(f's_cmp_lg_u32 s{sR}, 0'); A('s_cbranch_scc1 L_TD_W')
        lds_wait(F_ODONE, vZ, 7)
        set_exec(0xff)
        poll(lambda: A(f'buffer_load_dword v12, v11, {srd("WS")}, s64 offen sc1'), [12], 7, regionAB=R_O, sleep=1)
        full_exec()
        lds_set(CNT_TD)
        A('L_TD_W:')
        lds_wait(CNT_TD, vZ, 7)
    else:
        tail_gate(TD)
    dma_issue(6, 'WD', 6, 77, 32 * 1280, 78, pace=TDEPTH, pol=TPOL)
    for r in range(4): A(f'v_mov_b32 v{24+r}, 0')
    A('s_waitcnt vmcnt(0)')
    for u in range(6):
        r = FR + u * 4
        for hh in range(2): A(f'ds_read_b64_tr_b16 v[{r+2*hh}:{r+2*hh+1}], v10 offset:{(32*u+16*hh)*32}')
    stamp(5)
    lds_wait(F_ODONE, vZ, 7)
    y_hint(160 if YTH else 0, 'D')
    A(f's_mov_b32 s64, {R_HM}')
    set_exec((1 << 48) - 1)
    def ld():
        A(f'buffer_load_dwordx2 v[32:33], v17, {srd("WS")}, s64 offen sc1')
        A(f'buffer_load_dwordx2 v[34:35], v17, {srd("WS")}, s64 offen offset:3072 sc1')
        A(f'buffer_load_dword v36, v18, {srd("WS")}, s64 offen sc1')
    poll(ld, [32, 33, 34, 35, 36], 7)
    stamp(6)
    unpack4(40, 32); unpack4(44, 34)
    for h in (0, 2): pk('mul', 40 + h, 40 + h, 44 + h)
    A('v_cvt_pk_bf16_f32 v32, v40, v41'); A('v_cvt_pk_bf16_f32 v33, v42, v43')
    A('ds_write_b64 v16, v[32:33]')
    full_exec()
    for u in range(6): A(f'ds_read2_b64 v[{40+4*u}:{43+4*u}], v19 offset0:{8*u} offset1:{8*u+4}')
    unpack2(38, 36)
    for u in range(6):
        r = FR + u * 4
        A(f's_waitcnt lgkmcnt({5-u})')
        A(f'v_mfma_f32_16x16x32_bf16 v[24:27], v[{r}:{r+3}], v[{40+4*u}:{43+4*u}], v[24:27]')
    set_exec(0x0001000100010001)
    A(f'ds_write_b128 v28, v[24:27] offset:{TRED}')
    A('s_waitcnt lgkmcnt(0)')
    barrier()
    A(f's_cmp_lg_u32 s{sR}, 0'); A('s_cbranch_scc1 L_KEND')
    set_exec(0xff)
    for k in range(8): A(f'ds_read_b64 v[{64+2*k}:{65+2*k}], v9 offset:{TRED + 64*k}')
    A('s_waitcnt lgkmcnt(0)')
    tree2(64, 8)
    rbf2(64, 64, 68)
    pk('mul', 64, 64, 20)
    rbf2(64, 64, 68)
    pk('add', 64, 64, 38)
    A('v_cvt_pk_bf16_f32 v68, v64, v65')
    A(f'buffer_store_dword v68, v14, {srd("OUT")}, 0 offen')
    dstamp(11, 208); dstamp(12, 217); dstamp(13, 230); dstamp(14, 239); dstamp(15, 243)
    A('L_KEND:')
    dry_check('L_DRYRET')
    stamp(7)
    flush_stamps()
    A('L_END:')
    A('s_endpgm')
    A('.section .rodata,"a"'); A('.p2align 6'); A(f'.amdhsa_kernel {NAME}_kernel')
    A('  .amdhsa_next_free_vgpr 128'); A('  .amdhsa_next_free_sgpr 102'); A('  .amdhsa_accum_offset 128')
    A('  .amdhsa_group_segment_fixed_size 0'); A('  .amdhsa_kernarg_size 112'); A('  .amdhsa_user_sgpr_count 2')
    A('  .amdhsa_user_sgpr_kernarg_segment_ptr 1'); A('  .amdhsa_system_sgpr_workgroup_id_x 1')
    A('  .amdhsa_float_denorm_mode_32 3'); A('  .amdhsa_float_denorm_mode_16_64 3')
    A('.end_amdhsa_kernel')
    return A.finish()

if __name__ == '__main__':
    import argparse
    ap = argparse.ArgumentParser()
    ap.add_argument('-o', default='cdna_kernels/' + NAME + '.s')
    ap.add_argument('--stamps', action='store_true')
    ap.add_argument('--cfg', default='')
    a = ap.parse_args()
    open(a.o, 'w').write(gen(stamps=a.stamps, **eval('dict(' + a.cfg + ')')))
```

```python
import sys
from asmfw import Asm
NAME = 'adaLN_cond__gqa_block_cached__glu_gated_bilinear__decode'
HEADER_COMMENT = open('cdna_kernels/' + NAME + '.s.ref').read().split('; Override launch')[0]

R_MOD = 0xE0000; R_Y = 0x00000; R_HM = 0x10000; R_X2 = 0x12000; R_CLR = 0x18000; R_MF = 0x1A000
R_Q = (0x20000, 0x40000); R_ST = (0x60000, 0x64000); R_O = (0x70000, 0xA0000)
R_DBG = 0x200000
F_N, F_H, F_Q, F_ML, F_CLR, CNT_O, F_ODONE, CNT_FREE, CNT_VD, F_MV, CNT_TD, F_A, CNT_B, F_YH = 0, 4, 8, 12, 16, 20, 24, 28, 32, 36, 40, 44, 48, 52
KISS, VISS, PRDY, ML = 64, 96, 128, 192
SC, HV, QV, PD, OACC = 0x100, 0x280, 0x380, 0x800, 0x1000
X2P, TRED, STG, MODV, RED = 0x1400, 0x1A00, 0x2000, 0x3000, 0x1000
ONES = 0x3f803f80
LDS_A, LDS_B, LDS_T = 0x6000, 0xB000, 0x13000
LDS_SIZE = 0x27000
SRD = dict(X=4, K=8, V=12, WQ=16, WO=20, WG=24, WU=28, WD=32, C=36, WMOD=40, OUT=44, DBG=48, WS=52)
KARG = dict(X=0, K=8, V=16, WQ=24, WO=32, WG=48, WU=56, WD=64, C=72, WMOD=80, OUT=88, DBG=96, WS=104)
SIZE = dict(X=1280, K=50331648, V=50331648, WQ=7864320, WO=7864320, WG=1966080, WU=1966080, WD=1966080, C=1280,
            WMOD=4915200, OUT=1280, DBG=256, WS=268435456)
def srd(n): return f's[{SRD[n]}:{SRD[n]+3}]'
sW, sX, sI, sH, sS, sR = 56, 57, 58, 59, 60, 61
sN, sLIVE = 79, 3
LOG2E = 0x3fb8aa3b
SCALE = 0x3d93cd3a
SPIN_MAX = 300000

def gen(DK=3, DV=4, VISS_AT=24, stamps=False, sleep_poll=1, NSLEEP=4, dry=False, TW='v', TG='v', TD='o', TDEPTH=99, TPOL='nt', VFREE=0, diagV=False, VADAPT=True, KADAPT=True, SOFT=2, FA_AT=10, FB_AT=8, KW='b', YTH=0, KVPOL='nt', FPOL='nt', dbg=False, WV=False, GMASK=True, X4=True, DPACE=4):
    A = Asm()
    vZ, vONE, vPF = 3, 4, 5
    def stamp(idx):
        if stamps: A(f's_memrealtime s[{86 + 2*idx}:{87 + 2*idx}]')
    def flush_stamps():
        if not stamps: return
        A('s_waitcnt lgkmcnt(0)')
        A(f's_lshl_b32 s62, s2, 4'); A(f's_add_u32 s62, s62, s{sW}'); A('s_lshl_b32 s62, s62, 5'); A(f's_add_u32 s62, s62, {R_DBG}')
        A('s_mov_b64 exec, 1')
        for k in range(8): A(f'v_mov_b32 v{8+k}, s{86+2*k}')
        A('v_mov_b32 v1, 0')
        A(f'buffer_store_dwordx4 v[8:11], v1, {srd("WS")}, s62 offen')
        A(f'buffer_store_dwordx4 v[12:15], v1, {srd("WS")}, s62 offen offset:16')
    def dstamp(slot, wg, wave=None, vt=(1, 125)):
        if not dbg: return
        L = A.label('DS')
        A(f's_cmp_lg_u32 s2, {wg}'); A(f's_cbranch_scc1 {L}')
        if wave is not None: A(f's_cmp_lg_u32 s{sW}, {wave}'); A(f's_cbranch_scc1 {L}')
        A('s_mov_b64 s[98:99], exec'); A('s_mov_b64 exec, 1')
        A('s_memrealtime s[96:97]')
        A(f'ds_read_b32 v{vt[1]}, v3 offset:{F_N}')
        A('s_waitcnt lgkmcnt(0)')
        A(f'v_sub_u32 v{vt[1]}, s96, v{vt[1]}')
        A(f'buffer_store_dword v{vt[1]}, v3, {srd("DBG")}, 0 offen offset:{4*slot} sc1')
        A('s_mov_b64 exec, s[98:99]')
        A(f'{L}:')
    def set_exec(mask):
        lo, hi = mask & 0xffffffff, mask >> 32
        for nm, m in (('exec_lo', lo), ('exec_hi', hi)):
            if m == 0xffffffff: A(f's_mov_b32 {nm}, s{sLIVE}')
            elif m == 0: A(f's_mov_b32 {nm}, 0')
            else: A(f's_and_b32 {nm}, s{sLIVE}, {m}')
    def full_exec(): set_exec((1 << 64) - 1)
    def barrier():
        L = A.label('BR')
        A(f's_cbranch_execz {L}'); A('s_barrier'); A(f'{L}:')
    def lds_wait(off, vz, vt, cmp_val=None):
        L = A.label('LW'); D = A.label('LWD')
        A('s_mov_b32 s63, 0')
        A(f's_cbranch_execz {D}')
        A(f'{L}:')
        A(f'ds_read_b32 v{vt}, v{vz} offset:{off}')
        A('s_waitcnt lgkmcnt(0)')
        A(f'v_readfirstlane_b32 s62, v{vt}')
        if cmp_val is None: A('s_cmp_lg_u32 s62, 0')
        else: A(f's_cmp_ge_u32 s62, {cmp_val}')
        A(f's_cbranch_scc1 {D}')
        A('s_sleep 1')
        A('s_add_u32 s63, s63, 1'); A(f's_cmp_lt_u32 s63, {SPIN_MAX * 8}'); A(f's_cbranch_scc1 {L}')
        A(f'{D}:')
    def lds_set(off, vz=vZ): A(f'ds_write_b32 v{vz}, v{vONE} offset:{off}')
    def lds_inc(off):
        set_exec(1); A(f'ds_add_u32 v{vZ}, v{vONE} offset:{off}'); full_exec()
    def poll(loads, regs, vt, regionAB=None, sleep=None, tags=(), vt2=None):
        L = A.label('PL'); D = A.label('PD')
        A('s_mov_b32 s63, 0')
        A(f'{L}:')
        if regionAB:
            A('s_and_b32 s62, s63, 7'); A('s_cmp_eq_u32 s62, 7')
            A(f's_mov_b32 s64, {regionAB[0]}'); A(f's_cselect_b32 s64, {regionAB[1]}, s64')
        loads()
        A('s_waitcnt vmcnt(0)')
        r = list(regs); first = True
        while r:
            if first:
                if len(r) >= 3: A(f'v_min3_u32 v{vt}, v{r[0]}, v{r[1]}, v{r[2]}'); r = r[3:]
                elif len(r) == 2: A(f'v_min_u32 v{vt}, v{r[0]}, v{r[1]}'); r = []
                else: A(f'v_mov_b32 v{vt}, v{r[0]}'); r = []
                first = False
            elif len(r) >= 2: A(f'v_min3_u32 v{vt}, v{vt}, v{r[0]}, v{r[1]}'); r = r[2:]
            else: A(f'v_min_u32 v{vt}, v{vt}, v{r[0]}'); r = []
        if regs: A(f'v_cmp_eq_u32 vcc, 0, v{vt}')
        if tags:
            tg = list(tags)
            x = vt2 if regs else vt
            A(f'v_xor_b32 v{x}, s{sN}, v{tg[0]}')
            for tr in tg[1:]: A(f'v_xor_b32 v{tr}, s{sN}, v{tr}')
            rest = tg[1:]
            while rest:
                if len(rest) >= 2: A(f'v_or3_b32 v{x}, v{x}, v{rest[0]}, v{rest[1]}'); rest = rest[2:]
                else: A(f'v_or_b32 v{x}, v{x}, v{rest[0]}'); rest = []
            if regs: A(f'v_cmp_ne_u32 s[82:83], 0, v{x}'); A('s_or_b64 vcc, vcc, s[82:83]')
            else: A(f'v_cmp_ne_u32 vcc, 0, v{x}')
        A(f's_cbranch_vccz {D}')
        sl = sleep_poll if sleep is None else sleep
        if sl: A(f's_sleep {sl}')
        A('s_add_u32 s63, s63, 1'); A(f's_cmp_lt_u32 s63, {SPIN_MAX}'); A(f's_cbranch_scc1 {L}')
        A(f'{D}:')
    def rbf(dst, src):
        A(f'v_cvt_pk_bf16_f32 v{dst}, v{src}, v{src}')
        A(f'v_and_b32 v{dst}, 0xffff0000, v{dst}')
    def rbf4(dst, src):
        for h in range(2):
            A(f'v_cvt_pk_bf16_f32 v{dst+2*h+1}, v{src+2*h}, v{src+2*h+1}')
        for h in range(2):
            A(f'v_lshlrev_b32 v{dst+2*h}, 16, v{dst+2*h+1}')
            A(f'v_and_b32 v{dst+2*h+1}, 0xffff0000, v{dst+2*h+1}')
    def allreduce(regs, op, tmp):
        for pat in ('quad_perm:[1,0,3,2]', 'quad_perm:[2,3,0,1]', 'row_half_mirror', 'row_mirror'):
            for r in regs: A(f'{op}_dpp v{r}, v{r}, v{r} {pat} row_mask:0xf bank_mask:0xf')
        for sw in ('v_permlane16_swap_b32', 'v_permlane32_swap_b32'):
            for r, t in zip(regs, tmp): A(f'v_mov_b32 v{t}, v{r}')
            for r, t in zip(regs, tmp): A(f'{sw} v{r}, v{t}')
            for r, t in zip(regs, tmp): A(f'{op} v{r}, v{r}, v{t}')
    def reduce_sgpr(regs, op, sdst):
        for pat in ('quad_perm:[1,0,3,2]', 'quad_perm:[2,3,0,1]', 'row_half_mirror', 'row_mirror'):
            for r in regs: A(f'{op}_dpp v{r}, v{r}, v{r} {pat} row_mask:0xf bank_mask:0xf')
        for r in regs: A(f'{op}_dpp v{r}, v{r}, v{r} row_bcast:15 row_mask:0xa bank_mask:0xf')
        for r in regs: A(f'{op}_dpp v{r}, v{r}, v{r} row_bcast:31 row_mask:0xc bank_mask:0xf')
        for r, sd in zip(regs, sdst): A(f'v_readlane_b32 s{sd}, v{r}, 63')
    def unpack2(dst, src):
        A(f'v_lshlrev_b32 v{dst}, 16, v{src}'); A(f'v_and_b32 v{dst+1}, 0xffff0000, v{src}')
    def rbf2(dst, src, t):
        A(f'v_cvt_pk_bf16_f32 v{t}, v{src}, v{src+1}'); unpack2(dst, t)
    def pk(op, d, a, b, bcast=False, negb=False):
        m = ''
        if bcast: m += ' op_sel_hi:[1,0]'
        if negb: m += ' neg_lo:[0,1] neg_hi:[0,1]'
        A(f'v_pk_{op}_f32 v[{d}:{d+1}], v[{a}:{a+1}], v[{b}:{b+1}]{m}')
    def tree2(base, n):
        step = 1
        while step < n:
            for k in range(0, n, 2 * step): pk('add', base + 2 * k, base + 2 * k, base + 2 * (k + step))
            step *= 2
    def ln_stats_pk(xs, vm, vinv):
        a, b = vm, vm + 1
        A(f's_mov_b32 s62, {ONES}')
        for k, r in enumerate(xs):
            A(f'v_dot2_f32_bf16 v{a}, v{r}, s62, ' + ('0' if k == 0 else f'v{a}'))
            A(f'v_dot2_f32_bf16 v{b}, v{r}, v{r}, ' + ('0' if k == 0 else f'v{b}'))
        reduce_sgpr([a, b], 'v_add_f32', [62, 63])
        A(f'v_mul_f32 v{a}, s62, v{vinv}'); A(f'v_mul_f32 v{b}, s63, v{vinv}')
        A(f'v_fma_f32 v{b}, -v{a}, v{a}, v{b}')
        A(f'v_max_f32 v{b}, 0, v{b}')
        rbf2(a, a, vm + 3)
        A(f'v_add_f32 v{b}, 0x3727c5ac, v{b}')
        rbf(b, b)
        A(f'v_sqrt_f32 v{b}, v{b}')
        rbf(b, b)
        A(f'v_rcp_f32 v{vm+2}, v{b}')
    def ln_apply_pk(b4, vm):
        for h in (0, 2): pk('add', b4 + h, b4 + h, vm, bcast=True, negb=True)
        rbf4(b4, b4)
        for h in (0, 2): pk('mul', b4 + h, b4 + h, vm + 2, bcast=True)
        rbf4(b4, b4)
    def tr_addr(RS, vdst, vt0, vt1, base_sgpr=None, base_imm=0):
        T = RS // 32
        A(f'v_lshrrev_b32 v{vt0}, 2, v0'); A(f'v_mul_u32_u24 v{vt0}, {RS}, v{vt0}')
        A(f'v_and_b32 v{vt1}, 3, v0'); A(f'v_lshl_add_u32 v{vt0}, v{vt1}, 3, v{vt0}')
        if base_sgpr is not None: A(f'v_add_u32 v{vt0}, s{base_sgpr}, v{vt0}')
        if base_imm: A(f'v_add_u32 v{vt0}, {base_imm}, v{vt0}')
        if RS == 128: A(f'v_bfe_u32 v{vt1}, v0, 3, 2')
        elif RS == 64: A(f'v_bfe_u32 v{vt1}, v0, 4, 1')
        for ct in range(T):
            A(f'v_xor_b32 v{vdst+ct}, {ct}, v{vt1}')
            A(f'v_lshl_add_u32 v{vdst+ct}, v{vdst+ct}, 5, v{vt0}')
    def dma_addr(RS, rowstride, vdst, vt0, vt1):
        cpr = RS // 16; lg = cpr.bit_length() - 1
        A(f'v_lshrrev_b32 v{vt0}, {lg}, v0'); A(f'v_and_b32 v{vt1}, {cpr - 1}, v0')
        if RS == 128:
            A(f'v_bfe_u32 v{vdst}, v{vt0}, 1, 2'); A(f'v_lshlrev_b32 v{vdst}, 1, v{vdst}'); A(f'v_xor_b32 v{vt1}, v{vt1}, v{vdst}')
        elif RS == 64:
            A(f'v_bfe_u32 v{vdst}, v{vt0}, 2, 1'); A(f'v_lshlrev_b32 v{vdst}, 1, v{vdst}'); A(f'v_xor_b32 v{vt1}, v{vt1}, v{vdst}')
        A(f'v_mul_u32_u24 v{vt0}, {rowstride}, v{vt0}')
        A(f'v_lshl_add_u32 v{vdst}, v{vt1}, 4, v{vt0}')
    def dma_issue(n, sr, vaddr, s_goff, gstep, s_lds, lds_imm=0, pace=0, pol='nt'):
        sr = srd(sr) if sr in SRD else sr
        L = A.label('DS')
        A(f's_cbranch_execz {L}')
        for k in range(n):
            if s_lds is None: A(f's_mov_b32 m0, {lds_imm + 1024 * k}')
            else: A(f's_add_u32 m0, s{s_lds}, {lds_imm + 1024 * k}')
            A(f'buffer_load_dwordx4 v{vaddr}, {sr}, s{s_goff} offen {pol} lds')
            if k + 1 < n: A(f's_add_u32 s{s_goff}, s{s_goff}, {gstep}')
            if pace and k + 1 >= pace and k + 1 < n: A(f's_waitcnt vmcnt({pace-1})')
        A(f'{L}:')
    def tail_gate(mode):
        if mode == 'v': lds_wait(VISS, vZ, 7, cmp_val=6)
        elif mode == 'o': lds_wait(F_ODONE, vZ, 7)
    def y_hint(th, tag):
        if not th: return
        A(f's_cmp_lg_u32 s{sR}, 0'); A(f's_cbranch_scc1 L_YH_{tag}')
        L = A.label('YH'); D = A.label('YHD')
        set_exec(1)
        A('s_mov_b32 s63, 0')
        A(f'{L}:')
        A(f'buffer_load_dword v7, v3, {srd("DBG")}, 0 offen offset:128 sc1')
        A('s_waitcnt vmcnt(0)')
        A('v_readfirstlane_b32 s62, v7'); A(f's_cmp_ge_u32 s62, {th}'); A(f's_cbranch_scc1 {D}')
        A('s_sleep 2')
        A('s_add_u32 s63, s63, 1'); A(f's_cmp_lt_u32 s63, {SPIN_MAX}'); A(f's_cbranch_scc1 {L}')
        A(f'{D}:')
        full_exec()
        lds_set(F_YH)
        A(f'L_YH_{tag}:')
        lds_wait(F_YH, vZ, 7)
    def merge4(acc, dst):
        for r in range(4): A(f'v_mov_b32 v{dst+r}, v{acc+r}')
        for ct in (1, 2, 3):
            m = 0x00010001 << ct
            A(f's_mov_b32 s80, {m}'); A(f's_mov_b32 s81, {m}')
            for r in range(4): A(f'v_cndmask_b32 v{dst+r}, v{dst+r}, v{acc+4*ct+r}, s[80:81]')
    def mod_addr(vdst, vcol, vt):
        A(f'v_lshrrev_b32 v{vt}, 6, v{vcol}'); A(f'v_lshlrev_b32 v{vt}, 11, v{vt}')
        A(f'v_and_b32 v{vdst}, 63, v{vcol}'); A(f'v_lshl_add_u32 v{vdst}, v{vdst}, 2, v{vt}')
    def mod_loads(vaddr, quads, nks, so='s64'):
        for ks in range(nks):
            for hf in range(2):
                q = quads[2 * ks + hf]
                A(f'buffer_load_dwordx4 v[{q}:{q+3}], v{vaddr}, {srd("WS")}, {so} offen offset:{512*ks+256*hf} sc1')
    def mod_tags(quads): return [q + 1 for q in quads] + [q + 3 for q in quads]
    def mod_sum(dst, quads, nks):
        for hf in range(2):
            for e in range(2):
                r = [quads[2 * ks + hf] + 2 * e for ks in range(nks)]
                d = dst + 2 * hf + e
                if nks == 2: A(f'v_add_f32 v{d}, v{r[0]}, v{r[1]}')
                else:
                    A(f'v_add_f32 v{r[0]}, v{r[0]}, v{r[1]}'); A(f'v_add_f32 v{r[2]}, v{r[2]}, v{r[3]}'); A(f'v_add_f32 v{d}, v{r[0]}, v{r[2]}')
    def get_nonce(vt):
        lds_wait(F_N, vZ, vt); A(f's_mov_b32 s{sN}, s62')
    def tree_add(base, n):
        step = 1
        while step < n:
            for k in range(0, n, 2 * step):
                for h2 in range(2):
                    a = base + 4 * k + 2 * h2; b = base + 4 * (k + step) + 2 * h2
                    A(f'v_pk_add_f32 v[{a}:{a+1}], v[{a}:{a+1}], v[{b}:{b+1}]')
            step *= 2
    def half_swap_add(base, tmp):
        for r in range(4): A(f'v_mov_b32 v{tmp+r}, v{base+r}')
        for r in range(4): A(f'v_permlane32_swap_b32 v{base+r}, v{tmp+r}')
        for h2 in range(2): A(f'v_pk_add_f32 v[{base+2*h2}:{base+1+2*h2}], v[{base+2*h2}:{base+1+2*h2}], v[{tmp+2*h2}:{tmp+1+2*h2}]')
    def fdiv(dst, num, den, t0, t1, t2, t3):
        A(f'v_rcp_f32 v{t0}, v{den}')
        A(f'v_mul_f32 v{t1}, v{num}, v{t0}')
        A(f'v_fma_f32 v{t2}, -v{t1}, v{den}, v{num}')
        A(f'v_fma_f32 v{t3}, v{t2}, v{t0}, v{t1}')
        A(f'v_cmp_o_f32 vcc, v{t3}, v{t3}')
        A(f'v_cndmask_b32 v{dst}, v{t1}, v{t3}, vcc')
    def ln_stats(xs, vm, vs, t0, t1):
        A(f'v_readfirstlane_b32 s62, v{xs[0]}')
        for r in xs: A(f'v_subrev_f32 v{r}, s62, v{r}')
        A(f'v_add_f32 v{vm}, v{xs[0]}, v{xs[1]}'); A(f'v_mul_f32 v{vs}, v{xs[0]}, v{xs[0]}')
        for k, r in enumerate(xs):
            if k >= 2: A(f'v_add_f32 v{vm}, v{vm}, v{r}')
            if k >= 1: A(f'v_fmac_f32 v{vs}, v{r}, v{r}')
        allreduce([vm, vs], 'v_add_f32', [t0, t1])
        inv = 0x3acccccd
        A(f'v_mul_f32 v{vm}, {inv}, v{vm}'); A(f'v_mul_f32 v{vs}, {inv}, v{vs}')
        A(f'v_fma_f32 v{vs}, -v{vm}, v{vm}, v{vs}')
        A(f'v_max_f32 v{vs}, 0, v{vs}')
        A(f'v_add_f32 v{vm}, s62, v{vm}')
        rbf(vm, vm); rbf(vs, vs)
        A(f'v_add_f32 v{vs}, 0x3727c5ac, v{vs}')
        rbf(vs, vs)
        A(f'v_sqrt_f32 v{vs}, v{vs}')
        rbf(vs, vs)
        A(f'v_rcp_f32 v{vs}, v{vs}')
    def ln_apply(b4, vm, vs):
        for r in range(4): A(f'v_sub_f32 v{b4+r}, v{b4+r}, v{vm}')
        rbf4(b4, b4)
        for r in range(4): A(f'v_mul_f32 v{b4+r}, v{b4+r}, v{vs}')
        rbf4(b4, b4)
    def unpack4(dst, src):
        A(f'v_lshlrev_b32 v{dst}, 16, v{src}'); A(f'v_and_b32 v{dst+1}, 0xffff0000, v{src}')
        A(f'v_lshlrev_b32 v{dst+2}, 16, v{src+1}'); A(f'v_and_b32 v{dst+3}, 0xffff0000, v{src+1}')
    def dry_check(ret):
        A(f's_cbranch_execz {ret}')
    def d_index():
        A(f's_lshl_b32 s75, s{sX}, 2'); A(f's_add_u32 s75, s75, s{sI}'); A('s_sub_u32 s75, s75, 26')
        A(f's_lshl_b32 s62, s{sX}, 1'); A(f's_add_u32 s62, s62, s{sI}'); A('s_add_u32 s62, s62, 2')
        A(f's_cmp_ge_u32 s{sI}, 30'); A('s_cselect_b32 s75, s62, s75')
    def branch_if_no_role(label):
        L = A.label('NR')
        A(f's_cmp_lt_u32 s{sI}, 30'); A(f's_cbranch_scc1 {L}')
        A(f's_cmp_ge_u32 s{sX}, 4'); A(f's_cbranch_scc1 {label}')
        A(f'{L}:')
    def kb_pi():
        A(f's_mul_i32 s68, s{sI}, 43'); A('s_lshr_b32 s68, s68, 8'); A('s_mul_i32 s62, s68, 6'); A(f's_sub_u32 s69, s{sI}, s62')

    A(HEADER_COMMENT.rstrip())
    A(f'; @launch grid=(256,1,1) block=(1024,1,1) lds={LDS_SIZE}')
    A('.amdgcn_target "amdgcn-amd-amdhsa--gfx950"')
    A('.text'); A(f'.globl {NAME}_kernel'); A('.p2align 8'); A(f'.type {NAME}_kernel,@function'); A(f'{NAME}_kernel:')
    for n in ('K', 'WMOD', 'WQ', 'WS', 'C', 'X', 'V', 'DBG', 'WO', 'WG', 'WU', 'WD', 'OUT'):
        A(f's_load_dwordx2 s[{SRD[n]}:{SRD[n]+1}], s[0:1], {KARG[n]}')
    if stamps:
        for k in range(1, 8): A(f's_mov_b32 s{86+2*k}, 0')
    stamp(0)
    A('v_lshrrev_b32 v1, 6, v0'); A('v_and_b32 v0, 63, v0')
    A(f'v_readfirstlane_b32 s{sW}, v1')
    for n in SRD:
        A(f's_mov_b32 s{SRD[n]+2}, {SIZE[n]}'); A(f's_mov_b32 s{SRD[n]+3}, 0x20000')
    A(f's_mov_b32 s{sLIVE}, -1'); A(f's_mov_b32 s{sN}, 0')
    A('s_cmp_ge_u32 s2, 256'); A('s_cbranch_scc1 L_END')
    A(f's_and_b32 s{sX}, s2, 7'); A(f's_lshr_b32 s{sI}, s2, 3')
    A(f's_lshr_b32 s{sH}, s{sI}, 3'); A(f's_lshl_b32 s62, s{sX}, 2'); A(f's_add_u32 s{sH}, s{sH}, s62')
    A(f's_and_b32 s{sS}, s{sI}, 7'); A(f's_and_b32 s{sR}, s{sW}, 7')
    A('v_lshrrev_b32 v1, 3, v0'); A('v_mul_u32_u24 v1, 1536, v1'); A('v_and_b32 v2, 7, v0'); A('v_lshl_add_u32 v2, v2, 4, v1')
    A('v_mov_b32 v3, 0'); A('v_mov_b32 v4, 1')
    A(f's_lshl_b32 s67, s{sH}, 12'); A(f's_lshl_b32 s62, s{sS}, 9'); A('s_add_u32 s67, s67, s62'); A('s_mul_i32 s67, s67, 384')
    A(f's_mul_i32 s65, s{sR}, 24576'); A('s_add_u32 s65, s65, s67'); A('s_add_u32 s66, s65, 12288')
    A(f's_lshl_b32 s62, s{sR}, 2'); A('v_mov_b32 v5, s62')
    A('s_waitcnt lgkmcnt(0)')
    A(f's_cmp_ge_u32 s{sW}, 8'); A('s_cbranch_scc1 L_KWAVE')
    A(f's_cmp_eq_u32 s{sR}, 2'); A('s_cbranch_scc1 L_F2')
    A(f's_cmp_ge_u32 s{sR}, 3'); A('s_cbranch_scc1 L_F3')

    kb_pi()
    A(f's_lshl_b32 s71, s{sR}, 14'); A(f's_add_u32 s71, s71, {LDS_B}')
    A('v_lshlrev_b32 v7, 2, v0')
    for j in range(5): A(f'buffer_load_dword v{10+j}, v7, {srd("X")}, 0 offen offset:{256*j}')
    A('v_and_b32 v8, 31, v0'); A('v_lshlrev_b32 v8, 3, v8'); A('s_lshl_b32 s62, s68, 8')
    A(f'buffer_load_dwordx2 v[16:17], v8, {srd("X")}, s62 offen')
    if SOFT: A('s_barrier')
    A(f's_cmp_ge_u32 s{sI}, 30'); A('s_cbranch_scc1 L_F01_NODMA')
    dma_addr(128, 12288, 6, 7, 8)
    A(f's_mul_i32 s70, s68, {128 * 12288}'); A(f's_mul_i32 s62, s{sX}, 1536'); A('s_add_u32 s70, s70, s62')
    A('s_lshl_b32 s62, s69, 8'); A('s_add_u32 s70, s70, s62'); A(f's_lshl_b32 s62, s{sR}, 7'); A('s_add_u32 s70, s70, s62')
    if SOFT: lds_wait(F_A, vZ, 9)
    dma_issue(16, 'WQ', 6, 70, 8 * 12288, 71, pol=FPOL)
    A(f's_waitcnt vmcnt({FB_AT})')
    A('L_F01_NODMA:')
    lds_inc(CNT_B)
    if not SOFT: A('s_barrier')
    A('L_F01_DRY:')
    A('s_waitcnt vmcnt(0)')
    A(f's_cmp_ge_u32 s{sI}, 30'); A('s_cbranch_scc1 L_F01_SKIPB')
    tr_addr(128, 40, 44, 45, base_sgpr=71)
    for u in range(4):
        for ct in range(4):
            r = 64 + (u * 4 + ct) * 4
            for hh in range(2):
                A(f'ds_read_b64_tr_b16 v[{r+2*hh}:{r+2*hh+1}], v{40+ct} offset:{(32*u+16*hh)*128}')
    A(f'v_lshrrev_b32 v46, 4, v0'); A('v_lshlrev_b32 v46, 3, v46')
    A('s_waitcnt lgkmcnt(0)')
    lds_inc(CNT_FREE)
    A(f's_cmp_eq_u32 s{sR}, 1'); A('s_cbranch_scc1 L_F1_WAITH')
    A('v_mov_b32 v29, 0x3acccccd')
    ln_stats_pk([10, 11, 12, 13, 14], 30, 29)
    unpack4(34, 16)
    ln_apply_pk(34, 30)
    A('v_and_b32 v8, 31, v0'); A('v_lshlrev_b32 v8, 2, v8'); A('v_lshrrev_b32 v9, 5, v0'); A('v_mul_u32_u24 v9, 640, v9'); A('v_add_u32 v8, v8, v9')
    A('s_lshl_b32 s62, s68, 7'); A('v_add_u32 v8, s62, v8')
    mod_addr(8, 8, 9)
    get_nonce(9)
    stamp(1)
    A(f's_mov_b32 s64, {R_MOD}')
    Q = [10, 14, 18, 22, 48, 52, 56, 60]
    A('v_and_b32 v38, 31, v0'); A('v_lshlrev_b32 v38, 2, v38'); A(f's_lshl_b32 s72, s{sX}, 7'); A(f's_add_u32 s72, s72, {R_CLR}')
    poll(lambda: (mod_loads(8, Q, 4), A(f'buffer_load_dword v39, v38, {srd("WS")}, s72 offen sc1')), [], 9, tags=mod_tags(Q) + [39])
    stamp(2)
    mod_sum(26, Q, 4)
    rbf4(48, 26)
    for r in range(4): A(f'v_mov_b32 v{52+r}, v{48+r}')
    for r in range(4): A(f'v_permlane32_swap_b32 v{48+r}, v{52+r}')
    for r in range(4): A(f'v_add_f32 v{52+r}, 1.0, v{52+r}')
    rbf4(52, 52)
    for r in range(4): A(f'v_mul_f32 v{52+r}, v{34+r}, v{52+r}')
    rbf4(52, 52)
    for r in range(4): A(f'v_add_f32 v{52+r}, v{52+r}, v{48+r}')
    A('v_cvt_pk_bf16_f32 v56, v52, v53'); A('v_cvt_pk_bf16_f32 v57, v54, v55')
    A('v_and_b32 v8, 31, v0'); A('v_lshlrev_b32 v8, 3, v8')
    A(f'ds_write_b64 v8, v[56:57] offset:{HV}')
    lds_set(F_H)
    dstamp(2, 8, vt=(1, 47))
    A('s_branch L_F01_C')
    A('L_F1_WAITH:')
    lds_wait(F_H, vZ, 18)
    A('L_F01_C:')
    for u in range(4):
        A(f'ds_read2_b64 v[{48+4*u}:{51+4*u}], v46 offset0:{HV//8 + 8*u} offset1:{HV//8 + 8*u + 4}')
    for r in range(16): A(f'v_mov_b32 v{20+r}, 0')
    A('v_and_b32 v8, 15, v0'); A('v_lshlrev_b32 v8, 6, v8'); A('v_lshrrev_b32 v9, 4, v0'); A('v_lshl_add_u32 v8, v9, 4, v8')
    A('s_mul_i32 s70, s68, 24576'); A(f's_mul_i32 s62, s{sX}, 3072'); A('s_add_u32 s70, s70, s62'); A('s_lshl_b32 s62, s69, 9'); A('s_add_u32 s70, s70, s62')
    A(f's_lshl_b32 s62, s{sR}, 8'); A('s_add_u32 s70, s70, s62')
    A(f's_add_u32 s72, s70, {R_Q[0]}'); A(f's_add_u32 s73, s70, {R_Q[1]}')
    A('s_waitcnt lgkmcnt(0)')
    for u in range(4):
        for ct in range(4):
            r = 64 + (u * 4 + ct) * 4
            A(f'v_mfma_f32_16x16x32_bf16 v[{20+4*ct}:{23+4*ct}], v[{r}:{r+3}], v[{48+4*u}:{51+4*u}], v[{20+4*ct}:{23+4*ct}]')
    lds_wait(F_CLR, vZ, 9)
    merge4(20, 36)
    for r in range(4): A(f'v_or_b32 v{36+r}, 1, v{36+r}')
    set_exec(0x000f000f000f000f)
    A(f'buffer_store_dwordx4 v[36:39], v8, {srd("WS")}, s72 offen')
    A(f'buffer_store_dwordx4 v[36:39], v8, {srd("WS")}, s73 offen sc1')
    full_exec()
    stamp(3)
    A('s_branch L_F01_D')
    A('L_F01_SKIPB:')
    lds_inc(CNT_FREE)
    get_nonce(9)
    lds_wait(F_CLR, vZ, 9)
    A('L_F01_D:')
    A(f's_cmp_eq_u32 s{sR}, 1'); A('s_cbranch_scc1 L_F1_T')
    A(f's_cmp_lt_u32 s{sI}, 30'); A('s_cbranch_scc1 L_F0_QG')
    A('v_and_b32 v8, 31, v0'); A('v_lshlrev_b32 v8, 2, v8'); A(f's_lshl_b32 s64, s{sX}, 7'); A(f's_add_u32 s64, s64, {R_CLR}')
    poll(lambda: A(f'buffer_load_dword v10, v8, {srd("WS")}, s64 offen sc1'), [], 9, tags=[10], sleep=8)
    A('L_F0_QG:')
    A('v_lshlrev_b32 v40, 4, v0'); A(f's_mul_i32 s62, s{sH}, 768'); A('v_add_u32 v40, s62, v40')
    for ks in range(1, 5): A(f'v_add_u32 v{40+ks}, {24576*ks}, v40')
    A('v_lshlrev_b32 v8, 3, v0')
    set_exec((1 << 48) - 1)
    def ld():
        for ks in range(5): A(f'buffer_load_dwordx4 v[{48+4*ks}:{51+4*ks}], v{40+ks}, {srd("WS")}, s64 offen sc1')
    poll(ld, list(range(48, 68)), 18, regionAB=R_Q)
    tree_add(48, 4)
    for h2 in range(2): A(f'v_pk_add_f32 v[{48+2*h2}:{49+2*h2}], v[{48+2*h2}:{49+2*h2}], v[{64+2*h2}:{65+2*h2}]')
    A('v_cvt_pk_bf16_f32 v56, v48, v49'); A('v_cvt_pk_bf16_f32 v57, v50, v51')
    A(f'ds_write_b64 v8, v[56:57] offset:{QV}')
    full_exec()
    lds_set(F_Q)
    dstamp(3, 8, vt=(1, 47))
    stamp(4)
    A(f's_lshl_b32 s62, s{sH}, 9'); A('v_add_u32 v14, s62, v8')
    poll(lambda: A(f'buffer_load_dwordx2 v[12:13], v14, {srd("WS")}, s64 offen sc1'), [12, 13], 15, regionAB=R_ST, sleep=2)
    A('v_and_b32 v12, 0xffff0000, v12')
    A('v_mov_b32 v16, v12')
    allreduce([16], 'v_max_f32', [15])
    A('v_sub_f32 v12, v12, v16'); A(f'v_mul_f32 v12, {LOG2E}, v12'); A('v_exp_f32 v12, v12'); A('v_mul_f32 v17, v12, v13')
    allreduce([17], 'v_add_f32', [15])
    A(f'ds_write_b64 v3, v[16:17] offset:{ML}')
    lds_set(F_ML)
    dstamp(5, 8, vt=(1, 47))
    stamp(5)
    A('s_branch L_F01_PV')
    A('L_F1_T:')
    A(f's_cmp_lt_u32 s{sI}, 20'); A('s_cbranch_scc1 L_F01_PV')
    branch_if_no_role('L_F01_PV')
    get_nonce(9)
    A('v_lshlrev_b32 v8, 4, v0')
    A(f's_mov_b32 s64, {R_MF}'); A(f's_mov_b32 s72, {R_CLR}'); A(f's_mov_b32 s73, {R_MF + 4096}')
    A(f's_cmp_ge_u32 s{sI}, 26'); A('s_cbranch_scc1 L_F1_TD')
    def ld():
        A(f'buffer_load_dwordx4 v[12:15], v8, {srd("WS")}, s72 offen sc1')
        for k in range(8):
            A(f'buffer_load_dwordx4 v[{16+4*k}:{19+4*k}], v8, {srd("WS")}, {"s64" if k < 4 else "s73"} offen offset:{1024*(k%4)} sc1')
    poll(ld, [], 9, tags=[12, 13, 14, 15] + [17 + 4 * k for k in range(8)] + [19 + 4 * k for k in range(8)], sleep=8)
    for k in range(8):
        q = 16 + 4 * k
        A(f'v_and_b32 v{q+3}, 0xffff0000, v{q+2}'); A(f'v_lshlrev_b32 v{q+2}, 16, v{q+2}')
        A(f'v_and_b32 v{q+1}, 0xffff0000, v{q}'); A(f'v_lshlrev_b32 v{q}, 16, v{q}')
        if k >= 5:
            for r in range(4): A(f'v_add_f32 v{q+r}, 1.0, v{q+r}')
            rbf4(q, q)
        A(f'ds_write_b128 v8, v[{q}:{q+3}] offset:{MODV + 1024*k}')
    lds_set(F_MV)
    stamp(4)
    A('s_branch L_F01_PV')
    A('L_F1_TD:')
    d_index()
    A('v_and_b32 v10, 3, v0'); A('v_lshlrev_b32 v10, 4, v10'); A('s_lshl_b32 s62, s75, 6'); A(f's_add_u32 s64, s62, {R_MF + 7680}')
    def ld():
        A(f'buffer_load_dwordx4 v[12:15], v8, {srd("WS")}, s72 offen sc1')
        A(f'buffer_load_dwordx4 v[16:19], v10, {srd("WS")}, s64 offen sc1')
    poll(ld, [], 9, tags=[12, 13, 14, 15, 17, 19], sleep=8)
    A('v_and_b32 v19, 0xffff0000, v18'); A('v_lshlrev_b32 v18, 16, v18'); A('v_and_b32 v17, 0xffff0000, v16'); A('v_lshlrev_b32 v16, 16, v16')
    A(f'ds_write_b128 v10, v[16:19] offset:{MODV}')
    lds_set(F_MV)
    stamp(4)
    A('L_F01_PV:')
    dry_check('L_DRYRET')
    lds_wait(CNT_VD, vZ, 9, cmp_val=6)
    A(f's_mul_i32 s62, s{sR}, 24576'); A(f's_add_u32 s62, s62, {LDS_A}'); A('v_lshl_add_u32 v8, v0, 4, s62')
    for n in range(24): A(f'ds_read_b128 v[{32+4*n}:{35+4*n}], v8 offset:{1024*n}')
    A('s_waitcnt lgkmcnt(0)')
    A('s_branch L_PV')

    A('L_F2:')
    A('s_cmp_ge_u32 s2, 240'); A('s_cbranch_scc1 L_F2_NONE')
    A('s_lshr_b32 s68, s2, 2'); A('s_and_b32 s69, s2, 3')
    A('v_lshlrev_b32 v7, 3, v0'); A('s_mul_i32 s62, s69, 320')
    A(f'buffer_load_dwordx2 v[10:11], v7, {srd("C")}, s62 offen')
    dma_addr(128, 7680, 6, 8, 9)
    A(f's_mul_i32 s70, s69, {160 * 7680}'); A('s_lshl_b32 s62, s68, 7'); A('s_add_u32 s70, s70, s62')
    dma_issue(20, 'WMOD', 6, 70, 8 * 7680, None, LDS_A, pol=FPOL)
    A('s_barrier')
    A('s_waitcnt vmcnt(20)')
    unpack4(12, 10)
    A(f's_mov_b32 s62, {LOG2E | 0x80000000}')
    for r in range(4): A(f'v_mul_f32 v{16+r}, s62, v{12+r}')
    for r in range(4): A(f'v_exp_f32 v{16+r}, v{16+r}')
    for r in range(4): A(f'v_add_f32 v{16+r}, 1.0, v{16+r}')
    for r in range(4): fdiv(12 + r, 12 + r, 16 + r, 20, 21, 22, 23)
    A('v_cvt_pk_bf16_f32 v16, v12, v13'); A('v_cvt_pk_bf16_f32 v17, v14, v15')
    set_exec((1 << 40) - 1)
    A(f'ds_write_b64 v7, v[16:17] offset:{SC}')
    full_exec()
    tr_addr(128, 6, 10, 11, base_imm=LDS_A)
    A(f'v_lshrrev_b32 v10, 4, v0'); A('v_lshlrev_b32 v10, 3, v10')
    for u in range(5):
        A(f'ds_read2_b64 v[{28+4*u}:{31+4*u}], v10 offset0:{SC//8 + 8*u} offset1:{SC//8 + 8*u + 4}')
    A('v_and_b32 v11, 15, v0'); A('v_lshlrev_b32 v11, 6, v11'); A('v_lshrrev_b32 v12, 4, v0'); A('v_lshl_add_u32 v11, v12, 4, v11')
    if dry:
        A(f's_mov_b32 s{sLIVE}, 0'); A('s_mov_b64 exec, 0')
    A('L_F2_B:')
    A(f's_cbranch_execz L_F2_B1'); A(f's_waitcnt vmcnt({FA_AT})'); lds_set(F_A); A('s_waitcnt vmcnt(0)'); A('L_F2_B1:')
    stamp(1)
    for u in range(5):
        for ct in range(4):
            r = 48 + (u * 4 + ct) * 4
            for hh in range(2):
                A(f'ds_read_b64_tr_b16 v[{r+2*hh}:{r+2*hh+1}], v{6+ct} offset:{(32*u+16*hh)*128}')
    for r in range(16): A(f'v_mov_b32 v{12+r}, 0')
    A('s_waitcnt lgkmcnt(0)')
    lds_inc(CNT_FREE)
    for u in range(5):
        for ct in range(4):
            r = 48 + (u * 4 + ct) * 4
            A(f'v_mfma_f32_16x16x32_bf16 v[{12+4*ct}:{15+4*ct}], v[{r}:{r+3}], v[{28+4*u}:{31+4*u}], v[{12+4*ct}:{15+4*ct}]')
    A(f's_lshl_b32 s70, s2, 9'); A(f's_add_u32 s70, s70, {R_MOD}')
    get_nonce(49)
    merge4(12, 52)
    stamp(2)
    A('v_mov_b32 v56, v52'); A('v_mov_b32 v58, v53'); A('v_mov_b32 v60, v54'); A('v_mov_b32 v62, v55')
    for r in (57, 59, 61, 63): A(f'v_mov_b32 v{r}, s{sN}')
    set_exec(0x000f000f000f000f)
    A(f'buffer_store_dwordx4 v[56:59], v11, {srd("WS")}, s70 offen sc1')
    A(f'buffer_store_dwordx4 v[60:63], v11, {srd("WS")}, s70 offen offset:256 sc1')
    full_exec()
    dstamp(1, 8, vt=(1, 47))
    stamp(3)
    if dry:
        A('s_cbranch_execnz L_VSTREAM')
        A(f's_mov_b32 s{sLIVE}, -1'); A('s_mov_b64 exec, -1'); A('s_branch L_F2_B')
    A('s_branch L_VSTREAM')
    A('L_F2_NONE:')
    A('s_barrier')
    lds_set(F_A)
    lds_inc(CNT_FREE)
    A('s_branch L_VSTREAM')

    A('L_F3:')
    A(f's_cmp_ge_u32 s{sR}, 4'); A('s_cbranch_scc1 L_F4')
    A('s_cmp_lg_u32 s2, 0'); A('s_cbranch_scc1 L_F3_B')
    A('s_memrealtime s[62:63]'); A('s_waitcnt lgkmcnt(0)'); A('s_or_b32 s62, s62, 1'); A('v_mov_b32 v8, s62')
    set_exec(1)
    A('v_mov_b32 v9, 0')
    A(f'buffer_atomic_cmpswap v[8:9], v3, {srd("DBG")}, 0 offen sc1')
    full_exec()
    A('L_F3_B:')
    A('v_lshlrev_b32 v7, 2, v0'); A('ds_write_b32 v7, v3')
    for k in range(3): A(f'ds_write_b32 v7, v3 offset:{OACC + 256*k}')
    A('s_waitcnt lgkmcnt(0)')
    A('s_barrier')
    set_exec(1)
    poll(lambda: A(f'buffer_load_dword v9, v3, {srd("DBG")}, 0 offen sc1'), [9], 10, sleep=NSLEEP)
    A(f'ds_write_b32 v3, v9 offset:{F_N}')
    full_exec()
    stamp(1)
    A('s_branch L_VSTREAM')
    A('L_F4:')
    A(f's_cmp_lg_u32 s{sR}, 4'); A('s_cbranch_scc1 L_F5')
    for r in range(4): A(f'v_mov_b32 v{8+r}, 0')
    kb_pi()
    A('s_mul_i32 s70, s68, 24576'); A(f's_mul_i32 s62, s{sX}, 3072'); A('s_add_u32 s70, s70, s62'); A('s_lshl_b32 s62, s69, 9'); A('s_add_u32 s70, s70, s62')
    A(f's_add_u32 s70, s70, {R_Q[0]}')
    A('v_and_b32 v12, 31, v0'); A('v_lshlrev_b32 v12, 4, v12'); A('v_lshrrev_b32 v13, 5, v0'); A(f'v_mul_u32_u24 v13, {R_Q[1]-R_Q[0]}, v13'); A('v_add_u32 v12, v12, v13')
    A(f's_cmp_ge_u32 s{sI}, 30'); A('s_cbranch_scc1 L_F4_B')
    A(f'buffer_store_dwordx4 v[8:11], v12, {srd("WS")}, s70 offen sc1')
    A('L_F4_B:')
    A(f's_lshl_b32 s62, s{sH}, 3'); A(f's_add_u32 s62, s62, s{sS}'); A('s_mul_i32 s71, s62, 768'); A('s_lshl_b32 s72, s62, 6')
    A('v_lshlrev_b32 v12, 4, v0')
    A(f's_add_u32 s73, s71, {R_O[0]}'); A('v_add_u32 v13, s73, v12')
    A(f's_add_u32 s73, s72, {R_ST[0] - 768}'); A('v_add_u32 v14, s73, v12')
    A('v_cmp_lt_u32 vcc, 47, v0'); A('v_cndmask_b32 v13, v13, v14, vcc')
    A(f's_add_u32 s73, s71, {R_O[1]}'); A('v_add_u32 v15, s73, v12')
    A(f's_add_u32 s73, s72, {R_ST[1] - 768}'); A('v_add_u32 v14, s73, v12')
    A('v_cndmask_b32 v15, v15, v14, vcc')
    A(f's_cmp_ge_u32 s{sI}, 20'); A('s_cbranch_scc1 L_F4_C')
    A(f's_and_b32 s62, s{sI}, 1'); A(f's_lshl_b32 s63, s{sX}, 1'); A('s_add_u32 s62, s62, s63'); A('s_mul_i32 s74, s62, 2560')
    A(f's_lshr_b32 s62, s{sI}, 1'); A('s_lshl_b32 s62, s62, 8'); A('s_add_u32 s74, s74, s62'); A(f's_add_u32 s74, s74, {R_Y}')
    set_exec(0xffff)
    A(f'buffer_store_dwordx4 v[8:11], v12, {srd("WS")}, s74 offen sc1')
    full_exec()
    A('s_branch L_F4_D')
    A('L_F4_C:')
    A(f's_cmp_ge_u32 s{sI}, 26'); A('s_cbranch_scc1 L_F4_D')
    A(f's_mul_i32 s75, s{sX}, 6'); A(f's_add_u32 s75, s75, s{sI}'); A('s_sub_u32 s75, s75, 20')
    A('s_and_b32 s62, s75, 1'); A('s_mul_i32 s74, s62, 3072'); A('s_lshr_b32 s62, s75, 1'); A('s_lshl_b32 s62, s62, 7'); A('s_add_u32 s74, s74, s62'); A(f's_add_u32 s74, s74, {R_HM}')
    set_exec(0xff)
    A(f'buffer_store_dwordx4 v[8:11], v12, {srd("WS")}, s74 offen sc1')
    full_exec()
    A('s_cmp_ge_u32 s75, 8'); A('s_cbranch_scc1 L_F4_D')
    A('s_mul_i32 s63, s75, 160'); A(f's_add_u32 s63, s63, {R_X2}')
    set_exec(0x3ff)
    A(f'buffer_store_dwordx4 v[8:11], v12, {srd("WS")}, s63 offen sc1')
    full_exec()
    A('L_F4_D:')
    set_exec((1 << 52) - 1)
    A(f'buffer_store_dwordx4 v[8:11], v13, {srd("WS")}, 0 offen sc1')
    set_exec((1 << 52) - 1)
    A(f'buffer_store_dwordx4 v[8:11], v15, {srd("WS")}, 0 offen sc1')
    full_exec()
    A('s_barrier')
    A('s_waitcnt vmcnt(0)')
    lds_set(F_CLR)
    stamp(1)
    get_nonce(12)
    A(f'v_mov_b32 v12, s{sN}')
    A(f's_lshl_b32 s70, s{sX}, 5'); A(f's_add_u32 s70, s70, s{sI}'); A('s_lshl_b32 s70, s70, 2'); A(f's_add_u32 s70, s70, {R_CLR}')
    set_exec(1)
    A(f'buffer_store_dword v12, v3, {srd("WS")}, s70 offen sc1')
    full_exec()
    stamp(2)
    A('s_branch L_VSTREAM')
    A('L_F5:')
    A('s_barrier')
    A(f's_cmp_lg_u32 s{sR}, 5'); A('s_cbranch_scc1 L_F6')
    A('s_cmp_ge_u32 s2, 40'); A('s_cbranch_scc1 L_F6')
    A('v_lshrrev_b32 v8, 4, v0'); A('v_lshlrev_b32 v8, 9, v8'); A('v_and_b32 v9, 15, v0'); A('v_lshlrev_b32 v9, 4, v9'); A('v_add_u32 v8, v8, v9')
    A('s_lshl_b32 s64, s2, 11'); A(f's_add_u32 s64, s64, {R_MOD + 20 * 2048}')
    A('s_lshl_b32 s72, s2, 8'); A(f's_add_u32 s72, s72, {R_MF}')
    get_nonce(10)
    def ld():
        A(f'buffer_load_dwordx4 v[12:15], v8, {srd("WS")}, s64 offen sc1')
        A(f'buffer_load_dwordx4 v[16:19], v8, {srd("WS")}, s64 offen offset:256 sc1')
    poll(ld, [], 10, tags=[13, 15, 17, 19], sleep=8)
    vals = [12, 14, 16, 18]
    for sw in ('v_permlane16_swap_b32', 'v_permlane32_swap_b32'):
        for r in vals: A(f'v_mov_b32 v{r+1}, v{r}')
        for r in vals: A(f'{sw} v{r}, v{r+1}')
        for r in vals: A(f'v_add_f32 v{r}, v{r}, v{r+1}')
    A('v_cvt_pk_bf16_f32 v20, v12, v14'); A('v_cvt_pk_bf16_f32 v22, v16, v18'); A(f'v_mov_b32 v21, s{sN}'); A(f'v_mov_b32 v23, s{sN}')
    set_exec(0xffff)
    A(f'buffer_store_dwordx4 v[20:23], v9, {srd("WS")}, s72 offen sc1')
    full_exec()
    stamp(2)
    A('L_F6:')
    if TD == 's':
        A(f's_cmp_lt_u32 s{sR}, 6'); A('s_cbranch_scc1 L_F6_X')
        A(f's_cmp_lt_u32 s{sI}, 26'); A('s_cbranch_scc1 L_F6_X')
        branch_if_no_role('L_F6_X')
        d_index()
        dma_addr(32, 1280, 6, 7, 8)
        A(f's_sub_u32 s76, s{sR}, 6')
        A(f's_mul_i32 s77, s76, {768 * 1280}'); A('s_lshl_b32 s62, s75, 5'); A('s_add_u32 s77, s77, s62')
        A(f's_mul_i32 s78, s76, 24576'); A(f's_add_u32 s78, s78, {LDS_T}')
        lds_wait(CNT_B, vZ, 9, cmp_val=2)
        dma_issue(24, 'WD', 6, 77, 32 * 1280, 78, pace=DPACE, pol=TPOL)
        A('s_waitcnt vmcnt(0)')
        lds_inc(CNT_TD)
        A('L_F6_X:')
    if dry:
        for r in list(range(6, 48)): A(f'v_mov_b32 v{r}, 0')
        A(f's_mov_b32 s{sLIVE}, 0'); A('s_mov_b64 exec, 0')
        A(f's_cmp_eq_u32 s{sR}, 5'); A('s_cbranch_scc1 L_F5_K')
        A(f's_cmp_eq_u32 s{sR}, 6'); A('s_cbranch_scc1 L_F6_F')
        A('s_branch L_PV')
        A('L_F5_K:'); A(f's_mov_b32 s{sR}, 0'); A('s_branch L_K_DRY')
        A('L_F6_F:'); A(f's_mov_b32 s{sR}, 0'); kb_pi(); A(f's_mov_b32 s71, {LDS_B}'); A('s_branch L_F01_DRY')
        A('L_DRYRET:')
        A(f's_mov_b32 s{sLIVE}, -1'); A('s_mov_b64 exec, -1'); A(f's_and_b32 s{sR}, s{sW}, 7')
        stamp(1)
    else:
        A('L_DRYRET:')

    VD = 32
    A('L_VSTREAM:')
    A('s_waitcnt vmcnt(0)')
    A(f's_sub_u32 s68, s{sR}, 2'); A('s_cmp_ge_u32 s68, 3'); A('s_cselect_b32 s69, 1, 0')
    A('s_mul_i32 s62, s69, 3'); A('s_sub_u32 s68, s68, s62')
    A('s_mul_i32 s70, s69, 24576'); A(f's_add_u32 s71, s70, {LDS_A}'); A('s_add_u32 s70, s70, s67')
    A('s_lshl_b32 s62, s68, 13'); A('s_add_u32 s71, s71, s62')
    lds_wait(CNT_FREE, vZ, 6, cmp_val=3)
    lds_wait(KISS, vPF, 6)
    stamp(5)
    cnt = 0
    for part in range(3):
        if part < 2:
            A(f's_cmp_lg_u32 s68, {part}'); A(f's_cbranch_scc1 L_VD_{part+1}')
        for k in range(8):
            n = 8 * part + k
            off = (n // 12) * 12288 + ((n % 12) // 3) * 384 + (n % 3) * 128
            A(f's_add_u32 m0, s71, {1024*k}'); A(f's_add_u32 s62, s70, {off}')
            A(f'buffer_load_dwordx4 v2, {srd("V")}, s62 offen {KVPOL} lds')
            if k + 1 >= DV: A(f's_waitcnt vmcnt({DV-1})')
        if part < 2:
            A('s_branch L_VD_E'); A(f'L_VD_{part+1}:')
    A('L_VD_E:')
    def vload(n):
        T, tt, c = n // 12, (n % 12) // 3, n % 3
        A(f'buffer_load_dwordx4 v[{VD+4*n}:{VD+4*n+3}], v2, {srd("V")}, s{65+T} offen offset:{tt*384+c*128} {KVPOL}')
    for n in range(24):
        vload(n)
        if n + 1 < 24 - VFREE:
            if VADAPT and n + 1 > DV:
                A(f'ds_read_b32 v6, v{vPF} offset:{PRDY}')
                A(f's_waitcnt vmcnt({DV-1}) lgkmcnt(0)')
                A('v_readfirstlane_b32 s62, v6'); A('s_cmp_lg_u32 s62, 0'); A(f's_cbranch_scc1 L_VF_{n+1}')
            else:
                A(f's_waitcnt vmcnt({DV-1})')
        if n + 1 == DV: lds_inc(CNT_VD)
    if VADAPT:
        A('s_branch L_VF_E')
        for n in range(DV + 1, 24):
            A(f'L_VF_{n}:'); vload(n)
        A('L_VF_E:')
    lds_inc(VISS)
    if WV:
        A(f's_cmp_ge_u32 s{sI}, 20'); A('s_cbranch_scc1 L_WV_NO')
        dma_addr(128, 1280, 6, 7, 8)
        A(f's_mul_i32 s70, s{sX}, 768'); A(f's_and_b32 s62, s{sI}, 1'); A('s_mul_i32 s62, s62, 384'); A('s_add_u32 s70, s70, s62')
        A(f's_sub_u32 s71, s{sR}, 2'); A('s_lshl_b32 s62, s71, 6'); A('s_add_u32 s70, s70, s62'); A('s_mul_i32 s70, s70, 1280')
        A(f's_lshr_b32 s62, s{sI}, 1'); A('s_lshl_b32 s62, s62, 7'); A('s_add_u32 s70, s70, s62')
        A('s_lshl_b32 s71, s71, 13'); A(f's_add_u32 s71, s71, {LDS_T}')
        dma_issue(8, 'WO', 6, 70, 8 * 1280, 71, pol=TPOL)
        A('s_branch L_WV_E')
        A('L_WV_NO:')
        A('v_mov_b32 v6, 0x7ffff000')
        for k in range(8): A(f'buffer_load_dword v2, v6, {srd("X")}, 0 offen')
        A('L_WV_E:')
    if diagV:
        stamp(3); A('s_waitcnt vmcnt(0)'); stamp(4)
    A('L_PV:')
    A('v_and_b32 v14, 7, v0')
    A('v_and_b32 v15, 1, v14'); A('v_lshlrev_b32 v15, 4, v15'); A('v_mov_b32 v10, 0xffff'); A('v_lshlrev_b32 v15, v15, v10')
    A('v_lshrrev_b32 v14, 1, v14')
    for d in range(4):
        A(f'v_cmp_eq_u32 vcc, {d}, v14'); A(f'v_cndmask_b32 v{6+d}, 0, v15, vcc')
    for r in range(12): A(f'v_mov_b32 v{16+r}, 0')
    A('v_lshrrev_b32 v14, 3, v0'); A('v_lshlrev_b32 v14, 4, v14'); A(f's_lshl_b32 s62, s{sR}, 8'); A('v_add_u32 v14, s62, v14')
    A('v_bfe_u32 v1, v0, 4, 1'); A('v_lshlrev_b32 v1, 7, v1'); A('v_and_b32 v15, 7, v0'); A('v_lshl_add_u32 v1, v15, 2, v1')
    A('v_lshrrev_b32 v15, 5, v0'); A('v_lshl_add_u32 v1, v15, 5, v1'); A(f's_mul_i32 s62, s{sR}, 768'); A('v_add_u32 v1, s62, v1')
    A(f's_lshl_b32 s62, s{sH}, 3'); A(f's_add_u32 s62, s62, s{sS}'); A('s_mul_i32 s62, s62, 768')
    A(f's_add_u32 s72, s62, {R_O[0]}'); A(f's_add_u32 s73, s62, {R_O[1]}')
    lds_wait(PRDY, vPF, 15)
    stamp(6)
    for T in range(2):
        A(f'ds_read_b128 v[10:13], v14 offset:{PD + 128*T}')
        A('s_waitcnt lgkmcnt(0)')
        for tt in range(4):
            t = 4 * T + tt
            for d in range(4): A(f'v_and_b32 v{28+d}, v{10+tt}, v{6+d}')
            for c in range(3):
                n = 3 * t + c
                A(f's_waitcnt vmcnt({23-n+(8 if WV else 0)})')
                A(f'v_mfma_f32_16x16x32_bf16 v[{16+4*c}:{19+4*c}], v[{VD+4*n}:{VD+4*n+3}], v[28:31], v[{16+4*c}:{19+4*c}]')
    A('v_lshlrev_b32 v14, 4, v0')
    for k in range(6): A(f'v_permlane32_swap_b32 v{16+2*k}, v{17+2*k}')
    for k in range(6): A(f'v_add_f32_dpp v{16+2*k}, v{17+2*k}, v{16+2*k} row_ror:8 row_mask:0xf bank_mask:0xf')
    set_exec(0x00ff00ff00ff00ff)
    for k in range(6): A(f'ds_write_b32 v1, v{16+2*k} offset:{RED + 256*(k//2) + 64*(k%2)}')
    set_exec(1)
    A(f'ds_add_rtn_u32 v15, v3, v4 offset:{CNT_O}')
    set_exec((1 << 48) - 1)
    for k in range(8): A(f'ds_read_b128 v[{32+4*k}:{35+4*k}], v14 offset:{RED + 768*k}')
    A('s_waitcnt lgkmcnt(8)')
    A('v_readfirstlane_b32 s62, v15')
    A('s_cbranch_execz L_VRED')
    A('s_cmp_lg_u32 s62, 7'); A('s_cbranch_scc1 L_VEND')
    A('L_VRED:')
    A('s_waitcnt lgkmcnt(0)')
    tree_add(32, 8)
    for r in range(4): A(f'v_or_b32 v{32+r}, 1, v{32+r}')
    A(f'buffer_store_dwordx4 v[32:35], v14, {srd("WS")}, s72 offen')
    A(f'buffer_store_dwordx4 v[32:35], v14, {srd("WS")}, s73 offen sc1')
    lds_set(F_ODONE)
    dstamp(6, 8, vt=(1, 47))
    dry_check('L_DRYRET')
    A('L_VEND:')
    stamp(7)
    if WV:
        A(f's_cmp_lt_u32 s{sR}, 2'); A('s_cbranch_scc1 L_VEND2')
        A(f's_cmp_ge_u32 s{sI}, 20'); A('s_cbranch_scc1 L_VEND2')
        A('s_waitcnt vmcnt(0)')
        lds_inc(CNT_TD)
        A('L_VEND2:')
    flush_stamps()
    A('s_endpgm')

    A('L_KWAVE:')
    KD = 32
    def kload(n):
        T, tt, c = n // 12, (n % 12) // 3, n % 3
        A(f'buffer_load_dwordx4 v[{KD+4*n}:{KD+4*n+3}], v2, {srd("K")}, s{65+T} offen offset:{tt*384+c*128} {KVPOL}')
    KA0 = 12
    for n in range(24):
        kload(n)
        if n + 1 == (SOFT or DK):
            A('s_barrier')
            if SOFT and KW == 'a': lds_wait(F_A, vZ, 6)
            if SOFT and KW == 'b': lds_wait(CNT_B, vZ, 6, cmp_val=2)
        if n + 1 >= DK and n + 1 < 24:
            if KADAPT and n + 1 >= KA0:
                A(f'ds_read_b32 v6, v{vZ} offset:{F_Q}')
                A(f's_waitcnt vmcnt({DK-1}) lgkmcnt(0)')
                A('v_readfirstlane_b32 s62, v6'); A('s_cmp_lg_u32 s62, 0'); A(f's_cbranch_scc1 L_KF_{n+1}')
            else:
                A(f's_waitcnt vmcnt({DK-1})')
    if KADAPT:
        A('s_branch L_KF_E')
        for n in range(KA0, 24):
            A(f'L_KF_{n}:'); kload(n)
        A('L_KF_E:')
    lds_set(KISS, vPF)
    dstamp(4, 8, 8, vt=(1, 7))
    stamp(1)
    A('L_K_DRY:')
    A('v_and_b32 v6, 7, v0'); A('v_lshlrev_b32 v6, 4, v6')
    A(f's_lshl_b32 s62, s{sH}, 6'); A(f's_lshl_b32 s63, s{sS}, 3'); A('s_add_u32 s62, s62, s63'); A(f's_add_u32 s62, s62, s{sR}'); A('s_lshl_b32 s62, s62, 3')
    A(f's_add_u32 s72, s62, {R_ST[0]}'); A(f's_add_u32 s73, s62, {R_ST[1]}')
    def setmask(m, s): A(f's_mov_b32 s{s}, {m}'); A(f's_mov_b32 s{s+1}, {m}')
    setmask(0xf0f0f0f0, 80); setmask(0xaaaaaaaa, 82); setmask(0xcccccccc, 84)
    lds_wait(F_Q, vZ, 7)
    stamp(2)
    for c in range(3): A(f'ds_read_b128 v[{8+4*c}:{11+4*c}], v6 offset:{QV + 128*c}')
    A('s_waitcnt lgkmcnt(0)')
    for tp in range(0, 8, 2):
        A(f's_waitcnt vmcnt({21 - 3*(tp+1)})')
        for c in range(3):
            for d in range(4):
                for t in (tp, tp + 1):
                    kr = KD + 4 * (3 * t + c) + d
                    src2 = '0' if (c == 0 and d == 0) else f'v{20+t}'
                    A(f'v_dot2_f32_bf16 v{20+t}, v{kr}, v{8+4*c+d}, {src2}')
    for j in range(4):
        A(f'v_cndmask_b32 v{8+j}, v{20+j}, v{24+j}, s[80:81]')
        A(f'v_cndmask_b32 v{12+j}, v{24+j}, v{20+j}, s[80:81]')
    for j in range(4): A(f'v_add_f32_dpp v{8+j}, v{12+j}, v{8+j} row_half_mirror row_mask:0xf bank_mask:0xf')
    for jj in (0, 1):
        A(f'v_cndmask_b32 v{12+jj}, v{8+2*jj}, v{9+2*jj}, s[82:83]')
        A(f'v_cndmask_b32 v{14+jj}, v{9+2*jj}, v{8+2*jj}, s[82:83]')
    for jj in (0, 1): A(f'v_add_f32_dpp v{12+jj}, v{14+jj}, v{12+jj} quad_perm:[1,0,3,2] row_mask:0xf bank_mask:0xf')
    A('v_cndmask_b32 v8, v12, v13, s[84:85]'); A('v_cndmask_b32 v9, v13, v12, s[84:85]')
    A('v_add_f32_dpp v8, v9, v8 quad_perm:[2,3,0,1] row_mask:0xf bank_mask:0xf')
    rbf(8, 8); A(f'v_mul_f32 v8, {SCALE}, v8'); rbf(8, 8)
    A('v_mov_b32 v9, v8')
    allreduce([9], 'v_max_f32', [10])
    A('v_sub_f32 v10, v8, v9'); A(f'v_mul_f32 v10, {LOG2E}, v10'); A('v_exp_f32 v10, v10')
    allreduce([10], 'v_add_f32', [11])
    A('v_or_b32 v12, 1, v9'); A('v_mov_b32 v13, v10')
    set_exec(1)
    A(f'buffer_store_dwordx2 v[12:13], v3, {srd("WS")}, s72 offen')
    A(f'buffer_store_dwordx2 v[12:13], v3, {srd("WS")}, s73 offen sc1')
    full_exec()
    stamp(3)
    A('v_mov_b32 v127, v8')
    A(f's_cmp_lt_u32 s{sR}, 2'); A('s_cselect_b32 s62, 8, 0'); A('v_add_u32 v126, s62, v5')
    def emit_p():
        lds_wait(F_ML, vZ, 120)
        A(f'ds_read_b64 v[120:121], v3 offset:{ML}')
        A('v_bfe_u32 v122, v0, 2, 1'); A('v_lshlrev_b32 v122, 5, v122'); A('v_lshrrev_b32 v123, 3, v0'); A('v_lshl_add_u32 v122, v123, 2, v122')
        A('v_and_b32 v123, 3, v0'); A('v_add_u32 v122, v122, v123'); A('v_lshlrev_b32 v122, 2, v122'); A(f's_lshl_b32 s62, s{sR}, 8'); A('v_add_u32 v122, s62, v122')
        A('s_waitcnt lgkmcnt(0)')
        A('v_sub_f32 v127, v127, v120'); A(f'v_mul_f32 v127, {LOG2E}, v127'); A('v_exp_f32 v127, v127')
        fdiv(127, 127, 121, 120, 123, 124, 125)
        A('v_cvt_pk_bf16_f32 v127, v127, v127')
        A(f'ds_write_b32 v122, v127 offset:{PD}')
        lds_set(PRDY, vPF)
        stamp(4)
    A(f's_cmp_lt_u32 s{sI}, 20'); A('s_cbranch_scc1 L_TW')
    A(f's_cmp_lt_u32 s{sI}, 26'); A('s_cbranch_scc1 L_TG')
    branch_if_no_role('L_TNONE')
    A('s_branch L_TD')
    A('L_TNONE:')
    emit_p()
    A('s_branch L_KEND')

    FR = 64
    def wg_common(nk, rows_per_kg):
        A(f's_and_b32 s76, s{sR}, 3'); A(f's_lshr_b32 s77, s{sR}, 2')
        A(f's_mul_i32 s78, s76, {rows_per_kg * 128}'); A(f's_add_u32 s78, s78, {LDS_T}')
        A('v_lshrrev_b32 v12, 2, v0'); A('v_lshlrev_b32 v12, 7, v12'); A('v_and_b32 v13, 3, v0'); A('v_lshl_add_u32 v12, v13, 3, v12'); A('v_add_u32 v12, s78, v12')
        A('v_bfe_u32 v13, v0, 3, 2'); A('s_lshl_b32 s62, s77, 1')
        A('v_xor_b32 v10, s62, v13'); A('v_xor_b32 v11, 1, v10')
        A('v_lshl_add_u32 v10, v10, 5, v12'); A('v_lshl_add_u32 v11, v11, 5, v12')
        A(f's_lshl_b32 s74, s{sR}, 9'); A(f's_add_u32 s74, s74, {STG}')
        A('v_lshrrev_b32 v19, 4, v0'); A('v_lshl_add_u32 v19, v19, 3, s74')
        A('v_lshrrev_b32 v18, 4, v0'); A('v_lshlrev_b32 v18, 4, v18'); A('s_lshl_b32 s62, s76, 8'); A('s_lshl_b32 s63, s77, 7'); A('s_add_u32 s62, s62, s63'); A('v_add_u32 v18, s62, v18')
        A('v_lshlrev_b32 v27, 3, v0')
        A(f's_mul_i32 s62, s77, {rows_per_kg * 64}'); A('s_add_u32 s73, s78, s62')
    def wg_fetch(nk, acc):
        for r in range(8): A(f'v_mov_b32 v{acc+r}, 0')
        A('s_waitcnt vmcnt(0)')
        lds_inc(CNT_TD)
        lds_wait(CNT_TD, vZ, 7, cmp_val=8)
        for u in range(nk):
            for ct in range(2):
                r = FR + (u * 2 + ct) * 4
                for hh in range(2): A(f'ds_read_b64_tr_b16 v[{r+2*hh}:{r+2*hh+1}], v{10+ct} offset:{(32*u+16*hh)*128}')
    def wg_mfma(nk, acc, bb):
        for u in range(nk): A(f'ds_read2_b64 v[{bb+4*u}:{bb+3+4*u}], v19 offset0:{8*u} offset1:{8*u+4}')
        for u in range(nk):
            A(f's_waitcnt lgkmcnt({nk-1-u})')
            for ct in range(2):
                r = FR + (u * 2 + ct) * 4
                A(f'v_mfma_f32_16x16x32_bf16 v[{acc+4*ct}:{acc+3+4*ct}], v[{r}:{r+3}], v[{bb+4*u}:{bb+3+4*u}], v[{acc+4*ct}:{acc+3+4*ct}]')
        set_exec(0x0001000100010001)
        for ct in range(2): A(f'ds_write_b128 v18, v[{acc+4*ct}:{acc+3+4*ct}] offset:{TRED + 64*ct}')
        A('s_waitcnt lgkmcnt(0)')
        barrier()
        A(f's_cmp_lg_u32 s{sR}, 0'); A('s_cbranch_scc1 L_KEND')
        set_exec(0xffffffff)
        for k in range(4): A(f'ds_read_b64 v[{32+2*k}:{33+2*k}], v27 offset:{TRED + 256*k}')
        A('s_waitcnt lgkmcnt(0)')
        tree2(32, 4)

    A('L_TW:')
    wg_common(3, 96)
    dma_addr(128, 1280, 6, 7, 8)
    A(f's_and_b32 s75, s{sI}, 1')
    A(f's_mul_i32 s70, s{sX}, 768'); A('s_mul_i32 s62, s75, 384'); A('s_add_u32 s70, s70, s62'); A('s_mul_i32 s62, s76, 96'); A('s_add_u32 s70, s70, s62')
    A(f's_lshl_b32 s62, s{sX}, 2'); A('s_lshl_b32 s63, s75, 1'); A('s_add_u32 s62, s62, s63'); A('s_lshr_b32 s63, s76, 1'); A('s_add_u32 s62, s62, s63'); A('s_mul_i32 s62, s62, 6144')
    A('s_and_b32 s63, s76, 1'); A('s_mul_i32 s63, s63, 384'); A('s_add_u32 s62, s62, s63')
    if X4:
        A('v_lshrrev_b32 v14, 5, v0'); A('v_mul_u32_u24 v14, 3072, v14'); A('v_and_b32 v15, 31, v0'); A('v_lshl_add_u32 v14, v15, 4, v14'); A('v_add_u32 v14, s62, v14')
    else:
        A('v_lshl_add_u32 v14, v0, 3, s62'); A('v_add_u32 v15, 3072, v14')
    A('s_mul_i32 s62, s77, 48'); A('s_add_u32 s70, s70, s62'); A('s_mul_i32 s70, s70, 1280')
    A(f's_lshr_b32 s62, s{sI}, 1'); A('s_lshl_b32 s62, s62, 7'); A('s_add_u32 s70, s70, s62')
    A('v_lshl_add_u32 v16, v15, 3, s74' if X4 else 'v_lshl_add_u32 v16, v0, 2, s74')
    A(f's_lshl_b32 s63, s{sX}, 1'); A('s_add_u32 s63, s63, s75'); A('s_mul_i32 s75, s63, 2560'); A('s_lshl_b32 s62, s62, 1'); A('s_add_u32 s75, s75, s62'); A(f's_add_u32 s75, s75, {R_Y}')
    emit_p()
    def w_tr():
        for u in range(3):
            for ct in range(2):
                r = FR + (u * 2 + ct) * 4
                for hh in range(2): A(f'ds_read_b64_tr_b16 v[{r+2*hh}:{r+2*hh+1}], v{10+ct} offset:{(32*u+16*hh)*128}')
    if not WV:
        tail_gate(TW)
        dma_issue(6, 'WO', 6, 70, 8 * 1280, 73, pace=TDEPTH, pol=TPOL)
        wg_fetch(3, 112)
        stamp(5)
    else:
        for r in range(8): A(f'v_mov_b32 v{112+r}, 0')
    lds_wait(F_ODONE, vZ, 7)
    if X4:
        set_exec(0x00ffffff00ffffff)
        def ld():
            for n in range(4): A(f'buffer_load_dwordx4 v[{32+4*n}:{35+4*n}], v14, {srd("WS")}, s64 offen offset:{768*n} sc1')
        poll(ld, list(range(32, 48)), 7, regionAB=R_O, sleep=0)
        stamp(6)
        tree_add(32, 4)
        half_swap_add(32, 36)
        A('v_cvt_pk_bf16_f32 v36, v32, v33'); A('v_cvt_pk_bf16_f32 v37, v34, v35')
        A('ds_write_b64 v16, v[36:37]')
        full_exec()
    else:
        set_exec((1 << 48) - 1)
        def ld():
            for n in range(8): A(f'buffer_load_dwordx2 v[{32+2*n}:{33+2*n}], v{14 + n//4}, {srd("WS")}, s64 offen offset:{768*(n%4)} sc1')
        poll(ld, list(range(32, 48)), 7, regionAB=R_O, sleep=0)
        stamp(6)
        tree2(32, 8)
        A('v_cvt_pk_bf16_f32 v36, v32, v33')
        A('ds_write_b32 v16, v36')
        full_exec()
    if WV:
        lds_wait(CNT_TD, vZ, 7, cmp_val=6)
        stamp(5)
        w_tr()
    wg_mfma(3, 112, 40)
    for r in range(2): A(f'v_or_b32 v{32+r}, 1, v{32+r}')
    A(f'buffer_store_dwordx2 v[32:33], v27, {srd("WS")}, s75 offen sc1')
    dstamp(7, 8); dstamp(8, 13)
    if YTH:
        set_exec(1)
        A(f'buffer_atomic_add v4, v3, {srd("DBG")}, 0 offen offset:128 sc1')
    A('s_branch L_KEND')

    A('L_TG:')
    A(f's_mul_i32 s75, s{sX}, 6'); A(f's_add_u32 s75, s75, s{sI}'); A('s_sub_u32 s75, s75, 20')
    wg_common(5, 160)
    A('s_bitcmp1_b32 s75, 0')
    A(f's_cselect_b32 s68, s{SRD["WU"]}, s{SRD["WG"]}'); A(f's_cselect_b32 s69, s{SRD["WU"]+1}, s{SRD["WG"]+1}')
    A(f's_mov_b32 s70, {SIZE["WG"]}'); A('s_mov_b32 s71, 0x20000'); G_SRD = 's[68:71]'
    dma_addr(128, 3072, 6, 7, 8)
    A('s_mul_i32 s72, s76, 160'); A('s_mul_i32 s62, s77, 80'); A('s_add_u32 s72, s72, s62'); A('s_mul_i32 s72, s72, 3072')
    A('s_lshr_b32 s62, s75, 1'); A('s_lshl_b32 s62, s62, 7'); A('s_add_u32 s72, s72, s62')
    A('s_and_b32 s63, s75, 1'); A('s_mul_i32 s63, s63, 3072'); A('s_add_u32 s62, s62, s63'); A(f's_add_u32 s84, s62, {R_HM}')
    if X4:
        A('v_and_b32 v7, 31, v0'); A('v_min_u32 v7, 19, v7')
        A(f's_mul_i32 s62, s{sR}, 160'); A('v_lshl_add_u32 v14, v7, 3, s62')
        A(f'buffer_load_dwordx2 v[24:25], v14, {srd("X")}, 0 offen')
        A('v_lshlrev_b32 v17, 1, v14')
        A('v_lshrrev_b32 v7, 5, v0'); A('v_mul_u32_u24 v7, 2560, v7'); A('v_add_u32 v26, v7, v17')
        A('v_min_u32 v7, 39, v0')
    else:
        A('v_min_u32 v7, 39, v0')
        A(f's_mul_i32 s62, s{sR}, 160'); A('v_lshl_add_u32 v14, v7, 2, s62')
        A(f'buffer_load_dword v28, v14, {srd("X")}, 0 offen')
        A('v_lshlrev_b32 v17, 1, v14')
        A('v_add_u32 v26, 20480, v17')
    A('s_mul_i32 s62, s76, 320'); A('v_lshl_add_u32 v30, v7, 3, s62')
    A('v_lshlrev_b32 v31, 1, v30')
    A('v_lshl_add_u32 v16, v0, 3, s74')
    A('v_lshlrev_b32 v15, 4, v0'); A('v_lshlrev_b32 v9, 2, v0')
    A('v_mov_b32 v29, 0x3acccccd'); A('v_mov_b32 v8, 0x80000000')
    emit_p()
    lds_wait(F_MV, vZ, 7)
    A(f'ds_read_b128 v[20:23], v17 offset:{MODV}' if X4 else f'ds_read_b64 v[20:21], v17 offset:{MODV}')
    A(f'ds_read_b128 v[104:107], v31 offset:{MODV + 2560}'); A(f'ds_read_b128 v[108:111], v31 offset:{MODV + 5120}')
    tail_gate(TG)
    dma_issue(10, G_SRD, 6, 72, 8 * 3072, 73, pace=TDEPTH, pol=TPOL)
    wg_fetch(5, 112)
    if X4: unpack4(120, 24)
    else: unpack2(22, 28)
    stamp(5)
    for k in range(4): A(f's_mov_b32 s{80+k}, {R_Y + 5120*k}')
    lds_wait(F_ODONE, vZ, 7)
    if X4:
        MG = 0x000fffff000fffff
        set_exec(MG)
        A('s_mov_b32 s85, 0xff'); A('s_mov_b32 s63, 0')
        A('L_GP:')
        for g in range(8):
            A(f's_bitcmp1_b32 s85, {g}'); A(f's_cbranch_scc0 L_GPI_{g}')
            A(f's_mov_b32 s62, {R_Y + 5120*g}')
            A(f'buffer_load_dwordx4 v[{32+4*g}:{35+4*g}], v26, {srd("WS")}, s62 offen sc1')
            A(f'L_GPI_{g}:')
        A('s_waitcnt vmcnt(0)')
        for g in range(8):
            q = 32 + 4 * g
            A(f's_bitcmp1_b32 s85, {g}'); A(f's_cbranch_scc0 L_GPC_{g}')
            A(f'v_min3_u32 v7, v{q}, v{q+1}, v{q+2}'); A(f'v_min_u32 v7, v7, v{q+3}')
            A('v_cmp_eq_u32 vcc, 0, v7')
            A(f's_cbranch_vccnz L_GPC_{g}')
            A(f's_bitset0_b32 s85, {g}')
            A(f'L_GPC_{g}:')
        A('s_cmp_eq_u32 s85, 0'); A('s_cbranch_scc1 L_GPD')
        A('s_add_u32 s63, s63, 1'); A(f's_cmp_lt_u32 s63, {SPIN_MAX}'); A('s_cbranch_scc1 L_GP')
        A('L_GPD:')
        stamp(6)
        tree_add(32, 8)
        half_swap_add(32, 36)
        rbf4(32, 32)
        for h in (0, 2): pk('mul', 32 + h, 32 + h, 20 + h)
        rbf4(32, 32)
        for h in (0, 2): pk('add', 32 + h, 32 + h, 120 + h)
        A('v_cvt_pk_bf16_f32 v40, v32, v33'); A('v_cvt_pk_bf16_f32 v41, v34, v35')
        A(f'ds_write_b64 v14, v[40:41] offset:{X2P}')
    else:
        y_hint(YTH, 'G')
        set_exec((1 << 40) - 1)
        def yld(n):
            A(f'buffer_load_dwordx2 v[{32+2*n}:{33+2*n}], v{17 if n < 8 else 26}, {srd("WS")}, s{80 + (n%8)//2} offen offset:{2560*(n%2)} sc1')
        if not GMASK:
            def ld():
                for n in range(16): yld(n)
            poll(ld, list(range(32, 64)), 7)
        else:
            A('s_mov_b32 s85, 0xff'); A('s_mov_b32 s63, 0')
            A('L_GP:')
            for g in range(8):
                A(f's_bitcmp1_b32 s85, {g}'); A(f's_cbranch_scc0 L_GPI_{g}')
                yld(2 * g); yld(2 * g + 1)
                A(f'L_GPI_{g}:')
            A('s_waitcnt vmcnt(0)')
            for g in range(8):
                q = 32 + 4 * g
                A(f's_bitcmp1_b32 s85, {g}'); A(f's_cbranch_scc0 L_GPC_{g}')
                A(f'v_min3_u32 v7, v{q}, v{q+1}, v{q+2}'); A(f'v_min_u32 v7, v7, v{q+3}')
                A('v_cmp_eq_u32 vcc, 0, v7')
                A(f's_cbranch_vccnz L_GPC_{g}')
                A(f's_bitset0_b32 s85, {g}')
                A(f'L_GPC_{g}:')
            A('s_cmp_eq_u32 s85, 0'); A('s_cbranch_scc1 L_GPD')
            A('s_add_u32 s63, s63, 1'); A(f's_cmp_lt_u32 s63, {SPIN_MAX}'); A('s_cbranch_scc1 L_GP')
            A('L_GPD:')
        stamp(6)
        tree2(32, 16)
        rbf2(32, 32, 36)
        pk('mul', 32, 32, 20)
        rbf2(32, 32, 36)
        pk('add', 32, 32, 22)
        A('v_cvt_pk_bf16_f32 v37, v32, v33')
        A(f'ds_write_b32 v14, v37 offset:{X2P}')
    full_exec()
    A('s_waitcnt lgkmcnt(0)')
    barrier()
    A(f'ds_read_b128 v[32:35], v15 offset:{X2P}'); A(f'ds_read_b32 v36, v9 offset:{X2P+1024}')
    A(f'ds_read_b64 v[38:39], v30 offset:{X2P}')
    A(f's_cmp_lg_u32 s{sR}, s75'); A('s_cbranch_scc1 L_TG_NX')
    A(f's_mov_b32 s62, {R_X2}')
    if X4:
        set_exec(0xfffff)
        for r in (40, 41): A(f'v_cmp_eq_u32 vcc, 0, v{r}'); A(f'v_cndmask_b32 v{r}, v{r}, v8, vcc')
        A(f'buffer_store_dwordx2 v[40:41], v14, {srd("WS")}, s62 offen sc1')
    else:
        set_exec((1 << 40) - 1)
        A('v_cmp_eq_u32 vcc, 0, v37'); A('v_cndmask_b32 v37, v37, v8, vcc')
        A(f'buffer_store_dword v37, v14, {srd("WS")}, s62 offen sc1')
    full_exec()
    A('L_TG_NX:')
    dstamp(9, 160, 8)
    A('s_waitcnt lgkmcnt(1)')
    ln_stats_pk([32, 33, 34, 35, 36], 48, 29)
    A('s_waitcnt lgkmcnt(0)')
    unpack4(44, 38)
    ln_apply_pk(44, 48)
    for h in (0, 2): pk('mul', 44 + h, 44 + h, 108 + h)
    rbf4(44, 44)
    for h in (0, 2): pk('add', 44 + h, 44 + h, 104 + h)
    A('v_cvt_pk_bf16_f32 v36, v44, v45'); A('v_cvt_pk_bf16_f32 v37, v46, v47')
    A('ds_write_b64 v16, v[36:37]')
    wg_mfma(5, 112, 40)
    A('v_cvt_pk_bf16_f32 v36, v32, v33')
    A('v_cmp_eq_u32 vcc, 0, v36'); A('v_cndmask_b32 v36, v36, v8, vcc')
    A(f'buffer_store_dword v36, v9, {srd("WS")}, s84 offen sc1')
    dstamp(10, 160)
    A('s_branch L_KEND')

    A('L_TD:')
    d_index()
    dma_addr(32, 1280, 6, 7, 8)
    A(f's_mul_i32 s77, s{sR}, {192 * 1280}'); A('s_lshl_b32 s62, s75, 5'); A('s_add_u32 s77, s77, s62')
    A(f's_mul_i32 s78, s{sR}, 6144'); A(f's_add_u32 s78, s78, {LDS_T}')
    A('v_lshl_add_u32 v10, v0, 3, s78')
    A('v_and_b32 v14, 7, v0'); A('v_lshlrev_b32 v9, 3, v14')
    A(f's_mul_i32 s62, s{sH}, 6144'); A('v_mul_u32_u24 v11, 768, v14'); A('v_add_u32 v11, s62, v11')
    A('s_lshl_b32 s62, s75, 5'); A('v_lshl_add_u32 v14, v14, 2, s62')
    A(f's_mul_i32 s62, s{sR}, 384'); A('v_lshl_add_u32 v17, v0, 3, s62')
    A(f'v_add_u32 v18, {R_X2 - R_HM}, v14')
    A('v_lshrrev_b32 v28, 4, v0'); A('v_lshlrev_b32 v28, 4, v28'); A(f's_lshl_b32 s62, s{sR}, 6'); A('v_add_u32 v28, s62, v28')
    A(f's_lshl_b32 s74, s{sR}, 9'); A(f's_add_u32 s74, s74, {STG}')
    A('v_lshl_add_u32 v16, v0, 3, s74')
    A('v_lshrrev_b32 v19, 4, v0'); A('v_lshl_add_u32 v19, v19, 3, s74')
    emit_p()
    lds_wait(F_MV, vZ, 7)
    A(f'ds_read_b64 v[20:21], v9 offset:{MODV}')
    if TD == 't':
        A(f's_cmp_lg_u32 s{sR}, 0'); A('s_cbranch_scc1 L_TD_W')
        lds_wait(F_ODONE, vZ, 7)
        set_exec(0xff)
        poll(lambda: A(f'buffer_load_dword v12, v11, {srd("WS")}, s64 offen sc1'), [12], 7, regionAB=R_O, sleep=1)
        full_exec()
        lds_set(CNT_TD)
        A('L_TD_W:')
        lds_wait(CNT_TD, vZ, 7)
    elif TD == 's':
        lds_wait(CNT_TD, vZ, 7, cmp_val=2)
    else:
        tail_gate(TD)
    if TD != 's': dma_issue(6, 'WD', 6, 77, 32 * 1280, 78, pace=TDEPTH, pol=TPOL)
    for r in range(4): A(f'v_mov_b32 v{24+r}, 0')
    A('s_waitcnt vmcnt(0)')
    for u in range(6):
        r = FR + u * 4
        for hh in range(2): A(f'ds_read_b64_tr_b16 v[{r+2*hh}:{r+2*hh+1}], v10 offset:{(32*u+16*hh)*32}')
    stamp(5)
    lds_wait(F_ODONE, vZ, 7)
    y_hint(160 if YTH else 0, 'D')
    A(f's_mov_b32 s64, {R_HM}')
    set_exec((1 << 48) - 1)
    def ld():
        A(f'buffer_load_dwordx2 v[32:33], v17, {srd("WS")}, s64 offen sc1')
        A(f'buffer_load_dwordx2 v[34:35], v17, {srd("WS")}, s64 offen offset:3072 sc1')
        A(f'buffer_load_dword v36, v18, {srd("WS")}, s64 offen sc1')
    poll(ld, [32, 33, 34, 35, 36], 7)
    stamp(6)
    unpack4(40, 32); unpack4(44, 34)
    for h in (0, 2): pk('mul', 40 + h, 40 + h, 44 + h)
    A('v_cvt_pk_bf16_f32 v32, v40, v41'); A('v_cvt_pk_bf16_f32 v33, v42, v43')
    A('ds_write_b64 v16, v[32:33]')
    full_exec()
    for u in range(6): A(f'ds_read2_b64 v[{40+4*u}:{43+4*u}], v19 offset0:{8*u} offset1:{8*u+4}')
    unpack2(38, 36)
    for u in range(6):
        r = FR + u * 4
        A(f's_waitcnt lgkmcnt({5-u})')
        A(f'v_mfma_f32_16x16x32_bf16 v[24:27], v[{r}:{r+3}], v[{40+4*u}:{43+4*u}], v[24:27]')
    set_exec(0x0001000100010001)
    A(f'ds_write_b128 v28, v[24:27] offset:{TRED}')
    A('s_waitcnt lgkmcnt(0)')
    barrier()
    A(f's_cmp_lg_u32 s{sR}, 0'); A('s_cbranch_scc1 L_KEND')
    set_exec(0xff)
    for k in range(8): A(f'ds_read_b64 v[{64+2*k}:{65+2*k}], v9 offset:{TRED + 64*k}')
    A('s_waitcnt lgkmcnt(0)')
    tree2(64, 8)
    rbf2(64, 64, 68)
    pk('mul', 64, 64, 20)
    rbf2(64, 64, 68)
    pk('add', 64, 64, 38)
    A('v_cvt_pk_bf16_f32 v68, v64, v65')
    A(f'buffer_store_dword v68, v14, {srd("OUT")}, 0 offen')
    dstamp(11, 208); dstamp(12, 217); dstamp(13, 230); dstamp(14, 239); dstamp(15, 243)
    A('L_KEND:')
    dry_check('L_DRYRET')
    stamp(7)
    flush_stamps()
    A('L_END:')
    A('s_endpgm')
    A('.section .rodata,"a"'); A('.p2align 6'); A(f'.amdhsa_kernel {NAME}_kernel')
    A('  .amdhsa_next_free_vgpr 128'); A('  .amdhsa_next_free_sgpr 102'); A('  .amdhsa_accum_offset 128')
    A('  .amdhsa_group_segment_fixed_size 0'); A('  .amdhsa_kernarg_size 112'); A('  .amdhsa_user_sgpr_count 2')
    A('  .amdhsa_user_sgpr_kernarg_segment_ptr 1'); A('  .amdhsa_system_sgpr_workgroup_id_x 1')
    A('  .amdhsa_float_denorm_mode_32 3'); A('  .amdhsa_float_denorm_mode_16_64 3')
    A('.end_amdhsa_kernel')
    return A.finish()

if __name__ == '__main__':
    import argparse
    ap = argparse.ArgumentParser()
    ap.add_argument('-o', default='cdna_kernels/' + NAME + '.s')
    ap.add_argument('--stamps', action='store_true')
    ap.add_argument('--cfg', default='')
    a = ap.parse_args()
    open(a.o, 'w').write(gen(stamps=a.stamps, **eval('dict(' + a.cfg + ')')))
```

```python
import sys
from asmfw import Asm
NAME = 'adaLN_cond__gqa_block_cached__glu_gated_bilinear__decode'
HEADER_COMMENT = open('cdna_kernels/' + NAME + '.s.ref').read().split('; Override launch')[0]

R_MOD = 0xE0000; R_Y = 0x00000; R_HM = 0x10000; R_X2 = 0x12000; R_CLR = 0x18000; R_MF = 0x1A000
R_Q = (0x20000, 0x40000); R_ST = (0x60000, 0x64000); R_O = (0x70000, 0xA0000)
R_DBG = 0x200000
F_N, F_H, F_Q, F_ML, F_CLR, CNT_O, F_ODONE, CNT_FREE, CNT_VD, F_MV, CNT_TD, F_A, CNT_B, F_YH, F_TK = 0, 4, 8, 12, 16, 20, 24, 28, 32, 36, 40, 44, 48, 52, 56
KISS, VISS, PRDY, ML = 64, 96, 128, 192
SC, HV, QV, PD, OACC = 0x100, 0x280, 0x380, 0x800, 0x1000
X2P, TRED, STG, MODV, RED = 0x1400, 0x1A00, 0x2000, 0x3000, 0x1000
ONES = 0x3f803f80
LDS_A, LDS_B, LDS_T = 0x6000, 0xB000, 0x13000
LDS_SIZE = 0x27000
SRD = dict(X=4, K=8, V=12, WQ=16, WO=20, WG=24, WU=28, WD=32, C=36, WMOD=40, OUT=44, DBG=48, WS=52)
KARG = dict(X=0, K=8, V=16, WQ=24, WO=32, WG=48, WU=56, WD=64, C=72, WMOD=80, OUT=88, DBG=96, WS=104)
SIZE = dict(X=1280, K=50331648, V=50331648, WQ=7864320, WO=7864320, WG=1966080, WU=1966080, WD=1966080, C=1280,
            WMOD=4915200, OUT=1280, DBG=256, WS=268435456)
def srd(n): return f's[{SRD[n]}:{SRD[n]+3}]'
sW, sX, sI, sH, sS, sR = 56, 57, 58, 59, 60, 61
sN, sLIVE = 79, 3
LOG2E = 0x3fb8aa3b
SCALE = 0x3d93cd3a
SPIN_MAX = 300000

def gen(DK=3, DV=4, VISS_AT=24, stamps=False, sleep_poll=1, NSLEEP=4, dry=False, TW='v', TG='v', TD='t', TDEPTH=3, TPOL='nt', VFREE=0, diagV=False, VADAPT=True, KADAPT=True, SOFT=1, FA_AT=10, FB_AT=8, KW='b', YTH=0, KVPOL='nt', FPOL='nt', dbg=False, WV=False, GMASK=True, X4=True, DPACE=4, PRET=False, DVF=0, DKF=0, WIDE=True, DSLEEP=0, DYN=False, GSLEEP=1, GWG=True, DV0=0, KA0=12):
    A = Asm()
    vZ, vONE, vPF = 3, 4, 5
    def stamp(idx):
        if stamps: A(f's_memrealtime s[{86 + 2*idx}:{87 + 2*idx}]')
    def flush_stamps():
        if not stamps: return
        A('s_waitcnt lgkmcnt(0)')
        A(f's_lshl_b32 s62, s2, 4'); A(f's_add_u32 s62, s62, s{sW}'); A('s_lshl_b32 s62, s62, 5'); A(f's_add_u32 s62, s62, {R_DBG}')
        A('s_mov_b64 exec, 1')
        for k in range(8): A(f'v_mov_b32 v{8+k}, s{86+2*k}')
        A('v_mov_b32 v1, 0')
        A(f'buffer_store_dwordx4 v[8:11], v1, {srd("WS")}, s62 offen')
        A(f'buffer_store_dwordx4 v[12:15], v1, {srd("WS")}, s62 offen offset:16')
    def dstamp(slot, wg, wave=None, vt=(1, 125)):
        if not dbg: return
        L = A.label('DS')
        A(f's_cmp_lg_u32 s2, {wg}'); A(f's_cbranch_scc1 {L}')
        if wave is not None: A(f's_cmp_lg_u32 s{sW}, {wave}'); A(f's_cbranch_scc1 {L}')
        A('s_mov_b64 s[98:99], exec'); A('s_mov_b64 exec, 1')
        A('s_memrealtime s[96:97]')
        A(f'ds_read_b32 v{vt[1]}, v3 offset:{F_N}')
        A('s_waitcnt lgkmcnt(0)')
        A(f'v_sub_u32 v{vt[1]}, s96, v{vt[1]}')
        A(f'buffer_store_dword v{vt[1]}, v3, {srd("DBG")}, 0 offen offset:{4*slot} sc1')
        A('s_mov_b64 exec, s[98:99]')
        A(f'{L}:')
    def dstamp_n(slot, n, wave=None):
        if not dbg: return
        L = A.label('DN')
        A(f's_cmp_lg_u32 s75, {n}'); A(f's_cbranch_scc1 {L}')
        if wave is not None: A(f's_cmp_lg_u32 s{sW}, {wave}'); A(f's_cbranch_scc1 {L}')
        A('s_mov_b64 s[98:99], exec'); A('s_mov_b64 exec, 1')
        A('s_memrealtime s[96:97]')
        A(f'ds_read_b32 v125, v3 offset:{F_N}')
        A('s_waitcnt lgkmcnt(0)')
        A('v_sub_u32 v125, s96, v125')
        A(f'buffer_store_dword v125, v3, {srd("DBG")}, 0 offen offset:{4*slot} sc1')
        A('s_mov_b64 exec, s[98:99]')
        A(f'{L}:')
    def set_exec(mask):
        lo, hi = mask & 0xffffffff, mask >> 32
        for nm, m in (('exec_lo', lo), ('exec_hi', hi)):
            if m == 0xffffffff: A(f's_mov_b32 {nm}, s{sLIVE}')
            elif m == 0: A(f's_mov_b32 {nm}, 0')
            else: A(f's_and_b32 {nm}, s{sLIVE}, {m}')
    def full_exec(): set_exec((1 << 64) - 1)
    def barrier():
        L = A.label('BR')
        A(f's_cbranch_execz {L}'); A('s_barrier'); A(f'{L}:')
    def lds_wait(off, vz, vt, cmp_val=None):
        L = A.label('LW'); D = A.label('LWD')
        A('s_mov_b32 s63, 0')
        A(f's_cbranch_execz {D}')
        A(f'{L}:')
        A(f'ds_read_b32 v{vt}, v{vz} offset:{off}')
        A('s_waitcnt lgkmcnt(0)')
        A(f'v_readfirstlane_b32 s62, v{vt}')
        if cmp_val is None: A('s_cmp_lg_u32 s62, 0')
        else: A(f's_cmp_ge_u32 s62, {cmp_val}')
        A(f's_cbranch_scc1 {D}')
        A('s_sleep 1')
        A('s_add_u32 s63, s63, 1'); A(f's_cmp_lt_u32 s63, {SPIN_MAX * 8}'); A(f's_cbranch_scc1 {L}')
        A(f'{D}:')
    def lds_set(off, vz=vZ): A(f'ds_write_b32 v{vz}, v{vONE} offset:{off}')
    def lds_inc(off):
        set_exec(1); A(f'ds_add_u32 v{vZ}, v{vONE} offset:{off}'); full_exec()
    def poll(loads, regs, vt, regionAB=None, sleep=None, tags=(), vt2=None):
        L = A.label('PL'); D = A.label('PD')
        A('s_mov_b32 s63, 0')
        A(f'{L}:')
        if regionAB:
            A('s_and_b32 s62, s63, 7'); A('s_cmp_eq_u32 s62, 7')
            A(f's_mov_b32 s64, {regionAB[0]}'); A(f's_cselect_b32 s64, {regionAB[1]}, s64')
        loads()
        A('s_waitcnt vmcnt(0)')
        r = list(regs); first = True
        while r:
            if first:
                if len(r) >= 3: A(f'v_min3_u32 v{vt}, v{r[0]}, v{r[1]}, v{r[2]}'); r = r[3:]
                elif len(r) == 2: A(f'v_min_u32 v{vt}, v{r[0]}, v{r[1]}'); r = []
                else: A(f'v_mov_b32 v{vt}, v{r[0]}'); r = []
                first = False
            elif len(r) >= 2: A(f'v_min3_u32 v{vt}, v{vt}, v{r[0]}, v{r[1]}'); r = r[2:]
            else: A(f'v_min_u32 v{vt}, v{vt}, v{r[0]}'); r = []
        if regs: A(f'v_cmp_eq_u32 vcc, 0, v{vt}')
        if tags:
            tg = list(tags)
            x = vt2 if regs else vt
            A(f'v_xor_b32 v{x}, s{sN}, v{tg[0]}')
            for tr in tg[1:]: A(f'v_xor_b32 v{tr}, s{sN}, v{tr}')
            rest = tg[1:]
            while rest:
                if len(rest) >= 2: A(f'v_or3_b32 v{x}, v{x}, v{rest[0]}, v{rest[1]}'); rest = rest[2:]
                else: A(f'v_or_b32 v{x}, v{x}, v{rest[0]}'); rest = []
            if regs: A(f'v_cmp_ne_u32 s[82:83], 0, v{x}'); A('s_or_b64 vcc, vcc, s[82:83]')
            else: A(f'v_cmp_ne_u32 vcc, 0, v{x}')
        A(f's_cbranch_vccz {D}')
        sl = sleep_poll if sleep is None else sleep
        if sl: A(f's_sleep {sl}')
        A('s_add_u32 s63, s63, 1'); A(f's_cmp_lt_u32 s63, {SPIN_MAX}'); A(f's_cbranch_scc1 {L}')
        A(f'{D}:')
    def rbf(dst, src):
        A(f'v_cvt_pk_bf16_f32 v{dst}, v{src}, v{src}')
        A(f'v_and_b32 v{dst}, 0xffff0000, v{dst}')
    def rbf4(dst, src):
        for h in range(2):
            A(f'v_cvt_pk_bf16_f32 v{dst+2*h+1}, v{src+2*h}, v{src+2*h+1}')
        for h in range(2):
            A(f'v_lshlrev_b32 v{dst+2*h}, 16, v{dst+2*h+1}')
            A(f'v_and_b32 v{dst+2*h+1}, 0xffff0000, v{dst+2*h+1}')
    def allreduce(regs, op, tmp):
        for pat in ('quad_perm:[1,0,3,2]', 'quad_perm:[2,3,0,1]', 'row_half_mirror', 'row_mirror'):
            for r in regs: A(f'{op}_dpp v{r}, v{r}, v{r} {pat} row_mask:0xf bank_mask:0xf')
        for sw in ('v_permlane16_swap_b32', 'v_permlane32_swap_b32'):
            for r, t in zip(regs, tmp): A(f'v_mov_b32 v{t}, v{r}')
            for r, t in zip(regs, tmp): A(f'{sw} v{r}, v{t}')
            for r, t in zip(regs, tmp): A(f'{op} v{r}, v{r}, v{t}')
    def reduce_sgpr(regs, op, sdst):
        for pat in ('quad_perm:[1,0,3,2]', 'quad_perm:[2,3,0,1]', 'row_half_mirror', 'row_mirror'):
            for r in regs: A(f'{op}_dpp v{r}, v{r}, v{r} {pat} row_mask:0xf bank_mask:0xf')
        for r in regs: A(f'{op}_dpp v{r}, v{r}, v{r} row_bcast:15 row_mask:0xa bank_mask:0xf')
        for r in regs: A(f'{op}_dpp v{r}, v{r}, v{r} row_bcast:31 row_mask:0xc bank_mask:0xf')
        for r, sd in zip(regs, sdst): A(f'v_readlane_b32 s{sd}, v{r}, 63')
    def unpack2(dst, src):
        A(f'v_lshlrev_b32 v{dst}, 16, v{src}'); A(f'v_and_b32 v{dst+1}, 0xffff0000, v{src}')
    def rbf2(dst, src, t):
        A(f'v_cvt_pk_bf16_f32 v{t}, v{src}, v{src+1}'); unpack2(dst, t)
    def pk(op, d, a, b, bcast=False, negb=False):
        m = ''
        if bcast: m += ' op_sel_hi:[1,0]'
        if negb: m += ' neg_lo:[0,1] neg_hi:[0,1]'
        A(f'v_pk_{op}_f32 v[{d}:{d+1}], v[{a}:{a+1}], v[{b}:{b+1}]{m}')
    def tree2(base, n):
        step = 1
        while step < n:
            for k in range(0, n, 2 * step): pk('add', base + 2 * k, base + 2 * k, base + 2 * (k + step))
            step *= 2
    def ln_stats_pk(xs, vm, vinv):
        a, b = vm, vm + 1
        A(f's_mov_b32 s62, {ONES}')
        for k, r in enumerate(xs):
            A(f'v_dot2_f32_bf16 v{a}, v{r}, s62, ' + ('0' if k == 0 else f'v{a}'))
            A(f'v_dot2_f32_bf16 v{b}, v{r}, v{r}, ' + ('0' if k == 0 else f'v{b}'))
        reduce_sgpr([a, b], 'v_add_f32', [62, 63])
        A(f'v_mul_f32 v{a}, s62, v{vinv}'); A(f'v_mul_f32 v{b}, s63, v{vinv}')
        A(f'v_fma_f32 v{b}, -v{a}, v{a}, v{b}')
        A(f'v_max_f32 v{b}, 0, v{b}')
        rbf2(a, a, vm + 3)
        A(f'v_add_f32 v{b}, 0x3727c5ac, v{b}')
        rbf(b, b)
        A(f'v_sqrt_f32 v{b}, v{b}')
        rbf(b, b)
        A(f'v_rcp_f32 v{vm+2}, v{b}')
    def ln_apply_pk(b4, vm):
        for h in (0, 2): pk('add', b4 + h, b4 + h, vm, bcast=True, negb=True)
        rbf4(b4, b4)
        for h in (0, 2): pk('mul', b4 + h, b4 + h, vm + 2, bcast=True)
        rbf4(b4, b4)
    def tr_addr(RS, vdst, vt0, vt1, base_sgpr=None, base_imm=0):
        T = RS // 32
        A(f'v_lshrrev_b32 v{vt0}, 2, v0'); A(f'v_mul_u32_u24 v{vt0}, {RS}, v{vt0}')
        A(f'v_and_b32 v{vt1}, 3, v0'); A(f'v_lshl_add_u32 v{vt0}, v{vt1}, 3, v{vt0}')
        if base_sgpr is not None: A(f'v_add_u32 v{vt0}, s{base_sgpr}, v{vt0}')
        if base_imm: A(f'v_add_u32 v{vt0}, {base_imm}, v{vt0}')
        if RS == 128: A(f'v_bfe_u32 v{vt1}, v0, 3, 2')
        elif RS == 64: A(f'v_bfe_u32 v{vt1}, v0, 4, 1')
        for ct in range(T):
            A(f'v_xor_b32 v{vdst+ct}, {ct}, v{vt1}')
            A(f'v_lshl_add_u32 v{vdst+ct}, v{vdst+ct}, 5, v{vt0}')
    def dma_addr(RS, rowstride, vdst, vt0, vt1):
        cpr = RS // 16; lg = cpr.bit_length() - 1
        A(f'v_lshrrev_b32 v{vt0}, {lg}, v0'); A(f'v_and_b32 v{vt1}, {cpr - 1}, v0')
        if RS == 128:
            A(f'v_bfe_u32 v{vdst}, v{vt0}, 1, 2'); A(f'v_lshlrev_b32 v{vdst}, 1, v{vdst}'); A(f'v_xor_b32 v{vt1}, v{vt1}, v{vdst}')
        elif RS == 64:
            A(f'v_bfe_u32 v{vdst}, v{vt0}, 2, 1'); A(f'v_lshlrev_b32 v{vdst}, 1, v{vdst}'); A(f'v_xor_b32 v{vt1}, v{vt1}, v{vdst}')
        A(f'v_mul_u32_u24 v{vt0}, {rowstride}, v{vt0}')
        A(f'v_lshl_add_u32 v{vdst}, v{vt1}, 4, v{vt0}')
    def dma_issue(n, sr, vaddr, s_goff, gstep, s_lds, lds_imm=0, pace=0, pol='nt'):
        sr = srd(sr) if sr in SRD else sr
        L = A.label('DS')
        A(f's_cbranch_execz {L}')
        for k in range(n):
            if s_lds is None: A(f's_mov_b32 m0, {lds_imm + 1024 * k}')
            else: A(f's_add_u32 m0, s{s_lds}, {lds_imm + 1024 * k}')
            A(f'buffer_load_dwordx4 v{vaddr}, {sr}, s{s_goff} offen {pol} lds')
            if k + 1 < n: A(f's_add_u32 s{s_goff}, s{s_goff}, {gstep}')
            if pace and k + 1 >= pace and k + 1 < n: A(f's_waitcnt vmcnt({pace-1})')
        A(f'{L}:')
    def tail_gate(mode):
        if mode == 'v': lds_wait(VISS, vZ, 7, cmp_val=6)
        elif mode == 'o': lds_wait(F_ODONE, vZ, 7)
    def y_hint(th, tag):
        if not th: return
        A(f's_cmp_lg_u32 s{sR}, 0'); A(f's_cbranch_scc1 L_YH_{tag}')
        L = A.label('YH'); D = A.label('YHD')
        set_exec(1)
        A('s_mov_b32 s63, 0')
        A(f'{L}:')
        A(f'buffer_load_dword v7, v3, {srd("DBG")}, 0 offen offset:128 sc1')
        A('s_waitcnt vmcnt(0)')
        A('v_readfirstlane_b32 s62, v7'); A(f's_cmp_ge_u32 s62, {th}'); A(f's_cbranch_scc1 {D}')
        A('s_sleep 2')
        A('s_add_u32 s63, s63, 1'); A(f's_cmp_lt_u32 s63, {SPIN_MAX}'); A(f's_cbranch_scc1 {L}')
        A(f'{D}:')
        full_exec()
        lds_set(F_YH)
        A(f'L_YH_{tag}:')
        lds_wait(F_YH, vZ, 7)
    def merge4(acc, dst):
        for r in range(4): A(f'v_mov_b32 v{dst+r}, v{acc+r}')
        for ct in (1, 2, 3):
            m = 0x00010001 << ct
            A(f's_mov_b32 s80, {m}'); A(f's_mov_b32 s81, {m}')
            for r in range(4): A(f'v_cndmask_b32 v{dst+r}, v{dst+r}, v{acc+4*ct+r}, s[80:81]')
    def mod_addr(vdst, vcol, vt):
        A(f'v_lshrrev_b32 v{vt}, 6, v{vcol}'); A(f'v_lshlrev_b32 v{vt}, 11, v{vt}')
        A(f'v_and_b32 v{vdst}, 63, v{vcol}'); A(f'v_lshl_add_u32 v{vdst}, v{vdst}, 2, v{vt}')
    def mod_loads(vaddr, quads, nks, so='s64'):
        for ks in range(nks):
            for hf in range(2):
                q = quads[2 * ks + hf]
                A(f'buffer_load_dwordx4 v[{q}:{q+3}], v{vaddr}, {srd("WS")}, {so} offen offset:{512*ks+256*hf} sc1')
    def mod_tags(quads): return [q + 1 for q in quads] + [q + 3 for q in quads]
    def mod_sum(dst, quads, nks):
        for hf in range(2):
            for e in range(2):
                r = [quads[2 * ks + hf] + 2 * e for ks in range(nks)]
                d = dst + 2 * hf + e
                if nks == 2: A(f'v_add_f32 v{d}, v{r[0]}, v{r[1]}')
                else:
                    A(f'v_add_f32 v{r[0]}, v{r[0]}, v{r[1]}'); A(f'v_add_f32 v{r[2]}, v{r[2]}, v{r[3]}'); A(f'v_add_f32 v{d}, v{r[0]}, v{r[2]}')
    def get_nonce(vt):
        lds_wait(F_N, vZ, vt); A(f's_mov_b32 s{sN}, s62')
    def tree_add(base, n):
        step = 1
        while step < n:
            for k in range(0, n, 2 * step):
                for h2 in range(2):
                    a = base + 4 * k + 2 * h2; b = base + 4 * (k + step) + 2 * h2
                    A(f'v_pk_add_f32 v[{a}:{a+1}], v[{a}:{a+1}], v[{b}:{b+1}]')
            step *= 2
    def half_swap_add(base, tmp):
        for r in range(4): A(f'v_mov_b32 v{tmp+r}, v{base+r}')
        for r in range(4): A(f'v_permlane32_swap_b32 v{base+r}, v{tmp+r}')
        for h2 in range(2): A(f'v_pk_add_f32 v[{base+2*h2}:{base+1+2*h2}], v[{base+2*h2}:{base+1+2*h2}], v[{tmp+2*h2}:{tmp+1+2*h2}]')
    def fdiv(dst, num, den, t0, t1, t2, t3):
        A(f'v_rcp_f32 v{t0}, v{den}')
        A(f'v_mul_f32 v{t1}, v{num}, v{t0}')
        A(f'v_fma_f32 v{t2}, -v{t1}, v{den}, v{num}')
        A(f'v_fma_f32 v{t3}, v{t2}, v{t0}, v{t1}')
        A(f'v_cmp_o_f32 vcc, v{t3}, v{t3}')
        A(f'v_cndmask_b32 v{dst}, v{t1}, v{t3}, vcc')
    def ln_stats(xs, vm, vs, t0, t1):
        A(f'v_readfirstlane_b32 s62, v{xs[0]}')
        for r in xs: A(f'v_subrev_f32 v{r}, s62, v{r}')
        A(f'v_add_f32 v{vm}, v{xs[0]}, v{xs[1]}'); A(f'v_mul_f32 v{vs}, v{xs[0]}, v{xs[0]}')
        for k, r in enumerate(xs):
            if k >= 2: A(f'v_add_f32 v{vm}, v{vm}, v{r}')
            if k >= 1: A(f'v_fmac_f32 v{vs}, v{r}, v{r}')
        allreduce([vm, vs], 'v_add_f32', [t0, t1])
        inv = 0x3acccccd
        A(f'v_mul_f32 v{vm}, {inv}, v{vm}'); A(f'v_mul_f32 v{vs}, {inv}, v{vs}')
        A(f'v_fma_f32 v{vs}, -v{vm}, v{vm}, v{vs}')
        A(f'v_max_f32 v{vs}, 0, v{vs}')
        A(f'v_add_f32 v{vm}, s62, v{vm}')
        rbf(vm, vm); rbf(vs, vs)
        A(f'v_add_f32 v{vs}, 0x3727c5ac, v{vs}')
        rbf(vs, vs)
        A(f'v_sqrt_f32 v{vs}, v{vs}')
        rbf(vs, vs)
        A(f'v_rcp_f32 v{vs}, v{vs}')
    def ln_apply(b4, vm, vs):
        for r in range(4): A(f'v_sub_f32 v{b4+r}, v{b4+r}, v{vm}')
        rbf4(b4, b4)
        for r in range(4): A(f'v_mul_f32 v{b4+r}, v{b4+r}, v{vs}')
        rbf4(b4, b4)
    def unpack4(dst, src):
        A(f'v_lshlrev_b32 v{dst}, 16, v{src}'); A(f'v_and_b32 v{dst+1}, 0xffff0000, v{src}')
        A(f'v_lshlrev_b32 v{dst+2}, 16, v{src+1}'); A(f'v_and_b32 v{dst+3}, 0xffff0000, v{src+1}')
    def dry_check(ret):
        A(f's_cbranch_execz {ret}')
    def d_index():
        A(f's_lshl_b32 s75, s{sX}, 2'); A(f's_add_u32 s75, s75, s{sI}'); A('s_sub_u32 s75, s75, 26')
        A(f's_lshl_b32 s62, s{sX}, 1'); A(f's_add_u32 s62, s62, s{sI}'); A('s_add_u32 s62, s62, 2')
        A(f's_cmp_ge_u32 s{sI}, 30'); A('s_cselect_b32 s75, s62, s75')
    def branch_if_no_role(label):
        L = A.label('NR')
        A(f's_cmp_lt_u32 s{sI}, 30'); A(f's_cbranch_scc1 {L}')
        A(f's_cmp_ge_u32 s{sX}, 4'); A(f's_cbranch_scc1 {label}')
        A(f'{L}:')
    def branch_if_not_gcand(label):
        L = A.label('GC')
        A(f's_cmp_lt_u32 s{sI}, 20'); A(f's_cbranch_scc1 {label}')
        A(f's_cmp_lt_u32 s{sI}, 26'); A(f's_cbranch_scc1 {L}')
        A(f's_cmp_lt_u32 s{sI}, 30'); A(f's_cbranch_scc1 {label}')
        A(f's_cmp_lt_u32 s{sX}, 4'); A(f's_cbranch_scc1 {label}')
        A(f'{L}:')
    def kb_pi():
        A(f's_mul_i32 s68, s{sI}, 43'); A('s_lshr_b32 s68, s68, 8'); A('s_mul_i32 s62, s68, 6'); A(f's_sub_u32 s69, s{sI}, s62')

    A(HEADER_COMMENT.rstrip())
    A(f'; @launch grid=(256,1,1) block=(1024,1,1) lds={LDS_SIZE}')
    A('.amdgcn_target "amdgcn-amd-amdhsa--gfx950"')
    A('.text'); A(f'.globl {NAME}_kernel'); A('.p2align 8'); A(f'.type {NAME}_kernel,@function'); A(f'{NAME}_kernel:')
    for n in ('K', 'WMOD', 'WQ', 'WS', 'C', 'X', 'V', 'DBG', 'WO', 'WG', 'WU', 'WD', 'OUT'):
        A(f's_load_dwordx2 s[{SRD[n]}:{SRD[n]+1}], s[0:1], {KARG[n]}')
    if stamps:
        for k in range(1, 8): A(f's_mov_b32 s{86+2*k}, 0')
    stamp(0)
    A('v_lshrrev_b32 v1, 6, v0'); A('v_and_b32 v0, 63, v0')
    A(f'v_readfirstlane_b32 s{sW}, v1')
    for n in SRD:
        A(f's_mov_b32 s{SRD[n]+2}, {SIZE[n]}'); A(f's_mov_b32 s{SRD[n]+3}, 0x20000')
    A(f's_mov_b32 s{sLIVE}, -1'); A(f's_mov_b32 s{sN}, 0')
    A('s_cmp_ge_u32 s2, 256'); A('s_cbranch_scc1 L_END')
    A(f's_and_b32 s{sX}, s2, 7'); A(f's_lshr_b32 s{sI}, s2, 3')
    A(f's_lshr_b32 s{sH}, s{sI}, 3'); A(f's_lshl_b32 s62, s{sX}, 2'); A(f's_add_u32 s{sH}, s{sH}, s62')
    A(f's_and_b32 s{sS}, s{sI}, 7'); A(f's_and_b32 s{sR}, s{sW}, 7')
    A('v_lshrrev_b32 v1, 3, v0'); A('v_mul_u32_u24 v1, 1536, v1'); A('v_and_b32 v2, 7, v0'); A('v_lshl_add_u32 v2, v2, 4, v1')
    A('v_mov_b32 v3, 0'); A('v_mov_b32 v4, 1')
    A(f's_lshl_b32 s67, s{sH}, 12'); A(f's_lshl_b32 s62, s{sS}, 9'); A('s_add_u32 s67, s67, s62'); A('s_mul_i32 s67, s67, 384')
    A(f's_mul_i32 s65, s{sR}, 24576'); A('s_add_u32 s65, s65, s67'); A('s_add_u32 s66, s65, 12288')
    A(f's_lshl_b32 s62, s{sR}, 2'); A('v_mov_b32 v5, s62')
    A('s_waitcnt lgkmcnt(0)')
    A(f's_cmp_ge_u32 s{sW}, 8'); A('s_cbranch_scc1 L_KWAVE')
    A(f's_cmp_eq_u32 s{sR}, 2'); A('s_cbranch_scc1 L_F2')
    A(f's_cmp_ge_u32 s{sR}, 3'); A('s_cbranch_scc1 L_F3')

    kb_pi()
    A(f's_lshl_b32 s71, s{sR}, 14'); A(f's_add_u32 s71, s71, {LDS_B}')
    A('v_lshlrev_b32 v7, 2, v0')
    for j in range(5): A(f'buffer_load_dword v{10+j}, v7, {srd("X")}, 0 offen offset:{256*j}')
    A('v_and_b32 v8, 31, v0'); A('v_lshlrev_b32 v8, 3, v8'); A('s_lshl_b32 s62, s68, 8')
    A(f'buffer_load_dwordx2 v[16:17], v8, {srd("X")}, s62 offen')
    if SOFT: A('s_barrier')
    A(f's_cmp_ge_u32 s{sI}, 30'); A('s_cbranch_scc1 L_F01_NODMA')
    dma_addr(128, 12288, 6, 7, 8)
    A(f's_mul_i32 s70, s68, {128 * 12288}'); A(f's_mul_i32 s62, s{sX}, 1536'); A('s_add_u32 s70, s70, s62')
    A('s_lshl_b32 s62, s69, 8'); A('s_add_u32 s70, s70, s62'); A(f's_lshl_b32 s62, s{sR}, 7'); A('s_add_u32 s70, s70, s62')
    if SOFT: lds_wait(F_A, vZ, 9)
    dma_issue(16, 'WQ', 6, 70, 8 * 12288, 71, pol=FPOL)
    A(f's_waitcnt vmcnt({FB_AT})')
    A('L_F01_NODMA:')
    lds_inc(CNT_B)
    if not SOFT: A('s_barrier')
    A('L_F01_DRY:')
    A('s_waitcnt vmcnt(0)')
    A(f's_cmp_ge_u32 s{sI}, 30'); A('s_cbranch_scc1 L_F01_SKIPB')
    tr_addr(128, 40, 44, 45, base_sgpr=71)
    for u in range(4):
        for ct in range(4):
            r = 64 + (u * 4 + ct) * 4
            for hh in range(2):
                A(f'ds_read_b64_tr_b16 v[{r+2*hh}:{r+2*hh+1}], v{40+ct} offset:{(32*u+16*hh)*128}')
    A(f'v_lshrrev_b32 v46, 4, v0'); A('v_lshlrev_b32 v46, 3, v46')
    A('s_waitcnt lgkmcnt(0)')
    lds_inc(CNT_FREE)
    A(f's_cmp_eq_u32 s{sR}, 1'); A('s_cbranch_scc1 L_F1_WAITH')
    A('v_mov_b32 v29, 0x3acccccd')
    ln_stats_pk([10, 11, 12, 13, 14], 30, 29)
    unpack4(34, 16)
    ln_apply_pk(34, 30)
    A('v_and_b32 v8, 31, v0'); A('v_lshlrev_b32 v8, 2, v8'); A('v_lshrrev_b32 v9, 5, v0'); A('v_mul_u32_u24 v9, 640, v9'); A('v_add_u32 v8, v8, v9')
    A('s_lshl_b32 s62, s68, 7'); A('v_add_u32 v8, s62, v8')
    mod_addr(8, 8, 9)
    get_nonce(9)
    stamp(1)
    A(f's_mov_b32 s64, {R_MOD}')
    Q = [10, 14, 18, 22, 48, 52, 56, 60]
    A('v_and_b32 v38, 31, v0'); A('v_lshlrev_b32 v38, 2, v38'); A(f's_lshl_b32 s72, s{sX}, 7'); A(f's_add_u32 s72, s72, {R_CLR}')
    poll(lambda: (mod_loads(8, Q, 4), A(f'buffer_load_dword v39, v38, {srd("WS")}, s72 offen sc1')), [], 9, tags=mod_tags(Q) + [39])
    stamp(2)
    mod_sum(26, Q, 4)
    rbf4(48, 26)
    for r in range(4): A(f'v_mov_b32 v{52+r}, v{48+r}')
    for r in range(4): A(f'v_permlane32_swap_b32 v{48+r}, v{52+r}')
    for r in range(4): A(f'v_add_f32 v{52+r}, 1.0, v{52+r}')
    rbf4(52, 52)
    for r in range(4): A(f'v_mul_f32 v{52+r}, v{34+r}, v{52+r}')
    rbf4(52, 52)
    for r in range(4): A(f'v_add_f32 v{52+r}, v{52+r}, v{48+r}')
    A('v_cvt_pk_bf16_f32 v56, v52, v53'); A('v_cvt_pk_bf16_f32 v57, v54, v55')
    A('v_and_b32 v8, 31, v0'); A('v_lshlrev_b32 v8, 3, v8')
    A(f'ds_write_b64 v8, v[56:57] offset:{HV}')
    lds_set(F_H)
    dstamp(2, 8, vt=(1, 47))
    A('s_branch L_F01_C')
    A('L_F1_WAITH:')
    lds_wait(F_H, vZ, 18)
    A('L_F01_C:')
    for u in range(4):
        A(f'ds_read2_b64 v[{48+4*u}:{51+4*u}], v46 offset0:{HV//8 + 8*u} offset1:{HV//8 + 8*u + 4}')
    for r in range(16): A(f'v_mov_b32 v{20+r}, 0')
    A('v_and_b32 v8, 15, v0'); A('v_lshlrev_b32 v8, 6, v8'); A('v_lshrrev_b32 v9, 4, v0'); A('v_lshl_add_u32 v8, v9, 4, v8')
    A('s_mul_i32 s70, s68, 24576'); A(f's_mul_i32 s62, s{sX}, 3072'); A('s_add_u32 s70, s70, s62'); A('s_lshl_b32 s62, s69, 9'); A('s_add_u32 s70, s70, s62')
    A(f's_lshl_b32 s62, s{sR}, 8'); A('s_add_u32 s70, s70, s62')
    A(f's_add_u32 s72, s70, {R_Q[0]}'); A(f's_add_u32 s73, s70, {R_Q[1]}')
    A('s_waitcnt lgkmcnt(0)')
    for u in range(4):
        for ct in range(4):
            r = 64 + (u * 4 + ct) * 4
            A(f'v_mfma_f32_16x16x32_bf16 v[{20+4*ct}:{23+4*ct}], v[{r}:{r+3}], v[{48+4*u}:{51+4*u}], v[{20+4*ct}:{23+4*ct}]')
    lds_wait(F_CLR, vZ, 9)
    merge4(20, 36)
    for r in range(4): A(f'v_or_b32 v{36+r}, 1, v{36+r}')
    set_exec(0x000f000f000f000f)
    A(f'buffer_store_dwordx4 v[36:39], v8, {srd("WS")}, s72 offen')
    A(f'buffer_store_dwordx4 v[36:39], v8, {srd("WS")}, s73 offen sc1')
    full_exec()
    stamp(3)
    A('s_branch L_F01_D')
    A('L_F01_SKIPB:')
    lds_inc(CNT_FREE)
    get_nonce(9)
    lds_wait(F_CLR, vZ, 9)
    A('L_F01_D:')
    A(f's_cmp_eq_u32 s{sR}, 1'); A('s_cbranch_scc1 L_F1_T')
    A(f's_cmp_lt_u32 s{sI}, 30'); A('s_cbranch_scc1 L_F0_QG')
    A('v_and_b32 v8, 31, v0'); A('v_lshlrev_b32 v8, 2, v8'); A(f's_lshl_b32 s64, s{sX}, 7'); A(f's_add_u32 s64, s64, {R_CLR}')
    poll(lambda: A(f'buffer_load_dword v10, v8, {srd("WS")}, s64 offen sc1'), [], 9, tags=[10], sleep=8)
    A('L_F0_QG:')
    A('v_lshlrev_b32 v40, 4, v0'); A(f's_mul_i32 s62, s{sH}, 768'); A('v_add_u32 v40, s62, v40')
    for ks in range(1, 5): A(f'v_add_u32 v{40+ks}, {24576*ks}, v40')
    A('v_lshlrev_b32 v8, 3, v0')
    set_exec((1 << 48) - 1)
    def ld():
        for ks in range(5): A(f'buffer_load_dwordx4 v[{48+4*ks}:{51+4*ks}], v{40+ks}, {srd("WS")}, s64 offen sc1')
    poll(ld, list(range(48, 68)), 18, regionAB=R_Q)
    tree_add(48, 4)
    for h2 in range(2): A(f'v_pk_add_f32 v[{48+2*h2}:{49+2*h2}], v[{48+2*h2}:{49+2*h2}], v[{64+2*h2}:{65+2*h2}]')
    A('v_cvt_pk_bf16_f32 v56, v48, v49'); A('v_cvt_pk_bf16_f32 v57, v50, v51')
    A(f'ds_write_b64 v8, v[56:57] offset:{QV}')
    full_exec()
    lds_set(F_Q)
    dstamp(3, 8, vt=(1, 47))
    stamp(4)
    A(f's_lshl_b32 s62, s{sH}, 9'); A('v_add_u32 v14, s62, v8')
    poll(lambda: A(f'buffer_load_dwordx2 v[12:13], v14, {srd("WS")}, s64 offen sc1'), [12, 13], 15, regionAB=R_ST, sleep=2)
    A('v_and_b32 v12, 0xffff0000, v12')
    A('v_mov_b32 v16, v12')
    allreduce([16], 'v_max_f32', [15])
    A('v_sub_f32 v12, v12, v16'); A(f'v_mul_f32 v12, {LOG2E}, v12'); A('v_exp_f32 v12, v12'); A('v_mul_f32 v17, v12, v13')
    allreduce([17], 'v_add_f32', [15])
    A(f'ds_write_b64 v3, v[16:17] offset:{ML}')
    lds_set(F_ML)
    dstamp(5, 8, vt=(1, 47))
    stamp(5)
    if DYN:
        branch_if_not_gcand('L_F01_PV')
        set_exec(1)
        A('v_mov_b32 v12, 1')
        A(f'buffer_atomic_add v12, v3, {srd("DBG")}, 0 offen offset:192 sc0 sc1')
        A('s_waitcnt vmcnt(0)')
        A('v_readfirstlane_b32 s62, v12')
        A(f's_mul_hi_u32 s63, s62, {(1 << 32) // 56 + 1}'); A('s_mul_i32 s63, s63, 56'); A('s_sub_u32 s62, s62, s63'); A('s_add_u32 s62, s62, 1')
        A('v_mov_b32 v12, s62')
        A(f'ds_write_b32 v3, v12 offset:{F_TK}')
        full_exec()
    A('s_branch L_F01_PV')
    A('L_F1_T:')
    A(f's_cmp_lt_u32 s{sI}, 20'); A('s_cbranch_scc1 L_F01_PV')
    if not DYN: branch_if_no_role('L_F01_PV')
    get_nonce(9)
    A('v_lshlrev_b32 v8, 4, v0')
    A(f's_mov_b32 s64, {R_MF}'); A(f's_mov_b32 s72, {R_CLR}'); A(f's_mov_b32 s73, {R_MF + 4096}')
    if DYN: branch_if_not_gcand('L_F1_TD')
    else: A(f's_cmp_ge_u32 s{sI}, 26'); A('s_cbranch_scc1 L_F1_TD')
    def ld():
        A(f'buffer_load_dwordx4 v[12:15], v8, {srd("WS")}, s72 offen sc1')
        for k in range(8):
            A(f'buffer_load_dwordx4 v[{16+4*k}:{19+4*k}], v8, {srd("WS")}, {"s64" if k < 4 else "s73"} offen offset:{1024*(k%4)} sc1')
    poll(ld, [], 9, tags=[12, 13, 14, 15] + [17 + 4 * k for k in range(8)] + [19 + 4 * k for k in range(8)], sleep=8)
    for k in range(8):
        q = 16 + 4 * k
        A(f'v_and_b32 v{q+3}, 0xffff0000, v{q+2}'); A(f'v_lshlrev_b32 v{q+2}, 16, v{q+2}')
        A(f'v_and_b32 v{q+1}, 0xffff0000, v{q}'); A(f'v_lshlrev_b32 v{q}, 16, v{q}')
        if k >= 5:
            for r in range(4): A(f'v_add_f32 v{q+r}, 1.0, v{q+r}')
            rbf4(q, q)
        A(f'ds_write_b128 v8, v[{q}:{q+3}] offset:{MODV + 1024*k}')
    lds_set(F_MV)
    stamp(4)
    A('s_branch L_F01_PV')
    A('L_F1_TD:')
    d_index()
    A('v_and_b32 v10, 3, v0'); A('v_lshlrev_b32 v10, 4, v10'); A('s_lshl_b32 s62, s75, 6'); A(f's_add_u32 s64, s62, {R_MF + 7680}')
    def ld():
        A(f'buffer_load_dwordx4 v[12:15], v8, {srd("WS")}, s72 offen sc1')
        A(f'buffer_load_dwordx4 v[16:19], v10, {srd("WS")}, s64 offen sc1')
    poll(ld, [], 9, tags=[12, 13, 14, 15, 17, 19], sleep=8)
    A('v_and_b32 v19, 0xffff0000, v18'); A('v_lshlrev_b32 v18, 16, v18'); A('v_and_b32 v17, 0xffff0000, v16'); A('v_lshlrev_b32 v16, 16, v16')
    A(f'ds_write_b128 v10, v[16:19] offset:{MODV}')
    lds_set(F_MV)
    stamp(4)
    A('L_F01_PV:')
    dry_check('L_DRYRET')
    lds_wait(CNT_VD, vZ, 9, cmp_val=6)
    A(f's_mul_i32 s62, s{sR}, 24576'); A(f's_add_u32 s62, s62, {LDS_A}'); A('v_lshl_add_u32 v8, v0, 4, s62')
    for n in range(24): A(f'ds_read_b128 v[{32+4*n}:{35+4*n}], v8 offset:{1024*n}')
    A('s_waitcnt lgkmcnt(0)')
    A('s_branch L_PV')

    A('L_F2:')
    A('s_cmp_ge_u32 s2, 240'); A('s_cbranch_scc1 L_F2_NONE')
    A('s_lshr_b32 s68, s2, 2'); A('s_and_b32 s69, s2, 3')
    A('v_lshlrev_b32 v7, 3, v0'); A('s_mul_i32 s62, s69, 320')
    A(f'buffer_load_dwordx2 v[10:11], v7, {srd("C")}, s62 offen')
    dma_addr(128, 7680, 6, 8, 9)
    A(f's_mul_i32 s70, s69, {160 * 7680}'); A('s_lshl_b32 s62, s68, 7'); A('s_add_u32 s70, s70, s62')
    dma_issue(20, 'WMOD', 6, 70, 8 * 7680, None, LDS_A, pol=FPOL)
    A('s_barrier')
    A('s_waitcnt vmcnt(20)')
    unpack4(12, 10)
    A(f's_mov_b32 s62, {LOG2E | 0x80000000}')
    for r in range(4): A(f'v_mul_f32 v{16+r}, s62, v{12+r}')
    for r in range(4): A(f'v_exp_f32 v{16+r}, v{16+r}')
    for r in range(4): A(f'v_add_f32 v{16+r}, 1.0, v{16+r}')
    for r in range(4): fdiv(12 + r, 12 + r, 16 + r, 20, 21, 22, 23)
    A('v_cvt_pk_bf16_f32 v16, v12, v13'); A('v_cvt_pk_bf16_f32 v17, v14, v15')
    set_exec((1 << 40) - 1)
    A(f'ds_write_b64 v7, v[16:17] offset:{SC}')
    full_exec()
    tr_addr(128, 6, 10, 11, base_imm=LDS_A)
    A(f'v_lshrrev_b32 v10, 4, v0'); A('v_lshlrev_b32 v10, 3, v10')
    for u in range(5):
        A(f'ds_read2_b64 v[{28+4*u}:{31+4*u}], v10 offset0:{SC//8 + 8*u} offset1:{SC//8 + 8*u + 4}')
    A('v_and_b32 v11, 15, v0'); A('v_lshlrev_b32 v11, 6, v11'); A('v_lshrrev_b32 v12, 4, v0'); A('v_lshl_add_u32 v11, v12, 4, v11')
    if dry:
        A(f's_mov_b32 s{sLIVE}, 0'); A('s_mov_b64 exec, 0')
    A('L_F2_B:')
    A(f's_cbranch_execz L_F2_B1'); A(f's_waitcnt vmcnt({FA_AT})'); lds_set(F_A); A('s_waitcnt vmcnt(0)'); A('L_F2_B1:')
    stamp(1)
    for u in range(5):
        for ct in range(4):
            r = 48 + (u * 4 + ct) * 4
            for hh in range(2):
                A(f'ds_read_b64_tr_b16 v[{r+2*hh}:{r+2*hh+1}], v{6+ct} offset:{(32*u+16*hh)*128}')
    for r in range(16): A(f'v_mov_b32 v{12+r}, 0')
    A('s_waitcnt lgkmcnt(0)')
    lds_inc(CNT_FREE)
    for u in range(5):
        for ct in range(4):
            r = 48 + (u * 4 + ct) * 4
            A(f'v_mfma_f32_16x16x32_bf16 v[{12+4*ct}:{15+4*ct}], v[{r}:{r+3}], v[{28+4*u}:{31+4*u}], v[{12+4*ct}:{15+4*ct}]')
    A(f's_lshl_b32 s70, s2, 9'); A(f's_add_u32 s70, s70, {R_MOD}')
    get_nonce(49)
    merge4(12, 52)
    stamp(2)
    A('v_mov_b32 v56, v52'); A('v_mov_b32 v58, v53'); A('v_mov_b32 v60, v54'); A('v_mov_b32 v62, v55')
    for r in (57, 59, 61, 63): A(f'v_mov_b32 v{r}, s{sN}')
    set_exec(0x000f000f000f000f)
    A(f'buffer_store_dwordx4 v[56:59], v11, {srd("WS")}, s70 offen sc1')
    A(f'buffer_store_dwordx4 v[60:63], v11, {srd("WS")}, s70 offen offset:256 sc1')
    full_exec()
    dstamp(1, 8, vt=(1, 47))
    stamp(3)
    if dry:
        A('s_cbranch_execnz L_VSTREAM')
        A(f's_mov_b32 s{sLIVE}, -1'); A('s_mov_b64 exec, -1'); A('s_branch L_F2_B')
    A('s_branch L_VSTREAM')
    A('L_F2_NONE:')
    A('s_barrier')
    lds_set(F_A)
    lds_inc(CNT_FREE)
    A('s_branch L_VSTREAM')

    A('L_F3:')
    A(f's_cmp_ge_u32 s{sR}, 4'); A('s_cbranch_scc1 L_F4')
    A('s_cmp_lg_u32 s2, 0'); A('s_cbranch_scc1 L_F3_B')
    A('s_memrealtime s[62:63]'); A('s_waitcnt lgkmcnt(0)'); A('s_or_b32 s62, s62, 1'); A('v_mov_b32 v8, s62')
    set_exec(1)
    A('v_mov_b32 v9, 0')
    A(f'buffer_atomic_cmpswap v[8:9], v3, {srd("DBG")}, 0 offen sc1')
    full_exec()
    A('L_F3_B:')
    A('v_lshlrev_b32 v7, 2, v0'); A('ds_write_b32 v7, v3')
    for k in range(3): A(f'ds_write_b32 v7, v3 offset:{OACC + 256*k}')
    A('s_waitcnt lgkmcnt(0)')
    A('s_barrier')
    set_exec(1)
    poll(lambda: A(f'buffer_load_dword v9, v3, {srd("DBG")}, 0 offen sc1'), [9], 10, sleep=NSLEEP)
    A(f'ds_write_b32 v3, v9 offset:{F_N}')
    full_exec()
    stamp(1)
    A('s_branch L_VSTREAM')
    A('L_F4:')
    A(f's_cmp_lg_u32 s{sR}, 4'); A('s_cbranch_scc1 L_F5')
    for r in range(4): A(f'v_mov_b32 v{8+r}, 0')
    kb_pi()
    A('s_mul_i32 s70, s68, 24576'); A(f's_mul_i32 s62, s{sX}, 3072'); A('s_add_u32 s70, s70, s62'); A('s_lshl_b32 s62, s69, 9'); A('s_add_u32 s70, s70, s62')
    A(f's_add_u32 s70, s70, {R_Q[0]}')
    A('v_and_b32 v12, 31, v0'); A('v_lshlrev_b32 v12, 4, v12'); A('v_lshrrev_b32 v13, 5, v0'); A(f'v_mul_u32_u24 v13, {R_Q[1]-R_Q[0]}, v13'); A('v_add_u32 v12, v12, v13')
    A(f's_cmp_ge_u32 s{sI}, 30'); A('s_cbranch_scc1 L_F4_B')
    A(f'buffer_store_dwordx4 v[8:11], v12, {srd("WS")}, s70 offen sc1')
    A('L_F4_B:')
    A(f's_lshl_b32 s62, s{sH}, 3'); A(f's_add_u32 s62, s62, s{sS}'); A('s_mul_i32 s71, s62, 768'); A('s_lshl_b32 s72, s62, 6')
    A('v_lshlrev_b32 v12, 4, v0')
    A(f's_add_u32 s73, s71, {R_O[0]}'); A('v_add_u32 v13, s73, v12')
    A(f's_add_u32 s73, s72, {R_ST[0] - 768}'); A('v_add_u32 v14, s73, v12')
    A('v_cmp_lt_u32 vcc, 47, v0'); A('v_cndmask_b32 v13, v13, v14, vcc')
    A(f's_add_u32 s73, s71, {R_O[1]}'); A('v_add_u32 v15, s73, v12')
    A(f's_add_u32 s73, s72, {R_ST[1] - 768}'); A('v_add_u32 v14, s73, v12')
    A('v_cndmask_b32 v15, v15, v14, vcc')
    A(f's_cmp_ge_u32 s{sI}, 20'); A('s_cbranch_scc1 L_F4_C')
    A(f's_and_b32 s62, s{sI}, 1'); A(f's_lshl_b32 s63, s{sX}, 1'); A('s_add_u32 s62, s62, s63'); A('s_mul_i32 s74, s62, 2560')
    A(f's_lshr_b32 s62, s{sI}, 1'); A('s_lshl_b32 s62, s62, 8'); A('s_add_u32 s74, s74, s62'); A(f's_add_u32 s74, s74, {R_Y}')
    set_exec(0xffff)
    A(f'buffer_store_dwordx4 v[8:11], v12, {srd("WS")}, s74 offen sc1')
    full_exec()
    A('s_branch L_F4_D')
    A('L_F4_C:')
    A(f's_cmp_ge_u32 s{sI}, 26'); A('s_cbranch_scc1 L_F4_D')
    A(f's_mul_i32 s75, s{sX}, 6'); A(f's_add_u32 s75, s75, s{sI}'); A('s_sub_u32 s75, s75, 20')
    A('s_and_b32 s62, s75, 1'); A('s_mul_i32 s74, s62, 3072'); A('s_lshr_b32 s62, s75, 1'); A('s_lshl_b32 s62, s62, 7'); A('s_add_u32 s74, s74, s62'); A(f's_add_u32 s74, s74, {R_HM}')
    set_exec(0xff)
    A(f'buffer_store_dwordx4 v[8:11], v12, {srd("WS")}, s74 offen sc1')
    full_exec()
    A('s_cmp_ge_u32 s75, 8'); A('s_cbranch_scc1 L_F4_D')
    A('s_mul_i32 s63, s75, 160'); A(f's_add_u32 s63, s63, {R_X2}')
    set_exec(0x3ff)
    A(f'buffer_store_dwordx4 v[8:11], v12, {srd("WS")}, s63 offen sc1')
    full_exec()
    A('L_F4_D:')
    set_exec((1 << 52) - 1)
    A(f'buffer_store_dwordx4 v[8:11], v13, {srd("WS")}, 0 offen sc1')
    set_exec((1 << 52) - 1)
    A(f'buffer_store_dwordx4 v[8:11], v15, {srd("WS")}, 0 offen sc1')
    full_exec()
    A('s_barrier')
    A('s_waitcnt vmcnt(0)')
    lds_set(F_CLR)
    stamp(1)
    get_nonce(12)
    A(f'v_mov_b32 v12, s{sN}')
    A(f's_lshl_b32 s70, s{sX}, 5'); A(f's_add_u32 s70, s70, s{sI}'); A('s_lshl_b32 s70, s70, 2'); A(f's_add_u32 s70, s70, {R_CLR}')
    set_exec(1)
    A(f'buffer_store_dword v12, v3, {srd("WS")}, s70 offen sc1')
    full_exec()
    stamp(2)
    A('s_branch L_VSTREAM')
    A('L_F5:')
    A('s_barrier')
    A(f's_cmp_lg_u32 s{sR}, 5'); A('s_cbranch_scc1 L_F6')
    A('s_cmp_ge_u32 s2, 40'); A('s_cbranch_scc1 L_F6')
    A('v_lshrrev_b32 v8, 4, v0'); A('v_lshlrev_b32 v8, 9, v8'); A('v_and_b32 v9, 15, v0'); A('v_lshlrev_b32 v9, 4, v9'); A('v_add_u32 v8, v8, v9')
    A('s_lshl_b32 s64, s2, 11'); A(f's_add_u32 s64, s64, {R_MOD + 20 * 2048}')
    A('s_lshl_b32 s72, s2, 8'); A(f's_add_u32 s72, s72, {R_MF}')
    get_nonce(10)
    def ld():
        A(f'buffer_load_dwordx4 v[12:15], v8, {srd("WS")}, s64 offen sc1')
        A(f'buffer_load_dwordx4 v[16:19], v8, {srd("WS")}, s64 offen offset:256 sc1')
    poll(ld, [], 10, tags=[13, 15, 17, 19], sleep=8)
    vals = [12, 14, 16, 18]
    for sw in ('v_permlane16_swap_b32', 'v_permlane32_swap_b32'):
        for r in vals: A(f'v_mov_b32 v{r+1}, v{r}')
        for r in vals: A(f'{sw} v{r}, v{r+1}')
        for r in vals: A(f'v_add_f32 v{r}, v{r}, v{r+1}')
    A('v_cvt_pk_bf16_f32 v20, v12, v14'); A('v_cvt_pk_bf16_f32 v22, v16, v18'); A(f'v_mov_b32 v21, s{sN}'); A(f'v_mov_b32 v23, s{sN}')
    set_exec(0xffff)
    A(f'buffer_store_dwordx4 v[20:23], v9, {srd("WS")}, s72 offen sc1')
    full_exec()
    stamp(2)
    A('L_F6:')
    if PRET:
        A(f's_cmp_lg_u32 s{sR}, 7'); A('s_cbranch_scc1 L_F7_X')
        A('v_lshlrev_b32 v8, 17, v0')
        set_exec(0xffff)
        A(f'buffer_load_dword v9, v8, {srd("WG")}, 0 offen nt'); A(f'buffer_load_dword v10, v8, {srd("WU")}, 0 offen nt'); A(f'buffer_load_dword v11, v8, {srd("WD")}, 0 offen nt')
        A(f's_mul_i32 s62, s{sX}, {768 * 1280}')
        set_exec(0x1ff)
        A(f'buffer_load_dword v12, v8, {srd("WO")}, s62 offen nt')
        set_exec(0x3)
        A(f'buffer_load_dword v13, v8, {srd("V")}, s67 offen nt')
        set_exec(1)
        A(f'buffer_load_dword v14, v3, {srd("OUT")}, 0 offen nt')
        full_exec()
        A('L_F7_X:')
    if TD == 's':
        A(f's_cmp_lt_u32 s{sR}, 6'); A('s_cbranch_scc1 L_F6_X')
        A(f's_cmp_lt_u32 s{sI}, 26'); A('s_cbranch_scc1 L_F6_X')
        branch_if_no_role('L_F6_X')
        d_index()
        dma_addr(32, 1280, 6, 7, 8)
        A(f's_sub_u32 s76, s{sR}, 6')
        A(f's_mul_i32 s77, s76, {768 * 1280}'); A('s_lshl_b32 s62, s75, 5'); A('s_add_u32 s77, s77, s62')
        A(f's_mul_i32 s78, s76, 24576'); A(f's_add_u32 s78, s78, {LDS_T}')
        lds_wait(CNT_B, vZ, 9, cmp_val=2)
        dma_issue(24, 'WD', 6, 77, 32 * 1280, 78, pace=DPACE, pol=TPOL)
        A('s_waitcnt vmcnt(0)')
        lds_inc(CNT_TD)
        A('L_F6_X:')
    if dry:
        for r in list(range(6, 48)): A(f'v_mov_b32 v{r}, 0')
        A(f's_mov_b32 s{sLIVE}, 0'); A('s_mov_b64 exec, 0')
        A(f's_cmp_eq_u32 s{sR}, 5'); A('s_cbranch_scc1 L_F5_K')
        A(f's_cmp_eq_u32 s{sR}, 6'); A('s_cbranch_scc1 L_F6_F')
        A('s_branch L_PV')
        A('L_F5_K:'); A(f's_mov_b32 s{sR}, 0'); A('s_branch L_K_DRY')
        A('L_F6_F:'); A(f's_mov_b32 s{sR}, 0'); kb_pi(); A(f's_mov_b32 s71, {LDS_B}'); A('s_branch L_F01_DRY')
        A('L_DRYRET:')
        A(f's_mov_b32 s{sLIVE}, -1'); A('s_mov_b64 exec, -1'); A(f's_and_b32 s{sR}, s{sW}, 7')
        stamp(1)
    else:
        A('L_DRYRET:')

    VD = 32
    A('L_VSTREAM:')
    A('s_waitcnt vmcnt(0)')
    A(f's_sub_u32 s68, s{sR}, 2'); A('s_cmp_ge_u32 s68, 3'); A('s_cselect_b32 s69, 1, 0')
    A('s_mul_i32 s62, s69, 3'); A('s_sub_u32 s68, s68, s62')
    A('s_mul_i32 s70, s69, 24576'); A(f's_add_u32 s71, s70, {LDS_A}'); A('s_add_u32 s70, s70, s67')
    A('s_lshl_b32 s62, s68, 13'); A('s_add_u32 s71, s71, s62')
    lds_wait(CNT_FREE, vZ, 6, cmp_val=3)
    lds_wait(KISS, vPF, 6)
    stamp(5)
    d0 = DV0 or DV
    def vload(n):
        T, tt, c = n // 12, (n % 12) // 3, n % 3
        A(f'buffer_load_dwordx4 v[{VD+4*n}:{VD+4*n+3}], v2, {srd("V")}, s{65+T} offen offset:{tt*384+c*128} {KVPOL}')
    A('s_lshl_b32 s68, s68, 3'); A('s_mov_b32 s69, 0'); A('s_mov_b32 s74, 0'); A('s_mov_b32 s75, 0')
    A('L_VP:')
    A('s_lshl_b32 s62, s68, 7'); A('s_cmp_ge_u32 s68, 12'); A('s_cselect_b32 s63, 10752, 0'); A('s_add_u32 s62, s62, s63'); A('s_add_u32 s62, s62, s70')
    A('s_mov_b32 m0, s71')
    A(f'buffer_load_dwordx4 v2, {srd("V")}, s62 offen {KVPOL} lds')
    A('s_add_u32 s71, s71, 1024'); A('s_add_u32 s68, s68, 1'); A('s_add_u32 s69, s69, 1')
    A('s_cmp_lg_u32 s74, 0'); A('s_cbranch_scc1 L_VP_N')
    A(f'ds_read_b32 v6, v{vPF} offset:{PRDY}')
    A(f's_waitcnt vmcnt({d0-1}) lgkmcnt(0)')
    A('v_readfirstlane_b32 s74, v6')
    A('L_VP_N:')
    A('s_cmp_lt_u32 s69, 8'); A('s_cbranch_scc1 L_VP')
    A('s_cmp_lg_u32 s74, 0'); A('s_cbranch_scc1 L_VF_0')
    for n in range(24):
        vload(n)
        if n + 1 < 24 - VFREE:
            A(f'ds_read_b32 v6, v{vPF} offset:{PRDY}')
            A(f's_waitcnt vmcnt({DV-1}) lgkmcnt(0)')
            if n + 1 == DV:
                lds_inc(CNT_VD); A('s_mov_b32 s75, 1')
            A('v_readfirstlane_b32 s62, v6'); A('s_cmp_lg_u32 s62, 0'); A(f's_cbranch_scc1 L_VF_{n+1}')
    A('s_branch L_VF_E')
    for n in range(24):
        A(f'L_VF_{n}:'); vload(n)
    A('s_cmp_lg_u32 s75, 0'); A('s_cbranch_scc1 L_VF_E')
    lds_inc(VISS)
    A('s_waitcnt vmcnt(24)')
    lds_inc(CNT_VD)
    A('s_branch L_VF_E2')
    A('L_VF_E:')
    lds_inc(VISS)
    A('L_VF_E2:')
    if WV:
        A(f's_cmp_ge_u32 s{sI}, 20'); A('s_cbranch_scc1 L_WV_NO')
        dma_addr(128, 1280, 6, 7, 8)
        A(f's_mul_i32 s70, s{sX}, 768'); A(f's_and_b32 s62, s{sI}, 1'); A('s_mul_i32 s62, s62, 384'); A('s_add_u32 s70, s70, s62')
        A(f's_sub_u32 s71, s{sR}, 2'); A('s_lshl_b32 s62, s71, 6'); A('s_add_u32 s70, s70, s62'); A('s_mul_i32 s70, s70, 1280')
        A(f's_lshr_b32 s62, s{sI}, 1'); A('s_lshl_b32 s62, s62, 7'); A('s_add_u32 s70, s70, s62')
        A('s_lshl_b32 s71, s71, 13'); A(f's_add_u32 s71, s71, {LDS_T}')
        dma_issue(8, 'WO', 6, 70, 8 * 1280, 71, pol=TPOL)
        A('s_branch L_WV_E')
        A('L_WV_NO:')
        A('v_mov_b32 v6, 0x7ffff000')
        for k in range(8): A(f'buffer_load_dword v2, v6, {srd("X")}, 0 offen')
        A('L_WV_E:')
    if diagV:
        stamp(3); A('s_waitcnt vmcnt(0)'); stamp(4)
    A('L_PV:')
    A('v_and_b32 v14, 7, v0')
    A('v_and_b32 v15, 1, v14'); A('v_lshlrev_b32 v15, 4, v15'); A('v_mov_b32 v10, 0xffff'); A('v_lshlrev_b32 v15, v15, v10')
    A('v_lshrrev_b32 v14, 1, v14')
    for d in range(4):
        A(f'v_cmp_eq_u32 vcc, {d}, v14'); A(f'v_cndmask_b32 v{6+d}, 0, v15, vcc')
    for r in range(12): A(f'v_mov_b32 v{16+r}, 0')
    A('v_lshrrev_b32 v14, 3, v0'); A('v_lshlrev_b32 v14, 4, v14'); A(f's_lshl_b32 s62, s{sR}, 8'); A('v_add_u32 v14, s62, v14')
    A('v_bfe_u32 v1, v0, 4, 1'); A('v_lshlrev_b32 v1, 7, v1'); A('v_and_b32 v15, 7, v0'); A('v_lshl_add_u32 v1, v15, 2, v1')
    A('v_lshrrev_b32 v15, 5, v0'); A('v_lshl_add_u32 v1, v15, 5, v1'); A(f's_mul_i32 s62, s{sR}, 768'); A('v_add_u32 v1, s62, v1')
    A(f's_lshl_b32 s62, s{sH}, 3'); A(f's_add_u32 s62, s62, s{sS}'); A('s_mul_i32 s62, s62, 768')
    A(f's_add_u32 s72, s62, {R_O[0]}'); A(f's_add_u32 s73, s62, {R_O[1]}')
    lds_wait(PRDY, vPF, 15)
    stamp(6)
    for T in range(2):
        A(f'ds_read_b128 v[10:13], v14 offset:{PD + 128*T}')
        A('s_waitcnt lgkmcnt(0)')
        for tt in range(4):
            t = 4 * T + tt
            for d in range(4): A(f'v_and_b32 v{28+d}, v{10+tt}, v{6+d}')
            for c in range(3):
                n = 3 * t + c
                A(f's_waitcnt vmcnt({23-n+(8 if WV else 0)})')
                A(f'v_mfma_f32_16x16x32_bf16 v[{16+4*c}:{19+4*c}], v[{VD+4*n}:{VD+4*n+3}], v[28:31], v[{16+4*c}:{19+4*c}]')
    A('v_lshlrev_b32 v14, 4, v0')
    for k in range(6): A(f'v_permlane32_swap_b32 v{16+2*k}, v{17+2*k}')
    for k in range(6): A(f'v_add_f32_dpp v{16+2*k}, v{17+2*k}, v{16+2*k} row_ror:8 row_mask:0xf bank_mask:0xf')
    set_exec(0x00ff00ff00ff00ff)
    for k in range(6): A(f'ds_write_b32 v1, v{16+2*k} offset:{RED + 256*(k//2) + 64*(k%2)}')
    set_exec(1)
    A(f'ds_add_rtn_u32 v15, v3, v4 offset:{CNT_O}')
    set_exec((1 << 48) - 1)
    for k in range(8): A(f'ds_read_b128 v[{32+4*k}:{35+4*k}], v14 offset:{RED + 768*k}')
    A('s_waitcnt lgkmcnt(8)')
    A('v_readfirstlane_b32 s62, v15')
    A('s_cbranch_execz L_VRED')
    A('s_cmp_lg_u32 s62, 7'); A('s_cbranch_scc1 L_VEND')
    A('L_VRED:')
    A('s_waitcnt lgkmcnt(0)')
    tree_add(32, 8)
    for r in range(4): A(f'v_or_b32 v{32+r}, 1, v{32+r}')
    A(f'buffer_store_dwordx4 v[32:35], v14, {srd("WS")}, s72 offen')
    A(f'buffer_store_dwordx4 v[32:35], v14, {srd("WS")}, s73 offen sc1')
    lds_set(F_ODONE)
    dstamp(6, 8, vt=(1, 47))
    dry_check('L_DRYRET')
    A('L_VEND:')
    stamp(7)
    if WV:
        A(f's_cmp_lt_u32 s{sR}, 2'); A('s_cbranch_scc1 L_VEND2')
        A(f's_cmp_ge_u32 s{sI}, 20'); A('s_cbranch_scc1 L_VEND2')
        A('s_waitcnt vmcnt(0)')
        lds_inc(CNT_TD)
        A('L_VEND2:')
    if TG == 'w':
        A(f's_cmp_lt_u32 s{sI}, 20'); A('s_cbranch_scc1 L_VEND3')
        A(f's_cmp_ge_u32 s{sI}, 26'); A('s_cbranch_scc1 L_VEND3')
        full_exec()
        A(f's_mul_i32 s75, s{sX}, 6'); A(f's_add_u32 s75, s75, s{sI}'); A('s_sub_u32 s75, s75, 20')
        A('s_bitcmp1_b32 s75, 0')
        A(f's_cselect_b32 s68, s{SRD["WU"]}, s{SRD["WG"]}'); A(f's_cselect_b32 s69, s{SRD["WU"]+1}, s{SRD["WG"]+1}')
        A(f's_mov_b32 s70, {SIZE["WG"]}'); A('s_mov_b32 s71, 0x20000')
        dma_addr(128, 3072, 6, 7, 8)
        A(f's_mul_i32 s72, s{sR}, {80 * 3072}'); A('s_lshr_b32 s62, s75, 1'); A('s_lshl_b32 s62, s62, 7'); A('s_add_u32 s72, s72, s62')
        A(f's_mul_i32 s73, s{sR}, 10240'); A(f's_add_u32 s73, s73, {LDS_T}')
        if GWG: lds_wait(VISS, vZ, 9, cmp_val=6)
        dma_issue(10, 's[68:71]', 6, 72, 8 * 3072, 73, pace=TDEPTH, pol=TPOL)
        A('s_waitcnt vmcnt(0)')
        lds_inc(CNT_TD)
        A('L_VEND3:')
    flush_stamps()
    A('s_endpgm')

    A('L_KWAVE:')
    KD = 32
    def kload(n):
        T, tt, c = n // 12, (n % 12) // 3, n % 3
        A(f'buffer_load_dwordx4 v[{KD+4*n}:{KD+4*n+3}], v2, {srd("K")}, s{65+T} offen offset:{tt*384+c*128} {KVPOL}')
    for n in range(24):
        kload(n)
        if n + 1 == (SOFT or DK):
            A('s_barrier')
            if SOFT and KW == 'a': lds_wait(F_A, vZ, 6)
            if SOFT and KW == 'b': lds_wait(CNT_B, vZ, 6, cmp_val=2)
        if n + 1 >= DK and n + 1 < 24:
            if KADAPT and n + 1 >= KA0:
                A(f'ds_read_b32 v6, v{vZ} offset:{F_Q}')
                A(f's_waitcnt vmcnt({DK-1}) lgkmcnt(0)')
                A('v_readfirstlane_b32 s62, v6'); A('s_cmp_lg_u32 s62, 0'); A(f's_cbranch_scc1 L_KF_{n+1}')
            else:
                A(f's_waitcnt vmcnt({DK-1})')
    if KADAPT:
        A('s_branch L_KF_E')
        for n in range(KA0, 24):
            A(f'L_KF_{n}:'); kload(n)
            if DKF and n + 1 < 24: A(f's_waitcnt vmcnt({DKF-1})')
        A('L_KF_E:')
    lds_set(KISS, vPF)
    dstamp(4, 8, 8, vt=(1, 7))
    stamp(1)
    A('L_K_DRY:')
    A('v_and_b32 v6, 7, v0'); A('v_lshlrev_b32 v6, 4, v6')
    A(f's_lshl_b32 s62, s{sH}, 6'); A(f's_lshl_b32 s63, s{sS}, 3'); A('s_add_u32 s62, s62, s63'); A(f's_add_u32 s62, s62, s{sR}'); A('s_lshl_b32 s62, s62, 3')
    A(f's_add_u32 s72, s62, {R_ST[0]}'); A(f's_add_u32 s73, s62, {R_ST[1]}')
    def setmask(m, s): A(f's_mov_b32 s{s}, {m}'); A(f's_mov_b32 s{s+1}, {m}')
    setmask(0xf0f0f0f0, 80); setmask(0xaaaaaaaa, 82); setmask(0xcccccccc, 84)
    lds_wait(F_Q, vZ, 7)
    stamp(2)
    for c in range(3): A(f'ds_read_b128 v[{8+4*c}:{11+4*c}], v6 offset:{QV + 128*c}')
    A('s_waitcnt lgkmcnt(0)')
    for tp in range(0, 8, 2):
        A(f's_waitcnt vmcnt({21 - 3*(tp+1)})')
        for c in range(3):
            for d in range(4):
                for t in (tp, tp + 1):
                    kr = KD + 4 * (3 * t + c) + d
                    src2 = '0' if (c == 0 and d == 0) else f'v{20+t}'
                    A(f'v_dot2_f32_bf16 v{20+t}, v{kr}, v{8+4*c+d}, {src2}')
    for j in range(4):
        A(f'v_cndmask_b32 v{8+j}, v{20+j}, v{24+j}, s[80:81]')
        A(f'v_cndmask_b32 v{12+j}, v{24+j}, v{20+j}, s[80:81]')
    for j in range(4): A(f'v_add_f32_dpp v{8+j}, v{12+j}, v{8+j} row_half_mirror row_mask:0xf bank_mask:0xf')
    for jj in (0, 1):
        A(f'v_cndmask_b32 v{12+jj}, v{8+2*jj}, v{9+2*jj}, s[82:83]')
        A(f'v_cndmask_b32 v{14+jj}, v{9+2*jj}, v{8+2*jj}, s[82:83]')
    for jj in (0, 1): A(f'v_add_f32_dpp v{12+jj}, v{14+jj}, v{12+jj} quad_perm:[1,0,3,2] row_mask:0xf bank_mask:0xf')
    A('v_cndmask_b32 v8, v12, v13, s[84:85]'); A('v_cndmask_b32 v9, v13, v12, s[84:85]')
    A('v_add_f32_dpp v8, v9, v8 quad_perm:[2,3,0,1] row_mask:0xf bank_mask:0xf')
    rbf(8, 8); A(f'v_mul_f32 v8, {SCALE}, v8'); rbf(8, 8)
    A('v_mov_b32 v9, v8')
    allreduce([9], 'v_max_f32', [10])
    A('v_sub_f32 v10, v8, v9'); A(f'v_mul_f32 v10, {LOG2E}, v10'); A('v_exp_f32 v10, v10')
    allreduce([10], 'v_add_f32', [11])
    A('v_or_b32 v12, 1, v9'); A('v_mov_b32 v13, v10')
    set_exec(1)
    A(f'buffer_store_dwordx2 v[12:13], v3, {srd("WS")}, s72 offen')
    A(f'buffer_store_dwordx2 v[12:13], v3, {srd("WS")}, s73 offen sc1')
    full_exec()
    stamp(3)
    A('v_mov_b32 v127, v8')
    A(f's_cmp_lt_u32 s{sR}, 2'); A('s_cselect_b32 s62, 8, 0'); A('v_add_u32 v126, s62, v5')
    def emit_p():
        lds_wait(F_ML, vZ, 120)
        A(f'ds_read_b64 v[120:121], v3 offset:{ML}')
        A('v_bfe_u32 v122, v0, 2, 1'); A('v_lshlrev_b32 v122, 5, v122'); A('v_lshrrev_b32 v123, 3, v0'); A('v_lshl_add_u32 v122, v123, 2, v122')
        A('v_and_b32 v123, 3, v0'); A('v_add_u32 v122, v122, v123'); A('v_lshlrev_b32 v122, 2, v122'); A(f's_lshl_b32 s62, s{sR}, 8'); A('v_add_u32 v122, s62, v122')
        A('s_waitcnt lgkmcnt(0)')
        A('v_sub_f32 v127, v127, v120'); A(f'v_mul_f32 v127, {LOG2E}, v127'); A('v_exp_f32 v127, v127')
        fdiv(127, 127, 121, 120, 123, 124, 125)
        A('v_cvt_pk_bf16_f32 v127, v127, v127')
        A(f'ds_write_b32 v122, v127 offset:{PD}')
        lds_set(PRDY, vPF)
        stamp(4)
    A(f's_cmp_lt_u32 s{sI}, 20'); A('s_cbranch_scc1 L_TW')
    if DYN:
        branch_if_not_gcand('L_TD')
        emit_p()
        lds_wait(F_TK, vZ, 7)
        A('s_sub_u32 s75, s62, 1')
        A('s_cmp_lt_u32 s75, 48'); A('s_cbranch_scc1 L_TG')
        A('s_branch L_KEND')
    else:
        A(f's_cmp_lt_u32 s{sI}, 26'); A('s_cbranch_scc1 L_TG')
        branch_if_no_role('L_TNONE')
        A('s_branch L_TD')
        A('L_TNONE:')
        emit_p()
        A('s_branch L_KEND')

    FR = 64
    def wg_common(nk, rows_per_kg):
        A(f's_and_b32 s76, s{sR}, 3'); A(f's_lshr_b32 s77, s{sR}, 2')
        A(f's_mul_i32 s78, s76, {rows_per_kg * 128}'); A(f's_add_u32 s78, s78, {LDS_T}')
        A('v_lshrrev_b32 v12, 2, v0'); A('v_lshlrev_b32 v12, 7, v12'); A('v_and_b32 v13, 3, v0'); A('v_lshl_add_u32 v12, v13, 3, v12'); A('v_add_u32 v12, s78, v12')
        A('v_bfe_u32 v13, v0, 3, 2'); A('s_lshl_b32 s62, s77, 1')
        A('v_xor_b32 v10, s62, v13'); A('v_xor_b32 v11, 1, v10')
        A('v_lshl_add_u32 v10, v10, 5, v12'); A('v_lshl_add_u32 v11, v11, 5, v12')
        A(f's_lshl_b32 s74, s{sR}, 9'); A(f's_add_u32 s74, s74, {STG}')
        A('v_lshrrev_b32 v19, 4, v0'); A('v_lshl_add_u32 v19, v19, 3, s74')
        A('v_lshrrev_b32 v18, 4, v0'); A('v_lshlrev_b32 v18, 4, v18'); A('s_lshl_b32 s62, s76, 8'); A('s_lshl_b32 s63, s77, 7'); A('s_add_u32 s62, s62, s63'); A('v_add_u32 v18, s62, v18')
        A('v_lshlrev_b32 v27, 3, v0')
        A(f's_mul_i32 s62, s77, {rows_per_kg * 64}'); A('s_add_u32 s73, s78, s62')
    def wg_fetch(nk, acc):
        for r in range(8): A(f'v_mov_b32 v{acc+r}, 0')
        A('s_waitcnt vmcnt(0)')
        lds_inc(CNT_TD)
        lds_wait(CNT_TD, vZ, 7, cmp_val=8)
        for u in range(nk):
            for ct in range(2):
                r = FR + (u * 2 + ct) * 4
                for hh in range(2): A(f'ds_read_b64_tr_b16 v[{r+2*hh}:{r+2*hh+1}], v{10+ct} offset:{(32*u+16*hh)*128}')
    def wg_mfma(nk, acc, bb):
        for u in range(nk): A(f'ds_read2_b64 v[{bb+4*u}:{bb+3+4*u}], v19 offset0:{8*u} offset1:{8*u+4}')
        for u in range(nk):
            A(f's_waitcnt lgkmcnt({nk-1-u})')
            for ct in range(2):
                r = FR + (u * 2 + ct) * 4
                A(f'v_mfma_f32_16x16x32_bf16 v[{acc+4*ct}:{acc+3+4*ct}], v[{r}:{r+3}], v[{bb+4*u}:{bb+3+4*u}], v[{acc+4*ct}:{acc+3+4*ct}]')
        set_exec(0x0001000100010001)
        for ct in range(2): A(f'ds_write_b128 v18, v[{acc+4*ct}:{acc+3+4*ct}] offset:{TRED + 64*ct}')
        A('s_waitcnt lgkmcnt(0)')
        barrier()
        A(f's_cmp_lg_u32 s{sR}, 0'); A('s_cbranch_scc1 L_KEND')
        set_exec(0xffffffff)
        for k in range(4): A(f'ds_read_b64 v[{32+2*k}:{33+2*k}], v27 offset:{TRED + 256*k}')
        A('s_waitcnt lgkmcnt(0)')
        tree2(32, 4)

    A('L_TW:')
    wg_common(3, 96)
    dma_addr(128, 1280, 6, 7, 8)
    A(f's_and_b32 s75, s{sI}, 1')
    A(f's_mul_i32 s70, s{sX}, 768'); A('s_mul_i32 s62, s75, 384'); A('s_add_u32 s70, s70, s62'); A('s_mul_i32 s62, s76, 96'); A('s_add_u32 s70, s70, s62')
    A(f's_lshl_b32 s62, s{sX}, 2'); A('s_lshl_b32 s63, s75, 1'); A('s_add_u32 s62, s62, s63'); A('s_lshr_b32 s63, s76, 1'); A('s_add_u32 s62, s62, s63'); A('s_mul_i32 s62, s62, 6144')
    A('s_and_b32 s63, s76, 1'); A('s_mul_i32 s63, s63, 384'); A('s_add_u32 s62, s62, s63')
    if X4:
        A('v_lshrrev_b32 v14, 5, v0'); A('v_mul_u32_u24 v14, 3072, v14'); A('v_and_b32 v15, 31, v0'); A('v_lshl_add_u32 v14, v15, 4, v14'); A('v_add_u32 v14, s62, v14')
    else:
        A('v_lshl_add_u32 v14, v0, 3, s62'); A('v_add_u32 v15, 3072, v14')
    A('s_mul_i32 s62, s77, 48'); A('s_add_u32 s70, s70, s62'); A('s_mul_i32 s70, s70, 1280')
    A(f's_lshr_b32 s62, s{sI}, 1'); A('s_lshl_b32 s62, s62, 7'); A('s_add_u32 s70, s70, s62')
    A('v_lshl_add_u32 v16, v15, 3, s74' if X4 else 'v_lshl_add_u32 v16, v0, 2, s74')
    A(f's_lshl_b32 s63, s{sX}, 1'); A('s_add_u32 s63, s63, s75'); A('s_mul_i32 s75, s63, 2560'); A('s_lshl_b32 s62, s62, 1'); A('s_add_u32 s75, s75, s62'); A(f's_add_u32 s75, s75, {R_Y}')
    emit_p()
    def w_tr():
        for u in range(3):
            for ct in range(2):
                r = FR + (u * 2 + ct) * 4
                for hh in range(2): A(f'ds_read_b64_tr_b16 v[{r+2*hh}:{r+2*hh+1}], v{10+ct} offset:{(32*u+16*hh)*128}')
    if not WV:
        tail_gate(TW)
        dma_issue(6, 'WO', 6, 70, 8 * 1280, 73, pace=TDEPTH, pol=TPOL)
        wg_fetch(3, 112)
        stamp(5)
    else:
        for r in range(8): A(f'v_mov_b32 v{112+r}, 0')
    lds_wait(F_ODONE, vZ, 7)
    if X4:
        set_exec(0x00ffffff00ffffff)
        def ld():
            for n in range(4): A(f'buffer_load_dwordx4 v[{32+4*n}:{35+4*n}], v14, {srd("WS")}, s64 offen offset:{768*n} sc1')
        poll(ld, list(range(32, 48)), 7, regionAB=R_O, sleep=0)
        stamp(6)
        tree_add(32, 4)
        half_swap_add(32, 36)
        A('v_cvt_pk_bf16_f32 v36, v32, v33'); A('v_cvt_pk_bf16_f32 v37, v34, v35')
        A('ds_write_b64 v16, v[36:37]')
        full_exec()
    else:
        set_exec((1 << 48) - 1)
        def ld():
            for n in range(8): A(f'buffer_load_dwordx2 v[{32+2*n}:{33+2*n}], v{14 + n//4}, {srd("WS")}, s64 offen offset:{768*(n%4)} sc1')
        poll(ld, list(range(32, 48)), 7, regionAB=R_O, sleep=0)
        stamp(6)
        tree2(32, 8)
        A('v_cvt_pk_bf16_f32 v36, v32, v33')
        A('ds_write_b32 v16, v36')
        full_exec()
    if WV:
        lds_wait(CNT_TD, vZ, 7, cmp_val=6)
        stamp(5)
        w_tr()
    wg_mfma(3, 112, 40)
    for r in range(2): A(f'v_or_b32 v{32+r}, 1, v{32+r}')
    if WIDE:
        A('v_mov_b32_dpp v34, v32 quad_perm:[1,1,3,3] row_mask:0xf bank_mask:0xf'); A('v_mov_b32_dpp v35, v33 quad_perm:[1,1,3,3] row_mask:0xf bank_mask:0xf')
        set_exec(0x55555555)
        A(f'buffer_store_dwordx4 v[32:35], v27, {srd("WS")}, s75 offen sc1')
    else:
        A(f'buffer_store_dwordx2 v[32:33], v27, {srd("WS")}, s75 offen sc1')
    dstamp(7, 8); dstamp(8, 13)
    if YTH:
        set_exec(1)
        A(f'buffer_atomic_add v4, v3, {srd("DBG")}, 0 offen offset:128 sc1')
    A('s_branch L_KEND')

    A('L_TG:')
    if not DYN:
        A(f's_mul_i32 s75, s{sX}, 6'); A(f's_add_u32 s75, s75, s{sI}'); A('s_sub_u32 s75, s75, 20')
    wg_common(5, 160)
    A('s_bitcmp1_b32 s75, 0')
    A(f's_cselect_b32 s68, s{SRD["WU"]}, s{SRD["WG"]}'); A(f's_cselect_b32 s69, s{SRD["WU"]+1}, s{SRD["WG"]+1}')
    A(f's_mov_b32 s70, {SIZE["WG"]}'); A('s_mov_b32 s71, 0x20000'); G_SRD = 's[68:71]'
    dma_addr(128, 3072, 6, 7, 8)
    A('s_mul_i32 s72, s76, 160'); A('s_mul_i32 s62, s77, 80'); A('s_add_u32 s72, s72, s62'); A('s_mul_i32 s72, s72, 3072')
    A('s_lshr_b32 s62, s75, 1'); A('s_lshl_b32 s62, s62, 7'); A('s_add_u32 s72, s72, s62')
    A('s_and_b32 s63, s75, 1'); A('s_mul_i32 s63, s63, 3072'); A('s_add_u32 s62, s62, s63'); A(f's_add_u32 s84, s62, {R_HM}')
    if X4:
        A('v_and_b32 v7, 31, v0'); A('v_min_u32 v7, 19, v7')
        A(f's_mul_i32 s62, s{sR}, 160'); A('v_lshl_add_u32 v14, v7, 3, s62')
        A(f'buffer_load_dwordx2 v[24:25], v14, {srd("X")}, 0 offen')
        A('v_lshlrev_b32 v17, 1, v14')
        A('v_lshrrev_b32 v7, 5, v0'); A('v_mul_u32_u24 v7, 2560, v7'); A('v_add_u32 v26, v7, v17')
        A('v_min_u32 v7, 39, v0')
    else:
        A('v_min_u32 v7, 39, v0')
        A(f's_mul_i32 s62, s{sR}, 160'); A('v_lshl_add_u32 v14, v7, 2, s62')
        A(f'buffer_load_dword v28, v14, {srd("X")}, 0 offen')
        A('v_lshlrev_b32 v17, 1, v14')
        A('v_add_u32 v26, 20480, v17')
    A('s_mul_i32 s62, s76, 320'); A('v_lshl_add_u32 v30, v7, 3, s62')
    A('v_lshlrev_b32 v31, 1, v30')
    A('v_lshl_add_u32 v16, v0, 3, s74')
    A('v_lshlrev_b32 v15, 4, v0'); A('v_lshlrev_b32 v9, 2, v0')
    A('v_mov_b32 v29, 0x3acccccd'); A('v_mov_b32 v8, 0x80000000')
    if not DYN: emit_p()
    lds_wait(F_MV, vZ, 7)
    A(f'ds_read_b128 v[20:23], v17 offset:{MODV}' if X4 else f'ds_read_b64 v[20:21], v17 offset:{MODV}')
    A(f'ds_read_b128 v[104:107], v31 offset:{MODV + 2560}'); A(f'ds_read_b128 v[108:111], v31 offset:{MODV + 5120}')
    def g_tr():
        for u in range(5):
            for ct in range(2):
                r = FR + (u * 2 + ct) * 4
                for hh in range(2): A(f'ds_read_b64_tr_b16 v[{r+2*hh}:{r+2*hh+1}], v{10+ct} offset:{(32*u+16*hh)*128}')
    if TG == 'w':
        for r in range(8): A(f'v_mov_b32 v{112+r}, 0')
        A('s_waitcnt vmcnt(0)'); A('s_mov_b32 s73, 0')
    else:
        tail_gate(TG)
        dma_issue(10, G_SRD, 6, 72, 8 * 3072, 73, pace=TDEPTH, pol=TPOL)
        wg_fetch(5, 112)
    if X4: unpack4(120, 24)
    else: unpack2(22, 28)
    stamp(5)
    for k in range(4): A(f's_mov_b32 s{80+k}, {R_Y + 5120*k}')
    lds_wait(F_ODONE, vZ, 7)
    if X4:
        MG = 0x000fffff000fffff
        set_exec(MG)
        A('s_mov_b32 s85, 0xff'); A('s_mov_b32 s63, 0')
        A('L_GP:')
        for g in range(8):
            A(f's_bitcmp1_b32 s85, {g}'); A(f's_cbranch_scc0 L_GPI_{g}')
            A(f's_mov_b32 s62, {R_Y + 5120*g}')
            A(f'buffer_load_dwordx4 v[{32+4*g}:{35+4*g}], v26, {srd("WS")}, s62 offen sc1')
            A(f'L_GPI_{g}:')
        if TG == 'w':
            A('s_cmp_lg_u32 s73, 0'); A('s_cbranch_scc1 L_GFH')
            A(f'ds_read_b32 v7, v3 offset:{CNT_TD}'); A('s_waitcnt lgkmcnt(0)'); A('v_readfirstlane_b32 s62, v7')
            A('s_cmp_lt_u32 s62, 8'); A('s_cbranch_scc1 L_GFH')
            full_exec(); g_tr(); set_exec(MG)
            A('s_mov_b32 s73, 1')
            A('L_GFH:')
        A('s_waitcnt vmcnt(0)')
        for g in range(8):
            q = 32 + 4 * g
            A(f's_bitcmp1_b32 s85, {g}'); A(f's_cbranch_scc0 L_GPC_{g}')
            A(f'v_min3_u32 v7, v{q}, v{q+1}, v{q+2}'); A(f'v_min_u32 v7, v7, v{q+3}')
            A('v_cmp_eq_u32 vcc, 0, v7')
            A(f's_cbranch_vccnz L_GPC_{g}')
            A(f's_bitset0_b32 s85, {g}')
            A(f'L_GPC_{g}:')
        A('s_cmp_eq_u32 s85, 0'); A('s_cbranch_scc1 L_GPD')
        if TG == 'w' and GSLEEP:
            A('s_cmp_lg_u32 s73, 0'); A('s_cbranch_scc1 L_GNS'); A(f's_sleep {GSLEEP}'); A('L_GNS:')
        A('s_add_u32 s63, s63, 1'); A(f's_cmp_lt_u32 s63, {SPIN_MAX}'); A('s_cbranch_scc1 L_GP')
        A('L_GPD:')
        stamp(6)
        tree_add(32, 8)
        half_swap_add(32, 36)
        rbf4(32, 32)
        for h in (0, 2): pk('mul', 32 + h, 32 + h, 20 + h)
        rbf4(32, 32)
        for h in (0, 2): pk('add', 32 + h, 32 + h, 120 + h)
        A('v_cvt_pk_bf16_f32 v40, v32, v33'); A('v_cvt_pk_bf16_f32 v41, v34, v35')
        A(f'ds_write_b64 v14, v[40:41] offset:{X2P}')
    else:
        y_hint(YTH, 'G')
        set_exec((1 << 40) - 1)
        def yld(n):
            A(f'buffer_load_dwordx2 v[{32+2*n}:{33+2*n}], v{17 if n < 8 else 26}, {srd("WS")}, s{80 + (n%8)//2} offen offset:{2560*(n%2)} sc1')
        if not GMASK:
            def ld():
                for n in range(16): yld(n)
            poll(ld, list(range(32, 64)), 7)
        else:
            A('s_mov_b32 s85, 0xff'); A('s_mov_b32 s63, 0')
            A('L_GP:')
            for g in range(8):
                A(f's_bitcmp1_b32 s85, {g}'); A(f's_cbranch_scc0 L_GPI_{g}')
                yld(2 * g); yld(2 * g + 1)
                A(f'L_GPI_{g}:')
            A('s_waitcnt vmcnt(0)')
            for g in range(8):
                q = 32 + 4 * g
                A(f's_bitcmp1_b32 s85, {g}'); A(f's_cbranch_scc0 L_GPC_{g}')
                A(f'v_min3_u32 v7, v{q}, v{q+1}, v{q+2}'); A(f'v_min_u32 v7, v7, v{q+3}')
                A('v_cmp_eq_u32 vcc, 0, v7')
                A(f's_cbranch_vccnz L_GPC_{g}')
                A(f's_bitset0_b32 s85, {g}')
                A(f'L_GPC_{g}:')
            A('s_cmp_eq_u32 s85, 0'); A('s_cbranch_scc1 L_GPD')
            A('s_add_u32 s63, s63, 1'); A(f's_cmp_lt_u32 s63, {SPIN_MAX}'); A('s_cbranch_scc1 L_GP')
            A('L_GPD:')
        stamp(6)
        tree2(32, 16)
        rbf2(32, 32, 36)
        pk('mul', 32, 32, 20)
        rbf2(32, 32, 36)
        pk('add', 32, 32, 22)
        A('v_cvt_pk_bf16_f32 v37, v32, v33')
        A(f'ds_write_b32 v14, v37 offset:{X2P}')
    full_exec()
    A('s_waitcnt lgkmcnt(0)')
    barrier()
    A(f'ds_read_b128 v[32:35], v15 offset:{X2P}'); A(f'ds_read_b32 v36, v9 offset:{X2P+1024}')
    A(f'ds_read_b64 v[38:39], v30 offset:{X2P}')
    A(f's_cmp_lg_u32 s{sR}, s75'); A('s_cbranch_scc1 L_TG_NX')
    A(f's_mov_b32 s62, {R_X2}')
    if X4:
        set_exec(0xfffff)
        for r in (40, 41): A(f'v_cmp_eq_u32 vcc, 0, v{r}'); A(f'v_cndmask_b32 v{r}, v{r}, v8, vcc')
        A(f'buffer_store_dwordx2 v[40:41], v14, {srd("WS")}, s62 offen sc1')
    else:
        set_exec((1 << 40) - 1)
        A('v_cmp_eq_u32 vcc, 0, v37'); A('v_cndmask_b32 v37, v37, v8, vcc')
        A(f'buffer_store_dword v37, v14, {srd("WS")}, s62 offen sc1')
    full_exec()
    A('L_TG_NX:')
    dstamp_n(9, 0, 8)
    A('s_waitcnt lgkmcnt(1)')
    ln_stats_pk([32, 33, 34, 35, 36], 48, 29)
    A('s_waitcnt lgkmcnt(0)')
    unpack4(44, 38)
    ln_apply_pk(44, 48)
    for h in (0, 2): pk('mul', 44 + h, 44 + h, 108 + h)
    rbf4(44, 44)
    for h in (0, 2): pk('add', 44 + h, 44 + h, 104 + h)
    A('v_cvt_pk_bf16_f32 v36, v44, v45'); A('v_cvt_pk_bf16_f32 v37, v46, v47')
    A('ds_write_b64 v16, v[36:37]')
    if TG == 'w':
        A('s_cmp_lg_u32 s73, 0'); A('s_cbranch_scc1 L_GFF')
        lds_wait(CNT_TD, vZ, 7, cmp_val=8)
        g_tr()
        A('L_GFF:')
    wg_mfma(5, 112, 40)
    A('v_cvt_pk_bf16_f32 v36, v32, v33')
    A('v_cmp_eq_u32 vcc, 0, v36'); A('v_cndmask_b32 v36, v36, v8, vcc')
    if WIDE:
        for k in (1, 2, 3): A(f'v_mov_b32_dpp v{36+k}, v36 quad_perm:[{k},{k},{k},{k}] row_mask:0xf bank_mask:0xf')
        set_exec(0x11111111)
        A(f'buffer_store_dwordx4 v[36:39], v9, {srd("WS")}, s84 offen sc1')
    else:
        A(f'buffer_store_dword v36, v9, {srd("WS")}, s84 offen sc1')
    dstamp_n(10, 0)
    A('s_branch L_KEND')

    A('L_TD:')
    d_index()
    dma_addr(32, 1280, 6, 7, 8)
    A(f's_mul_i32 s77, s{sR}, {192 * 1280}'); A('s_lshl_b32 s62, s75, 5'); A('s_add_u32 s77, s77, s62')
    A(f's_mul_i32 s78, s{sR}, 6144'); A(f's_add_u32 s78, s78, {LDS_T}')
    A('v_lshl_add_u32 v10, v0, 3, s78')
    A('v_and_b32 v14, 7, v0'); A('v_lshlrev_b32 v9, 3, v14')
    A(f's_mul_i32 s62, s{sH}, 6144'); A('v_mul_u32_u24 v11, 768, v14'); A('v_add_u32 v11, s62, v11')
    A('s_lshl_b32 s62, s75, 5'); A('v_lshl_add_u32 v14, v14, 2, s62')
    A(f's_mul_i32 s62, s{sR}, 384'); A('v_lshl_add_u32 v17, v0, 3, s62')
    A(f'v_add_u32 v18, {R_X2 - R_HM}, v14')
    A('v_lshrrev_b32 v28, 4, v0'); A('v_lshlrev_b32 v28, 4, v28'); A(f's_lshl_b32 s62, s{sR}, 6'); A('v_add_u32 v28, s62, v28')
    A(f's_lshl_b32 s74, s{sR}, 9'); A(f's_add_u32 s74, s74, {STG}')
    A('v_lshl_add_u32 v16, v0, 3, s74')
    A('v_lshrrev_b32 v19, 4, v0'); A('v_lshl_add_u32 v19, v19, 3, s74')
    emit_p()
    lds_wait(F_MV, vZ, 7)
    A(f'ds_read_b64 v[20:21], v9 offset:{MODV}')
    if TD == 't':
        A(f's_cmp_lg_u32 s{sR}, 0'); A('s_cbranch_scc1 L_TD_W')
        lds_wait(F_ODONE, vZ, 7)
        set_exec(0xff)
        poll(lambda: A(f'buffer_load_dword v12, v11, {srd("WS")}, s64 offen sc1'), [12], 7, regionAB=R_O, sleep=1)
        full_exec()
        lds_set(CNT_TD)
        A('L_TD_W:')
        lds_wait(CNT_TD, vZ, 7)
    elif TD == 's':
        lds_wait(CNT_TD, vZ, 7, cmp_val=2)
    else:
        tail_gate(TD)
    if TD != 's': dma_issue(6, 'WD', 6, 77, 32 * 1280, 78, pace=TDEPTH, pol=TPOL)
    for r in range(4): A(f'v_mov_b32 v{24+r}, 0')
    A('s_waitcnt vmcnt(0)')
    for u in range(6):
        r = FR + u * 4
        for hh in range(2): A(f'ds_read_b64_tr_b16 v[{r+2*hh}:{r+2*hh+1}], v10 offset:{(32*u+16*hh)*32}')
    stamp(5)
    lds_wait(F_ODONE, vZ, 7)
    y_hint(160 if YTH else 0, 'D')
    A(f's_mov_b32 s64, {R_HM}')
    set_exec((1 << 48) - 1)
    def ld():
        A(f'buffer_load_dwordx2 v[32:33], v17, {srd("WS")}, s64 offen sc1')
        A(f'buffer_load_dwordx2 v[34:35], v17, {srd("WS")}, s64 offen offset:3072 sc1')
        A(f'buffer_load_dword v36, v18, {srd("WS")}, s64 offen sc1')
    poll(ld, [32, 33, 34, 35, 36], 7, sleep=DSLEEP)
    stamp(6)
    unpack4(40, 32); unpack4(44, 34)
    for h in (0, 2): pk('mul', 40 + h, 40 + h, 44 + h)
    A('v_cvt_pk_bf16_f32 v32, v40, v41'); A('v_cvt_pk_bf16_f32 v33, v42, v43')
    A('ds_write_b64 v16, v[32:33]')
    full_exec()
    for u in range(6): A(f'ds_read2_b64 v[{40+4*u}:{43+4*u}], v19 offset0:{8*u} offset1:{8*u+4}')
    unpack2(38, 36)
    for u in range(6):
        r = FR + u * 4
        A(f's_waitcnt lgkmcnt({5-u})')
        A(f'v_mfma_f32_16x16x32_bf16 v[24:27], v[{r}:{r+3}], v[{40+4*u}:{43+4*u}], v[24:27]')
    set_exec(0x0001000100010001)
    A(f'ds_write_b128 v28, v[24:27] offset:{TRED}')
    A('s_waitcnt lgkmcnt(0)')
    barrier()
    A(f's_cmp_lg_u32 s{sR}, 0'); A('s_cbranch_scc1 L_KEND')
    set_exec(0xff)
    for k in range(8): A(f'ds_read_b64 v[{64+2*k}:{65+2*k}], v9 offset:{TRED + 64*k}')
    A('s_waitcnt lgkmcnt(0)')
    tree2(64, 8)
    rbf2(64, 64, 68)
    pk('mul', 64, 64, 20)
    rbf2(64, 64, 68)
    pk('add', 64, 64, 38)
    A('v_cvt_pk_bf16_f32 v68, v64, v65')
    A(f'buffer_store_dword v68, v14, {srd("OUT")}, 0 offen')
    dstamp_n(11, 0); dstamp_n(12, 5); dstamp_n(13, 26); dstamp_n(14, 31); dstamp_n(15, 38)
    A('L_KEND:')
    dry_check('L_DRYRET')
    stamp(7)
    flush_stamps()
    A('L_END:')
    A('s_endpgm')
    A('.section .rodata,"a"'); A('.p2align 6'); A(f'.amdhsa_kernel {NAME}_kernel')
    A('  .amdhsa_next_free_vgpr 128'); A('  .amdhsa_next_free_sgpr 102'); A('  .amdhsa_accum_offset 128')
    A('  .amdhsa_group_segment_fixed_size 0'); A('  .amdhsa_kernarg_size 112'); A('  .amdhsa_user_sgpr_count 2')
    A('  .amdhsa_user_sgpr_kernarg_segment_ptr 1'); A('  .amdhsa_system_sgpr_workgroup_id_x 1')
    A('  .amdhsa_float_denorm_mode_32 3'); A('  .amdhsa_float_denorm_mode_16_64 3')
    A('.end_amdhsa_kernel')
    return A.finish()

if __name__ == '__main__':
    import argparse
    ap = argparse.ArgumentParser()
    ap.add_argument('-o', default='cdna_kernels/' + NAME + '.s')
    ap.add_argument('--stamps', action='store_true')
    ap.add_argument('--cfg', default='')
    a = ap.parse_args()
    open(a.o, 'w').write(gen(stamps=a.stamps, **eval('dict(' + a.cfg + ')')))
```

```python
import sys
from asmfw import Asm
NAME = 'adaLN_cond__gqa_block_cached__glu_gated_bilinear__decode'
HEADER_COMMENT = open('cdna_kernels/' + NAME + '.s.ref').read().split('; Override launch')[0]

R_MOD = 0xE0000; R_Y = 0x00000; R_HM = 0x10000; R_X2 = 0x12000; R_CLR = 0x18000; R_MF = 0x1A000
R_Q = (0x20000, 0x40000); R_ST = (0x60000, 0x64000); R_O = (0x70000, 0xA0000)
R_DBG = 0x200000
F_N, F_H, F_Q, F_ML, F_CLR, CNT_O, F_ODONE, CNT_FREE, CNT_VD, F_MV, CNT_TD, F_A, CNT_B, F_YH, F_TK = 0, 4, 8, 12, 16, 20, 24, 28, 32, 36, 40, 44, 48, 52, 56
KISS, VISS, PRDY, ML = 64, 96, 128, 192
SC, HV, QV, PD, OACC = 0x100, 0x280, 0x380, 0x800, 0x1000
X2P, TRED, STG, MODV, RED = 0x1400, 0x1A00, 0x2000, 0x3000, 0x1000
ONES = 0x3f803f80
LDS_A, LDS_B, LDS_T = 0x6000, 0xB000, 0x13000
LDS_SIZE = 0x27000
SRD = dict(X=4, K=8, V=12, WQ=16, WO=20, WG=24, WU=28, WD=32, C=36, WMOD=40, OUT=44, DBG=48, WS=52)
KARG = dict(X=0, K=8, V=16, WQ=24, WO=32, WG=48, WU=56, WD=64, C=72, WMOD=80, OUT=88, DBG=96, WS=104)
SIZE = dict(X=1280, K=50331648, V=50331648, WQ=7864320, WO=7864320, WG=1966080, WU=1966080, WD=1966080, C=1280,
            WMOD=4915200, OUT=1280, DBG=256, WS=268435456)
def srd(n): return f's[{SRD[n]}:{SRD[n]+3}]'
sW, sX, sI, sH, sS, sR = 56, 57, 58, 59, 60, 61
sN, sLIVE = 79, 3
LOG2E = 0x3fb8aa3b
SCALE = 0x3d93cd3a
SPIN_MAX = 300000

def gen(DK=3, DV=4, VISS_AT=24, stamps=False, sleep_poll=1, NSLEEP=4, dry=False, TW='v', TG='v', TD='o', TDEPTH=3, TPOL='nt', VFREE=0, diagV=False, VADAPT=True, KADAPT=True, SOFT=1, FA_AT=10, FB_AT=8, KW='b', YTH=0, KVPOL='nt', FPOL='nt', dbg=False, WV=False, GMASK=True, X4=True, DPACE=4, PRET=False, DVF=0, DKF=0, WIDE=True, DSLEEP=0, DYN=False, GSLEEP=1, GWG=True, DV0=0, KA0=12, AB='AB'):
    A = Asm()
    vZ, vONE, vPF = 3, 4, 5
    def stamp(idx):
        if stamps: A(f's_memrealtime s[{86 + 2*idx}:{87 + 2*idx}]')
    def flush_stamps():
        if not stamps: return
        A('s_waitcnt lgkmcnt(0)')
        A(f's_lshl_b32 s62, s2, 4'); A(f's_add_u32 s62, s62, s{sW}'); A('s_lshl_b32 s62, s62, 5'); A(f's_add_u32 s62, s62, {R_DBG}')
        A('s_mov_b64 exec, 1')
        for k in range(8): A(f'v_mov_b32 v{8+k}, s{86+2*k}')
        A('v_mov_b32 v1, 0')
        A(f'buffer_store_dwordx4 v[8:11], v1, {srd("WS")}, s62 offen')
        A(f'buffer_store_dwordx4 v[12:15], v1, {srd("WS")}, s62 offen offset:16')
    def dstamp(slot, wg, wave=None, vt=(1, 125)):
        if not dbg: return
        L = A.label('DS')
        A(f's_cmp_lg_u32 s2, {wg}'); A(f's_cbranch_scc1 {L}')
        if wave is not None: A(f's_cmp_lg_u32 s{sW}, {wave}'); A(f's_cbranch_scc1 {L}')
        A('s_mov_b64 s[98:99], exec'); A('s_mov_b64 exec, 1')
        A('s_memrealtime s[96:97]')
        A(f'ds_read_b32 v{vt[1]}, v3 offset:{F_N}')
        A('s_waitcnt lgkmcnt(0)')
        A(f'v_sub_u32 v{vt[1]}, s96, v{vt[1]}')
        A(f'buffer_store_dword v{vt[1]}, v3, {srd("DBG")}, 0 offen offset:{4*slot} sc1')
        A('s_mov_b64 exec, s[98:99]')
        A(f'{L}:')
    def dstamp_n(slot, n, wave=None):
        if not dbg: return
        L = A.label('DN')
        A(f's_cmp_lg_u32 s75, {n}'); A(f's_cbranch_scc1 {L}')
        if wave is not None: A(f's_cmp_lg_u32 s{sW}, {wave}'); A(f's_cbranch_scc1 {L}')
        A('s_mov_b64 s[98:99], exec'); A('s_mov_b64 exec, 1')
        A('s_memrealtime s[96:97]')
        A(f'ds_read_b32 v125, v3 offset:{F_N}')
        A('s_waitcnt lgkmcnt(0)')
        A('v_sub_u32 v125, s96, v125')
        A(f'buffer_store_dword v125, v3, {srd("DBG")}, 0 offen offset:{4*slot} sc1')
        A('s_mov_b64 exec, s[98:99]')
        A(f'{L}:')
    def set_exec(mask):
        lo, hi = mask & 0xffffffff, mask >> 32
        for nm, m in (('exec_lo', lo), ('exec_hi', hi)):
            if m == 0xffffffff: A(f's_mov_b32 {nm}, s{sLIVE}')
            elif m == 0: A(f's_mov_b32 {nm}, 0')
            else: A(f's_and_b32 {nm}, s{sLIVE}, {m}')
    def full_exec(): set_exec((1 << 64) - 1)
    def barrier():
        L = A.label('BR')
        A(f's_cbranch_execz {L}'); A('s_barrier'); A(f'{L}:')
    def lds_wait(off, vz, vt, cmp_val=None):
        L = A.label('LW'); D = A.label('LWD')
        A('s_mov_b32 s63, 0')
        A(f's_cbranch_execz {D}')
        A(f'{L}:')
        A(f'ds_read_b32 v{vt}, v{vz} offset:{off}')
        A('s_waitcnt lgkmcnt(0)')
        A(f'v_readfirstlane_b32 s62, v{vt}')
        if cmp_val is None: A('s_cmp_lg_u32 s62, 0')
        else: A(f's_cmp_ge_u32 s62, {cmp_val}')
        A(f's_cbranch_scc1 {D}')
        A('s_sleep 1')
        A('s_add_u32 s63, s63, 1'); A(f's_cmp_lt_u32 s63, {SPIN_MAX * 8}'); A(f's_cbranch_scc1 {L}')
        A(f'{D}:')
    def lds_set(off, vz=vZ): A(f'ds_write_b32 v{vz}, v{vONE} offset:{off}')
    def lds_inc(off):
        set_exec(1); A(f'ds_add_u32 v{vZ}, v{vONE} offset:{off}'); full_exec()
    def poll(loads, regs, vt, regionAB=None, sleep=None, tags=(), vt2=None):
        L = A.label('PL'); D = A.label('PD')
        A('s_mov_b32 s63, 0')
        A(f'{L}:')
        if regionAB and AB == 'B':
            A(f's_mov_b32 s64, {regionAB[1]}')
        elif regionAB:
            m = 7 if AB == 'AB' else 1
            A(f's_and_b32 s62, s63, {m}'); A(f's_cmp_eq_u32 s62, {m}')
            A(f's_mov_b32 s64, {regionAB[0]}'); A(f's_cselect_b32 s64, {regionAB[1]}, s64')
        loads()
        A('s_waitcnt vmcnt(0)')
        r = list(regs); first = True
        while r:
            if first:
                if len(r) >= 3: A(f'v_min3_u32 v{vt}, v{r[0]}, v{r[1]}, v{r[2]}'); r = r[3:]
                elif len(r) == 2: A(f'v_min_u32 v{vt}, v{r[0]}, v{r[1]}'); r = []
                else: A(f'v_mov_b32 v{vt}, v{r[0]}'); r = []
                first = False
            elif len(r) >= 2: A(f'v_min3_u32 v{vt}, v{vt}, v{r[0]}, v{r[1]}'); r = r[2:]
            else: A(f'v_min_u32 v{vt}, v{vt}, v{r[0]}'); r = []
        if regs: A(f'v_cmp_eq_u32 vcc, 0, v{vt}')
        if tags:
            tg = list(tags)
            x = vt2 if regs else vt
            A(f'v_xor_b32 v{x}, s{sN}, v{tg[0]}')
            for tr in tg[1:]: A(f'v_xor_b32 v{tr}, s{sN}, v{tr}')
            rest = tg[1:]
            while rest:
                if len(rest) >= 2: A(f'v_or3_b32 v{x}, v{x}, v{rest[0]}, v{rest[1]}'); rest = rest[2:]
                else: A(f'v_or_b32 v{x}, v{x}, v{rest[0]}'); rest = []
            if regs: A(f'v_cmp_ne_u32 s[82:83], 0, v{x}'); A('s_or_b64 vcc, vcc, s[82:83]')
            else: A(f'v_cmp_ne_u32 vcc, 0, v{x}')
        A(f's_cbranch_vccz {D}')
        sl = sleep_poll if sleep is None else sleep
        if sl: A(f's_sleep {sl}')
        A('s_add_u32 s63, s63, 1'); A(f's_cmp_lt_u32 s63, {SPIN_MAX}'); A(f's_cbranch_scc1 {L}')
        A(f'{D}:')
    def rbf(dst, src):
        A(f'v_cvt_pk_bf16_f32 v{dst}, v{src}, v{src}')
        A(f'v_and_b32 v{dst}, 0xffff0000, v{dst}')
    def rbf4(dst, src):
        for h in range(2):
            A(f'v_cvt_pk_bf16_f32 v{dst+2*h+1}, v{src+2*h}, v{src+2*h+1}')
        for h in range(2):
            A(f'v_lshlrev_b32 v{dst+2*h}, 16, v{dst+2*h+1}')
            A(f'v_and_b32 v{dst+2*h+1}, 0xffff0000, v{dst+2*h+1}')
    def allreduce(regs, op, tmp):
        for pat in ('quad_perm:[1,0,3,2]', 'quad_perm:[2,3,0,1]', 'row_half_mirror', 'row_mirror'):
            for r in regs: A(f'{op}_dpp v{r}, v{r}, v{r} {pat} row_mask:0xf bank_mask:0xf')
        for sw in ('v_permlane16_swap_b32', 'v_permlane32_swap_b32'):
            for r, t in zip(regs, tmp): A(f'v_mov_b32 v{t}, v{r}')
            for r, t in zip(regs, tmp): A(f'{sw} v{r}, v{t}')
            for r, t in zip(regs, tmp): A(f'{op} v{r}, v{r}, v{t}')
    def reduce_sgpr(regs, op, sdst):
        for pat in ('quad_perm:[1,0,3,2]', 'quad_perm:[2,3,0,1]', 'row_half_mirror', 'row_mirror'):
            for r in regs: A(f'{op}_dpp v{r}, v{r}, v{r} {pat} row_mask:0xf bank_mask:0xf')
        for r in regs: A(f'{op}_dpp v{r}, v{r}, v{r} row_bcast:15 row_mask:0xa bank_mask:0xf')
        for r in regs: A(f'{op}_dpp v{r}, v{r}, v{r} row_bcast:31 row_mask:0xc bank_mask:0xf')
        for r, sd in zip(regs, sdst): A(f'v_readlane_b32 s{sd}, v{r}, 63')
    def unpack2(dst, src):
        A(f'v_lshlrev_b32 v{dst}, 16, v{src}'); A(f'v_and_b32 v{dst+1}, 0xffff0000, v{src}')
    def rbf2(dst, src, t):
        A(f'v_cvt_pk_bf16_f32 v{t}, v{src}, v{src+1}'); unpack2(dst, t)
    def pk(op, d, a, b, bcast=False, negb=False):
        m = ''
        if bcast: m += ' op_sel_hi:[1,0]'
        if negb: m += ' neg_lo:[0,1] neg_hi:[0,1]'
        A(f'v_pk_{op}_f32 v[{d}:{d+1}], v[{a}:{a+1}], v[{b}:{b+1}]{m}')
    def tree2(base, n):
        step = 1
        while step < n:
            for k in range(0, n, 2 * step): pk('add', base + 2 * k, base + 2 * k, base + 2 * (k + step))
            step *= 2
    def ln_stats_pk(xs, vm, vinv):
        a, b = vm, vm + 1
        A(f's_mov_b32 s62, {ONES}')
        for k, r in enumerate(xs):
            A(f'v_dot2_f32_bf16 v{a}, v{r}, s62, ' + ('0' if k == 0 else f'v{a}'))
            A(f'v_dot2_f32_bf16 v{b}, v{r}, v{r}, ' + ('0' if k == 0 else f'v{b}'))
        reduce_sgpr([a, b], 'v_add_f32', [62, 63])
        A(f'v_mul_f32 v{a}, s62, v{vinv}'); A(f'v_mul_f32 v{b}, s63, v{vinv}')
        A(f'v_fma_f32 v{b}, -v{a}, v{a}, v{b}')
        A(f'v_max_f32 v{b}, 0, v{b}')
        rbf2(a, a, vm + 3)
        A(f'v_add_f32 v{b}, 0x3727c5ac, v{b}')
        rbf(b, b)
        A(f'v_sqrt_f32 v{b}, v{b}')
        rbf(b, b)
        A(f'v_rcp_f32 v{vm+2}, v{b}')
    def ln_apply_pk(b4, vm):
        for h in (0, 2): pk('add', b4 + h, b4 + h, vm, bcast=True, negb=True)
        rbf4(b4, b4)
        for h in (0, 2): pk('mul', b4 + h, b4 + h, vm + 2, bcast=True)
        rbf4(b4, b4)
    def tr_addr(RS, vdst, vt0, vt1, base_sgpr=None, base_imm=0):
        T = RS // 32
        A(f'v_lshrrev_b32 v{vt0}, 2, v0'); A(f'v_mul_u32_u24 v{vt0}, {RS}, v{vt0}')
        A(f'v_and_b32 v{vt1}, 3, v0'); A(f'v_lshl_add_u32 v{vt0}, v{vt1}, 3, v{vt0}')
        if base_sgpr is not None: A(f'v_add_u32 v{vt0}, s{base_sgpr}, v{vt0}')
        if base_imm: A(f'v_add_u32 v{vt0}, {base_imm}, v{vt0}')
        if RS == 128: A(f'v_bfe_u32 v{vt1}, v0, 3, 2')
        elif RS == 64: A(f'v_bfe_u32 v{vt1}, v0, 4, 1')
        for ct in range(T):
            A(f'v_xor_b32 v{vdst+ct}, {ct}, v{vt1}')
            A(f'v_lshl_add_u32 v{vdst+ct}, v{vdst+ct}, 5, v{vt0}')
    def dma_addr(RS, rowstride, vdst, vt0, vt1):
        cpr = RS // 16; lg = cpr.bit_length() - 1
        A(f'v_lshrrev_b32 v{vt0}, {lg}, v0'); A(f'v_and_b32 v{vt1}, {cpr - 1}, v0')
        if RS == 128:
            A(f'v_bfe_u32 v{vdst}, v{vt0}, 1, 2'); A(f'v_lshlrev_b32 v{vdst}, 1, v{vdst}'); A(f'v_xor_b32 v{vt1}, v{vt1}, v{vdst}')
        elif RS == 64:
            A(f'v_bfe_u32 v{vdst}, v{vt0}, 2, 1'); A(f'v_lshlrev_b32 v{vdst}, 1, v{vdst}'); A(f'v_xor_b32 v{vt1}, v{vt1}, v{vdst}')
        A(f'v_mul_u32_u24 v{vt0}, {rowstride}, v{vt0}')
        A(f'v_lshl_add_u32 v{vdst}, v{vt1}, 4, v{vt0}')
    def dma_issue(n, sr, vaddr, s_goff, gstep, s_lds, lds_imm=0, pace=0, pol='nt'):
        sr = srd(sr) if sr in SRD else sr
        L = A.label('DS')
        A(f's_cbranch_execz {L}')
        for k in range(n):
            if s_lds is None: A(f's_mov_b32 m0, {lds_imm + 1024 * k}')
            else: A(f's_add_u32 m0, s{s_lds}, {lds_imm + 1024 * k}')
            A(f'buffer_load_dwordx4 v{vaddr}, {sr}, s{s_goff} offen {pol} lds')
            if k + 1 < n: A(f's_add_u32 s{s_goff}, s{s_goff}, {gstep}')
            if pace and k + 1 >= pace and k + 1 < n: A(f's_waitcnt vmcnt({pace-1})')
        A(f'{L}:')
    def tail_gate(mode):
        if mode == 'v': lds_wait(VISS, vZ, 7, cmp_val=6)
        elif mode == 'o': lds_wait(F_ODONE, vZ, 7)
    def y_hint(th, tag):
        if not th: return
        A(f's_cmp_lg_u32 s{sR}, 0'); A(f's_cbranch_scc1 L_YH_{tag}')
        L = A.label('YH'); D = A.label('YHD')
        set_exec(1)
        A('s_mov_b32 s63, 0')
        A(f'{L}:')
        A(f'buffer_load_dword v7, v3, {srd("DBG")}, 0 offen offset:128 sc1')
        A('s_waitcnt vmcnt(0)')
        A('v_readfirstlane_b32 s62, v7'); A(f's_cmp_ge_u32 s62, {th}'); A(f's_cbranch_scc1 {D}')
        A('s_sleep 2')
        A('s_add_u32 s63, s63, 1'); A(f's_cmp_lt_u32 s63, {SPIN_MAX}'); A(f's_cbranch_scc1 {L}')
        A(f'{D}:')
        full_exec()
        lds_set(F_YH)
        A(f'L_YH_{tag}:')
        lds_wait(F_YH, vZ, 7)
    def merge4(acc, dst):
        for r in range(4): A(f'v_mov_b32 v{dst+r}, v{acc+r}')
        for ct in (1, 2, 3):
            m = 0x00010001 << ct
            A(f's_mov_b32 s80, {m}'); A(f's_mov_b32 s81, {m}')
            for r in range(4): A(f'v_cndmask_b32 v{dst+r}, v{dst+r}, v{acc+4*ct+r}, s[80:81]')
    def mod_addr(vdst, vcol, vt):
        A(f'v_lshrrev_b32 v{vt}, 6, v{vcol}'); A(f'v_lshlrev_b32 v{vt}, 11, v{vt}')
        A(f'v_and_b32 v{vdst}, 63, v{vcol}'); A(f'v_lshl_add_u32 v{vdst}, v{vdst}, 2, v{vt}')
    def mod_loads(vaddr, quads, nks, so='s64'):
        for ks in range(nks):
            for hf in range(2):
                q = quads[2 * ks + hf]
                A(f'buffer_load_dwordx4 v[{q}:{q+3}], v{vaddr}, {srd("WS")}, {so} offen offset:{512*ks+256*hf} sc1')
    def mod_tags(quads): return [q + 1 for q in quads] + [q + 3 for q in quads]
    def mod_sum(dst, quads, nks):
        for hf in range(2):
            for e in range(2):
                r = [quads[2 * ks + hf] + 2 * e for ks in range(nks)]
                d = dst + 2 * hf + e
                if nks == 2: A(f'v_add_f32 v{d}, v{r[0]}, v{r[1]}')
                else:
                    A(f'v_add_f32 v{r[0]}, v{r[0]}, v{r[1]}'); A(f'v_add_f32 v{r[2]}, v{r[2]}, v{r[3]}'); A(f'v_add_f32 v{d}, v{r[0]}, v{r[2]}')
    def get_nonce(vt):
        lds_wait(F_N, vZ, vt); A(f's_mov_b32 s{sN}, s62')
    def tree_add(base, n):
        step = 1
        while step < n:
            for k in range(0, n, 2 * step):
                for h2 in range(2):
                    a = base + 4 * k + 2 * h2; b = base + 4 * (k + step) + 2 * h2
                    A(f'v_pk_add_f32 v[{a}:{a+1}], v[{a}:{a+1}], v[{b}:{b+1}]')
            step *= 2
    def half_swap_add(base, tmp):
        for r in range(4): A(f'v_mov_b32 v{tmp+r}, v{base+r}')
        for r in range(4): A(f'v_permlane32_swap_b32 v{base+r}, v{tmp+r}')
        for h2 in range(2): A(f'v_pk_add_f32 v[{base+2*h2}:{base+1+2*h2}], v[{base+2*h2}:{base+1+2*h2}], v[{tmp+2*h2}:{tmp+1+2*h2}]')
    def fdiv(dst, num, den, t0, t1, t2, t3):
        A(f'v_rcp_f32 v{t0}, v{den}')
        A(f'v_mul_f32 v{t1}, v{num}, v{t0}')
        A(f'v_fma_f32 v{t2}, -v{t1}, v{den}, v{num}')
        A(f'v_fma_f32 v{t3}, v{t2}, v{t0}, v{t1}')
        A(f'v_cmp_o_f32 vcc, v{t3}, v{t3}')
        A(f'v_cndmask_b32 v{dst}, v{t1}, v{t3}, vcc')
    def ln_stats(xs, vm, vs, t0, t1):
        A(f'v_readfirstlane_b32 s62, v{xs[0]}')
        for r in xs: A(f'v_subrev_f32 v{r}, s62, v{r}')
        A(f'v_add_f32 v{vm}, v{xs[0]}, v{xs[1]}'); A(f'v_mul_f32 v{vs}, v{xs[0]}, v{xs[0]}')
        for k, r in enumerate(xs):
            if k >= 2: A(f'v_add_f32 v{vm}, v{vm}, v{r}')
            if k >= 1: A(f'v_fmac_f32 v{vs}, v{r}, v{r}')
        allreduce([vm, vs], 'v_add_f32', [t0, t1])
        inv = 0x3acccccd
        A(f'v_mul_f32 v{vm}, {inv}, v{vm}'); A(f'v_mul_f32 v{vs}, {inv}, v{vs}')
        A(f'v_fma_f32 v{vs}, -v{vm}, v{vm}, v{vs}')
        A(f'v_max_f32 v{vs}, 0, v{vs}')
        A(f'v_add_f32 v{vm}, s62, v{vm}')
        rbf(vm, vm); rbf(vs, vs)
        A(f'v_add_f32 v{vs}, 0x3727c5ac, v{vs}')
        rbf(vs, vs)
        A(f'v_sqrt_f32 v{vs}, v{vs}')
        rbf(vs, vs)
        A(f'v_rcp_f32 v{vs}, v{vs}')
    def ln_apply(b4, vm, vs):
        for r in range(4): A(f'v_sub_f32 v{b4+r}, v{b4+r}, v{vm}')
        rbf4(b4, b4)
        for r in range(4): A(f'v_mul_f32 v{b4+r}, v{b4+r}, v{vs}')
        rbf4(b4, b4)
    def unpack4(dst, src):
        A(f'v_lshlrev_b32 v{dst}, 16, v{src}'); A(f'v_and_b32 v{dst+1}, 0xffff0000, v{src}')
        A(f'v_lshlrev_b32 v{dst+2}, 16, v{src+1}'); A(f'v_and_b32 v{dst+3}, 0xffff0000, v{src+1}')
    def dry_check(ret):
        A(f's_cbranch_execz {ret}')
    def d_index():
        A(f's_lshl_b32 s75, s{sX}, 2'); A(f's_add_u32 s75, s75, s{sI}'); A('s_sub_u32 s75, s75, 26')
        A(f's_lshl_b32 s62, s{sX}, 1'); A(f's_add_u32 s62, s62, s{sI}'); A('s_add_u32 s62, s62, 2')
        A(f's_cmp_ge_u32 s{sI}, 30'); A('s_cselect_b32 s75, s62, s75')
    def branch_if_no_role(label):
        L = A.label('NR')
        A(f's_cmp_lt_u32 s{sI}, 30'); A(f's_cbranch_scc1 {L}')
        A(f's_cmp_ge_u32 s{sX}, 4'); A(f's_cbranch_scc1 {label}')
        A(f'{L}:')
    def branch_if_not_gcand(label):
        L = A.label('GC')
        A(f's_cmp_lt_u32 s{sI}, 20'); A(f's_cbranch_scc1 {label}')
        A(f's_cmp_lt_u32 s{sI}, 26'); A(f's_cbranch_scc1 {L}')
        A(f's_cmp_lt_u32 s{sI}, 30'); A(f's_cbranch_scc1 {label}')
        A(f's_cmp_lt_u32 s{sX}, 4'); A(f's_cbranch_scc1 {label}')
        A(f'{L}:')
    def kb_pi():
        A(f's_mul_i32 s68, s{sI}, 43'); A('s_lshr_b32 s68, s68, 8'); A('s_mul_i32 s62, s68, 6'); A(f's_sub_u32 s69, s{sI}, s62')

    A(HEADER_COMMENT.rstrip())
    A(f'; @launch grid=(256,1,1) block=(1024,1,1) lds={LDS_SIZE}')
    A('.amdgcn_target "amdgcn-amd-amdhsa--gfx950"')
    A('.text'); A(f'.globl {NAME}_kernel'); A('.p2align 8'); A(f'.type {NAME}_kernel,@function'); A(f'{NAME}_kernel:')
    for n in ('K', 'WMOD', 'WQ', 'WS', 'C', 'X', 'V', 'DBG', 'WO', 'WG', 'WU', 'WD', 'OUT'):
        A(f's_load_dwordx2 s[{SRD[n]}:{SRD[n]+1}], s[0:1], {KARG[n]}')
    if stamps:
        for k in range(1, 8): A(f's_mov_b32 s{86+2*k}, 0')
    stamp(0)
    A('v_lshrrev_b32 v1, 6, v0'); A('v_and_b32 v0, 63, v0')
    A(f'v_readfirstlane_b32 s{sW}, v1')
    for n in SRD:
        A(f's_mov_b32 s{SRD[n]+2}, {SIZE[n]}'); A(f's_mov_b32 s{SRD[n]+3}, 0x20000')
    A(f's_mov_b32 s{sLIVE}, -1'); A(f's_mov_b32 s{sN}, 0')
    A('s_cmp_ge_u32 s2, 256'); A('s_cbranch_scc1 L_END')
    A(f's_and_b32 s{sX}, s2, 7'); A(f's_lshr_b32 s{sI}, s2, 3')
    A(f's_lshr_b32 s{sH}, s{sI}, 3'); A(f's_lshl_b32 s62, s{sX}, 2'); A(f's_add_u32 s{sH}, s{sH}, s62')
    A(f's_and_b32 s{sS}, s{sI}, 7'); A(f's_and_b32 s{sR}, s{sW}, 7')
    A('v_lshrrev_b32 v1, 3, v0'); A('v_mul_u32_u24 v1, 1536, v1'); A('v_and_b32 v2, 7, v0'); A('v_lshl_add_u32 v2, v2, 4, v1')
    A('v_mov_b32 v3, 0'); A('v_mov_b32 v4, 1')
    A(f's_lshl_b32 s67, s{sH}, 12'); A(f's_lshl_b32 s62, s{sS}, 9'); A('s_add_u32 s67, s67, s62'); A('s_mul_i32 s67, s67, 384')
    A(f's_mul_i32 s65, s{sR}, 24576'); A('s_add_u32 s65, s65, s67'); A('s_add_u32 s66, s65, 12288')
    A(f's_lshl_b32 s62, s{sR}, 2'); A('v_mov_b32 v5, s62')
    A('s_waitcnt lgkmcnt(0)')
    A(f's_cmp_ge_u32 s{sW}, 8'); A('s_cbranch_scc1 L_KWAVE')
    A(f's_cmp_eq_u32 s{sR}, 2'); A('s_cbranch_scc1 L_F2')
    A(f's_cmp_ge_u32 s{sR}, 3'); A('s_cbranch_scc1 L_F3')

    kb_pi()
    A(f's_lshl_b32 s71, s{sR}, 14'); A(f's_add_u32 s71, s71, {LDS_B}')
    A('v_lshlrev_b32 v7, 2, v0')
    for j in range(5): A(f'buffer_load_dword v{10+j}, v7, {srd("X")}, 0 offen offset:{256*j}')
    A('v_and_b32 v8, 31, v0'); A('v_lshlrev_b32 v8, 3, v8'); A('s_lshl_b32 s62, s68, 8')
    A(f'buffer_load_dwordx2 v[16:17], v8, {srd("X")}, s62 offen')
    if SOFT: A('s_barrier')
    A(f's_cmp_ge_u32 s{sI}, 30'); A('s_cbranch_scc1 L_F01_NODMA')
    dma_addr(128, 12288, 6, 7, 8)
    A(f's_mul_i32 s70, s68, {128 * 12288}'); A(f's_mul_i32 s62, s{sX}, 1536'); A('s_add_u32 s70, s70, s62')
    A('s_lshl_b32 s62, s69, 8'); A('s_add_u32 s70, s70, s62'); A(f's_lshl_b32 s62, s{sR}, 7'); A('s_add_u32 s70, s70, s62')
    if SOFT: lds_wait(F_A, vZ, 9)
    dma_issue(16, 'WQ', 6, 70, 8 * 12288, 71, pol=FPOL)
    A(f's_waitcnt vmcnt({FB_AT})')
    A('L_F01_NODMA:')
    lds_inc(CNT_B)
    if not SOFT: A('s_barrier')
    A('L_F01_DRY:')
    A('s_waitcnt vmcnt(0)')
    A(f's_cmp_ge_u32 s{sI}, 30'); A('s_cbranch_scc1 L_F01_SKIPB')
    tr_addr(128, 40, 44, 45, base_sgpr=71)
    for u in range(4):
        for ct in range(4):
            r = 64 + (u * 4 + ct) * 4
            for hh in range(2):
                A(f'ds_read_b64_tr_b16 v[{r+2*hh}:{r+2*hh+1}], v{40+ct} offset:{(32*u+16*hh)*128}')
    A(f'v_lshrrev_b32 v46, 4, v0'); A('v_lshlrev_b32 v46, 3, v46')
    A('s_waitcnt lgkmcnt(0)')
    lds_inc(CNT_FREE)
    A(f's_cmp_eq_u32 s{sR}, 1'); A('s_cbranch_scc1 L_F1_WAITH')
    A('v_mov_b32 v29, 0x3acccccd')
    ln_stats_pk([10, 11, 12, 13, 14], 30, 29)
    unpack4(34, 16)
    ln_apply_pk(34, 30)
    A('v_and_b32 v8, 31, v0'); A('v_lshlrev_b32 v8, 2, v8'); A('v_lshrrev_b32 v9, 5, v0'); A('v_mul_u32_u24 v9, 640, v9'); A('v_add_u32 v8, v8, v9')
    A('s_lshl_b32 s62, s68, 7'); A('v_add_u32 v8, s62, v8')
    mod_addr(8, 8, 9)
    get_nonce(9)
    stamp(1)
    A(f's_mov_b32 s64, {R_MOD}')
    Q = [10, 14, 18, 22, 48, 52, 56, 60]
    A('v_and_b32 v38, 31, v0'); A('v_lshlrev_b32 v38, 2, v38'); A(f's_lshl_b32 s72, s{sX}, 7'); A(f's_add_u32 s72, s72, {R_CLR}')
    poll(lambda: (mod_loads(8, Q, 4), A(f'buffer_load_dword v39, v38, {srd("WS")}, s72 offen sc1')), [], 9, tags=mod_tags(Q) + [39])
    stamp(2)
    mod_sum(26, Q, 4)
    rbf4(48, 26)
    for r in range(4): A(f'v_mov_b32 v{52+r}, v{48+r}')
    for r in range(4): A(f'v_permlane32_swap_b32 v{48+r}, v{52+r}')
    for r in range(4): A(f'v_add_f32 v{52+r}, 1.0, v{52+r}')
    rbf4(52, 52)
    for r in range(4): A(f'v_mul_f32 v{52+r}, v{34+r}, v{52+r}')
    rbf4(52, 52)
    for r in range(4): A(f'v_add_f32 v{52+r}, v{52+r}, v{48+r}')
    A('v_cvt_pk_bf16_f32 v56, v52, v53'); A('v_cvt_pk_bf16_f32 v57, v54, v55')
    A('v_and_b32 v8, 31, v0'); A('v_lshlrev_b32 v8, 3, v8')
    A(f'ds_write_b64 v8, v[56:57] offset:{HV}')
    lds_set(F_H)
    dstamp(2, 8, vt=(1, 47))
    A('s_branch L_F01_C')
    A('L_F1_WAITH:')
    lds_wait(F_H, vZ, 18)
    A('L_F01_C:')
    for u in range(4):
        A(f'ds_read2_b64 v[{48+4*u}:{51+4*u}], v46 offset0:{HV//8 + 8*u} offset1:{HV//8 + 8*u + 4}')
    for r in range(16): A(f'v_mov_b32 v{20+r}, 0')
    A('v_and_b32 v8, 15, v0'); A('v_lshlrev_b32 v8, 6, v8'); A('v_lshrrev_b32 v9, 4, v0'); A('v_lshl_add_u32 v8, v9, 4, v8')
    A('s_mul_i32 s70, s68, 24576'); A(f's_mul_i32 s62, s{sX}, 3072'); A('s_add_u32 s70, s70, s62'); A('s_lshl_b32 s62, s69, 9'); A('s_add_u32 s70, s70, s62')
    A(f's_lshl_b32 s62, s{sR}, 8'); A('s_add_u32 s70, s70, s62')
    A(f's_add_u32 s72, s70, {R_Q[0]}'); A(f's_add_u32 s73, s70, {R_Q[1]}')
    A('s_waitcnt lgkmcnt(0)')
    for u in range(4):
        for ct in range(4):
            r = 64 + (u * 4 + ct) * 4
            A(f'v_mfma_f32_16x16x32_bf16 v[{20+4*ct}:{23+4*ct}], v[{r}:{r+3}], v[{48+4*u}:{51+4*u}], v[{20+4*ct}:{23+4*ct}]')
    lds_wait(F_CLR, vZ, 9)
    merge4(20, 36)
    for r in range(4): A(f'v_or_b32 v{36+r}, 1, v{36+r}')
    set_exec(0x000f000f000f000f)
    A(f'buffer_store_dwordx4 v[36:39], v8, {srd("WS")}, s72 offen')
    A(f'buffer_store_dwordx4 v[36:39], v8, {srd("WS")}, s73 offen sc1')
    full_exec()
    stamp(3)
    A('s_branch L_F01_D')
    A('L_F01_SKIPB:')
    lds_inc(CNT_FREE)
    get_nonce(9)
    lds_wait(F_CLR, vZ, 9)
    A('L_F01_D:')
    A(f's_cmp_eq_u32 s{sR}, 1'); A('s_cbranch_scc1 L_F1_T')
    A(f's_cmp_lt_u32 s{sI}, 30'); A('s_cbranch_scc1 L_F0_QG')
    A('v_and_b32 v8, 31, v0'); A('v_lshlrev_b32 v8, 2, v8'); A(f's_lshl_b32 s64, s{sX}, 7'); A(f's_add_u32 s64, s64, {R_CLR}')
    poll(lambda: A(f'buffer_load_dword v10, v8, {srd("WS")}, s64 offen sc1'), [], 9, tags=[10], sleep=8)
    A('L_F0_QG:')
    A('v_lshlrev_b32 v40, 4, v0'); A(f's_mul_i32 s62, s{sH}, 768'); A('v_add_u32 v40, s62, v40')
    for ks in range(1, 5): A(f'v_add_u32 v{40+ks}, {24576*ks}, v40')
    A('v_lshlrev_b32 v8, 3, v0')
    set_exec((1 << 48) - 1)
    def ld():
        for ks in range(5): A(f'buffer_load_dwordx4 v[{48+4*ks}:{51+4*ks}], v{40+ks}, {srd("WS")}, s64 offen sc1')
    poll(ld, list(range(48, 68)), 18, regionAB=R_Q)
    tree_add(48, 4)
    for h2 in range(2): A(f'v_pk_add_f32 v[{48+2*h2}:{49+2*h2}], v[{48+2*h2}:{49+2*h2}], v[{64+2*h2}:{65+2*h2}]')
    A('v_cvt_pk_bf16_f32 v56, v48, v49'); A('v_cvt_pk_bf16_f32 v57, v50, v51')
    A(f'ds_write_b64 v8, v[56:57] offset:{QV}')
    full_exec()
    lds_set(F_Q)
    dstamp(3, 8, vt=(1, 47))
    stamp(4)
    A(f's_lshl_b32 s62, s{sH}, 9'); A('v_add_u32 v14, s62, v8')
    poll(lambda: A(f'buffer_load_dwordx2 v[12:13], v14, {srd("WS")}, s64 offen sc1'), [12, 13], 15, regionAB=R_ST, sleep=2)
    A('v_and_b32 v12, 0xffff0000, v12')
    A('v_mov_b32 v16, v12')
    allreduce([16], 'v_max_f32', [15])
    A('v_sub_f32 v12, v12, v16'); A(f'v_mul_f32 v12, {LOG2E}, v12'); A('v_exp_f32 v12, v12'); A('v_mul_f32 v17, v12, v13')
    allreduce([17], 'v_add_f32', [15])
    A(f'ds_write_b64 v3, v[16:17] offset:{ML}')
    lds_set(F_ML)
    dstamp(5, 8, vt=(1, 47))
    stamp(5)
    if DYN:
        branch_if_not_gcand('L_F01_PV')
        set_exec(1)
        A('v_mov_b32 v12, 1')
        A(f'buffer_atomic_add v12, v3, {srd("DBG")}, 0 offen offset:192 sc0 sc1')
        A('s_waitcnt vmcnt(0)')
        A('v_readfirstlane_b32 s62, v12')
        A(f's_mul_hi_u32 s63, s62, {(1 << 32) // 56 + 1}'); A('s_mul_i32 s63, s63, 56'); A('s_sub_u32 s62, s62, s63'); A('s_add_u32 s62, s62, 1')
        A('v_mov_b32 v12, s62')
        A(f'ds_write_b32 v3, v12 offset:{F_TK}')
        full_exec()
    A('s_branch L_F01_PV')
    A('L_F1_T:')
    A(f's_cmp_lt_u32 s{sI}, 20'); A('s_cbranch_scc1 L_F01_PV')
    if not DYN: branch_if_no_role('L_F01_PV')
    get_nonce(9)
    A('v_lshlrev_b32 v8, 4, v0')
    A(f's_mov_b32 s64, {R_MF}'); A(f's_mov_b32 s72, {R_CLR}'); A(f's_mov_b32 s73, {R_MF + 4096}')
    if DYN: branch_if_not_gcand('L_F1_TD')
    else: A(f's_cmp_ge_u32 s{sI}, 26'); A('s_cbranch_scc1 L_F1_TD')
    def ld():
        A(f'buffer_load_dwordx4 v[12:15], v8, {srd("WS")}, s72 offen sc1')
        for k in range(8):
            A(f'buffer_load_dwordx4 v[{16+4*k}:{19+4*k}], v8, {srd("WS")}, {"s64" if k < 4 else "s73"} offen offset:{1024*(k%4)} sc1')
    poll(ld, [], 9, tags=[12, 13, 14, 15] + [17 + 4 * k for k in range(8)] + [19 + 4 * k for k in range(8)], sleep=8)
    for k in range(8):
        q = 16 + 4 * k
        A(f'v_and_b32 v{q+3}, 0xffff0000, v{q+2}'); A(f'v_lshlrev_b32 v{q+2}, 16, v{q+2}')
        A(f'v_and_b32 v{q+1}, 0xffff0000, v{q}'); A(f'v_lshlrev_b32 v{q}, 16, v{q}')
        if k >= 5:
            for r in range(4): A(f'v_add_f32 v{q+r}, 1.0, v{q+r}')
            rbf4(q, q)
        A(f'ds_write_b128 v8, v[{q}:{q+3}] offset:{MODV + 1024*k}')
    lds_set(F_MV)
    stamp(4)
    A('s_branch L_F01_PV')
    A('L_F1_TD:')
    d_index()
    A('v_and_b32 v10, 3, v0'); A('v_lshlrev_b32 v10, 4, v10'); A('s_lshl_b32 s62, s75, 6'); A(f's_add_u32 s64, s62, {R_MF + 7680}')
    def ld():
        A(f'buffer_load_dwordx4 v[12:15], v8, {srd("WS")}, s72 offen sc1')
        A(f'buffer_load_dwordx4 v[16:19], v10, {srd("WS")}, s64 offen sc1')
    poll(ld, [], 9, tags=[12, 13, 14, 15, 17, 19], sleep=8)
    A('v_and_b32 v19, 0xffff0000, v18'); A('v_lshlrev_b32 v18, 16, v18'); A('v_and_b32 v17, 0xffff0000, v16'); A('v_lshlrev_b32 v16, 16, v16')
    A(f'ds_write_b128 v10, v[16:19] offset:{MODV}')
    lds_set(F_MV)
    stamp(4)
    A('L_F01_PV:')
    dry_check('L_DRYRET')
    lds_wait(CNT_VD, vZ, 9, cmp_val=6)
    A(f's_mul_i32 s62, s{sR}, 24576'); A(f's_add_u32 s62, s62, {LDS_A}'); A('v_lshl_add_u32 v8, v0, 4, s62')
    for n in range(24): A(f'ds_read_b128 v[{32+4*n}:{35+4*n}], v8 offset:{1024*n}')
    A('s_waitcnt lgkmcnt(0)')
    A('s_branch L_PV')

    A('L_F2:')
    A('s_cmp_ge_u32 s2, 240'); A('s_cbranch_scc1 L_F2_NONE')
    A('s_lshr_b32 s68, s2, 2'); A('s_and_b32 s69, s2, 3')
    A('v_lshlrev_b32 v7, 3, v0'); A('s_mul_i32 s62, s69, 320')
    A(f'buffer_load_dwordx2 v[10:11], v7, {srd("C")}, s62 offen')
    dma_addr(128, 7680, 6, 8, 9)
    A(f's_mul_i32 s70, s69, {160 * 7680}'); A('s_lshl_b32 s62, s68, 7'); A('s_add_u32 s70, s70, s62')
    dma_issue(20, 'WMOD', 6, 70, 8 * 7680, None, LDS_A, pol=FPOL)
    A('s_barrier')
    A('s_waitcnt vmcnt(20)')
    unpack4(12, 10)
    A(f's_mov_b32 s62, {LOG2E | 0x80000000}')
    for r in range(4): A(f'v_mul_f32 v{16+r}, s62, v{12+r}')
    for r in range(4): A(f'v_exp_f32 v{16+r}, v{16+r}')
    for r in range(4): A(f'v_add_f32 v{16+r}, 1.0, v{16+r}')
    for r in range(4): fdiv(12 + r, 12 + r, 16 + r, 20, 21, 22, 23)
    A('v_cvt_pk_bf16_f32 v16, v12, v13'); A('v_cvt_pk_bf16_f32 v17, v14, v15')
    set_exec((1 << 40) - 1)
    A(f'ds_write_b64 v7, v[16:17] offset:{SC}')
    full_exec()
    tr_addr(128, 6, 10, 11, base_imm=LDS_A)
    A(f'v_lshrrev_b32 v10, 4, v0'); A('v_lshlrev_b32 v10, 3, v10')
    for u in range(5):
        A(f'ds_read2_b64 v[{28+4*u}:{31+4*u}], v10 offset0:{SC//8 + 8*u} offset1:{SC//8 + 8*u + 4}')
    A('v_and_b32 v11, 15, v0'); A('v_lshlrev_b32 v11, 6, v11'); A('v_lshrrev_b32 v12, 4, v0'); A('v_lshl_add_u32 v11, v12, 4, v11')
    if dry:
        A(f's_mov_b32 s{sLIVE}, 0'); A('s_mov_b64 exec, 0')
    A('L_F2_B:')
    A(f's_cbranch_execz L_F2_B1'); A(f's_waitcnt vmcnt({FA_AT})'); lds_set(F_A); A('s_waitcnt vmcnt(0)'); A('L_F2_B1:')
    stamp(1)
    for u in range(5):
        for ct in range(4):
            r = 48 + (u * 4 + ct) * 4
            for hh in range(2):
                A(f'ds_read_b64_tr_b16 v[{r+2*hh}:{r+2*hh+1}], v{6+ct} offset:{(32*u+16*hh)*128}')
    for r in range(16): A(f'v_mov_b32 v{12+r}, 0')
    A('s_waitcnt lgkmcnt(0)')
    lds_inc(CNT_FREE)
    for u in range(5):
        for ct in range(4):
            r = 48 + (u * 4 + ct) * 4
            A(f'v_mfma_f32_16x16x32_bf16 v[{12+4*ct}:{15+4*ct}], v[{r}:{r+3}], v[{28+4*u}:{31+4*u}], v[{12+4*ct}:{15+4*ct}]')
    A(f's_lshl_b32 s70, s2, 9'); A(f's_add_u32 s70, s70, {R_MOD}')
    get_nonce(49)
    merge4(12, 52)
    stamp(2)
    A('v_mov_b32 v56, v52'); A('v_mov_b32 v58, v53'); A('v_mov_b32 v60, v54'); A('v_mov_b32 v62, v55')
    for r in (57, 59, 61, 63): A(f'v_mov_b32 v{r}, s{sN}')
    set_exec(0x000f000f000f000f)
    A(f'buffer_store_dwordx4 v[56:59], v11, {srd("WS")}, s70 offen sc1')
    A(f'buffer_store_dwordx4 v[60:63], v11, {srd("WS")}, s70 offen offset:256 sc1')
    full_exec()
    dstamp(1, 8, vt=(1, 47))
    stamp(3)
    if dry:
        A('s_cbranch_execnz L_VSTREAM')
        A(f's_mov_b32 s{sLIVE}, -1'); A('s_mov_b64 exec, -1'); A('s_branch L_F2_B')
    A('s_branch L_VSTREAM')
    A('L_F2_NONE:')
    A('s_barrier')
    lds_set(F_A)
    lds_inc(CNT_FREE)
    A('s_branch L_VSTREAM')

    A('L_F3:')
    A(f's_cmp_ge_u32 s{sR}, 4'); A('s_cbranch_scc1 L_F4')
    A('s_cmp_lg_u32 s2, 0'); A('s_cbranch_scc1 L_F3_B')
    A('s_memrealtime s[62:63]'); A('s_waitcnt lgkmcnt(0)'); A('s_or_b32 s62, s62, 1'); A('v_mov_b32 v8, s62')
    set_exec(1)
    A('v_mov_b32 v9, 0')
    A(f'buffer_atomic_cmpswap v[8:9], v3, {srd("DBG")}, 0 offen sc1')
    full_exec()
    A('L_F3_B:')
    A('v_lshlrev_b32 v7, 2, v0'); A('ds_write_b32 v7, v3')
    for k in range(3): A(f'ds_write_b32 v7, v3 offset:{OACC + 256*k}')
    A('s_waitcnt lgkmcnt(0)')
    A('s_barrier')
    set_exec(1)
    poll(lambda: A(f'buffer_load_dword v9, v3, {srd("DBG")}, 0 offen sc1'), [9], 10, sleep=NSLEEP)
    A(f'ds_write_b32 v3, v9 offset:{F_N}')
    full_exec()
    stamp(1)
    A('s_branch L_VSTREAM')
    A('L_F4:')
    A(f's_cmp_lg_u32 s{sR}, 4'); A('s_cbranch_scc1 L_F5')
    for r in range(4): A(f'v_mov_b32 v{8+r}, 0')
    kb_pi()
    A('s_mul_i32 s70, s68, 24576'); A(f's_mul_i32 s62, s{sX}, 3072'); A('s_add_u32 s70, s70, s62'); A('s_lshl_b32 s62, s69, 9'); A('s_add_u32 s70, s70, s62')
    A(f's_add_u32 s70, s70, {R_Q[0]}')
    A('v_and_b32 v12, 31, v0'); A('v_lshlrev_b32 v12, 4, v12'); A('v_lshrrev_b32 v13, 5, v0'); A(f'v_mul_u32_u24 v13, {R_Q[1]-R_Q[0]}, v13'); A('v_add_u32 v12, v12, v13')
    A(f's_cmp_ge_u32 s{sI}, 30'); A('s_cbranch_scc1 L_F4_B')
    A(f'buffer_store_dwordx4 v[8:11], v12, {srd("WS")}, s70 offen sc1')
    A('L_F4_B:')
    A(f's_lshl_b32 s62, s{sH}, 3'); A(f's_add_u32 s62, s62, s{sS}'); A('s_mul_i32 s71, s62, 768'); A('s_lshl_b32 s72, s62, 6')
    A('v_lshlrev_b32 v12, 4, v0')
    A(f's_add_u32 s73, s71, {R_O[0]}'); A('v_add_u32 v13, s73, v12')
    A(f's_add_u32 s73, s72, {R_ST[0] - 768}'); A('v_add_u32 v14, s73, v12')
    A('v_cmp_lt_u32 vcc, 47, v0'); A('v_cndmask_b32 v13, v13, v14, vcc')
    A(f's_add_u32 s73, s71, {R_O[1]}'); A('v_add_u32 v15, s73, v12')
    A(f's_add_u32 s73, s72, {R_ST[1] - 768}'); A('v_add_u32 v14, s73, v12')
    A('v_cndmask_b32 v15, v15, v14, vcc')
    A(f's_cmp_ge_u32 s{sI}, 20'); A('s_cbranch_scc1 L_F4_C')
    A(f's_and_b32 s62, s{sI}, 1'); A(f's_lshl_b32 s63, s{sX}, 1'); A('s_add_u32 s62, s62, s63'); A('s_mul_i32 s74, s62, 2560')
    A(f's_lshr_b32 s62, s{sI}, 1'); A('s_lshl_b32 s62, s62, 8'); A('s_add_u32 s74, s74, s62'); A(f's_add_u32 s74, s74, {R_Y}')
    set_exec(0xffff)
    A(f'buffer_store_dwordx4 v[8:11], v12, {srd("WS")}, s74 offen sc1')
    full_exec()
    A('s_branch L_F4_D')
    A('L_F4_C:')
    A(f's_cmp_ge_u32 s{sI}, 26'); A('s_cbranch_scc1 L_F4_D')
    A(f's_mul_i32 s75, s{sX}, 6'); A(f's_add_u32 s75, s75, s{sI}'); A('s_sub_u32 s75, s75, 20')
    A('s_and_b32 s62, s75, 1'); A('s_mul_i32 s74, s62, 3072'); A('s_lshr_b32 s62, s75, 1'); A('s_lshl_b32 s62, s62, 7'); A('s_add_u32 s74, s74, s62'); A(f's_add_u32 s74, s74, {R_HM}')
    set_exec(0xff)
    A(f'buffer_store_dwordx4 v[8:11], v12, {srd("WS")}, s74 offen sc1')
    full_exec()
    A('s_cmp_ge_u32 s75, 8'); A('s_cbranch_scc1 L_F4_D')
    A('s_mul_i32 s63, s75, 160'); A(f's_add_u32 s63, s63, {R_X2}')
    set_exec(0x3ff)
    A(f'buffer_store_dwordx4 v[8:11], v12, {srd("WS")}, s63 offen sc1')
    full_exec()
    A('L_F4_D:')
    set_exec((1 << 52) - 1)
    A(f'buffer_store_dwordx4 v[8:11], v13, {srd("WS")}, 0 offen sc1')
    set_exec((1 << 52) - 1)
    A(f'buffer_store_dwordx4 v[8:11], v15, {srd("WS")}, 0 offen sc1')
    full_exec()
    A('s_barrier')
    A('s_waitcnt vmcnt(0)')
    lds_set(F_CLR)
    stamp(1)
    get_nonce(12)
    A(f'v_mov_b32 v12, s{sN}')
    A(f's_lshl_b32 s70, s{sX}, 5'); A(f's_add_u32 s70, s70, s{sI}'); A('s_lshl_b32 s70, s70, 2'); A(f's_add_u32 s70, s70, {R_CLR}')
    set_exec(1)
    A(f'buffer_store_dword v12, v3, {srd("WS")}, s70 offen sc1')
    full_exec()
    stamp(2)
    A('s_branch L_VSTREAM')
    A('L_F5:')
    A('s_barrier')
    A(f's_cmp_lg_u32 s{sR}, 5'); A('s_cbranch_scc1 L_F6')
    A('s_cmp_ge_u32 s2, 40'); A('s_cbranch_scc1 L_F6')
    A('v_lshrrev_b32 v8, 4, v0'); A('v_lshlrev_b32 v8, 9, v8'); A('v_and_b32 v9, 15, v0'); A('v_lshlrev_b32 v9, 4, v9'); A('v_add_u32 v8, v8, v9')
    A('s_lshl_b32 s64, s2, 11'); A(f's_add_u32 s64, s64, {R_MOD + 20 * 2048}')
    A('s_lshl_b32 s72, s2, 8'); A(f's_add_u32 s72, s72, {R_MF}')
    get_nonce(10)
    def ld():
        A(f'buffer_load_dwordx4 v[12:15], v8, {srd("WS")}, s64 offen sc1')
        A(f'buffer_load_dwordx4 v[16:19], v8, {srd("WS")}, s64 offen offset:256 sc1')
    poll(ld, [], 10, tags=[13, 15, 17, 19], sleep=8)
    vals = [12, 14, 16, 18]
    for sw in ('v_permlane16_swap_b32', 'v_permlane32_swap_b32'):
        for r in vals: A(f'v_mov_b32 v{r+1}, v{r}')
        for r in vals: A(f'{sw} v{r}, v{r+1}')
        for r in vals: A(f'v_add_f32 v{r}, v{r}, v{r+1}')
    A('v_cvt_pk_bf16_f32 v20, v12, v14'); A('v_cvt_pk_bf16_f32 v22, v16, v18'); A(f'v_mov_b32 v21, s{sN}'); A(f'v_mov_b32 v23, s{sN}')
    set_exec(0xffff)
    A(f'buffer_store_dwordx4 v[20:23], v9, {srd("WS")}, s72 offen sc1')
    full_exec()
    stamp(2)
    A('L_F6:')
    if PRET:
        A(f's_cmp_lg_u32 s{sR}, 7'); A('s_cbranch_scc1 L_F7_X')
        A('v_lshlrev_b32 v8, 17, v0')
        set_exec(0xffff)
        A(f'buffer_load_dword v9, v8, {srd("WG")}, 0 offen nt'); A(f'buffer_load_dword v10, v8, {srd("WU")}, 0 offen nt'); A(f'buffer_load_dword v11, v8, {srd("WD")}, 0 offen nt')
        A(f's_mul_i32 s62, s{sX}, {768 * 1280}')
        set_exec(0x1ff)
        A(f'buffer_load_dword v12, v8, {srd("WO")}, s62 offen nt')
        set_exec(0x3)
        A(f'buffer_load_dword v13, v8, {srd("V")}, s67 offen nt')
        set_exec(1)
        A(f'buffer_load_dword v14, v3, {srd("OUT")}, 0 offen nt')
        full_exec()
        A('L_F7_X:')
    if TD == 's':
        A(f's_cmp_lt_u32 s{sR}, 6'); A('s_cbranch_scc1 L_F6_X')
        A(f's_cmp_lt_u32 s{sI}, 26'); A('s_cbranch_scc1 L_F6_X')
        branch_if_no_role('L_F6_X')
        d_index()
        dma_addr(32, 1280, 6, 7, 8)
        A(f's_sub_u32 s76, s{sR}, 6')
        A(f's_mul_i32 s77, s76, {768 * 1280}'); A('s_lshl_b32 s62, s75, 5'); A('s_add_u32 s77, s77, s62')
        A(f's_mul_i32 s78, s76, 24576'); A(f's_add_u32 s78, s78, {LDS_T}')
        lds_wait(CNT_B, vZ, 9, cmp_val=2)
        dma_issue(24, 'WD', 6, 77, 32 * 1280, 78, pace=DPACE, pol=TPOL)
        A('s_waitcnt vmcnt(0)')
        lds_inc(CNT_TD)
        A('L_F6_X:')
    if dry:
        for r in list(range(6, 48)): A(f'v_mov_b32 v{r}, 0')
        A(f's_mov_b32 s{sLIVE}, 0'); A('s_mov_b64 exec, 0')
        A(f's_cmp_eq_u32 s{sR}, 5'); A('s_cbranch_scc1 L_F5_K')
        A(f's_cmp_eq_u32 s{sR}, 6'); A('s_cbranch_scc1 L_F6_F')
        A('s_branch L_PV')
        A('L_F5_K:'); A(f's_mov_b32 s{sR}, 0'); A('s_branch L_K_DRY')
        A('L_F6_F:'); A(f's_mov_b32 s{sR}, 0'); kb_pi(); A(f's_mov_b32 s71, {LDS_B}'); A('s_branch L_F01_DRY')
        A('L_DRYRET:')
        A(f's_mov_b32 s{sLIVE}, -1'); A('s_mov_b64 exec, -1'); A(f's_and_b32 s{sR}, s{sW}, 7')
        stamp(1)
    else:
        A('L_DRYRET:')

    VD = 32
    A('L_VSTREAM:')
    A('s_waitcnt vmcnt(0)')
    A(f's_sub_u32 s68, s{sR}, 2'); A('s_cmp_ge_u32 s68, 3'); A('s_cselect_b32 s69, 1, 0')
    A('s_mul_i32 s62, s69, 3'); A('s_sub_u32 s68, s68, s62')
    A('s_mul_i32 s70, s69, 24576'); A(f's_add_u32 s71, s70, {LDS_A}'); A('s_add_u32 s70, s70, s67')
    A('s_lshl_b32 s62, s68, 13'); A('s_add_u32 s71, s71, s62')
    lds_wait(CNT_FREE, vZ, 6, cmp_val=3)
    lds_wait(KISS, vPF, 6)
    stamp(5)
    d0 = DV0 or DV
    def vload(n):
        T, tt, c = n // 12, (n % 12) // 3, n % 3
        A(f'buffer_load_dwordx4 v[{VD+4*n}:{VD+4*n+3}], v2, {srd("V")}, s{65+T} offen offset:{tt*384+c*128} {KVPOL}')
    A('s_lshl_b32 s68, s68, 3'); A('s_mov_b32 s69, 0'); A('s_mov_b32 s74, 0'); A('s_mov_b32 s75, 0')
    A('L_VP:')
    A('s_lshl_b32 s62, s68, 7'); A('s_cmp_ge_u32 s68, 12'); A('s_cselect_b32 s63, 10752, 0'); A('s_add_u32 s62, s62, s63'); A('s_add_u32 s62, s62, s70')
    A('s_mov_b32 m0, s71')
    A(f'buffer_load_dwordx4 v2, {srd("V")}, s62 offen {KVPOL} lds')
    A('s_add_u32 s71, s71, 1024'); A('s_add_u32 s68, s68, 1'); A('s_add_u32 s69, s69, 1')
    A('s_cmp_lg_u32 s74, 0'); A('s_cbranch_scc1 L_VP_N')
    A(f'ds_read_b32 v6, v{vPF} offset:{PRDY}')
    A(f's_waitcnt vmcnt({d0-1}) lgkmcnt(0)')
    A('v_readfirstlane_b32 s74, v6')
    A('L_VP_N:')
    A('s_cmp_lt_u32 s69, 8'); A('s_cbranch_scc1 L_VP')
    A('s_cmp_lg_u32 s74, 0'); A('s_cbranch_scc1 L_VF_0')
    for n in range(24):
        vload(n)
        if n + 1 < 24 - VFREE:
            A(f'ds_read_b32 v6, v{vPF} offset:{PRDY}')
            A(f's_waitcnt vmcnt({DV-1}) lgkmcnt(0)')
            if n + 1 == DV:
                lds_inc(CNT_VD); A('s_mov_b32 s75, 1')
            A('v_readfirstlane_b32 s62, v6'); A('s_cmp_lg_u32 s62, 0'); A(f's_cbranch_scc1 L_VF_{n+1}')
    A('s_branch L_VF_E')
    for n in range(24):
        A(f'L_VF_{n}:'); vload(n)
    A('s_cmp_lg_u32 s75, 0'); A('s_cbranch_scc1 L_VF_E')
    lds_inc(VISS)
    A('s_waitcnt vmcnt(24)')
    lds_inc(CNT_VD)
    A('s_branch L_VF_E2')
    A('L_VF_E:')
    lds_inc(VISS)
    A('L_VF_E2:')
    if WV:
        A(f's_cmp_ge_u32 s{sI}, 20'); A('s_cbranch_scc1 L_WV_NO')
        dma_addr(128, 1280, 6, 7, 8)
        A(f's_mul_i32 s70, s{sX}, 768'); A(f's_and_b32 s62, s{sI}, 1'); A('s_mul_i32 s62, s62, 384'); A('s_add_u32 s70, s70, s62')
        A(f's_sub_u32 s71, s{sR}, 2'); A('s_lshl_b32 s62, s71, 6'); A('s_add_u32 s70, s70, s62'); A('s_mul_i32 s70, s70, 1280')
        A(f's_lshr_b32 s62, s{sI}, 1'); A('s_lshl_b32 s62, s62, 7'); A('s_add_u32 s70, s70, s62')
        A('s_lshl_b32 s71, s71, 13'); A(f's_add_u32 s71, s71, {LDS_T}')
        dma_issue(8, 'WO', 6, 70, 8 * 1280, 71, pol=TPOL)
        A('s_branch L_WV_E')
        A('L_WV_NO:')
        A('v_mov_b32 v6, 0x7ffff000')
        for k in range(8): A(f'buffer_load_dword v2, v6, {srd("X")}, 0 offen')
        A('L_WV_E:')
    if diagV:
        stamp(3); A('s_waitcnt vmcnt(0)'); stamp(4)
    A('L_PV:')
    A('v_and_b32 v14, 7, v0')
    A('v_and_b32 v15, 1, v14'); A('v_lshlrev_b32 v15, 4, v15'); A('v_mov_b32 v10, 0xffff'); A('v_lshlrev_b32 v15, v15, v10')
    A('v_lshrrev_b32 v14, 1, v14')
    for d in range(4):
        A(f'v_cmp_eq_u32 vcc, {d}, v14'); A(f'v_cndmask_b32 v{6+d}, 0, v15, vcc')
    for r in range(12): A(f'v_mov_b32 v{16+r}, 0')
    A('v_lshrrev_b32 v14, 3, v0'); A('v_lshlrev_b32 v14, 4, v14'); A(f's_lshl_b32 s62, s{sR}, 8'); A('v_add_u32 v14, s62, v14')
    A('v_bfe_u32 v1, v0, 4, 1'); A('v_lshlrev_b32 v1, 7, v1'); A('v_and_b32 v15, 7, v0'); A('v_lshl_add_u32 v1, v15, 2, v1')
    A('v_lshrrev_b32 v15, 5, v0'); A('v_lshl_add_u32 v1, v15, 5, v1'); A(f's_mul_i32 s62, s{sR}, 768'); A('v_add_u32 v1, s62, v1')
    A(f's_lshl_b32 s62, s{sH}, 3'); A(f's_add_u32 s62, s62, s{sS}'); A('s_mul_i32 s62, s62, 768')
    A(f's_add_u32 s72, s62, {R_O[0]}'); A(f's_add_u32 s73, s62, {R_O[1]}')
    lds_wait(PRDY, vPF, 15)
    stamp(6)
    for T in range(2):
        A(f'ds_read_b128 v[10:13], v14 offset:{PD + 128*T}')
        A('s_waitcnt lgkmcnt(0)')
        for tt in range(4):
            t = 4 * T + tt
            for d in range(4): A(f'v_and_b32 v{28+d}, v{10+tt}, v{6+d}')
            for c in range(3):
                n = 3 * t + c
                A(f's_waitcnt vmcnt({23-n+(8 if WV else 0)})')
                A(f'v_mfma_f32_16x16x32_bf16 v[{16+4*c}:{19+4*c}], v[{VD+4*n}:{VD+4*n+3}], v[28:31], v[{16+4*c}:{19+4*c}]')
    A('v_lshlrev_b32 v14, 4, v0')
    for k in range(6): A(f'v_permlane32_swap_b32 v{16+2*k}, v{17+2*k}')
    for k in range(6): A(f'v_add_f32_dpp v{16+2*k}, v{17+2*k}, v{16+2*k} row_ror:8 row_mask:0xf bank_mask:0xf')
    set_exec(0x00ff00ff00ff00ff)
    for k in range(6): A(f'ds_write_b32 v1, v{16+2*k} offset:{RED + 256*(k//2) + 64*(k%2)}')
    set_exec(1)
    A(f'ds_add_rtn_u32 v15, v3, v4 offset:{CNT_O}')
    set_exec((1 << 48) - 1)
    for k in range(8): A(f'ds_read_b128 v[{32+4*k}:{35+4*k}], v14 offset:{RED + 768*k}')
    A('s_waitcnt lgkmcnt(8)')
    A('v_readfirstlane_b32 s62, v15')
    A('s_cbranch_execz L_VRED')
    A('s_cmp_lg_u32 s62, 7'); A('s_cbranch_scc1 L_VEND')
    A('L_VRED:')
    A('s_waitcnt lgkmcnt(0)')
    tree_add(32, 8)
    for r in range(4): A(f'v_or_b32 v{32+r}, 1, v{32+r}')
    A(f'buffer_store_dwordx4 v[32:35], v14, {srd("WS")}, s72 offen')
    A(f'buffer_store_dwordx4 v[32:35], v14, {srd("WS")}, s73 offen sc1')
    lds_set(F_ODONE)
    dstamp(6, 8, vt=(1, 47))
    dry_check('L_DRYRET')
    A('L_VEND:')
    stamp(7)
    if WV:
        A(f's_cmp_lt_u32 s{sR}, 2'); A('s_cbranch_scc1 L_VEND2')
        A(f's_cmp_ge_u32 s{sI}, 20'); A('s_cbranch_scc1 L_VEND2')
        A('s_waitcnt vmcnt(0)')
        lds_inc(CNT_TD)
        A('L_VEND2:')
    if TG == 'w':
        A(f's_cmp_lt_u32 s{sI}, 20'); A('s_cbranch_scc1 L_VEND3')
        A(f's_cmp_ge_u32 s{sI}, 26'); A('s_cbranch_scc1 L_VEND3')
        full_exec()
        A(f's_mul_i32 s75, s{sX}, 6'); A(f's_add_u32 s75, s75, s{sI}'); A('s_sub_u32 s75, s75, 20')
        A('s_bitcmp1_b32 s75, 0')
        A(f's_cselect_b32 s68, s{SRD["WU"]}, s{SRD["WG"]}'); A(f's_cselect_b32 s69, s{SRD["WU"]+1}, s{SRD["WG"]+1}')
        A(f's_mov_b32 s70, {SIZE["WG"]}'); A('s_mov_b32 s71, 0x20000')
        dma_addr(128, 3072, 6, 7, 8)
        A(f's_mul_i32 s72, s{sR}, {80 * 3072}'); A('s_lshr_b32 s62, s75, 1'); A('s_lshl_b32 s62, s62, 7'); A('s_add_u32 s72, s72, s62')
        A(f's_mul_i32 s73, s{sR}, 10240'); A(f's_add_u32 s73, s73, {LDS_T}')
        if GWG: lds_wait(VISS, vZ, 9, cmp_val=6)
        dma_issue(10, 's[68:71]', 6, 72, 8 * 3072, 73, pace=TDEPTH, pol=TPOL)
        A('s_waitcnt vmcnt(0)')
        lds_inc(CNT_TD)
        A('L_VEND3:')
    flush_stamps()
    A('s_endpgm')

    A('L_KWAVE:')
    KD = 32
    def kload(n):
        T, tt, c = n // 12, (n % 12) // 3, n % 3
        A(f'buffer_load_dwordx4 v[{KD+4*n}:{KD+4*n+3}], v2, {srd("K")}, s{65+T} offen offset:{tt*384+c*128} {KVPOL}')
    for n in range(24):
        kload(n)
        if n + 1 == (SOFT or DK):
            A('s_barrier')
            if SOFT and KW == 'a': lds_wait(F_A, vZ, 6)
            if SOFT and KW == 'b': lds_wait(CNT_B, vZ, 6, cmp_val=2)
        if n + 1 >= DK and n + 1 < 24:
            if KADAPT and n + 1 >= KA0:
                A(f'ds_read_b32 v6, v{vZ} offset:{F_Q}')
                A(f's_waitcnt vmcnt({DK-1}) lgkmcnt(0)')
                A('v_readfirstlane_b32 s62, v6'); A('s_cmp_lg_u32 s62, 0'); A(f's_cbranch_scc1 L_KF_{n+1}')
            else:
                A(f's_waitcnt vmcnt({DK-1})')
    if KADAPT:
        A('s_branch L_KF_E')
        for n in range(KA0, 24):
            A(f'L_KF_{n}:'); kload(n)
            if DKF and n + 1 < 24: A(f's_waitcnt vmcnt({DKF-1})')
        A('L_KF_E:')
    lds_set(KISS, vPF)
    dstamp(4, 8, 8, vt=(1, 7))
    stamp(1)
    A('L_K_DRY:')
    A('v_and_b32 v6, 7, v0'); A('v_lshlrev_b32 v6, 4, v6')
    A(f's_lshl_b32 s62, s{sH}, 6'); A(f's_lshl_b32 s63, s{sS}, 3'); A('s_add_u32 s62, s62, s63'); A(f's_add_u32 s62, s62, s{sR}'); A('s_lshl_b32 s62, s62, 3')
    A(f's_add_u32 s72, s62, {R_ST[0]}'); A(f's_add_u32 s73, s62, {R_ST[1]}')
    def setmask(m, s): A(f's_mov_b32 s{s}, {m}'); A(f's_mov_b32 s{s+1}, {m}')
    setmask(0xf0f0f0f0, 80); setmask(0xaaaaaaaa, 82); setmask(0xcccccccc, 84)
    lds_wait(F_Q, vZ, 7)
    stamp(2)
    for c in range(3): A(f'ds_read_b128 v[{8+4*c}:{11+4*c}], v6 offset:{QV + 128*c}')
    A('s_waitcnt lgkmcnt(0)')
    for tp in range(0, 8, 2):
        A(f's_waitcnt vmcnt({21 - 3*(tp+1)})')
        for c in range(3):
            for d in range(4):
                for t in (tp, tp + 1):
                    kr = KD + 4 * (3 * t + c) + d
                    src2 = '0' if (c == 0 and d == 0) else f'v{20+t}'
                    A(f'v_dot2_f32_bf16 v{20+t}, v{kr}, v{8+4*c+d}, {src2}')
    for j in range(4):
        A(f'v_cndmask_b32 v{8+j}, v{20+j}, v{24+j}, s[80:81]')
        A(f'v_cndmask_b32 v{12+j}, v{24+j}, v{20+j}, s[80:81]')
    for j in range(4): A(f'v_add_f32_dpp v{8+j}, v{12+j}, v{8+j} row_half_mirror row_mask:0xf bank_mask:0xf')
    for jj in (0, 1):
        A(f'v_cndmask_b32 v{12+jj}, v{8+2*jj}, v{9+2*jj}, s[82:83]')
        A(f'v_cndmask_b32 v{14+jj}, v{9+2*jj}, v{8+2*jj}, s[82:83]')
    for jj in (0, 1): A(f'v_add_f32_dpp v{12+jj}, v{14+jj}, v{12+jj} quad_perm:[1,0,3,2] row_mask:0xf bank_mask:0xf')
    A('v_cndmask_b32 v8, v12, v13, s[84:85]'); A('v_cndmask_b32 v9, v13, v12, s[84:85]')
    A('v_add_f32_dpp v8, v9, v8 quad_perm:[2,3,0,1] row_mask:0xf bank_mask:0xf')
    rbf(8, 8); A(f'v_mul_f32 v8, {SCALE}, v8'); rbf(8, 8)
    A('v_mov_b32 v9, v8')
    allreduce([9], 'v_max_f32', [10])
    A('v_sub_f32 v10, v8, v9'); A(f'v_mul_f32 v10, {LOG2E}, v10'); A('v_exp_f32 v10, v10')
    allreduce([10], 'v_add_f32', [11])
    A('v_or_b32 v12, 1, v9'); A('v_mov_b32 v13, v10')
    set_exec(1)
    A(f'buffer_store_dwordx2 v[12:13], v3, {srd("WS")}, s72 offen')
    A(f'buffer_store_dwordx2 v[12:13], v3, {srd("WS")}, s73 offen sc1')
    full_exec()
    stamp(3)
    A('v_mov_b32 v127, v8')
    A(f's_cmp_lt_u32 s{sR}, 2'); A('s_cselect_b32 s62, 8, 0'); A('v_add_u32 v126, s62, v5')
    def emit_p():
        lds_wait(F_ML, vZ, 120)
        A(f'ds_read_b64 v[120:121], v3 offset:{ML}')
        A('v_bfe_u32 v122, v0, 2, 1'); A('v_lshlrev_b32 v122, 5, v122'); A('v_lshrrev_b32 v123, 3, v0'); A('v_lshl_add_u32 v122, v123, 2, v122')
        A('v_and_b32 v123, 3, v0'); A('v_add_u32 v122, v122, v123'); A('v_lshlrev_b32 v122, 2, v122'); A(f's_lshl_b32 s62, s{sR}, 8'); A('v_add_u32 v122, s62, v122')
        A('s_waitcnt lgkmcnt(0)')
        A('v_sub_f32 v127, v127, v120'); A(f'v_mul_f32 v127, {LOG2E}, v127'); A('v_exp_f32 v127, v127')
        fdiv(127, 127, 121, 120, 123, 124, 125)
        A('v_cvt_pk_bf16_f32 v127, v127, v127')
        A(f'ds_write_b32 v122, v127 offset:{PD}')
        lds_set(PRDY, vPF)
        stamp(4)
    A(f's_cmp_lt_u32 s{sI}, 20'); A('s_cbranch_scc1 L_TW')
    if DYN:
        branch_if_not_gcand('L_TD')
        emit_p()
        lds_wait(F_TK, vZ, 7)
        A('s_sub_u32 s75, s62, 1')
        A('s_cmp_lt_u32 s75, 48'); A('s_cbranch_scc1 L_TG')
        A('s_branch L_KEND')
    else:
        A(f's_cmp_lt_u32 s{sI}, 26'); A('s_cbranch_scc1 L_TG')
        branch_if_no_role('L_TNONE')
        A('s_branch L_TD')
        A('L_TNONE:')
        emit_p()
        A('s_branch L_KEND')

    FR = 64
    def wg_common(nk, rows_per_kg):
        A(f's_and_b32 s76, s{sR}, 3'); A(f's_lshr_b32 s77, s{sR}, 2')
        A(f's_mul_i32 s78, s76, {rows_per_kg * 128}'); A(f's_add_u32 s78, s78, {LDS_T}')
        A('v_lshrrev_b32 v12, 2, v0'); A('v_lshlrev_b32 v12, 7, v12'); A('v_and_b32 v13, 3, v0'); A('v_lshl_add_u32 v12, v13, 3, v12'); A('v_add_u32 v12, s78, v12')
        A('v_bfe_u32 v13, v0, 3, 2'); A('s_lshl_b32 s62, s77, 1')
        A('v_xor_b32 v10, s62, v13'); A('v_xor_b32 v11, 1, v10')
        A('v_lshl_add_u32 v10, v10, 5, v12'); A('v_lshl_add_u32 v11, v11, 5, v12')
        A(f's_lshl_b32 s74, s{sR}, 9'); A(f's_add_u32 s74, s74, {STG}')
        A('v_lshrrev_b32 v19, 4, v0'); A('v_lshl_add_u32 v19, v19, 3, s74')
        A('v_lshrrev_b32 v18, 4, v0'); A('v_lshlrev_b32 v18, 4, v18'); A('s_lshl_b32 s62, s76, 8'); A('s_lshl_b32 s63, s77, 7'); A('s_add_u32 s62, s62, s63'); A('v_add_u32 v18, s62, v18')
        A('v_lshlrev_b32 v27, 3, v0')
        A(f's_mul_i32 s62, s77, {rows_per_kg * 64}'); A('s_add_u32 s73, s78, s62')
    def wg_fetch(nk, acc):
        for r in range(8): A(f'v_mov_b32 v{acc+r}, 0')
        A('s_waitcnt vmcnt(0)')
        lds_inc(CNT_TD)
        lds_wait(CNT_TD, vZ, 7, cmp_val=8)
        for u in range(nk):
            for ct in range(2):
                r = FR + (u * 2 + ct) * 4
                for hh in range(2): A(f'ds_read_b64_tr_b16 v[{r+2*hh}:{r+2*hh+1}], v{10+ct} offset:{(32*u+16*hh)*128}')
    def wg_mfma(nk, acc, bb):
        for u in range(nk): A(f'ds_read2_b64 v[{bb+4*u}:{bb+3+4*u}], v19 offset0:{8*u} offset1:{8*u+4}')
        for u in range(nk):
            A(f's_waitcnt lgkmcnt({nk-1-u})')
            for ct in range(2):
                r = FR + (u * 2 + ct) * 4
                A(f'v_mfma_f32_16x16x32_bf16 v[{acc+4*ct}:{acc+3+4*ct}], v[{r}:{r+3}], v[{bb+4*u}:{bb+3+4*u}], v[{acc+4*ct}:{acc+3+4*ct}]')
        set_exec(0x0001000100010001)
        for ct in range(2): A(f'ds_write_b128 v18, v[{acc+4*ct}:{acc+3+4*ct}] offset:{TRED + 64*ct}')
        A('s_waitcnt lgkmcnt(0)')
        barrier()
        A(f's_cmp_lg_u32 s{sR}, 0'); A('s_cbranch_scc1 L_KEND')
        set_exec(0xffffffff)
        for k in range(4): A(f'ds_read_b64 v[{32+2*k}:{33+2*k}], v27 offset:{TRED + 256*k}')
        A('s_waitcnt lgkmcnt(0)')
        tree2(32, 4)

    A('L_TW:')
    wg_common(3, 96)
    dma_addr(128, 1280, 6, 7, 8)
    A(f's_and_b32 s75, s{sI}, 1')
    A(f's_mul_i32 s70, s{sX}, 768'); A('s_mul_i32 s62, s75, 384'); A('s_add_u32 s70, s70, s62'); A('s_mul_i32 s62, s76, 96'); A('s_add_u32 s70, s70, s62')
    A(f's_lshl_b32 s62, s{sX}, 2'); A('s_lshl_b32 s63, s75, 1'); A('s_add_u32 s62, s62, s63'); A('s_lshr_b32 s63, s76, 1'); A('s_add_u32 s62, s62, s63'); A('s_mul_i32 s62, s62, 6144')
    A('s_and_b32 s63, s76, 1'); A('s_mul_i32 s63, s63, 384'); A('s_add_u32 s62, s62, s63')
    if X4:
        A('v_lshrrev_b32 v14, 5, v0'); A('v_mul_u32_u24 v14, 3072, v14'); A('v_and_b32 v15, 31, v0'); A('v_lshl_add_u32 v14, v15, 4, v14'); A('v_add_u32 v14, s62, v14')
    else:
        A('v_lshl_add_u32 v14, v0, 3, s62'); A('v_add_u32 v15, 3072, v14')
    A('s_mul_i32 s62, s77, 48'); A('s_add_u32 s70, s70, s62'); A('s_mul_i32 s70, s70, 1280')
    A(f's_lshr_b32 s62, s{sI}, 1'); A('s_lshl_b32 s62, s62, 7'); A('s_add_u32 s70, s70, s62')
    A('v_lshl_add_u32 v16, v15, 3, s74' if X4 else 'v_lshl_add_u32 v16, v0, 2, s74')
    A(f's_lshl_b32 s63, s{sX}, 1'); A('s_add_u32 s63, s63, s75'); A('s_mul_i32 s75, s63, 2560'); A('s_lshl_b32 s62, s62, 1'); A('s_add_u32 s75, s75, s62'); A(f's_add_u32 s75, s75, {R_Y}')
    emit_p()
    def w_tr():
        for u in range(3):
            for ct in range(2):
                r = FR + (u * 2 + ct) * 4
                for hh in range(2): A(f'ds_read_b64_tr_b16 v[{r+2*hh}:{r+2*hh+1}], v{10+ct} offset:{(32*u+16*hh)*128}')
    if not WV:
        tail_gate(TW)
        dma_issue(6, 'WO', 6, 70, 8 * 1280, 73, pace=TDEPTH, pol=TPOL)
        wg_fetch(3, 112)
        stamp(5)
    else:
        for r in range(8): A(f'v_mov_b32 v{112+r}, 0')
    lds_wait(F_ODONE, vZ, 7)
    if X4:
        set_exec(0x00ffffff00ffffff)
        def ld():
            for n in range(4): A(f'buffer_load_dwordx4 v[{32+4*n}:{35+4*n}], v14, {srd("WS")}, s64 offen offset:{768*n} sc1')
        poll(ld, list(range(32, 48)), 7, regionAB=R_O, sleep=0)
        stamp(6)
        tree_add(32, 4)
        half_swap_add(32, 36)
        A('v_cvt_pk_bf16_f32 v36, v32, v33'); A('v_cvt_pk_bf16_f32 v37, v34, v35')
        A('ds_write_b64 v16, v[36:37]')
        full_exec()
    else:
        set_exec((1 << 48) - 1)
        def ld():
            for n in range(8): A(f'buffer_load_dwordx2 v[{32+2*n}:{33+2*n}], v{14 + n//4}, {srd("WS")}, s64 offen offset:{768*(n%4)} sc1')
        poll(ld, list(range(32, 48)), 7, regionAB=R_O, sleep=0)
        stamp(6)
        tree2(32, 8)
        A('v_cvt_pk_bf16_f32 v36, v32, v33')
        A('ds_write_b32 v16, v36')
        full_exec()
    if WV:
        lds_wait(CNT_TD, vZ, 7, cmp_val=6)
        stamp(5)
        w_tr()
    wg_mfma(3, 112, 40)
    for r in range(2): A(f'v_or_b32 v{32+r}, 1, v{32+r}')
    if WIDE:
        A('v_mov_b32_dpp v34, v32 quad_perm:[1,1,3,3] row_mask:0xf bank_mask:0xf'); A('v_mov_b32_dpp v35, v33 quad_perm:[1,1,3,3] row_mask:0xf bank_mask:0xf')
        set_exec(0x55555555)
        A(f'buffer_store_dwordx4 v[32:35], v27, {srd("WS")}, s75 offen sc1')
    else:
        A(f'buffer_store_dwordx2 v[32:33], v27, {srd("WS")}, s75 offen sc1')
    dstamp(7, 8); dstamp(8, 13)
    if YTH:
        set_exec(1)
        A(f'buffer_atomic_add v4, v3, {srd("DBG")}, 0 offen offset:128 sc1')
    A('s_branch L_KEND')

    A('L_TG:')
    if not DYN:
        A(f's_mul_i32 s75, s{sX}, 6'); A(f's_add_u32 s75, s75, s{sI}'); A('s_sub_u32 s75, s75, 20')
    wg_common(5, 160)
    A('s_bitcmp1_b32 s75, 0')
    A(f's_cselect_b32 s68, s{SRD["WU"]}, s{SRD["WG"]}'); A(f's_cselect_b32 s69, s{SRD["WU"]+1}, s{SRD["WG"]+1}')
    A(f's_mov_b32 s70, {SIZE["WG"]}'); A('s_mov_b32 s71, 0x20000'); G_SRD = 's[68:71]'
    dma_addr(128, 3072, 6, 7, 8)
    A('s_mul_i32 s72, s76, 160'); A('s_mul_i32 s62, s77, 80'); A('s_add_u32 s72, s72, s62'); A('s_mul_i32 s72, s72, 3072')
    A('s_lshr_b32 s62, s75, 1'); A('s_lshl_b32 s62, s62, 7'); A('s_add_u32 s72, s72, s62')
    A('s_and_b32 s63, s75, 1'); A('s_mul_i32 s63, s63, 3072'); A('s_add_u32 s62, s62, s63'); A(f's_add_u32 s84, s62, {R_HM}')
    if X4:
        A('v_and_b32 v7, 31, v0'); A('v_min_u32 v7, 19, v7')
        A(f's_mul_i32 s62, s{sR}, 160'); A('v_lshl_add_u32 v14, v7, 3, s62')
        A(f'buffer_load_dwordx2 v[24:25], v14, {srd("X")}, 0 offen')
        A('v_lshlrev_b32 v17, 1, v14')
        A('v_lshrrev_b32 v7, 5, v0'); A('v_mul_u32_u24 v7, 2560, v7'); A('v_add_u32 v26, v7, v17')
        A('v_min_u32 v7, 39, v0')
    else:
        A('v_min_u32 v7, 39, v0')
        A(f's_mul_i32 s62, s{sR}, 160'); A('v_lshl_add_u32 v14, v7, 2, s62')
        A(f'buffer_load_dword v28, v14, {srd("X")}, 0 offen')
        A('v_lshlrev_b32 v17, 1, v14')
        A('v_add_u32 v26, 20480, v17')
    A('s_mul_i32 s62, s76, 320'); A('v_lshl_add_u32 v30, v7, 3, s62')
    A('v_lshlrev_b32 v31, 1, v30')
    A('v_lshl_add_u32 v16, v0, 3, s74')
    A('v_lshlrev_b32 v15, 4, v0'); A('v_lshlrev_b32 v9, 2, v0')
    A('v_mov_b32 v29, 0x3acccccd'); A('v_mov_b32 v8, 0x80000000')
    if not DYN: emit_p()
    lds_wait(F_MV, vZ, 7)
    A(f'ds_read_b128 v[20:23], v17 offset:{MODV}' if X4 else f'ds_read_b64 v[20:21], v17 offset:{MODV}')
    A(f'ds_read_b128 v[104:107], v31 offset:{MODV + 2560}'); A(f'ds_read_b128 v[108:111], v31 offset:{MODV + 5120}')
    def g_tr():
        for u in range(5):
            for ct in range(2):
                r = FR + (u * 2 + ct) * 4
                for hh in range(2): A(f'ds_read_b64_tr_b16 v[{r+2*hh}:{r+2*hh+1}], v{10+ct} offset:{(32*u+16*hh)*128}')
    if TG == 'w':
        for r in range(8): A(f'v_mov_b32 v{112+r}, 0')
        A('s_waitcnt vmcnt(0)'); A('s_mov_b32 s73, 0')
    else:
        tail_gate(TG)
        dma_issue(10, G_SRD, 6, 72, 8 * 3072, 73, pace=TDEPTH, pol=TPOL)
        wg_fetch(5, 112)
    if X4: unpack4(120, 24)
    else: unpack2(22, 28)
    stamp(5)
    for k in range(4): A(f's_mov_b32 s{80+k}, {R_Y + 5120*k}')
    lds_wait(F_ODONE, vZ, 7)
    if X4:
        MG = 0x000fffff000fffff
        set_exec(MG)
        A('s_mov_b32 s85, 0xff'); A('s_mov_b32 s63, 0')
        A('L_GP:')
        for g in range(8):
            A(f's_bitcmp1_b32 s85, {g}'); A(f's_cbranch_scc0 L_GPI_{g}')
            A(f's_mov_b32 s62, {R_Y + 5120*g}')
            A(f'buffer_load_dwordx4 v[{32+4*g}:{35+4*g}], v26, {srd("WS")}, s62 offen sc1')
            A(f'L_GPI_{g}:')
        if TG == 'w':
            A('s_cmp_lg_u32 s73, 0'); A('s_cbranch_scc1 L_GFH')
            A(f'ds_read_b32 v7, v3 offset:{CNT_TD}'); A('s_waitcnt lgkmcnt(0)'); A('v_readfirstlane_b32 s62, v7')
            A('s_cmp_lt_u32 s62, 8'); A('s_cbranch_scc1 L_GFH')
            full_exec(); g_tr(); set_exec(MG)
            A('s_mov_b32 s73, 1')
            A('L_GFH:')
        A('s_waitcnt vmcnt(0)')
        for g in range(8):
            q = 32 + 4 * g
            A(f's_bitcmp1_b32 s85, {g}'); A(f's_cbranch_scc0 L_GPC_{g}')
            A(f'v_min3_u32 v7, v{q}, v{q+1}, v{q+2}'); A(f'v_min_u32 v7, v7, v{q+3}')
            A('v_cmp_eq_u32 vcc, 0, v7')
            A(f's_cbranch_vccnz L_GPC_{g}')
            A(f's_bitset0_b32 s85, {g}')
            A(f'L_GPC_{g}:')
        A('s_cmp_eq_u32 s85, 0'); A('s_cbranch_scc1 L_GPD')
        if TG == 'w' and GSLEEP:
            A('s_cmp_lg_u32 s73, 0'); A('s_cbranch_scc1 L_GNS'); A(f's_sleep {GSLEEP}'); A('L_GNS:')
        A('s_add_u32 s63, s63, 1'); A(f's_cmp_lt_u32 s63, {SPIN_MAX}'); A('s_cbranch_scc1 L_GP')
        A('L_GPD:')
        stamp(6)
        tree_add(32, 8)
        half_swap_add(32, 36)
        rbf4(32, 32)
        for h in (0, 2): pk('mul', 32 + h, 32 + h, 20 + h)
        rbf4(32, 32)
        for h in (0, 2): pk('add', 32 + h, 32 + h, 120 + h)
        A('v_cvt_pk_bf16_f32 v40, v32, v33'); A('v_cvt_pk_bf16_f32 v41, v34, v35')
        A(f'ds_write_b64 v14, v[40:41] offset:{X2P}')
    else:
        y_hint(YTH, 'G')
        set_exec((1 << 40) - 1)
        def yld(n):
            A(f'buffer_load_dwordx2 v[{32+2*n}:{33+2*n}], v{17 if n < 8 else 26}, {srd("WS")}, s{80 + (n%8)//2} offen offset:{2560*(n%2)} sc1')
        if not GMASK:
            def ld():
                for n in range(16): yld(n)
            poll(ld, list(range(32, 64)), 7)
        else:
            A('s_mov_b32 s85, 0xff'); A('s_mov_b32 s63, 0')
            A('L_GP:')
            for g in range(8):
                A(f's_bitcmp1_b32 s85, {g}'); A(f's_cbranch_scc0 L_GPI_{g}')
                yld(2 * g); yld(2 * g + 1)
                A(f'L_GPI_{g}:')
            A('s_waitcnt vmcnt(0)')
            for g in range(8):
                q = 32 + 4 * g
                A(f's_bitcmp1_b32 s85, {g}'); A(f's_cbranch_scc0 L_GPC_{g}')
                A(f'v_min3_u32 v7, v{q}, v{q+1}, v{q+2}'); A(f'v_min_u32 v7, v7, v{q+3}')
                A('v_cmp_eq_u32 vcc, 0, v7')
                A(f's_cbranch_vccnz L_GPC_{g}')
                A(f's_bitset0_b32 s85, {g}')
                A(f'L_GPC_{g}:')
            A('s_cmp_eq_u32 s85, 0'); A('s_cbranch_scc1 L_GPD')
            A('s_add_u32 s63, s63, 1'); A(f's_cmp_lt_u32 s63, {SPIN_MAX}'); A('s_cbranch_scc1 L_GP')
            A('L_GPD:')
        stamp(6)
        tree2(32, 16)
        rbf2(32, 32, 36)
        pk('mul', 32, 32, 20)
        rbf2(32, 32, 36)
        pk('add', 32, 32, 22)
        A('v_cvt_pk_bf16_f32 v37, v32, v33')
        A(f'ds_write_b32 v14, v37 offset:{X2P}')
    full_exec()
    A('s_waitcnt lgkmcnt(0)')
    barrier()
    A(f'ds_read_b128 v[32:35], v15 offset:{X2P}'); A(f'ds_read_b32 v36, v9 offset:{X2P+1024}')
    A(f'ds_read_b64 v[38:39], v30 offset:{X2P}')
    A(f's_cmp_lg_u32 s{sR}, s75'); A('s_cbranch_scc1 L_TG_NX')
    A(f's_mov_b32 s62, {R_X2}')
    if X4:
        set_exec(0xfffff)
        for r in (40, 41): A(f'v_cmp_eq_u32 vcc, 0, v{r}'); A(f'v_cndmask_b32 v{r}, v{r}, v8, vcc')
        A(f'buffer_store_dwordx2 v[40:41], v14, {srd("WS")}, s62 offen sc1')
    else:
        set_exec((1 << 40) - 1)
        A('v_cmp_eq_u32 vcc, 0, v37'); A('v_cndmask_b32 v37, v37, v8, vcc')
        A(f'buffer_store_dword v37, v14, {srd("WS")}, s62 offen sc1')
    full_exec()
    A('L_TG_NX:')
    dstamp_n(9, 0, 8)
    A('s_waitcnt lgkmcnt(1)')
    ln_stats_pk([32, 33, 34, 35, 36], 48, 29)
    A('s_waitcnt lgkmcnt(0)')
    unpack4(44, 38)
    ln_apply_pk(44, 48)
    for h in (0, 2): pk('mul', 44 + h, 44 + h, 108 + h)
    rbf4(44, 44)
    for h in (0, 2): pk('add', 44 + h, 44 + h, 104 + h)
    A('v_cvt_pk_bf16_f32 v36, v44, v45'); A('v_cvt_pk_bf16_f32 v37, v46, v47')
    A('ds_write_b64 v16, v[36:37]')
    if TG == 'w':
        A('s_cmp_lg_u32 s73, 0'); A('s_cbranch_scc1 L_GFF')
        lds_wait(CNT_TD, vZ, 7, cmp_val=8)
        g_tr()
        A('L_GFF:')
    wg_mfma(5, 112, 40)
    A('v_cvt_pk_bf16_f32 v36, v32, v33')
    A('v_cmp_eq_u32 vcc, 0, v36'); A('v_cndmask_b32 v36, v36, v8, vcc')
    if WIDE:
        for k in (1, 2, 3): A(f'v_mov_b32_dpp v{36+k}, v36 quad_perm:[{k},{k},{k},{k}] row_mask:0xf bank_mask:0xf')
        set_exec(0x11111111)
        A(f'buffer_store_dwordx4 v[36:39], v9, {srd("WS")}, s84 offen sc1')
    else:
        A(f'buffer_store_dword v36, v9, {srd("WS")}, s84 offen sc1')
    dstamp_n(10, 0)
    A('s_branch L_KEND')

    A('L_TD:')
    d_index()
    dma_addr(32, 1280, 6, 7, 8)
    A(f's_mul_i32 s77, s{sR}, {192 * 1280}'); A('s_lshl_b32 s62, s75, 5'); A('s_add_u32 s77, s77, s62')
    A(f's_mul_i32 s78, s{sR}, 6144'); A(f's_add_u32 s78, s78, {LDS_T}')
    A('v_lshl_add_u32 v10, v0, 3, s78')
    A('v_and_b32 v14, 7, v0'); A('v_lshlrev_b32 v9, 3, v14')
    A(f's_mul_i32 s62, s{sH}, 6144'); A('v_mul_u32_u24 v11, 768, v14'); A('v_add_u32 v11, s62, v11')
    A('s_lshl_b32 s62, s75, 5'); A('v_lshl_add_u32 v14, v14, 2, s62')
    A(f's_mul_i32 s62, s{sR}, 384'); A('v_lshl_add_u32 v17, v0, 3, s62')
    A(f'v_add_u32 v18, {R_X2 - R_HM}, v14')
    A('v_lshrrev_b32 v28, 4, v0'); A('v_lshlrev_b32 v28, 4, v28'); A(f's_lshl_b32 s62, s{sR}, 6'); A('v_add_u32 v28, s62, v28')
    A(f's_lshl_b32 s74, s{sR}, 9'); A(f's_add_u32 s74, s74, {STG}')
    A('v_lshl_add_u32 v16, v0, 3, s74')
    A('v_lshrrev_b32 v19, 4, v0'); A('v_lshl_add_u32 v19, v19, 3, s74')
    emit_p()
    lds_wait(F_MV, vZ, 7)
    A(f'ds_read_b64 v[20:21], v9 offset:{MODV}')
    if TD == 't':
        A(f's_cmp_lg_u32 s{sR}, 0'); A('s_cbranch_scc1 L_TD_W')
        lds_wait(F_ODONE, vZ, 7)
        set_exec(0xff)
        poll(lambda: A(f'buffer_load_dword v12, v11, {srd("WS")}, s64 offen sc1'), [12], 7, regionAB=R_O, sleep=1)
        full_exec()
        lds_set(CNT_TD)
        A('L_TD_W:')
        lds_wait(CNT_TD, vZ, 7)
    elif TD == 's':
        lds_wait(CNT_TD, vZ, 7, cmp_val=2)
    else:
        tail_gate(TD)
    if TD != 's': dma_issue(6, 'WD', 6, 77, 32 * 1280, 78, pace=TDEPTH, pol=TPOL)
    for r in range(4): A(f'v_mov_b32 v{24+r}, 0')
    A('s_waitcnt vmcnt(0)')
    for u in range(6):
        r = FR + u * 4
        for hh in range(2): A(f'ds_read_b64_tr_b16 v[{r+2*hh}:{r+2*hh+1}], v10 offset:{(32*u+16*hh)*32}')
    stamp(5)
    lds_wait(F_ODONE, vZ, 7)
    y_hint(160 if YTH else 0, 'D')
    A(f's_mov_b32 s64, {R_HM}')
    set_exec((1 << 48) - 1)
    def ld():
        A(f'buffer_load_dwordx2 v[32:33], v17, {srd("WS")}, s64 offen sc1')
        A(f'buffer_load_dwordx2 v[34:35], v17, {srd("WS")}, s64 offen offset:3072 sc1')
        A(f'buffer_load_dword v36, v18, {srd("WS")}, s64 offen sc1')
    poll(ld, [32, 33, 34, 35, 36], 7, sleep=DSLEEP)
    stamp(6)
    unpack4(40, 32); unpack4(44, 34)
    for h in (0, 2): pk('mul', 40 + h, 40 + h, 44 + h)
    A('v_cvt_pk_bf16_f32 v32, v40, v41'); A('v_cvt_pk_bf16_f32 v33, v42, v43')
    A('ds_write_b64 v16, v[32:33]')
    full_exec()
    for u in range(6): A(f'ds_read2_b64 v[{40+4*u}:{43+4*u}], v19 offset0:{8*u} offset1:{8*u+4}')
    unpack2(38, 36)
    for u in range(6):
        r = FR + u * 4
        A(f's_waitcnt lgkmcnt({5-u})')
        A(f'v_mfma_f32_16x16x32_bf16 v[24:27], v[{r}:{r+3}], v[{40+4*u}:{43+4*u}], v[24:27]')
    set_exec(0x0001000100010001)
    A(f'ds_write_b128 v28, v[24:27] offset:{TRED}')
    A('s_waitcnt lgkmcnt(0)')
    barrier()
    A(f's_cmp_lg_u32 s{sR}, 0'); A('s_cbranch_scc1 L_KEND')
    set_exec(0xff)
    for k in range(8): A(f'ds_read_b64 v[{64+2*k}:{65+2*k}], v9 offset:{TRED + 64*k}')
    A('s_waitcnt lgkmcnt(0)')
    tree2(64, 8)
    rbf2(64, 64, 68)
    pk('mul', 64, 64, 20)
    rbf2(64, 64, 68)
    pk('add', 64, 64, 38)
    A('v_cvt_pk_bf16_f32 v68, v64, v65')
    A(f'buffer_store_dword v68, v14, {srd("OUT")}, 0 offen')
    dstamp_n(11, 0); dstamp_n(12, 5); dstamp_n(13, 26); dstamp_n(14, 31); dstamp_n(15, 38)
    A('L_KEND:')
    dry_check('L_DRYRET')
    stamp(7)
    flush_stamps()
    A('L_END:')
    A('s_endpgm')
    A('.section .rodata,"a"'); A('.p2align 6'); A(f'.amdhsa_kernel {NAME}_kernel')
    A('  .amdhsa_next_free_vgpr 128'); A('  .amdhsa_next_free_sgpr 102'); A('  .amdhsa_accum_offset 128')
    A('  .amdhsa_group_segment_fixed_size 0'); A('  .amdhsa_kernarg_size 112'); A('  .amdhsa_user_sgpr_count 2')
    A('  .amdhsa_user_sgpr_kernarg_segment_ptr 1'); A('  .amdhsa_system_sgpr_workgroup_id_x 1')
    A('  .amdhsa_float_denorm_mode_32 3'); A('  .amdhsa_float_denorm_mode_16_64 3')
    A('.end_amdhsa_kernel')
    return A.finish()

if __name__ == '__main__':
    import argparse
    ap = argparse.ArgumentParser()
    ap.add_argument('-o', default='cdna_kernels/' + NAME + '.s')
    ap.add_argument('--stamps', action='store_true')
    ap.add_argument('--cfg', default='')
    a = ap.parse_args()
    open(a.o, 'w').write(gen(stamps=a.stamps, **eval('dict(' + a.cfg + ')')))
```

```python
import sys
from asmfw import Asm
NAME = 'adaLN_cond__gqa_block_cached__glu_gated_bilinear__decode'
HEADER_COMMENT = open('cdna_kernels/' + NAME + '.s.ref').read().split('; Override launch')[0]

R_MOD = 0xE0000; R_Y = 0x00000; R_HM = 0x10000; R_X2 = 0x12000; R_CLR = 0x18000; R_MF = 0x1A000
R_Q = (0x20000, 0x40000); R_ST = (0x60000, 0x64000); R_O = (0x70000, 0xA0000)
R_DBG = 0x200000
F_N, F_H, F_Q, F_ML, F_CLR, CNT_O, F_ODONE, CNT_FREE, CNT_VD, F_MV, CNT_TD, F_A, CNT_B, F_YH, F_TK, F_LOC = 0, 4, 8, 12, 16, 20, 24, 28, 32, 36, 40, 44, 48, 52, 56, 60
KISS, VISS, PRDY, ML = 64, 96, 128, 192
SC, HV, QV, PD, OACC = 0x100, 0x280, 0x380, 0x800, 0x1000
X2P, TRED, STG, MODV, RED = 0x1400, 0x1A00, 0x2000, 0x3000, 0x1000
ONES = 0x3f803f80
LDS_A, LDS_B, LDS_T = 0x6000, 0xB000, 0x13000
LDS_SIZE = 0x27000
SRD = dict(X=4, K=8, V=12, WQ=16, WO=20, WG=24, WU=28, WD=32, C=36, WMOD=40, OUT=44, DBG=48, WS=52)
KARG = dict(X=0, K=8, V=16, WQ=24, WO=32, WG=48, WU=56, WD=64, C=72, WMOD=80, OUT=88, DBG=96, WS=104)
SIZE = dict(X=1280, K=50331648, V=50331648, WQ=7864320, WO=7864320, WG=1966080, WU=1966080, WD=1966080, C=1280,
            WMOD=4915200, OUT=1280, DBG=256, WS=268435456)
def srd(n): return f's[{SRD[n]}:{SRD[n]+3}]'
sW, sX, sI, sH, sS, sR = 56, 57, 58, 59, 60, 61
sN, sLIVE = 79, 3
LOG2E = 0x3fb8aa3b
SCALE = 0x3d93cd3a
SPIN_MAX = 300000

def gen(DK=3, DV=4, VISS_AT=24, stamps=False, sleep_poll=1, NSLEEP=4, dry=False, TW='v', TG='v', TD='o', TDEPTH=3, TPOL='nt', VFREE=0, diagV=False, VADAPT=True, KADAPT=True, SOFT=1, FA_AT=10, FB_AT=8, KW='b', YTH=0, KVPOL='nt', FPOL='nt', dbg=False, WV=False, GMASK=True, X4=True, DPACE=4, PRET=False, DVF=0, DKF=0, WIDE=True, DSLEEP=0, DYN=False, GSLEEP=1, GWG=True, DV0=0, KA0=12, AB='AB', GS2=0):
    A = Asm()
    vZ, vONE, vPF = 3, 4, 5
    def stamp(idx):
        if stamps: A(f's_memrealtime s[{86 + 2*idx}:{87 + 2*idx}]')
    def flush_stamps():
        if not stamps: return
        A('s_waitcnt lgkmcnt(0)')
        A(f's_lshl_b32 s62, s2, 4'); A(f's_add_u32 s62, s62, s{sW}'); A('s_lshl_b32 s62, s62, 5'); A(f's_add_u32 s62, s62, {R_DBG}')
        A('s_mov_b64 exec, 1')
        for k in range(8): A(f'v_mov_b32 v{8+k}, s{86+2*k}')
        A('v_mov_b32 v1, 0')
        A(f'buffer_store_dwordx4 v[8:11], v1, {srd("WS")}, s62 offen')
        A(f'buffer_store_dwordx4 v[12:15], v1, {srd("WS")}, s62 offen offset:16')
    def dstamp(slot, wg, wave=None, vt=(1, 125)):
        if not dbg: return
        L = A.label('DS')
        A(f's_cmp_lg_u32 s2, {wg}'); A(f's_cbranch_scc1 {L}')
        if wave is not None: A(f's_cmp_lg_u32 s{sW}, {wave}'); A(f's_cbranch_scc1 {L}')
        A('s_mov_b64 s[98:99], exec'); A('s_mov_b64 exec, 1')
        A('s_memrealtime s[96:97]')
        A(f'ds_read_b32 v{vt[1]}, v3 offset:{F_N}')
        A('s_waitcnt lgkmcnt(0)')
        A(f'v_sub_u32 v{vt[1]}, s96, v{vt[1]}')
        A(f'buffer_store_dword v{vt[1]}, v3, {srd("DBG")}, 0 offen offset:{4*slot} sc1')
        A('s_mov_b64 exec, s[98:99]')
        A(f'{L}:')
    def dstamp_n(slot, n, wave=None):
        if not dbg: return
        L = A.label('DN')
        A(f's_cmp_lg_u32 s75, {n}'); A(f's_cbranch_scc1 {L}')
        if wave is not None: A(f's_cmp_lg_u32 s{sW}, {wave}'); A(f's_cbranch_scc1 {L}')
        A('s_mov_b64 s[98:99], exec'); A('s_mov_b64 exec, 1')
        A('s_memrealtime s[96:97]')
        A(f'ds_read_b32 v125, v3 offset:{F_N}')
        A('s_waitcnt lgkmcnt(0)')
        A('v_sub_u32 v125, s96, v125')
        A(f'buffer_store_dword v125, v3, {srd("DBG")}, 0 offen offset:{4*slot} sc1')
        A('s_mov_b64 exec, s[98:99]')
        A(f'{L}:')
    def set_exec(mask):
        lo, hi = mask & 0xffffffff, mask >> 32
        for nm, m in (('exec_lo', lo), ('exec_hi', hi)):
            if m == 0xffffffff: A(f's_mov_b32 {nm}, s{sLIVE}')
            elif m == 0: A(f's_mov_b32 {nm}, 0')
            else: A(f's_and_b32 {nm}, s{sLIVE}, {m}')
    def full_exec(): set_exec((1 << 64) - 1)
    def barrier():
        L = A.label('BR')
        A(f's_cbranch_execz {L}'); A('s_barrier'); A(f'{L}:')
    def lds_wait(off, vz, vt, cmp_val=None):
        L = A.label('LW'); D = A.label('LWD')
        A('s_mov_b32 s63, 0')
        A(f's_cbranch_execz {D}')
        A(f'{L}:')
        A(f'ds_read_b32 v{vt}, v{vz} offset:{off}')
        A('s_waitcnt lgkmcnt(0)')
        A(f'v_readfirstlane_b32 s62, v{vt}')
        if cmp_val is None: A('s_cmp_lg_u32 s62, 0')
        else: A(f's_cmp_ge_u32 s62, {cmp_val}')
        A(f's_cbranch_scc1 {D}')
        A('s_sleep 1')
        A('s_add_u32 s63, s63, 1'); A(f's_cmp_lt_u32 s63, {SPIN_MAX * 8}'); A(f's_cbranch_scc1 {L}')
        A(f'{D}:')
    def lds_set(off, vz=vZ): A(f'ds_write_b32 v{vz}, v{vONE} offset:{off}')
    def lds_inc(off):
        set_exec(1); A(f'ds_add_u32 v{vZ}, v{vONE} offset:{off}'); full_exec()
    def poll(loads, regs, vt, regionAB=None, sleep=None, tags=(), vt2=None):
        L = A.label('PL'); D = A.label('PD')
        A('s_mov_b32 s63, 0')
        if regionAB: A(f's_mov_b32 s64, {regionAB[0]}')
        A(f'{L}:')
        loads()
        A('s_waitcnt vmcnt(0)')
        r = list(regs); first = True
        while r:
            if first:
                if len(r) >= 3: A(f'v_min3_u32 v{vt}, v{r[0]}, v{r[1]}, v{r[2]}'); r = r[3:]
                elif len(r) == 2: A(f'v_min_u32 v{vt}, v{r[0]}, v{r[1]}'); r = []
                else: A(f'v_mov_b32 v{vt}, v{r[0]}'); r = []
                first = False
            elif len(r) >= 2: A(f'v_min3_u32 v{vt}, v{vt}, v{r[0]}, v{r[1]}'); r = r[2:]
            else: A(f'v_min_u32 v{vt}, v{vt}, v{r[0]}'); r = []
        if regs: A(f'v_cmp_eq_u32 vcc, 0, v{vt}')
        if tags:
            tg = list(tags)
            x = vt2 if regs else vt
            A(f'v_xor_b32 v{x}, s{sN}, v{tg[0]}')
            for tr in tg[1:]: A(f'v_xor_b32 v{tr}, s{sN}, v{tr}')
            rest = tg[1:]
            while rest:
                if len(rest) >= 2: A(f'v_or3_b32 v{x}, v{x}, v{rest[0]}, v{rest[1]}'); rest = rest[2:]
                else: A(f'v_or_b32 v{x}, v{x}, v{rest[0]}'); rest = []
            if regs: A(f'v_cmp_ne_u32 s[82:83], 0, v{x}'); A('s_or_b64 vcc, vcc, s[82:83]')
            else: A(f'v_cmp_ne_u32 vcc, 0, v{x}')
        A(f's_cbranch_vccz {D}')
        sl = sleep_poll if sleep is None else sleep
        if sl: A(f's_sleep {sl}')
        A('s_add_u32 s63, s63, 1'); A(f's_cmp_lt_u32 s63, {SPIN_MAX}'); A(f's_cbranch_scc1 {L}')
        A(f'{D}:')
    def rbf(dst, src):
        A(f'v_cvt_pk_bf16_f32 v{dst}, v{src}, v{src}')
        A(f'v_and_b32 v{dst}, 0xffff0000, v{dst}')
    def rbf4(dst, src):
        for h in range(2):
            A(f'v_cvt_pk_bf16_f32 v{dst+2*h+1}, v{src+2*h}, v{src+2*h+1}')
        for h in range(2):
            A(f'v_lshlrev_b32 v{dst+2*h}, 16, v{dst+2*h+1}')
            A(f'v_and_b32 v{dst+2*h+1}, 0xffff0000, v{dst+2*h+1}')
    def allreduce(regs, op, tmp):
        for pat in ('quad_perm:[1,0,3,2]', 'quad_perm:[2,3,0,1]', 'row_half_mirror', 'row_mirror'):
            for r in regs: A(f'{op}_dpp v{r}, v{r}, v{r} {pat} row_mask:0xf bank_mask:0xf')
        for sw in ('v_permlane16_swap_b32', 'v_permlane32_swap_b32'):
            for r, t in zip(regs, tmp): A(f'v_mov_b32 v{t}, v{r}')
            for r, t in zip(regs, tmp): A(f'{sw} v{r}, v{t}')
            for r, t in zip(regs, tmp): A(f'{op} v{r}, v{r}, v{t}')
    def reduce_sgpr(regs, op, sdst):
        for pat in ('quad_perm:[1,0,3,2]', 'quad_perm:[2,3,0,1]', 'row_half_mirror', 'row_mirror'):
            for r in regs: A(f'{op}_dpp v{r}, v{r}, v{r} {pat} row_mask:0xf bank_mask:0xf')
        for r in regs: A(f'{op}_dpp v{r}, v{r}, v{r} row_bcast:15 row_mask:0xa bank_mask:0xf')
        for r in regs: A(f'{op}_dpp v{r}, v{r}, v{r} row_bcast:31 row_mask:0xc bank_mask:0xf')
        for r, sd in zip(regs, sdst): A(f'v_readlane_b32 s{sd}, v{r}, 63')
    def unpack2(dst, src):
        A(f'v_lshlrev_b32 v{dst}, 16, v{src}'); A(f'v_and_b32 v{dst+1}, 0xffff0000, v{src}')
    def rbf2(dst, src, t):
        A(f'v_cvt_pk_bf16_f32 v{t}, v{src}, v{src+1}'); unpack2(dst, t)
    def pk(op, d, a, b, bcast=False, negb=False):
        m = ''
        if bcast: m += ' op_sel_hi:[1,0]'
        if negb: m += ' neg_lo:[0,1] neg_hi:[0,1]'
        A(f'v_pk_{op}_f32 v[{d}:{d+1}], v[{a}:{a+1}], v[{b}:{b+1}]{m}')
    def tree2(base, n):
        step = 1
        while step < n:
            for k in range(0, n, 2 * step): pk('add', base + 2 * k, base + 2 * k, base + 2 * (k + step))
            step *= 2
    def ln_stats_pk(xs, vm, vinv):
        a, b = vm, vm + 1
        A(f's_mov_b32 s62, {ONES}')
        for k, r in enumerate(xs):
            A(f'v_dot2_f32_bf16 v{a}, v{r}, s62, ' + ('0' if k == 0 else f'v{a}'))
            A(f'v_dot2_f32_bf16 v{b}, v{r}, v{r}, ' + ('0' if k == 0 else f'v{b}'))
        reduce_sgpr([a, b], 'v_add_f32', [62, 63])
        A(f'v_mul_f32 v{a}, s62, v{vinv}'); A(f'v_mul_f32 v{b}, s63, v{vinv}')
        A(f'v_fma_f32 v{b}, -v{a}, v{a}, v{b}')
        A(f'v_max_f32 v{b}, 0, v{b}')
        rbf2(a, a, vm + 3)
        A(f'v_add_f32 v{b}, 0x3727c5ac, v{b}')
        rbf(b, b)
        A(f'v_sqrt_f32 v{b}, v{b}')
        rbf(b, b)
        A(f'v_rcp_f32 v{vm+2}, v{b}')
    def ln_apply_pk(b4, vm):
        for h in (0, 2): pk('add', b4 + h, b4 + h, vm, bcast=True, negb=True)
        rbf4(b4, b4)
        for h in (0, 2): pk('mul', b4 + h, b4 + h, vm + 2, bcast=True)
        rbf4(b4, b4)
    def tr_addr(RS, vdst, vt0, vt1, base_sgpr=None, base_imm=0):
        T = RS // 32
        A(f'v_lshrrev_b32 v{vt0}, 2, v0'); A(f'v_mul_u32_u24 v{vt0}, {RS}, v{vt0}')
        A(f'v_and_b32 v{vt1}, 3, v0'); A(f'v_lshl_add_u32 v{vt0}, v{vt1}, 3, v{vt0}')
        if base_sgpr is not None: A(f'v_add_u32 v{vt0}, s{base_sgpr}, v{vt0}')
        if base_imm: A(f'v_add_u32 v{vt0}, {base_imm}, v{vt0}')
        if RS == 128: A(f'v_bfe_u32 v{vt1}, v0, 3, 2')
        elif RS == 64: A(f'v_bfe_u32 v{vt1}, v0, 4, 1')
        for ct in range(T):
            A(f'v_xor_b32 v{vdst+ct}, {ct}, v{vt1}')
            A(f'v_lshl_add_u32 v{vdst+ct}, v{vdst+ct}, 5, v{vt0}')
    def dma_addr(RS, rowstride, vdst, vt0, vt1):
        cpr = RS // 16; lg = cpr.bit_length() - 1
        A(f'v_lshrrev_b32 v{vt0}, {lg}, v0'); A(f'v_and_b32 v{vt1}, {cpr - 1}, v0')
        if RS == 128:
            A(f'v_bfe_u32 v{vdst}, v{vt0}, 1, 2'); A(f'v_lshlrev_b32 v{vdst}, 1, v{vdst}'); A(f'v_xor_b32 v{vt1}, v{vt1}, v{vdst}')
        elif RS == 64:
            A(f'v_bfe_u32 v{vdst}, v{vt0}, 2, 1'); A(f'v_lshlrev_b32 v{vdst}, 1, v{vdst}'); A(f'v_xor_b32 v{vt1}, v{vt1}, v{vdst}')
        A(f'v_mul_u32_u24 v{vt0}, {rowstride}, v{vt0}')
        A(f'v_lshl_add_u32 v{vdst}, v{vt1}, 4, v{vt0}')
    def dma_issue(n, sr, vaddr, s_goff, gstep, s_lds, lds_imm=0, pace=0, pol='nt'):
        sr = srd(sr) if sr in SRD else sr
        L = A.label('DS')
        A(f's_cbranch_execz {L}')
        for k in range(n):
            if s_lds is None: A(f's_mov_b32 m0, {lds_imm + 1024 * k}')
            else: A(f's_add_u32 m0, s{s_lds}, {lds_imm + 1024 * k}')
            A(f'buffer_load_dwordx4 v{vaddr}, {sr}, s{s_goff} offen {pol} lds')
            if k + 1 < n: A(f's_add_u32 s{s_goff}, s{s_goff}, {gstep}')
            if pace and k + 1 >= pace and k + 1 < n: A(f's_waitcnt vmcnt({pace-1})')
        A(f'{L}:')
    def tail_gate(mode):
        if mode == 'v': lds_wait(VISS, vZ, 7, cmp_val=6)
        elif mode == 'o': lds_wait(F_ODONE, vZ, 7)
    def y_hint(th, tag):
        if not th: return
        A(f's_cmp_lg_u32 s{sR}, 0'); A(f's_cbranch_scc1 L_YH_{tag}')
        L = A.label('YH'); D = A.label('YHD')
        set_exec(1)
        A('s_mov_b32 s63, 0')
        A(f'{L}:')
        A(f'buffer_load_dword v7, v3, {srd("DBG")}, 0 offen offset:128 sc1')
        A('s_waitcnt vmcnt(0)')
        A('v_readfirstlane_b32 s62, v7'); A(f's_cmp_ge_u32 s62, {th}'); A(f's_cbranch_scc1 {D}')
        A('s_sleep 2')
        A('s_add_u32 s63, s63, 1'); A(f's_cmp_lt_u32 s63, {SPIN_MAX}'); A(f's_cbranch_scc1 {L}')
        A(f'{D}:')
        full_exec()
        lds_set(F_YH)
        A(f'L_YH_{tag}:')
        lds_wait(F_YH, vZ, 7)
    def loc_store(instr):
        L = A.label('LS'); E = A.label('LSE')
        A('s_cmp_eq_u32 s73, 1'); A(f's_cbranch_scc1 {L}')
        A(instr + ' sc1'); A(f's_branch {E}')
        A(f'{L}:'); A(instr)
        A(f'{E}:')
    def get_loc(vt):
        lds_wait(F_LOC, vZ, vt); A('s_mov_b32 s73, s62')
    def set_loc(vx, vt):
        A('s_getreg_b32 s62, hwreg(HW_REG_XCC_ID)'); A('s_and_b32 s62, s62, 15'); A('s_add_u32 s62, s62, 1')
        A(f'v_cmp_ne_u32 vcc, s62, v{vx}')
        A('s_cmp_eq_u64 vcc, 0'); A('s_cselect_b32 s62, 1, 2')
        A(f'v_mov_b32 v{vt}, s62')
        A(f'ds_write_b32 v3, v{vt} offset:{F_LOC}')
    def merge4(acc, dst):
        for r in range(4): A(f'v_mov_b32 v{dst+r}, v{acc+r}')
        for ct in (1, 2, 3):
            m = 0x00010001 << ct
            A(f's_mov_b32 s80, {m}'); A(f's_mov_b32 s81, {m}')
            for r in range(4): A(f'v_cndmask_b32 v{dst+r}, v{dst+r}, v{acc+4*ct+r}, s[80:81]')
    def mod_addr(vdst, vcol, vt):
        A(f'v_lshrrev_b32 v{vt}, 6, v{vcol}'); A(f'v_lshlrev_b32 v{vt}, 11, v{vt}')
        A(f'v_and_b32 v{vdst}, 63, v{vcol}'); A(f'v_lshl_add_u32 v{vdst}, v{vdst}, 2, v{vt}')
    def mod_loads(vaddr, quads, nks, so='s64'):
        for ks in range(nks):
            for hf in range(2):
                q = quads[2 * ks + hf]
                A(f'buffer_load_dwordx4 v[{q}:{q+3}], v{vaddr}, {srd("WS")}, {so} offen offset:{512*ks+256*hf} sc1')
    def mod_tags(quads): return [q + 1 for q in quads] + [q + 3 for q in quads]
    def mod_sum(dst, quads, nks):
        for hf in range(2):
            for e in range(2):
                r = [quads[2 * ks + hf] + 2 * e for ks in range(nks)]
                d = dst + 2 * hf + e
                if nks == 2: A(f'v_add_f32 v{d}, v{r[0]}, v{r[1]}')
                else:
                    A(f'v_add_f32 v{r[0]}, v{r[0]}, v{r[1]}'); A(f'v_add_f32 v{r[2]}, v{r[2]}, v{r[3]}'); A(f'v_add_f32 v{d}, v{r[0]}, v{r[2]}')
    def get_nonce(vt):
        lds_wait(F_N, vZ, vt); A(f's_mov_b32 s{sN}, s62')
    def tree_add(base, n):
        step = 1
        while step < n:
            for k in range(0, n, 2 * step):
                for h2 in range(2):
                    a = base + 4 * k + 2 * h2; b = base + 4 * (k + step) + 2 * h2
                    A(f'v_pk_add_f32 v[{a}:{a+1}], v[{a}:{a+1}], v[{b}:{b+1}]')
            step *= 2
    def half_swap_add(base, tmp):
        for r in range(4): A(f'v_mov_b32 v{tmp+r}, v{base+r}')
        for r in range(4): A(f'v_permlane32_swap_b32 v{base+r}, v{tmp+r}')
        for h2 in range(2): A(f'v_pk_add_f32 v[{base+2*h2}:{base+1+2*h2}], v[{base+2*h2}:{base+1+2*h2}], v[{tmp+2*h2}:{tmp+1+2*h2}]')
    def fdiv(dst, num, den, t0, t1, t2, t3):
        A(f'v_rcp_f32 v{t0}, v{den}')
        A(f'v_mul_f32 v{t1}, v{num}, v{t0}')
        A(f'v_fma_f32 v{t2}, -v{t1}, v{den}, v{num}')
        A(f'v_fma_f32 v{t3}, v{t2}, v{t0}, v{t1}')
        A(f'v_cmp_o_f32 vcc, v{t3}, v{t3}')
        A(f'v_cndmask_b32 v{dst}, v{t1}, v{t3}, vcc')
    def ln_stats(xs, vm, vs, t0, t1):
        A(f'v_readfirstlane_b32 s62, v{xs[0]}')
        for r in xs: A(f'v_subrev_f32 v{r}, s62, v{r}')
        A(f'v_add_f32 v{vm}, v{xs[0]}, v{xs[1]}'); A(f'v_mul_f32 v{vs}, v{xs[0]}, v{xs[0]}')
        for k, r in enumerate(xs):
            if k >= 2: A(f'v_add_f32 v{vm}, v{vm}, v{r}')
            if k >= 1: A(f'v_fmac_f32 v{vs}, v{r}, v{r}')
        allreduce([vm, vs], 'v_add_f32', [t0, t1])
        inv = 0x3acccccd
        A(f'v_mul_f32 v{vm}, {inv}, v{vm}'); A(f'v_mul_f32 v{vs}, {inv}, v{vs}')
        A(f'v_fma_f32 v{vs}, -v{vm}, v{vm}, v{vs}')
        A(f'v_max_f32 v{vs}, 0, v{vs}')
        A(f'v_add_f32 v{vm}, s62, v{vm}')
        rbf(vm, vm); rbf(vs, vs)
        A(f'v_add_f32 v{vs}, 0x3727c5ac, v{vs}')
        rbf(vs, vs)
        A(f'v_sqrt_f32 v{vs}, v{vs}')
        rbf(vs, vs)
        A(f'v_rcp_f32 v{vs}, v{vs}')
    def ln_apply(b4, vm, vs):
        for r in range(4): A(f'v_sub_f32 v{b4+r}, v{b4+r}, v{vm}')
        rbf4(b4, b4)
        for r in range(4): A(f'v_mul_f32 v{b4+r}, v{b4+r}, v{vs}')
        rbf4(b4, b4)
    def unpack4(dst, src):
        A(f'v_lshlrev_b32 v{dst}, 16, v{src}'); A(f'v_and_b32 v{dst+1}, 0xffff0000, v{src}')
        A(f'v_lshlrev_b32 v{dst+2}, 16, v{src+1}'); A(f'v_and_b32 v{dst+3}, 0xffff0000, v{src+1}')
    def dry_check(ret):
        A(f's_cbranch_execz {ret}')
    def d_index():
        A(f's_lshl_b32 s75, s{sX}, 2'); A(f's_add_u32 s75, s75, s{sI}'); A('s_sub_u32 s75, s75, 26')
        A(f's_lshl_b32 s62, s{sX}, 1'); A(f's_add_u32 s62, s62, s{sI}'); A('s_add_u32 s62, s62, 2')
        A(f's_cmp_ge_u32 s{sI}, 30'); A('s_cselect_b32 s75, s62, s75')
    def branch_if_no_role(label):
        L = A.label('NR')
        A(f's_cmp_lt_u32 s{sI}, 30'); A(f's_cbranch_scc1 {L}')
        A(f's_cmp_ge_u32 s{sX}, 4'); A(f's_cbranch_scc1 {label}')
        A(f'{L}:')
    def branch_if_not_gcand(label):
        L = A.label('GC')
        A(f's_cmp_lt_u32 s{sI}, 20'); A(f's_cbranch_scc1 {label}')
        A(f's_cmp_lt_u32 s{sI}, 26'); A(f's_cbranch_scc1 {L}')
        A(f's_cmp_lt_u32 s{sI}, 30'); A(f's_cbranch_scc1 {label}')
        A(f's_cmp_lt_u32 s{sX}, 4'); A(f's_cbranch_scc1 {label}')
        A(f'{L}:')
    def kb_pi():
        A(f's_mul_i32 s68, s{sI}, 43'); A('s_lshr_b32 s68, s68, 8'); A('s_mul_i32 s62, s68, 6'); A(f's_sub_u32 s69, s{sI}, s62')

    A(HEADER_COMMENT.rstrip())
    A(f'; @launch grid=(256,1,1) block=(1024,1,1) lds={LDS_SIZE}')
    A('.amdgcn_target "amdgcn-amd-amdhsa--gfx950"')
    A('.text'); A(f'.globl {NAME}_kernel'); A('.p2align 8'); A(f'.type {NAME}_kernel,@function'); A(f'{NAME}_kernel:')
    for n in ('K', 'WMOD', 'WQ', 'WS', 'C', 'X', 'V', 'DBG', 'WO', 'WG', 'WU', 'WD', 'OUT'):
        A(f's_load_dwordx2 s[{SRD[n]}:{SRD[n]+1}], s[0:1], {KARG[n]}')
    if stamps:
        for k in range(1, 8): A(f's_mov_b32 s{86+2*k}, 0')
    stamp(0)
    A('v_lshrrev_b32 v1, 6, v0'); A('v_and_b32 v0, 63, v0')
    A(f'v_readfirstlane_b32 s{sW}, v1')
    for n in SRD:
        A(f's_mov_b32 s{SRD[n]+2}, {SIZE[n]}'); A(f's_mov_b32 s{SRD[n]+3}, 0x20000')
    A(f's_mov_b32 s{sLIVE}, -1'); A(f's_mov_b32 s{sN}, 0')
    A('s_cmp_ge_u32 s2, 256'); A('s_cbranch_scc1 L_END')
    A(f's_and_b32 s{sX}, s2, 7'); A(f's_lshr_b32 s{sI}, s2, 3')
    A(f's_lshr_b32 s{sH}, s{sI}, 3'); A(f's_lshl_b32 s62, s{sX}, 2'); A(f's_add_u32 s{sH}, s{sH}, s62')
    A(f's_and_b32 s{sS}, s{sI}, 7'); A(f's_and_b32 s{sR}, s{sW}, 7')
    A('v_lshrrev_b32 v1, 3, v0'); A('v_mul_u32_u24 v1, 1536, v1'); A('v_and_b32 v2, 7, v0'); A('v_lshl_add_u32 v2, v2, 4, v1')
    A('v_mov_b32 v3, 0'); A('v_mov_b32 v4, 1')
    A(f's_lshl_b32 s67, s{sH}, 12'); A(f's_lshl_b32 s62, s{sS}, 9'); A('s_add_u32 s67, s67, s62'); A('s_mul_i32 s67, s67, 384')
    A(f's_mul_i32 s65, s{sR}, 24576'); A('s_add_u32 s65, s65, s67'); A('s_add_u32 s66, s65, 12288')
    A(f's_lshl_b32 s62, s{sR}, 2'); A('v_mov_b32 v5, s62')
    A('s_waitcnt lgkmcnt(0)')
    A(f's_cmp_ge_u32 s{sW}, 8'); A('s_cbranch_scc1 L_KWAVE')
    A(f's_cmp_eq_u32 s{sR}, 2'); A('s_cbranch_scc1 L_F2')
    A(f's_cmp_ge_u32 s{sR}, 3'); A('s_cbranch_scc1 L_F3')

    kb_pi()
    A(f's_lshl_b32 s71, s{sR}, 14'); A(f's_add_u32 s71, s71, {LDS_B}')
    A('v_lshlrev_b32 v7, 2, v0')
    for j in range(5): A(f'buffer_load_dword v{10+j}, v7, {srd("X")}, 0 offen offset:{256*j}')
    A('v_and_b32 v8, 31, v0'); A('v_lshlrev_b32 v8, 3, v8'); A('s_lshl_b32 s62, s68, 8')
    A(f'buffer_load_dwordx2 v[16:17], v8, {srd("X")}, s62 offen')
    if SOFT: A('s_barrier')
    A(f's_cmp_ge_u32 s{sI}, 30'); A('s_cbranch_scc1 L_F01_NODMA')
    dma_addr(128, 12288, 6, 7, 8)
    A(f's_mul_i32 s70, s68, {128 * 12288}'); A(f's_mul_i32 s62, s{sX}, 1536'); A('s_add_u32 s70, s70, s62')
    A('s_lshl_b32 s62, s69, 8'); A('s_add_u32 s70, s70, s62'); A(f's_lshl_b32 s62, s{sR}, 7'); A('s_add_u32 s70, s70, s62')
    if SOFT: lds_wait(F_A, vZ, 9)
    dma_issue(16, 'WQ', 6, 70, 8 * 12288, 71, pol=FPOL)
    A(f's_waitcnt vmcnt({FB_AT})')
    A('L_F01_NODMA:')
    lds_inc(CNT_B)
    if not SOFT: A('s_barrier')
    A('L_F01_DRY:')
    A('s_waitcnt vmcnt(0)')
    A(f's_cmp_ge_u32 s{sI}, 30'); A('s_cbranch_scc1 L_F01_SKIPB')
    tr_addr(128, 40, 44, 45, base_sgpr=71)
    for u in range(4):
        for ct in range(4):
            r = 64 + (u * 4 + ct) * 4
            for hh in range(2):
                A(f'ds_read_b64_tr_b16 v[{r+2*hh}:{r+2*hh+1}], v{40+ct} offset:{(32*u+16*hh)*128}')
    A(f'v_lshrrev_b32 v46, 4, v0'); A('v_lshlrev_b32 v46, 3, v46')
    A('s_waitcnt lgkmcnt(0)')
    lds_inc(CNT_FREE)
    A(f's_cmp_eq_u32 s{sR}, 1'); A('s_cbranch_scc1 L_F1_WAITH')
    A('v_mov_b32 v29, 0x3acccccd')
    ln_stats_pk([10, 11, 12, 13, 14], 30, 29)
    unpack4(34, 16)
    ln_apply_pk(34, 30)
    A('v_and_b32 v8, 31, v0'); A('v_lshlrev_b32 v8, 2, v8'); A('v_lshrrev_b32 v9, 5, v0'); A('v_mul_u32_u24 v9, 640, v9'); A('v_add_u32 v8, v8, v9')
    A('s_lshl_b32 s62, s68, 7'); A('v_add_u32 v8, s62, v8')
    mod_addr(8, 8, 9)
    get_nonce(9)
    stamp(1)
    A(f's_mov_b32 s64, {R_MOD}')
    Q = [10, 14, 18, 22, 48, 52, 56, 60]
    A('v_and_b32 v47, 31, v0'); A('v_lshlrev_b32 v47, 3, v47'); A(f's_lshl_b32 s72, s{sX}, 8'); A(f's_add_u32 s72, s72, {R_CLR}')
    poll(lambda: (mod_loads(8, Q, 4), A(f'buffer_load_dwordx2 v[38:39], v47, {srd("WS")}, s72 offen sc1')), [], 9, tags=mod_tags(Q) + [38])
    set_loc(39, 9)
    stamp(2)
    mod_sum(26, Q, 4)
    rbf4(48, 26)
    for r in range(4): A(f'v_mov_b32 v{52+r}, v{48+r}')
    for r in range(4): A(f'v_permlane32_swap_b32 v{48+r}, v{52+r}')
    for r in range(4): A(f'v_add_f32 v{52+r}, 1.0, v{52+r}')
    rbf4(52, 52)
    for r in range(4): A(f'v_mul_f32 v{52+r}, v{34+r}, v{52+r}')
    rbf4(52, 52)
    for r in range(4): A(f'v_add_f32 v{52+r}, v{52+r}, v{48+r}')
    A('v_cvt_pk_bf16_f32 v56, v52, v53'); A('v_cvt_pk_bf16_f32 v57, v54, v55')
    A('v_and_b32 v8, 31, v0'); A('v_lshlrev_b32 v8, 3, v8')
    A(f'ds_write_b64 v8, v[56:57] offset:{HV}')
    lds_set(F_H)
    dstamp(2, 8, vt=(1, 47))
    A('s_branch L_F01_C')
    A('L_F1_WAITH:')
    lds_wait(F_H, vZ, 18)
    A('L_F01_C:')
    for u in range(4):
        A(f'ds_read2_b64 v[{48+4*u}:{51+4*u}], v46 offset0:{HV//8 + 8*u} offset1:{HV//8 + 8*u + 4}')
    for r in range(16): A(f'v_mov_b32 v{20+r}, 0')
    A('v_and_b32 v8, 15, v0'); A('v_lshlrev_b32 v8, 6, v8'); A('v_lshrrev_b32 v9, 4, v0'); A('v_lshl_add_u32 v8, v9, 4, v8')
    A('s_mul_i32 s70, s68, 24576'); A(f's_mul_i32 s62, s{sX}, 3072'); A('s_add_u32 s70, s70, s62'); A('s_lshl_b32 s62, s69, 9'); A('s_add_u32 s70, s70, s62')
    A(f's_lshl_b32 s62, s{sR}, 8'); A('s_add_u32 s70, s70, s62')
    A(f's_add_u32 s72, s70, {R_Q[0]}')
    A('s_waitcnt lgkmcnt(0)')
    for u in range(4):
        for ct in range(4):
            r = 64 + (u * 4 + ct) * 4
            A(f'v_mfma_f32_16x16x32_bf16 v[{20+4*ct}:{23+4*ct}], v[{r}:{r+3}], v[{48+4*u}:{51+4*u}], v[{20+4*ct}:{23+4*ct}]')
    lds_wait(F_CLR, vZ, 9)
    get_loc(9)
    merge4(20, 36)
    for r in range(4): A(f'v_or_b32 v{36+r}, 1, v{36+r}')
    set_exec(0x000f000f000f000f)
    loc_store(f'buffer_store_dwordx4 v[36:39], v8, {srd("WS")}, s72 offen')
    full_exec()
    stamp(3)
    A('s_branch L_F01_D')
    A('L_F01_SKIPB:')
    lds_inc(CNT_FREE)
    get_nonce(9)
    lds_wait(F_CLR, vZ, 9)
    A('L_F01_D:')
    A(f's_cmp_eq_u32 s{sR}, 1'); A('s_cbranch_scc1 L_F1_T')
    A(f's_cmp_lt_u32 s{sI}, 30'); A('s_cbranch_scc1 L_F0_QG')
    A('v_and_b32 v8, 31, v0'); A('v_lshlrev_b32 v8, 3, v8'); A(f's_lshl_b32 s64, s{sX}, 8'); A(f's_add_u32 s64, s64, {R_CLR}')
    poll(lambda: A(f'buffer_load_dwordx2 v[10:11], v8, {srd("WS")}, s64 offen sc1'), [], 9, tags=[10], sleep=8)
    set_loc(11, 9)
    A('L_F0_QG:')
    A('v_lshlrev_b32 v40, 4, v0'); A(f's_mul_i32 s62, s{sH}, 768'); A('v_add_u32 v40, s62, v40')
    for ks in range(1, 5): A(f'v_add_u32 v{40+ks}, {24576*ks}, v40')
    A('v_lshlrev_b32 v8, 3, v0')
    set_exec((1 << 48) - 1)
    def ld():
        for ks in range(5): A(f'buffer_load_dwordx4 v[{48+4*ks}:{51+4*ks}], v{40+ks}, {srd("WS")}, s64 offen sc1')
    poll(ld, list(range(48, 68)), 18, regionAB=R_Q)
    tree_add(48, 4)
    for h2 in range(2): A(f'v_pk_add_f32 v[{48+2*h2}:{49+2*h2}], v[{48+2*h2}:{49+2*h2}], v[{64+2*h2}:{65+2*h2}]')
    A('v_cvt_pk_bf16_f32 v56, v48, v49'); A('v_cvt_pk_bf16_f32 v57, v50, v51')
    A(f'ds_write_b64 v8, v[56:57] offset:{QV}')
    full_exec()
    lds_set(F_Q)
    dstamp(3, 8, vt=(1, 47))
    stamp(4)
    A(f's_lshl_b32 s62, s{sH}, 9'); A('v_add_u32 v14, s62, v8')
    poll(lambda: A(f'buffer_load_dwordx2 v[12:13], v14, {srd("WS")}, s64 offen sc1'), [12, 13], 15, regionAB=R_ST, sleep=2)
    A('v_and_b32 v12, 0xffff0000, v12')
    A('v_mov_b32 v16, v12')
    allreduce([16], 'v_max_f32', [15])
    A('v_sub_f32 v12, v12, v16'); A(f'v_mul_f32 v12, {LOG2E}, v12'); A('v_exp_f32 v12, v12'); A('v_mul_f32 v17, v12, v13')
    allreduce([17], 'v_add_f32', [15])
    A(f'ds_write_b64 v3, v[16:17] offset:{ML}')
    lds_set(F_ML)
    dstamp(5, 8, vt=(1, 47))
    stamp(5)
    if DYN:
        branch_if_not_gcand('L_F01_PV')
        set_exec(1)
        A('v_mov_b32 v12, 1')
        A(f'buffer_atomic_add v12, v3, {srd("DBG")}, 0 offen offset:192 sc0 sc1')
        A('s_waitcnt vmcnt(0)')
        A('v_readfirstlane_b32 s62, v12')
        A(f's_mul_hi_u32 s63, s62, {(1 << 32) // 56 + 1}'); A('s_mul_i32 s63, s63, 56'); A('s_sub_u32 s62, s62, s63'); A('s_add_u32 s62, s62, 1')
        A('v_mov_b32 v12, s62')
        A(f'ds_write_b32 v3, v12 offset:{F_TK}')
        full_exec()
    A('s_branch L_F01_PV')
    A('L_F1_T:')
    A(f's_cmp_lt_u32 s{sI}, 20'); A('s_cbranch_scc1 L_F01_PV')
    if not DYN: branch_if_no_role('L_F01_PV')
    get_nonce(9)
    A('v_lshlrev_b32 v8, 4, v0')
    A(f's_mov_b32 s64, {R_MF}'); A(f's_mov_b32 s72, {R_CLR}'); A(f's_mov_b32 s73, {R_MF + 4096}')
    if DYN: branch_if_not_gcand('L_F1_TD')
    else: A(f's_cmp_ge_u32 s{sI}, 26'); A('s_cbranch_scc1 L_F1_TD')
    def ld():
        A(f'buffer_load_dwordx4 v[12:15], v8, {srd("WS")}, s72 offen sc1')
        A(f'buffer_load_dwordx4 v[48:51], v8, {srd("WS")}, s72 offen offset:1024 sc1')
        for k in range(8):
            A(f'buffer_load_dwordx4 v[{16+4*k}:{19+4*k}], v8, {srd("WS")}, {"s64" if k < 4 else "s73"} offen offset:{1024*(k%4)} sc1')
    poll(ld, [], 9, tags=[12, 14, 48, 50] + [17 + 4 * k for k in range(8)] + [19 + 4 * k for k in range(8)], sleep=8)
    for k in range(8):
        q = 16 + 4 * k
        A(f'v_and_b32 v{q+3}, 0xffff0000, v{q+2}'); A(f'v_lshlrev_b32 v{q+2}, 16, v{q+2}')
        A(f'v_and_b32 v{q+1}, 0xffff0000, v{q}'); A(f'v_lshlrev_b32 v{q}, 16, v{q}')
        if k >= 5:
            for r in range(4): A(f'v_add_f32 v{q+r}, 1.0, v{q+r}')
            rbf4(q, q)
        A(f'ds_write_b128 v8, v[{q}:{q+3}] offset:{MODV + 1024*k}')
    lds_set(F_MV)
    stamp(4)
    A('s_branch L_F01_PV')
    A('L_F1_TD:')
    d_index()
    A('v_and_b32 v10, 3, v0'); A('v_lshlrev_b32 v10, 4, v10'); A('s_lshl_b32 s62, s75, 6'); A(f's_add_u32 s64, s62, {R_MF + 7680}')
    def ld():
        A(f'buffer_load_dwordx4 v[12:15], v8, {srd("WS")}, s72 offen sc1')
        A(f'buffer_load_dwordx4 v[48:51], v8, {srd("WS")}, s72 offen offset:1024 sc1')
        A(f'buffer_load_dwordx4 v[16:19], v10, {srd("WS")}, s64 offen sc1')
    poll(ld, [], 9, tags=[12, 14, 48, 50, 17, 19], sleep=8)
    A('v_and_b32 v19, 0xffff0000, v18'); A('v_lshlrev_b32 v18, 16, v18'); A('v_and_b32 v17, 0xffff0000, v16'); A('v_lshlrev_b32 v16, 16, v16')
    A(f'ds_write_b128 v10, v[16:19] offset:{MODV}')
    lds_set(F_MV)
    stamp(4)
    A('L_F01_PV:')
    dry_check('L_DRYRET')
    lds_wait(CNT_VD, vZ, 9, cmp_val=6)
    A(f's_mul_i32 s62, s{sR}, 24576'); A(f's_add_u32 s62, s62, {LDS_A}'); A('v_lshl_add_u32 v8, v0, 4, s62')
    for n in range(24): A(f'ds_read_b128 v[{32+4*n}:{35+4*n}], v8 offset:{1024*n}')
    A('s_waitcnt lgkmcnt(0)')
    A('s_branch L_PV')

    A('L_F2:')
    A('s_cmp_ge_u32 s2, 240'); A('s_cbranch_scc1 L_F2_NONE')
    A('s_lshr_b32 s68, s2, 2'); A('s_and_b32 s69, s2, 3')
    A('v_lshlrev_b32 v7, 3, v0'); A('s_mul_i32 s62, s69, 320')
    A(f'buffer_load_dwordx2 v[10:11], v7, {srd("C")}, s62 offen')
    dma_addr(128, 7680, 6, 8, 9)
    A(f's_mul_i32 s70, s69, {160 * 7680}'); A('s_lshl_b32 s62, s68, 7'); A('s_add_u32 s70, s70, s62')
    dma_issue(20, 'WMOD', 6, 70, 8 * 7680, None, LDS_A, pol=FPOL)
    A('s_barrier')
    A('s_waitcnt vmcnt(20)')
    unpack4(12, 10)
    A(f's_mov_b32 s62, {LOG2E | 0x80000000}')
    for r in range(4): A(f'v_mul_f32 v{16+r}, s62, v{12+r}')
    for r in range(4): A(f'v_exp_f32 v{16+r}, v{16+r}')
    for r in range(4): A(f'v_add_f32 v{16+r}, 1.0, v{16+r}')
    for r in range(4): fdiv(12 + r, 12 + r, 16 + r, 20, 21, 22, 23)
    A('v_cvt_pk_bf16_f32 v16, v12, v13'); A('v_cvt_pk_bf16_f32 v17, v14, v15')
    set_exec((1 << 40) - 1)
    A(f'ds_write_b64 v7, v[16:17] offset:{SC}')
    full_exec()
    tr_addr(128, 6, 10, 11, base_imm=LDS_A)
    A(f'v_lshrrev_b32 v10, 4, v0'); A('v_lshlrev_b32 v10, 3, v10')
    for u in range(5):
        A(f'ds_read2_b64 v[{28+4*u}:{31+4*u}], v10 offset0:{SC//8 + 8*u} offset1:{SC//8 + 8*u + 4}')
    A('v_and_b32 v11, 15, v0'); A('v_lshlrev_b32 v11, 6, v11'); A('v_lshrrev_b32 v12, 4, v0'); A('v_lshl_add_u32 v11, v12, 4, v11')
    if dry:
        A(f's_mov_b32 s{sLIVE}, 0'); A('s_mov_b64 exec, 0')
    A('L_F2_B:')
    A(f's_cbranch_execz L_F2_B1'); A(f's_waitcnt vmcnt({FA_AT})'); lds_set(F_A); A('s_waitcnt vmcnt(0)'); A('L_F2_B1:')
    stamp(1)
    for u in range(5):
        for ct in range(4):
            r = 48 + (u * 4 + ct) * 4
            for hh in range(2):
                A(f'ds_read_b64_tr_b16 v[{r+2*hh}:{r+2*hh+1}], v{6+ct} offset:{(32*u+16*hh)*128}')
    for r in range(16): A(f'v_mov_b32 v{12+r}, 0')
    A('s_waitcnt lgkmcnt(0)')
    lds_inc(CNT_FREE)
    for u in range(5):
        for ct in range(4):
            r = 48 + (u * 4 + ct) * 4
            A(f'v_mfma_f32_16x16x32_bf16 v[{12+4*ct}:{15+4*ct}], v[{r}:{r+3}], v[{28+4*u}:{31+4*u}], v[{12+4*ct}:{15+4*ct}]')
    A(f's_lshl_b32 s70, s2, 9'); A(f's_add_u32 s70, s70, {R_MOD}')
    get_nonce(49)
    merge4(12, 52)
    stamp(2)
    A('v_mov_b32 v56, v52'); A('v_mov_b32 v58, v53'); A('v_mov_b32 v60, v54'); A('v_mov_b32 v62, v55')
    for r in (57, 59, 61, 63): A(f'v_mov_b32 v{r}, s{sN}')
    set_exec(0x000f000f000f000f)
    A(f'buffer_store_dwordx4 v[56:59], v11, {srd("WS")}, s70 offen sc1')
    A(f'buffer_store_dwordx4 v[60:63], v11, {srd("WS")}, s70 offen offset:256 sc1')
    full_exec()
    dstamp(1, 8, vt=(1, 47))
    stamp(3)
    if dry:
        A('s_cbranch_execnz L_VSTREAM')
        A(f's_mov_b32 s{sLIVE}, -1'); A('s_mov_b64 exec, -1'); A('s_branch L_F2_B')
    A('s_branch L_VSTREAM')
    A('L_F2_NONE:')
    A('s_barrier')
    lds_set(F_A)
    lds_inc(CNT_FREE)
    A('s_branch L_VSTREAM')

    A('L_F3:')
    A(f's_cmp_ge_u32 s{sR}, 4'); A('s_cbranch_scc1 L_F4')
    A('s_cmp_lg_u32 s2, 0'); A('s_cbranch_scc1 L_F3_B')
    A('s_memrealtime s[62:63]'); A('s_waitcnt lgkmcnt(0)'); A('s_or_b32 s62, s62, 1'); A('v_mov_b32 v8, s62')
    set_exec(1)
    A('v_mov_b32 v9, 0')
    A(f'buffer_atomic_cmpswap v[8:9], v3, {srd("DBG")}, 0 offen sc1')
    full_exec()
    A('L_F3_B:')
    A('v_lshlrev_b32 v7, 2, v0'); A('ds_write_b32 v7, v3')
    for k in range(3): A(f'ds_write_b32 v7, v3 offset:{OACC + 256*k}')
    A('s_waitcnt lgkmcnt(0)')
    A('s_barrier')
    set_exec(1)
    poll(lambda: A(f'buffer_load_dword v9, v3, {srd("DBG")}, 0 offen sc1'), [9], 10, sleep=NSLEEP)
    A(f'ds_write_b32 v3, v9 offset:{F_N}')
    full_exec()
    stamp(1)
    A('s_branch L_VSTREAM')
    A('L_F4:')
    A(f's_cmp_lg_u32 s{sR}, 4'); A('s_cbranch_scc1 L_F5')
    for r in range(4): A(f'v_mov_b32 v{8+r}, 0')
    kb_pi()
    A('s_mul_i32 s70, s68, 24576'); A(f's_mul_i32 s62, s{sX}, 3072'); A('s_add_u32 s70, s70, s62'); A('s_lshl_b32 s62, s69, 9'); A('s_add_u32 s70, s70, s62')
    A(f's_add_u32 s70, s70, {R_Q[0]}')
    A('v_and_b32 v12, 31, v0'); A('v_lshlrev_b32 v12, 4, v12'); A('v_lshrrev_b32 v13, 5, v0'); A(f'v_mul_u32_u24 v13, {R_Q[1]-R_Q[0]}, v13'); A('v_add_u32 v12, v12, v13')
    A(f's_cmp_ge_u32 s{sI}, 30'); A('s_cbranch_scc1 L_F4_B')
    set_exec(0xffffffff)
    A(f'buffer_store_dwordx4 v[8:11], v12, {srd("WS")}, s70 offen sc1')
    full_exec()
    A('L_F4_B:')
    A(f's_lshl_b32 s62, s{sH}, 3'); A(f's_add_u32 s62, s62, s{sS}'); A('s_mul_i32 s71, s62, 768'); A('s_lshl_b32 s72, s62, 6')
    A('v_lshlrev_b32 v12, 4, v0')
    A(f's_add_u32 s73, s71, {R_O[0]}'); A('v_add_u32 v13, s73, v12')
    A(f's_add_u32 s73, s72, {R_ST[0] - 768}'); A('v_add_u32 v14, s73, v12')
    A('v_cmp_lt_u32 vcc, 47, v0'); A('v_cndmask_b32 v13, v13, v14, vcc')
    A(f's_add_u32 s73, s71, {R_O[1]}'); A('v_add_u32 v15, s73, v12')
    A(f's_add_u32 s73, s72, {R_ST[1] - 768}'); A('v_add_u32 v14, s73, v12')
    A('v_cndmask_b32 v15, v15, v14, vcc')
    A(f's_cmp_ge_u32 s{sI}, 20'); A('s_cbranch_scc1 L_F4_C')
    A(f's_and_b32 s62, s{sI}, 1'); A(f's_lshl_b32 s63, s{sX}, 1'); A('s_add_u32 s62, s62, s63'); A('s_mul_i32 s74, s62, 2560')
    A(f's_lshr_b32 s62, s{sI}, 1'); A('s_lshl_b32 s62, s62, 8'); A('s_add_u32 s74, s74, s62'); A(f's_add_u32 s74, s74, {R_Y}')
    set_exec(0xffff)
    A(f'buffer_store_dwordx4 v[8:11], v12, {srd("WS")}, s74 offen sc1')
    full_exec()
    A('s_branch L_F4_D')
    A('L_F4_C:')
    A(f's_cmp_ge_u32 s{sI}, 26'); A('s_cbranch_scc1 L_F4_D')
    A(f's_mul_i32 s75, s{sX}, 6'); A(f's_add_u32 s75, s75, s{sI}'); A('s_sub_u32 s75, s75, 20')
    A('s_and_b32 s62, s75, 1'); A('s_mul_i32 s74, s62, 3072'); A('s_lshr_b32 s62, s75, 1'); A('s_lshl_b32 s62, s62, 7'); A('s_add_u32 s74, s74, s62'); A(f's_add_u32 s74, s74, {R_HM}')
    set_exec(0xff)
    A(f'buffer_store_dwordx4 v[8:11], v12, {srd("WS")}, s74 offen sc1')
    full_exec()
    A('s_cmp_ge_u32 s75, 8'); A('s_cbranch_scc1 L_F4_D')
    A('s_mul_i32 s63, s75, 160'); A(f's_add_u32 s63, s63, {R_X2}')
    set_exec(0x3ff)
    A(f'buffer_store_dwordx4 v[8:11], v12, {srd("WS")}, s63 offen sc1')
    full_exec()
    A('L_F4_D:')
    set_exec((1 << 52) - 1)
    A(f'buffer_store_dwordx4 v[8:11], v13, {srd("WS")}, 0 offen sc1')
    full_exec()
    A('s_barrier')
    A('s_waitcnt vmcnt(0)')
    lds_set(F_CLR)
    stamp(1)
    get_nonce(12)
    A(f'v_mov_b32 v12, s{sN}')
    A('s_getreg_b32 s62, hwreg(HW_REG_XCC_ID)'); A('s_and_b32 s62, s62, 15'); A('s_add_u32 s62, s62, 1'); A('v_mov_b32 v13, s62')
    A(f's_lshl_b32 s70, s{sX}, 5'); A(f's_add_u32 s70, s70, s{sI}'); A('s_lshl_b32 s70, s70, 3'); A(f's_add_u32 s70, s70, {R_CLR}')
    set_exec(1)
    A(f'buffer_store_dwordx2 v[12:13], v3, {srd("WS")}, s70 offen sc1')
    full_exec()
    stamp(2)
    A('s_branch L_VSTREAM')
    A('L_F5:')
    A('s_barrier')
    A(f's_cmp_lg_u32 s{sR}, 5'); A('s_cbranch_scc1 L_F6')
    A('s_cmp_ge_u32 s2, 40'); A('s_cbranch_scc1 L_F6')
    A('v_lshrrev_b32 v8, 4, v0'); A('v_lshlrev_b32 v8, 9, v8'); A('v_and_b32 v9, 15, v0'); A('v_lshlrev_b32 v9, 4, v9'); A('v_add_u32 v8, v8, v9')
    A('s_lshl_b32 s64, s2, 11'); A(f's_add_u32 s64, s64, {R_MOD + 20 * 2048}')
    A('s_lshl_b32 s72, s2, 8'); A(f's_add_u32 s72, s72, {R_MF}')
    get_nonce(10)
    def ld():
        A(f'buffer_load_dwordx4 v[12:15], v8, {srd("WS")}, s64 offen sc1')
        A(f'buffer_load_dwordx4 v[16:19], v8, {srd("WS")}, s64 offen offset:256 sc1')
    poll(ld, [], 10, tags=[13, 15, 17, 19], sleep=8)
    vals = [12, 14, 16, 18]
    for sw in ('v_permlane16_swap_b32', 'v_permlane32_swap_b32'):
        for r in vals: A(f'v_mov_b32 v{r+1}, v{r}')
        for r in vals: A(f'{sw} v{r}, v{r+1}')
        for r in vals: A(f'v_add_f32 v{r}, v{r}, v{r+1}')
    A('v_cvt_pk_bf16_f32 v20, v12, v14'); A('v_cvt_pk_bf16_f32 v22, v16, v18'); A(f'v_mov_b32 v21, s{sN}'); A(f'v_mov_b32 v23, s{sN}')
    set_exec(0xffff)
    A(f'buffer_store_dwordx4 v[20:23], v9, {srd("WS")}, s72 offen sc1')
    full_exec()
    stamp(2)
    A('L_F6:')
    if PRET:
        A(f's_cmp_lg_u32 s{sR}, 7'); A('s_cbranch_scc1 L_F7_X')
        A('v_lshlrev_b32 v8, 17, v0')
        set_exec(0xffff)
        A(f'buffer_load_dword v9, v8, {srd("WG")}, 0 offen nt'); A(f'buffer_load_dword v10, v8, {srd("WU")}, 0 offen nt'); A(f'buffer_load_dword v11, v8, {srd("WD")}, 0 offen nt')
        A(f's_mul_i32 s62, s{sX}, {768 * 1280}')
        set_exec(0x1ff)
        A(f'buffer_load_dword v12, v8, {srd("WO")}, s62 offen nt')
        set_exec(0x3)
        A(f'buffer_load_dword v13, v8, {srd("V")}, s67 offen nt')
        set_exec(1)
        A(f'buffer_load_dword v14, v3, {srd("OUT")}, 0 offen nt')
        full_exec()
        A('L_F7_X:')
    if TD == 's':
        A(f's_cmp_lt_u32 s{sR}, 6'); A('s_cbranch_scc1 L_F6_X')
        A(f's_cmp_lt_u32 s{sI}, 26'); A('s_cbranch_scc1 L_F6_X')
        branch_if_no_role('L_F6_X')
        d_index()
        dma_addr(32, 1280, 6, 7, 8)
        A(f's_sub_u32 s76, s{sR}, 6')
        A(f's_mul_i32 s77, s76, {768 * 1280}'); A('s_lshl_b32 s62, s75, 5'); A('s_add_u32 s77, s77, s62')
        A(f's_mul_i32 s78, s76, 24576'); A(f's_add_u32 s78, s78, {LDS_T}')
        lds_wait(CNT_B, vZ, 9, cmp_val=2)
        dma_issue(24, 'WD', 6, 77, 32 * 1280, 78, pace=DPACE, pol=TPOL)
        A('s_waitcnt vmcnt(0)')
        lds_inc(CNT_TD)
        A('L_F6_X:')
    if dry:
        for r in list(range(6, 48)): A(f'v_mov_b32 v{r}, 0')
        A(f's_mov_b32 s{sLIVE}, 0'); A('s_mov_b64 exec, 0')
        A(f's_cmp_eq_u32 s{sR}, 5'); A('s_cbranch_scc1 L_F5_K')
        A(f's_cmp_eq_u32 s{sR}, 6'); A('s_cbranch_scc1 L_F6_F')
        A('s_branch L_PV')
        A('L_F5_K:'); A(f's_mov_b32 s{sR}, 0'); A('s_branch L_K_DRY')
        A('L_F6_F:'); A(f's_mov_b32 s{sR}, 0'); kb_pi(); A(f's_mov_b32 s71, {LDS_B}'); A('s_branch L_F01_DRY')
        A('L_DRYRET:')
        A(f's_mov_b32 s{sLIVE}, -1'); A('s_mov_b64 exec, -1'); A(f's_and_b32 s{sR}, s{sW}, 7')
        stamp(1)
    else:
        A('L_DRYRET:')

    VD = 32
    A('L_VSTREAM:')
    A('s_waitcnt vmcnt(0)')
    A(f's_sub_u32 s68, s{sR}, 2'); A('s_cmp_ge_u32 s68, 3'); A('s_cselect_b32 s69, 1, 0')
    A('s_mul_i32 s62, s69, 3'); A('s_sub_u32 s68, s68, s62')
    A('s_mul_i32 s70, s69, 24576'); A(f's_add_u32 s71, s70, {LDS_A}'); A('s_add_u32 s70, s70, s67')
    A('s_lshl_b32 s62, s68, 13'); A('s_add_u32 s71, s71, s62')
    lds_wait(CNT_FREE, vZ, 6, cmp_val=3)
    lds_wait(KISS, vPF, 6)
    stamp(5)
    d0 = DV0 or DV
    def vload(n):
        T, tt, c = n // 12, (n % 12) // 3, n % 3
        A(f'buffer_load_dwordx4 v[{VD+4*n}:{VD+4*n+3}], v2, {srd("V")}, s{65+T} offen offset:{tt*384+c*128} {KVPOL}')
    A('s_lshl_b32 s68, s68, 3'); A('s_mov_b32 s69, 0'); A('s_mov_b32 s74, 0'); A('s_mov_b32 s75, 0')
    A('L_VP:')
    A('s_lshl_b32 s62, s68, 7'); A('s_cmp_ge_u32 s68, 12'); A('s_cselect_b32 s63, 10752, 0'); A('s_add_u32 s62, s62, s63'); A('s_add_u32 s62, s62, s70')
    A('s_mov_b32 m0, s71')
    A(f'buffer_load_dwordx4 v2, {srd("V")}, s62 offen {KVPOL} lds')
    A('s_add_u32 s71, s71, 1024'); A('s_add_u32 s68, s68, 1'); A('s_add_u32 s69, s69, 1')
    A('s_cmp_lg_u32 s74, 0'); A('s_cbranch_scc1 L_VP_N')
    A(f'ds_read_b32 v6, v{vPF} offset:{PRDY}')
    A(f's_waitcnt vmcnt({d0-1}) lgkmcnt(0)')
    A('v_readfirstlane_b32 s74, v6')
    A('L_VP_N:')
    A('s_cmp_lt_u32 s69, 8'); A('s_cbranch_scc1 L_VP')
    A('s_cmp_lg_u32 s74, 0'); A('s_cbranch_scc1 L_VF_0')
    for n in range(24):
        vload(n)
        if n + 1 < 24 - VFREE:
            A(f'ds_read_b32 v6, v{vPF} offset:{PRDY}')
            A(f's_waitcnt vmcnt({DV-1}) lgkmcnt(0)')
            if n + 1 == DV:
                lds_inc(CNT_VD); A('s_mov_b32 s75, 1')
            A('v_readfirstlane_b32 s62, v6'); A('s_cmp_lg_u32 s62, 0'); A(f's_cbranch_scc1 L_VF_{n+1}')
    A('s_branch L_VF_E')
    for n in range(24):
        A(f'L_VF_{n}:'); vload(n)
    A('s_cmp_lg_u32 s75, 0'); A('s_cbranch_scc1 L_VF_E')
    lds_inc(VISS)
    A('s_waitcnt vmcnt(24)')
    lds_inc(CNT_VD)
    A('s_branch L_VF_E2')
    A('L_VF_E:')
    lds_inc(VISS)
    A('L_VF_E2:')
    if WV:
        A(f's_cmp_ge_u32 s{sI}, 20'); A('s_cbranch_scc1 L_WV_NO')
        dma_addr(128, 1280, 6, 7, 8)
        A(f's_mul_i32 s70, s{sX}, 768'); A(f's_and_b32 s62, s{sI}, 1'); A('s_mul_i32 s62, s62, 384'); A('s_add_u32 s70, s70, s62')
        A(f's_sub_u32 s71, s{sR}, 2'); A('s_lshl_b32 s62, s71, 6'); A('s_add_u32 s70, s70, s62'); A('s_mul_i32 s70, s70, 1280')
        A(f's_lshr_b32 s62, s{sI}, 1'); A('s_lshl_b32 s62, s62, 7'); A('s_add_u32 s70, s70, s62')
        A('s_lshl_b32 s71, s71, 13'); A(f's_add_u32 s71, s71, {LDS_T}')
        dma_issue(8, 'WO', 6, 70, 8 * 1280, 71, pol=TPOL)
        A('s_branch L_WV_E')
        A('L_WV_NO:')
        A('v_mov_b32 v6, 0x7ffff000')
        for k in range(8): A(f'buffer_load_dword v2, v6, {srd("X")}, 0 offen')
        A('L_WV_E:')
    if diagV:
        stamp(3); A('s_waitcnt vmcnt(0)'); stamp(4)
    A('L_PV:')
    A('v_and_b32 v14, 7, v0')
    A('v_and_b32 v15, 1, v14'); A('v_lshlrev_b32 v15, 4, v15'); A('v_mov_b32 v10, 0xffff'); A('v_lshlrev_b32 v15, v15, v10')
    A('v_lshrrev_b32 v14, 1, v14')
    for d in range(4):
        A(f'v_cmp_eq_u32 vcc, {d}, v14'); A(f'v_cndmask_b32 v{6+d}, 0, v15, vcc')
    for r in range(12): A(f'v_mov_b32 v{16+r}, 0')
    A('v_lshrrev_b32 v14, 3, v0'); A('v_lshlrev_b32 v14, 4, v14'); A(f's_lshl_b32 s62, s{sR}, 8'); A('v_add_u32 v14, s62, v14')
    A('v_bfe_u32 v1, v0, 4, 1'); A('v_lshlrev_b32 v1, 7, v1'); A('v_and_b32 v15, 7, v0'); A('v_lshl_add_u32 v1, v15, 2, v1')
    A('v_lshrrev_b32 v15, 5, v0'); A('v_lshl_add_u32 v1, v15, 5, v1'); A(f's_mul_i32 s62, s{sR}, 768'); A('v_add_u32 v1, s62, v1')
    A(f's_lshl_b32 s62, s{sH}, 3'); A(f's_add_u32 s62, s62, s{sS}'); A('s_mul_i32 s62, s62, 768')
    A(f's_add_u32 s72, s62, {R_O[0]}')
    lds_wait(PRDY, vPF, 15)
    get_loc(15)
    stamp(6)
    for T in range(2):
        A(f'ds_read_b128 v[10:13], v14 offset:{PD + 128*T}')
        A('s_waitcnt lgkmcnt(0)')
        for tt in range(4):
            t = 4 * T + tt
            for d in range(4): A(f'v_and_b32 v{28+d}, v{10+tt}, v{6+d}')
            for c in range(3):
                n = 3 * t + c
                A(f's_waitcnt vmcnt({23-n+(8 if WV else 0)})')
                A(f'v_mfma_f32_16x16x32_bf16 v[{16+4*c}:{19+4*c}], v[{VD+4*n}:{VD+4*n+3}], v[28:31], v[{16+4*c}:{19+4*c}]')
    A('v_lshlrev_b32 v14, 4, v0')
    for k in range(6): A(f'v_permlane32_swap_b32 v{16+2*k}, v{17+2*k}')
    for k in range(6): A(f'v_add_f32_dpp v{16+2*k}, v{17+2*k}, v{16+2*k} row_ror:8 row_mask:0xf bank_mask:0xf')
    set_exec(0x00ff00ff00ff00ff)
    for k in range(6): A(f'ds_write_b32 v1, v{16+2*k} offset:{RED + 256*(k//2) + 64*(k%2)}')
    set_exec(1)
    A(f'ds_add_rtn_u32 v15, v3, v4 offset:{CNT_O}')
    set_exec((1 << 48) - 1)
    for k in range(8): A(f'ds_read_b128 v[{32+4*k}:{35+4*k}], v14 offset:{RED + 768*k}')
    A('s_waitcnt lgkmcnt(8)')
    A('v_readfirstlane_b32 s62, v15')
    A('s_cbranch_execz L_VRED')
    A('s_cmp_lg_u32 s62, 7'); A('s_cbranch_scc1 L_VEND')
    A('L_VRED:')
    A('s_waitcnt lgkmcnt(0)')
    tree_add(32, 8)
    for r in range(4): A(f'v_or_b32 v{32+r}, 1, v{32+r}')
    loc_store(f'buffer_store_dwordx4 v[32:35], v14, {srd("WS")}, s72 offen')
    lds_set(F_ODONE)
    dstamp(6, 8, vt=(1, 47))
    dry_check('L_DRYRET')
    A('L_VEND:')
    stamp(7)
    if WV:
        A(f's_cmp_lt_u32 s{sR}, 2'); A('s_cbranch_scc1 L_VEND2')
        A(f's_cmp_ge_u32 s{sI}, 20'); A('s_cbranch_scc1 L_VEND2')
        A('s_waitcnt vmcnt(0)')
        lds_inc(CNT_TD)
        A('L_VEND2:')
    if TG == 'w':
        A(f's_cmp_lt_u32 s{sI}, 20'); A('s_cbranch_scc1 L_VEND3')
        A(f's_cmp_ge_u32 s{sI}, 26'); A('s_cbranch_scc1 L_VEND3')
        full_exec()
        A(f's_mul_i32 s75, s{sX}, 6'); A(f's_add_u32 s75, s75, s{sI}'); A('s_sub_u32 s75, s75, 20')
        A('s_bitcmp1_b32 s75, 0')
        A(f's_cselect_b32 s68, s{SRD["WU"]}, s{SRD["WG"]}'); A(f's_cselect_b32 s69, s{SRD["WU"]+1}, s{SRD["WG"]+1}')
        A(f's_mov_b32 s70, {SIZE["WG"]}'); A('s_mov_b32 s71, 0x20000')
        dma_addr(128, 3072, 6, 7, 8)
        A(f's_mul_i32 s72, s{sR}, {80 * 3072}'); A('s_lshr_b32 s62, s75, 1'); A('s_lshl_b32 s62, s62, 7'); A('s_add_u32 s72, s72, s62')
        A(f's_mul_i32 s73, s{sR}, 10240'); A(f's_add_u32 s73, s73, {LDS_T}')
        if GWG: lds_wait(VISS, vZ, 9, cmp_val=6)
        dma_issue(10, 's[68:71]', 6, 72, 8 * 3072, 73, pace=TDEPTH, pol=TPOL)
        A('s_waitcnt vmcnt(0)')
        lds_inc(CNT_TD)
        A('L_VEND3:')
    flush_stamps()
    A('s_endpgm')

    A('L_KWAVE:')
    KD = 32
    def kload(n):
        T, tt, c = n // 12, (n % 12) // 3, n % 3
        A(f'buffer_load_dwordx4 v[{KD+4*n}:{KD+4*n+3}], v2, {srd("K")}, s{65+T} offen offset:{tt*384+c*128} {KVPOL}')
    for n in range(24):
        kload(n)
        if n + 1 == (SOFT or DK):
            A('s_barrier')
            if SOFT and KW == 'a': lds_wait(F_A, vZ, 6)
            if SOFT and KW == 'b': lds_wait(CNT_B, vZ, 6, cmp_val=2)
        if n + 1 >= DK and n + 1 < 24:
            if KADAPT and n + 1 >= KA0:
                A(f'ds_read_b32 v6, v{vZ} offset:{F_Q}')
                A(f's_waitcnt vmcnt({DK-1}) lgkmcnt(0)')
                A('v_readfirstlane_b32 s62, v6'); A('s_cmp_lg_u32 s62, 0'); A(f's_cbranch_scc1 L_KF_{n+1}')
            else:
                A(f's_waitcnt vmcnt({DK-1})')
    if KADAPT:
        A('s_branch L_KF_E')
        for n in range(KA0, 24):
            A(f'L_KF_{n}:'); kload(n)
            if DKF and n + 1 < 24: A(f's_waitcnt vmcnt({DKF-1})')
        A('L_KF_E:')
    lds_set(KISS, vPF)
    dstamp(4, 8, 8, vt=(1, 7))
    stamp(1)
    A('L_K_DRY:')
    A('v_and_b32 v6, 7, v0'); A('v_lshlrev_b32 v6, 4, v6')
    A(f's_lshl_b32 s62, s{sH}, 6'); A(f's_lshl_b32 s63, s{sS}, 3'); A('s_add_u32 s62, s62, s63'); A(f's_add_u32 s62, s62, s{sR}'); A('s_lshl_b32 s62, s62, 3')
    A(f's_add_u32 s72, s62, {R_ST[0]}')
    def setmask(m, s): A(f's_mov_b32 s{s}, {m}'); A(f's_mov_b32 s{s+1}, {m}')
    setmask(0xf0f0f0f0, 80); setmask(0xaaaaaaaa, 82); setmask(0xcccccccc, 84)
    get_loc(7)
    lds_wait(F_Q, vZ, 7)
    stamp(2)
    for c in range(3): A(f'ds_read_b128 v[{8+4*c}:{11+4*c}], v6 offset:{QV + 128*c}')
    A('s_waitcnt lgkmcnt(0)')
    for tp in range(0, 8, 2):
        A(f's_waitcnt vmcnt({21 - 3*(tp+1)})')
        for c in range(3):
            for d in range(4):
                for t in (tp, tp + 1):
                    kr = KD + 4 * (3 * t + c) + d
                    src2 = '0' if (c == 0 and d == 0) else f'v{20+t}'
                    A(f'v_dot2_f32_bf16 v{20+t}, v{kr}, v{8+4*c+d}, {src2}')
    for j in range(4):
        A(f'v_cndmask_b32 v{8+j}, v{20+j}, v{24+j}, s[80:81]')
        A(f'v_cndmask_b32 v{12+j}, v{24+j}, v{20+j}, s[80:81]')
    for j in range(4): A(f'v_add_f32_dpp v{8+j}, v{12+j}, v{8+j} row_half_mirror row_mask:0xf bank_mask:0xf')
    for jj in (0, 1):
        A(f'v_cndmask_b32 v{12+jj}, v{8+2*jj}, v{9+2*jj}, s[82:83]')
        A(f'v_cndmask_b32 v{14+jj}, v{9+2*jj}, v{8+2*jj}, s[82:83]')
    for jj in (0, 1): A(f'v_add_f32_dpp v{12+jj}, v{14+jj}, v{12+jj} quad_perm:[1,0,3,2] row_mask:0xf bank_mask:0xf')
    A('v_cndmask_b32 v8, v12, v13, s[84:85]'); A('v_cndmask_b32 v9, v13, v12, s[84:85]')
    A('v_add_f32_dpp v8, v9, v8 quad_perm:[2,3,0,1] row_mask:0xf bank_mask:0xf')
    rbf(8, 8); A(f'v_mul_f32 v8, {SCALE}, v8'); rbf(8, 8)
    A('v_mov_b32 v9, v8')
    allreduce([9], 'v_max_f32', [10])
    A('v_sub_f32 v10, v8, v9'); A(f'v_mul_f32 v10, {LOG2E}, v10'); A('v_exp_f32 v10, v10')
    allreduce([10], 'v_add_f32', [11])
    A('v_or_b32 v12, 1, v9'); A('v_mov_b32 v13, v10')
    set_exec(1)
    loc_store(f'buffer_store_dwordx2 v[12:13], v3, {srd("WS")}, s72 offen')
    full_exec()
    stamp(3)
    A('v_mov_b32 v127, v8')
    A(f's_cmp_lt_u32 s{sR}, 2'); A('s_cselect_b32 s62, 8, 0'); A('v_add_u32 v126, s62, v5')
    def emit_p():
        lds_wait(F_ML, vZ, 120)
        A(f'ds_read_b64 v[120:121], v3 offset:{ML}')
        A('v_bfe_u32 v122, v0, 2, 1'); A('v_lshlrev_b32 v122, 5, v122'); A('v_lshrrev_b32 v123, 3, v0'); A('v_lshl_add_u32 v122, v123, 2, v122')
        A('v_and_b32 v123, 3, v0'); A('v_add_u32 v122, v122, v123'); A('v_lshlrev_b32 v122, 2, v122'); A(f's_lshl_b32 s62, s{sR}, 8'); A('v_add_u32 v122, s62, v122')
        A('s_waitcnt lgkmcnt(0)')
        A('v_sub_f32 v127, v127, v120'); A(f'v_mul_f32 v127, {LOG2E}, v127'); A('v_exp_f32 v127, v127')
        fdiv(127, 127, 121, 120, 123, 124, 125)
        A('v_cvt_pk_bf16_f32 v127, v127, v127')
        A(f'ds_write_b32 v122, v127 offset:{PD}')
        lds_set(PRDY, vPF)
        stamp(4)
    A(f's_cmp_lt_u32 s{sI}, 20'); A('s_cbranch_scc1 L_TW')
    if DYN:
        branch_if_not_gcand('L_TD')
        emit_p()
        lds_wait(F_TK, vZ, 7)
        A('s_sub_u32 s75, s62, 1')
        A('s_cmp_lt_u32 s75, 48'); A('s_cbranch_scc1 L_TG')
        A('s_branch L_KEND')
    else:
        A(f's_cmp_lt_u32 s{sI}, 26'); A('s_cbranch_scc1 L_TG')
        branch_if_no_role('L_TNONE')
        A('s_branch L_TD')
        A('L_TNONE:')
        emit_p()
        A('s_branch L_KEND')

    FR = 64
    def wg_common(nk, rows_per_kg):
        A(f's_and_b32 s76, s{sR}, 3'); A(f's_lshr_b32 s77, s{sR}, 2')
        A(f's_mul_i32 s78, s76, {rows_per_kg * 128}'); A(f's_add_u32 s78, s78, {LDS_T}')
        A('v_lshrrev_b32 v12, 2, v0'); A('v_lshlrev_b32 v12, 7, v12'); A('v_and_b32 v13, 3, v0'); A('v_lshl_add_u32 v12, v13, 3, v12'); A('v_add_u32 v12, s78, v12')
        A('v_bfe_u32 v13, v0, 3, 2'); A('s_lshl_b32 s62, s77, 1')
        A('v_xor_b32 v10, s62, v13'); A('v_xor_b32 v11, 1, v10')
        A('v_lshl_add_u32 v10, v10, 5, v12'); A('v_lshl_add_u32 v11, v11, 5, v12')
        A(f's_lshl_b32 s74, s{sR}, 9'); A(f's_add_u32 s74, s74, {STG}')
        A('v_lshrrev_b32 v19, 4, v0'); A('v_lshl_add_u32 v19, v19, 3, s74')
        A('v_lshrrev_b32 v18, 4, v0'); A('v_lshlrev_b32 v18, 4, v18'); A('s_lshl_b32 s62, s76, 8'); A('s_lshl_b32 s63, s77, 7'); A('s_add_u32 s62, s62, s63'); A('v_add_u32 v18, s62, v18')
        A('v_lshlrev_b32 v27, 3, v0')
        A(f's_mul_i32 s62, s77, {rows_per_kg * 64}'); A('s_add_u32 s73, s78, s62')
    def wg_fetch(nk, acc):
        for r in range(8): A(f'v_mov_b32 v{acc+r}, 0')
        A('s_waitcnt vmcnt(0)')
        lds_inc(CNT_TD)
        lds_wait(CNT_TD, vZ, 7, cmp_val=8)
        for u in range(nk):
            for ct in range(2):
                r = FR + (u * 2 + ct) * 4
                for hh in range(2): A(f'ds_read_b64_tr_b16 v[{r+2*hh}:{r+2*hh+1}], v{10+ct} offset:{(32*u+16*hh)*128}')
    def wg_mfma(nk, acc, bb):
        for u in range(nk): A(f'ds_read2_b64 v[{bb+4*u}:{bb+3+4*u}], v19 offset0:{8*u} offset1:{8*u+4}')
        for u in range(nk):
            A(f's_waitcnt lgkmcnt({nk-1-u})')
            for ct in range(2):
                r = FR + (u * 2 + ct) * 4
                A(f'v_mfma_f32_16x16x32_bf16 v[{acc+4*ct}:{acc+3+4*ct}], v[{r}:{r+3}], v[{bb+4*u}:{bb+3+4*u}], v[{acc+4*ct}:{acc+3+4*ct}]')
        set_exec(0x0001000100010001)
        for ct in range(2): A(f'ds_write_b128 v18, v[{acc+4*ct}:{acc+3+4*ct}] offset:{TRED + 64*ct}')
        A('s_waitcnt lgkmcnt(0)')
        barrier()
        A(f's_cmp_lg_u32 s{sR}, 0'); A('s_cbranch_scc1 L_KEND')
        set_exec(0xffffffff)
        for k in range(4): A(f'ds_read_b64 v[{32+2*k}:{33+2*k}], v27 offset:{TRED + 256*k}')
        A('s_waitcnt lgkmcnt(0)')
        tree2(32, 4)

    A('L_TW:')
    wg_common(3, 96)
    dma_addr(128, 1280, 6, 7, 8)
    A(f's_and_b32 s75, s{sI}, 1')
    A(f's_mul_i32 s70, s{sX}, 768'); A('s_mul_i32 s62, s75, 384'); A('s_add_u32 s70, s70, s62'); A('s_mul_i32 s62, s76, 96'); A('s_add_u32 s70, s70, s62')
    A(f's_lshl_b32 s62, s{sX}, 2'); A('s_lshl_b32 s63, s75, 1'); A('s_add_u32 s62, s62, s63'); A('s_lshr_b32 s63, s76, 1'); A('s_add_u32 s62, s62, s63'); A('s_mul_i32 s62, s62, 6144')
    A('s_and_b32 s63, s76, 1'); A('s_mul_i32 s63, s63, 384'); A('s_add_u32 s62, s62, s63')
    if X4:
        A('v_lshrrev_b32 v14, 5, v0'); A('v_mul_u32_u24 v14, 3072, v14'); A('v_and_b32 v15, 31, v0'); A('v_lshl_add_u32 v14, v15, 4, v14'); A('v_add_u32 v14, s62, v14')
    else:
        A('v_lshl_add_u32 v14, v0, 3, s62'); A('v_add_u32 v15, 3072, v14')
    A('s_mul_i32 s62, s77, 48'); A('s_add_u32 s70, s70, s62'); A('s_mul_i32 s70, s70, 1280')
    A(f's_lshr_b32 s62, s{sI}, 1'); A('s_lshl_b32 s62, s62, 7'); A('s_add_u32 s70, s70, s62')
    A('v_lshl_add_u32 v16, v15, 3, s74' if X4 else 'v_lshl_add_u32 v16, v0, 2, s74')
    A(f's_lshl_b32 s63, s{sX}, 1'); A('s_add_u32 s63, s63, s75'); A('s_mul_i32 s75, s63, 2560'); A('s_lshl_b32 s62, s62, 1'); A('s_add_u32 s75, s75, s62'); A(f's_add_u32 s75, s75, {R_Y}')
    emit_p()
    def w_tr():
        for u in range(3):
            for ct in range(2):
                r = FR + (u * 2 + ct) * 4
                for hh in range(2): A(f'ds_read_b64_tr_b16 v[{r+2*hh}:{r+2*hh+1}], v{10+ct} offset:{(32*u+16*hh)*128}')
    if not WV:
        tail_gate(TW)
        dma_issue(6, 'WO', 6, 70, 8 * 1280, 73, pace=TDEPTH, pol=TPOL)
        wg_fetch(3, 112)
        stamp(5)
    else:
        for r in range(8): A(f'v_mov_b32 v{112+r}, 0')
    lds_wait(F_ODONE, vZ, 7)
    if X4:
        set_exec(0x00ffffff00ffffff)
        def ld():
            for n in range(4): A(f'buffer_load_dwordx4 v[{32+4*n}:{35+4*n}], v14, {srd("WS")}, s64 offen offset:{768*n} sc1')
        poll(ld, list(range(32, 48)), 7, regionAB=R_O, sleep=0)
        stamp(6)
        tree_add(32, 4)
        half_swap_add(32, 36)
        A('v_cvt_pk_bf16_f32 v36, v32, v33'); A('v_cvt_pk_bf16_f32 v37, v34, v35')
        A('ds_write_b64 v16, v[36:37]')
        full_exec()
    else:
        set_exec((1 << 48) - 1)
        def ld():
            for n in range(8): A(f'buffer_load_dwordx2 v[{32+2*n}:{33+2*n}], v{14 + n//4}, {srd("WS")}, s64 offen offset:{768*(n%4)} sc1')
        poll(ld, list(range(32, 48)), 7, regionAB=R_O, sleep=0)
        stamp(6)
        tree2(32, 8)
        A('v_cvt_pk_bf16_f32 v36, v32, v33')
        A('ds_write_b32 v16, v36')
        full_exec()
    if WV:
        lds_wait(CNT_TD, vZ, 7, cmp_val=6)
        stamp(5)
        w_tr()
    wg_mfma(3, 112, 40)
    for r in range(2): A(f'v_or_b32 v{32+r}, 1, v{32+r}')
    if WIDE:
        A('v_mov_b32_dpp v34, v32 quad_perm:[1,1,3,3] row_mask:0xf bank_mask:0xf'); A('v_mov_b32_dpp v35, v33 quad_perm:[1,1,3,3] row_mask:0xf bank_mask:0xf')
        set_exec(0x55555555)
        A(f'buffer_store_dwordx4 v[32:35], v27, {srd("WS")}, s75 offen sc1')
    else:
        A(f'buffer_store_dwordx2 v[32:33], v27, {srd("WS")}, s75 offen sc1')
    dstamp(7, 8); dstamp(8, 13)
    if YTH:
        set_exec(1)
        A(f'buffer_atomic_add v4, v3, {srd("DBG")}, 0 offen offset:128 sc1')
    A('s_branch L_KEND')

    A('L_TG:')
    if not DYN:
        A(f's_mul_i32 s75, s{sX}, 6'); A(f's_add_u32 s75, s75, s{sI}'); A('s_sub_u32 s75, s75, 20')
    wg_common(5, 160)
    A('s_bitcmp1_b32 s75, 0')
    A(f's_cselect_b32 s68, s{SRD["WU"]}, s{SRD["WG"]}'); A(f's_cselect_b32 s69, s{SRD["WU"]+1}, s{SRD["WG"]+1}')
    A(f's_mov_b32 s70, {SIZE["WG"]}'); A('s_mov_b32 s71, 0x20000'); G_SRD = 's[68:71]'
    dma_addr(128, 3072, 6, 7, 8)
    A('s_mul_i32 s72, s76, 160'); A('s_mul_i32 s62, s77, 80'); A('s_add_u32 s72, s72, s62'); A('s_mul_i32 s72, s72, 3072')
    A('s_lshr_b32 s62, s75, 1'); A('s_lshl_b32 s62, s62, 7'); A('s_add_u32 s72, s72, s62')
    A('s_and_b32 s63, s75, 1'); A('s_mul_i32 s63, s63, 3072'); A('s_add_u32 s62, s62, s63'); A(f's_add_u32 s84, s62, {R_HM}')
    if X4:
        A('v_and_b32 v7, 31, v0'); A('v_min_u32 v7, 19, v7')
        A(f's_mul_i32 s62, s{sR}, 160'); A('v_lshl_add_u32 v14, v7, 3, s62')
        A(f'buffer_load_dwordx2 v[24:25], v14, {srd("X")}, 0 offen')
        A('v_lshlrev_b32 v17, 1, v14')
        A('v_lshrrev_b32 v7, 5, v0'); A('v_mul_u32_u24 v7, 2560, v7'); A('v_add_u32 v26, v7, v17')
        A('v_min_u32 v7, 39, v0')
    else:
        A('v_min_u32 v7, 39, v0')
        A(f's_mul_i32 s62, s{sR}, 160'); A('v_lshl_add_u32 v14, v7, 2, s62')
        A(f'buffer_load_dword v28, v14, {srd("X")}, 0 offen')
        A('v_lshlrev_b32 v17, 1, v14')
        A('v_add_u32 v26, 20480, v17')
    A('s_mul_i32 s62, s76, 320'); A('v_lshl_add_u32 v30, v7, 3, s62')
    A('v_lshlrev_b32 v31, 1, v30')
    A('v_lshl_add_u32 v16, v0, 3, s74')
    A('v_lshlrev_b32 v15, 4, v0'); A('v_lshlrev_b32 v9, 2, v0')
    A('v_mov_b32 v29, 0x3acccccd'); A('v_mov_b32 v8, 0x80000000')
    if not DYN: emit_p()
    lds_wait(F_MV, vZ, 7)
    A(f'ds_read_b128 v[20:23], v17 offset:{MODV}' if X4 else f'ds_read_b64 v[20:21], v17 offset:{MODV}')
    A(f'ds_read_b128 v[104:107], v31 offset:{MODV + 2560}'); A(f'ds_read_b128 v[108:111], v31 offset:{MODV + 5120}')
    def g_tr():
        for u in range(5):
            for ct in range(2):
                r = FR + (u * 2 + ct) * 4
                for hh in range(2): A(f'ds_read_b64_tr_b16 v[{r+2*hh}:{r+2*hh+1}], v{10+ct} offset:{(32*u+16*hh)*128}')
    if TG == 'w':
        for r in range(8): A(f'v_mov_b32 v{112+r}, 0')
        A('s_waitcnt vmcnt(0)'); A('s_mov_b32 s73, 0')
    else:
        tail_gate(TG)
        dma_issue(10, G_SRD, 6, 72, 8 * 3072, 73, pace=TDEPTH, pol=TPOL)
        wg_fetch(5, 112)
    if X4: unpack4(120, 24)
    else: unpack2(22, 28)
    stamp(5)
    for k in range(4): A(f's_mov_b32 s{80+k}, {R_Y + 5120*k}')
    lds_wait(F_ODONE, vZ, 7)
    if X4:
        MG = 0x000fffff000fffff
        set_exec(MG)
        A('s_mov_b32 s85, 0xff'); A('s_mov_b32 s63, 0')
        A('L_GP:')
        for g in range(8):
            A(f's_bitcmp1_b32 s85, {g}'); A(f's_cbranch_scc0 L_GPI_{g}')
            A(f's_mov_b32 s62, {R_Y + 5120*g}')
            A(f'buffer_load_dwordx4 v[{32+4*g}:{35+4*g}], v26, {srd("WS")}, s62 offen sc1')
            A(f'L_GPI_{g}:')
        if TG == 'w':
            A('s_cmp_lg_u32 s73, 0'); A('s_cbranch_scc1 L_GFH')
            A(f'ds_read_b32 v7, v3 offset:{CNT_TD}'); A('s_waitcnt lgkmcnt(0)'); A('v_readfirstlane_b32 s62, v7')
            A('s_cmp_lt_u32 s62, 8'); A('s_cbranch_scc1 L_GFH')
            full_exec(); g_tr(); set_exec(MG)
            A('s_mov_b32 s73, 1')
            A('L_GFH:')
        A('s_waitcnt vmcnt(0)')
        for g in range(8):
            q = 32 + 4 * g
            A(f's_bitcmp1_b32 s85, {g}'); A(f's_cbranch_scc0 L_GPC_{g}')
            A(f'v_min3_u32 v7, v{q}, v{q+1}, v{q+2}'); A(f'v_min_u32 v7, v7, v{q+3}')
            A('v_cmp_eq_u32 vcc, 0, v7')
            A(f's_cbranch_vccnz L_GPC_{g}')
            A(f's_bitset0_b32 s85, {g}')
            A(f'L_GPC_{g}:')
        A('s_cmp_eq_u32 s85, 0'); A('s_cbranch_scc1 L_GPD')
        if TG == 'w' and GSLEEP:
            A('s_cmp_lg_u32 s73, 0'); A('s_cbranch_scc1 L_GNS'); A(f's_sleep {GSLEEP}'); A('L_GNS:')
        if TG != 'w' and GS2: A(f's_sleep {GS2}')
        A('s_add_u32 s63, s63, 1'); A(f's_cmp_lt_u32 s63, {SPIN_MAX}'); A('s_cbranch_scc1 L_GP')
        A('L_GPD:')
        stamp(6)
        tree_add(32, 8)
        half_swap_add(32, 36)
        rbf4(32, 32)
        for h in (0, 2): pk('mul', 32 + h, 32 + h, 20 + h)
        rbf4(32, 32)
        for h in (0, 2): pk('add', 32 + h, 32 + h, 120 + h)
        A('v_cvt_pk_bf16_f32 v40, v32, v33'); A('v_cvt_pk_bf16_f32 v41, v34, v35')
        A(f'ds_write_b64 v14, v[40:41] offset:{X2P}')
    else:
        y_hint(YTH, 'G')
        set_exec((1 << 40) - 1)
        def yld(n):
            A(f'buffer_load_dwordx2 v[{32+2*n}:{33+2*n}], v{17 if n < 8 else 26}, {srd("WS")}, s{80 + (n%8)//2} offen offset:{2560*(n%2)} sc1')
        if not GMASK:
            def ld():
                for n in range(16): yld(n)
            poll(ld, list(range(32, 64)), 7)
        else:
            A('s_mov_b32 s85, 0xff'); A('s_mov_b32 s63, 0')
            A('L_GP:')
            for g in range(8):
                A(f's_bitcmp1_b32 s85, {g}'); A(f's_cbranch_scc0 L_GPI_{g}')
                yld(2 * g); yld(2 * g + 1)
                A(f'L_GPI_{g}:')
            A('s_waitcnt vmcnt(0)')
            for g in range(8):
                q = 32 + 4 * g
                A(f's_bitcmp1_b32 s85, {g}'); A(f's_cbranch_scc0 L_GPC_{g}')
                A(f'v_min3_u32 v7, v{q}, v{q+1}, v{q+2}'); A(f'v_min_u32 v7, v7, v{q+3}')
                A('v_cmp_eq_u32 vcc, 0, v7')
                A(f's_cbranch_vccnz L_GPC_{g}')
                A(f's_bitset0_b32 s85, {g}')
                A(f'L_GPC_{g}:')
            A('s_cmp_eq_u32 s85, 0'); A('s_cbranch_scc1 L_GPD')
            A('s_add_u32 s63, s63, 1'); A(f's_cmp_lt_u32 s63, {SPIN_MAX}'); A('s_cbranch_scc1 L_GP')
            A('L_GPD:')
        stamp(6)
        tree2(32, 16)
        rbf2(32, 32, 36)
        pk('mul', 32, 32, 20)
        rbf2(32, 32, 36)
        pk('add', 32, 32, 22)
        A('v_cvt_pk_bf16_f32 v37, v32, v33')
        A(f'ds_write_b32 v14, v37 offset:{X2P}')
    full_exec()
    A('s_waitcnt lgkmcnt(0)')
    barrier()
    A(f'ds_read_b128 v[32:35], v15 offset:{X2P}'); A(f'ds_read_b32 v36, v9 offset:{X2P+1024}')
    A(f'ds_read_b64 v[38:39], v30 offset:{X2P}')
    A(f's_cmp_lg_u32 s{sR}, s75'); A('s_cbranch_scc1 L_TG_NX')
    A(f's_mov_b32 s62, {R_X2}')
    if X4:
        set_exec(0xfffff)
        for r in (40, 41): A(f'v_cmp_eq_u32 vcc, 0, v{r}'); A(f'v_cndmask_b32 v{r}, v{r}, v8, vcc')
        A(f'buffer_store_dwordx2 v[40:41], v14, {srd("WS")}, s62 offen sc1')
    else:
        set_exec((1 << 40) - 1)
        A('v_cmp_eq_u32 vcc, 0, v37'); A('v_cndmask_b32 v37, v37, v8, vcc')
        A(f'buffer_store_dword v37, v14, {srd("WS")}, s62 offen sc1')
    full_exec()
    A('L_TG_NX:')
    dstamp_n(9, 0, 8)
    A('s_waitcnt lgkmcnt(1)')
    ln_stats_pk([32, 33, 34, 35, 36], 48, 29)
    A('s_waitcnt lgkmcnt(0)')
    unpack4(44, 38)
    ln_apply_pk(44, 48)
    for h in (0, 2): pk('mul', 44 + h, 44 + h, 108 + h)
    rbf4(44, 44)
    for h in (0, 2): pk('add', 44 + h, 44 + h, 104 + h)
    A('v_cvt_pk_bf16_f32 v36, v44, v45'); A('v_cvt_pk_bf16_f32 v37, v46, v47')
    A('ds_write_b64 v16, v[36:37]')
    if TG == 'w':
        A('s_cmp_lg_u32 s73, 0'); A('s_cbranch_scc1 L_GFF')
        lds_wait(CNT_TD, vZ, 7, cmp_val=8)
        g_tr()
        A('L_GFF:')
    wg_mfma(5, 112, 40)
    A('v_cvt_pk_bf16_f32 v36, v32, v33')
    A('v_cmp_eq_u32 vcc, 0, v36'); A('v_cndmask_b32 v36, v36, v8, vcc')
    if WIDE:
        for k in (1, 2, 3): A(f'v_mov_b32_dpp v{36+k}, v36 quad_perm:[{k},{k},{k},{k}] row_mask:0xf bank_mask:0xf')
        set_exec(0x11111111)
        A(f'buffer_store_dwordx4 v[36:39], v9, {srd("WS")}, s84 offen sc1')
    else:
        A(f'buffer_store_dword v36, v9, {srd("WS")}, s84 offen sc1')
    dstamp_n(10, 0)
    A('s_branch L_KEND')

    A('L_TD:')
    d_index()
    dma_addr(32, 1280, 6, 7, 8)
    A(f's_mul_i32 s77, s{sR}, {192 * 1280}'); A('s_lshl_b32 s62, s75, 5'); A('s_add_u32 s77, s77, s62')
    A(f's_mul_i32 s78, s{sR}, 6144'); A(f's_add_u32 s78, s78, {LDS_T}')
    A('v_lshl_add_u32 v10, v0, 3, s78')
    A('v_and_b32 v14, 7, v0'); A('v_lshlrev_b32 v9, 3, v14')
    A(f's_mul_i32 s62, s{sH}, 6144'); A('v_mul_u32_u24 v11, 768, v14'); A('v_add_u32 v11, s62, v11')
    A('s_lshl_b32 s62, s75, 5'); A('v_lshl_add_u32 v14, v14, 2, s62')
    A(f's_mul_i32 s62, s{sR}, 384'); A('v_lshl_add_u32 v17, v0, 3, s62')
    A(f'v_add_u32 v18, {R_X2 - R_HM}, v14')
    A('v_lshrrev_b32 v28, 4, v0'); A('v_lshlrev_b32 v28, 4, v28'); A(f's_lshl_b32 s62, s{sR}, 6'); A('v_add_u32 v28, s62, v28')
    A(f's_lshl_b32 s74, s{sR}, 9'); A(f's_add_u32 s74, s74, {STG}')
    A('v_lshl_add_u32 v16, v0, 3, s74')
    A('v_lshrrev_b32 v19, 4, v0'); A('v_lshl_add_u32 v19, v19, 3, s74')
    emit_p()
    lds_wait(F_MV, vZ, 7)
    A(f'ds_read_b64 v[20:21], v9 offset:{MODV}')
    if TD == 't':
        A(f's_cmp_lg_u32 s{sR}, 0'); A('s_cbranch_scc1 L_TD_W')
        lds_wait(F_ODONE, vZ, 7)
        set_exec(0xff)
        poll(lambda: A(f'buffer_load_dword v12, v11, {srd("WS")}, s64 offen sc1'), [12], 7, regionAB=R_O, sleep=1)
        full_exec()
        lds_set(CNT_TD)
        A('L_TD_W:')
        lds_wait(CNT_TD, vZ, 7)
    elif TD == 's':
        lds_wait(CNT_TD, vZ, 7, cmp_val=2)
    else:
        tail_gate(TD)
    if TD != 's': dma_issue(6, 'WD', 6, 77, 32 * 1280, 78, pace=TDEPTH, pol=TPOL)
    for r in range(4): A(f'v_mov_b32 v{24+r}, 0')
    A('s_waitcnt vmcnt(0)')
    for u in range(6):
        r = FR + u * 4
        for hh in range(2): A(f'ds_read_b64_tr_b16 v[{r+2*hh}:{r+2*hh+1}], v10 offset:{(32*u+16*hh)*32}')
    stamp(5)
    lds_wait(F_ODONE, vZ, 7)
    y_hint(160 if YTH else 0, 'D')
    A(f's_mov_b32 s64, {R_HM}')
    set_exec((1 << 48) - 1)
    def ld():
        A(f'buffer_load_dwordx2 v[32:33], v17, {srd("WS")}, s64 offen sc1')
        A(f'buffer_load_dwordx2 v[34:35], v17, {srd("WS")}, s64 offen offset:3072 sc1')
        A(f'buffer_load_dword v36, v18, {srd("WS")}, s64 offen sc1')
    poll(ld, [32, 33, 34, 35, 36], 7, sleep=DSLEEP)
    stamp(6)
    unpack4(40, 32); unpack4(44, 34)
    for h in (0, 2): pk('mul', 40 + h, 40 + h, 44 + h)
    A('v_cvt_pk_bf16_f32 v32, v40, v41'); A('v_cvt_pk_bf16_f32 v33, v42, v43')
    A('ds_write_b64 v16, v[32:33]')
    full_exec()
    for u in range(6): A(f'ds_read2_b64 v[{40+4*u}:{43+4*u}], v19 offset0:{8*u} offset1:{8*u+4}')
    unpack2(38, 36)
    for u in range(6):
        r = FR + u * 4
        A(f's_waitcnt lgkmcnt({5-u})')
        A(f'v_mfma_f32_16x16x32_bf16 v[24:27], v[{r}:{r+3}], v[{40+4*u}:{43+4*u}], v[24:27]')
    set_exec(0x0001000100010001)
    A(f'ds_write_b128 v28, v[24:27] offset:{TRED}')
    A('s_waitcnt lgkmcnt(0)')
    barrier()
    A(f's_cmp_lg_u32 s{sR}, 0'); A('s_cbranch_scc1 L_KEND')
    set_exec(0xff)
    for k in range(8): A(f'ds_read_b64 v[{64+2*k}:{65+2*k}], v9 offset:{TRED + 64*k}')
    A('s_waitcnt lgkmcnt(0)')
    tree2(64, 8)
    rbf2(64, 64, 68)
    pk('mul', 64, 64, 20)
    rbf2(64, 64, 68)
    pk('add', 64, 64, 38)
    A('v_cvt_pk_bf16_f32 v68, v64, v65')
    A(f'buffer_store_dword v68, v14, {srd("OUT")}, 0 offen')
    dstamp_n(11, 0); dstamp_n(12, 5); dstamp_n(13, 26); dstamp_n(14, 31); dstamp_n(15, 38)
    A('L_KEND:')
    dry_check('L_DRYRET')
    stamp(7)
    flush_stamps()
    A('L_END:')
    A('s_endpgm')
    A('.section .rodata,"a"'); A('.p2align 6'); A(f'.amdhsa_kernel {NAME}_kernel')
    A('  .amdhsa_next_free_vgpr 128'); A('  .amdhsa_next_free_sgpr 102'); A('  .amdhsa_accum_offset 128')
    A('  .amdhsa_group_segment_fixed_size 0'); A('  .amdhsa_kernarg_size 112'); A('  .amdhsa_user_sgpr_count 2')
    A('  .amdhsa_user_sgpr_kernarg_segment_ptr 1'); A('  .amdhsa_system_sgpr_workgroup_id_x 1')
    A('  .amdhsa_float_denorm_mode_32 3'); A('  .amdhsa_float_denorm_mode_16_64 3')
    A('.end_amdhsa_kernel')
    return A.finish()

if __name__ == '__main__':
    import argparse
    ap = argparse.ArgumentParser()
    ap.add_argument('-o', default='cdna_kernels/' + NAME + '.s')
    ap.add_argument('--stamps', action='store_true')
    ap.add_argument('--cfg', default='')
    a = ap.parse_args()
    open(a.o, 'w').write(gen(stamps=a.stamps, **eval('dict(' + a.cfg + ')')))
```

```python
import sys
from asmfw import Asm
NAME = 'adaLN_cond__gqa_block_cached__glu_gated_bilinear__decode'
HEADER_COMMENT = open('cdna_kernels/' + NAME + '.s.ref').read().split('; Override launch')[0]

R_MOD = 0xE0000; R_Y = 0x00000; R_HM = 0x10000; R_X2 = 0x12000; R_CLR = 0x18000; R_MF = 0x1A000
R_Q = (0x20000, 0x40000); R_ST = (0x60000, 0x64000); R_O = (0x70000, 0xA0000)
R_DBG = 0x200000
F_N, F_H, F_Q, F_ML, F_CLR, CNT_O, F_ODONE, CNT_FREE, CNT_VD, F_MV, CNT_TD, F_A, CNT_B, F_YH, F_TK, F_LOC = 0, 4, 8, 12, 16, 20, 24, 28, 32, 36, 40, 44, 48, 52, 56, 60
KISS, VISS, PRDY, ML = 64, 96, 128, 192
SC, HV, QV, PD, OACC = 0x100, 0x280, 0x380, 0x800, 0x1000
X2P, TRED, STG, MODV, RED = 0x1400, 0x1A00, 0x2000, 0x3000, 0x1000
ONES = 0x3f803f80
SC2 = 0x500
LDS_A, LDS_B, LDS_T = 0x6000, 0xB000, 0x13000
LDS_SIZE = 0x27000
SRD = dict(X=4, K=8, V=12, WQ=16, WO=20, WG=24, WU=28, WD=32, C=36, WMOD=40, OUT=44, DBG=48, WS=52)
KARG = dict(X=0, K=8, V=16, WQ=24, WO=32, WG=48, WU=56, WD=64, C=72, WMOD=80, OUT=88, DBG=96, WS=104)
SIZE = dict(X=1280, K=50331648, V=50331648, WQ=7864320, WO=7864320, WG=1966080, WU=1966080, WD=1966080, C=1280,
            WMOD=4915200, OUT=1280, DBG=256, WS=268435456)
def srd(n): return f's[{SRD[n]}:{SRD[n]+3}]'
sW, sX, sI, sH, sS, sR = 56, 57, 58, 59, 60, 61
sN, sLIVE = 79, 3
LOG2E = 0x3fb8aa3b
SCALE = 0x3d93cd3a
SPIN_MAX = 300000

def gen(DK=3, DV=4, VISS_AT=24, stamps=False, sleep_poll=1, NSLEEP=4, dry=False, TW='v', TG='v', TD='o', TDEPTH=3, TPOL='nt', VFREE=0, diagV=False, VADAPT=True, KADAPT=True, SOFT=1, FA_AT=10, FB_AT=8, KW='b', YTH=0, KVPOL='nt', FPOL='nt', dbg=False, WV=False, GMASK=True, X4=True, DPACE=4, PRET=False, DVF=0, DKF=0, WIDE=True, DSLEEP=0, DYN=False, GSLEEP=1, GWG=True, DV0=0, KA0=12, AB='AB', GS2=0, RM=1, DA=False, APACE=6):
    A = Asm()
    vZ, vONE, vPF = 3, 4, 5
    def stamp(idx):
        if stamps: A(f's_memrealtime s[{86 + 2*idx}:{87 + 2*idx}]')
    def flush_stamps():
        if not stamps: return
        A('s_waitcnt lgkmcnt(0)')
        A(f's_lshl_b32 s62, s2, 4'); A(f's_add_u32 s62, s62, s{sW}'); A('s_lshl_b32 s62, s62, 5'); A(f's_add_u32 s62, s62, {R_DBG}')
        A('s_mov_b64 exec, 1')
        for k in range(8): A(f'v_mov_b32 v{8+k}, s{86+2*k}')
        A('v_mov_b32 v1, 0')
        A(f'buffer_store_dwordx4 v[8:11], v1, {srd("WS")}, s62 offen')
        A(f'buffer_store_dwordx4 v[12:15], v1, {srd("WS")}, s62 offen offset:16')
    def dstamp(slot, wg, wave=None, vt=(1, 125)):
        if not dbg: return
        L = A.label('DS')
        A(f's_cmp_lg_u32 s2, {wg}'); A(f's_cbranch_scc1 {L}')
        if wave is not None: A(f's_cmp_lg_u32 s{sW}, {wave}'); A(f's_cbranch_scc1 {L}')
        A('s_mov_b64 s[98:99], exec'); A('s_mov_b64 exec, 1')
        A('s_memrealtime s[96:97]')
        A(f'ds_read_b32 v{vt[1]}, v3 offset:{F_N}')
        A('s_waitcnt lgkmcnt(0)')
        A(f'v_sub_u32 v{vt[1]}, s96, v{vt[1]}')
        A(f'buffer_store_dword v{vt[1]}, v3, {srd("DBG")}, 0 offen offset:{4*slot} sc1')
        A('s_mov_b64 exec, s[98:99]')
        A(f'{L}:')
    def dstamp_n(slot, n, wave=None):
        if not dbg: return
        L = A.label('DN')
        A(f's_cmp_lg_u32 s75, {n}'); A(f's_cbranch_scc1 {L}')
        if wave is not None: A(f's_cmp_lg_u32 s{sW}, {wave}'); A(f's_cbranch_scc1 {L}')
        A('s_mov_b64 s[98:99], exec'); A('s_mov_b64 exec, 1')
        A('s_memrealtime s[96:97]')
        A(f'ds_read_b32 v125, v3 offset:{F_N}')
        A('s_waitcnt lgkmcnt(0)')
        A('v_sub_u32 v125, s96, v125')
        A(f'buffer_store_dword v125, v3, {srd("DBG")}, 0 offen offset:{4*slot} sc1')
        A('s_mov_b64 exec, s[98:99]')
        A(f'{L}:')
    def set_exec(mask):
        lo, hi = mask & 0xffffffff, mask >> 32
        for nm, m in (('exec_lo', lo), ('exec_hi', hi)):
            if m == 0xffffffff: A(f's_mov_b32 {nm}, s{sLIVE}')
            elif m == 0: A(f's_mov_b32 {nm}, 0')
            else: A(f's_and_b32 {nm}, s{sLIVE}, {m}')
    def full_exec(): set_exec((1 << 64) - 1)
    def barrier():
        L = A.label('BR')
        A(f's_cbranch_execz {L}'); A('s_barrier'); A(f'{L}:')
    def lds_wait(off, vz, vt, cmp_val=None):
        L = A.label('LW'); D = A.label('LWD')
        A('s_mov_b32 s63, 0')
        A(f's_cbranch_execz {D}')
        A(f'{L}:')
        A(f'ds_read_b32 v{vt}, v{vz} offset:{off}')
        A('s_waitcnt lgkmcnt(0)')
        A(f'v_readfirstlane_b32 s62, v{vt}')
        if cmp_val is None: A('s_cmp_lg_u32 s62, 0')
        else: A(f's_cmp_ge_u32 s62, {cmp_val}')
        A(f's_cbranch_scc1 {D}')
        A('s_sleep 1')
        A('s_add_u32 s63, s63, 1'); A(f's_cmp_lt_u32 s63, {SPIN_MAX * 8}'); A(f's_cbranch_scc1 {L}')
        A(f'{D}:')
    def lds_set(off, vz=vZ): A(f'ds_write_b32 v{vz}, v{vONE} offset:{off}')
    def lds_inc(off):
        set_exec(1); A(f'ds_add_u32 v{vZ}, v{vONE} offset:{off}'); full_exec()
    def poll(loads, regs, vt, regionAB=None, sleep=None, tags=(), vt2=None):
        L = A.label('PL'); D = A.label('PD')
        A('s_mov_b32 s63, 0')
        if regionAB: A(f's_mov_b32 s64, {regionAB[0]}')
        A(f'{L}:')
        loads()
        A('s_waitcnt vmcnt(0)')
        r = list(regs); first = True
        while r:
            if first:
                if len(r) >= 3: A(f'v_min3_u32 v{vt}, v{r[0]}, v{r[1]}, v{r[2]}'); r = r[3:]
                elif len(r) == 2: A(f'v_min_u32 v{vt}, v{r[0]}, v{r[1]}'); r = []
                else: A(f'v_mov_b32 v{vt}, v{r[0]}'); r = []
                first = False
            elif len(r) >= 2: A(f'v_min3_u32 v{vt}, v{vt}, v{r[0]}, v{r[1]}'); r = r[2:]
            else: A(f'v_min_u32 v{vt}, v{vt}, v{r[0]}'); r = []
        if regs: A(f'v_cmp_eq_u32 vcc, 0, v{vt}')
        if tags:
            tg = list(tags)
            x = vt2 if regs else vt
            A(f'v_xor_b32 v{x}, s{sN}, v{tg[0]}')
            for tr in tg[1:]: A(f'v_xor_b32 v{tr}, s{sN}, v{tr}')
            rest = tg[1:]
            while rest:
                if len(rest) >= 2: A(f'v_or3_b32 v{x}, v{x}, v{rest[0]}, v{rest[1]}'); rest = rest[2:]
                else: A(f'v_or_b32 v{x}, v{x}, v{rest[0]}'); rest = []
            if regs: A(f'v_cmp_ne_u32 s[82:83], 0, v{x}'); A('s_or_b64 vcc, vcc, s[82:83]')
            else: A(f'v_cmp_ne_u32 vcc, 0, v{x}')
        A(f's_cbranch_vccz {D}')
        sl = sleep_poll if sleep is None else sleep
        if sl: A(f's_sleep {sl}')
        A('s_add_u32 s63, s63, 1'); A(f's_cmp_lt_u32 s63, {SPIN_MAX}'); A(f's_cbranch_scc1 {L}')
        A(f'{D}:')
    def rbf(dst, src):
        A(f'v_cvt_pk_bf16_f32 v{dst}, v{src}, v{src}')
        A(f'v_and_b32 v{dst}, 0xffff0000, v{dst}')
    def rbf4(dst, src):
        for h in range(2):
            A(f'v_cvt_pk_bf16_f32 v{dst+2*h+1}, v{src+2*h}, v{src+2*h+1}')
        for h in range(2):
            A(f'v_lshlrev_b32 v{dst+2*h}, 16, v{dst+2*h+1}')
            A(f'v_and_b32 v{dst+2*h+1}, 0xffff0000, v{dst+2*h+1}')
    def allreduce(regs, op, tmp):
        for pat in ('quad_perm:[1,0,3,2]', 'quad_perm:[2,3,0,1]', 'row_half_mirror', 'row_mirror'):
            for r in regs: A(f'{op}_dpp v{r}, v{r}, v{r} {pat} row_mask:0xf bank_mask:0xf')
        for sw in ('v_permlane16_swap_b32', 'v_permlane32_swap_b32'):
            for r, t in zip(regs, tmp): A(f'v_mov_b32 v{t}, v{r}')
            for r, t in zip(regs, tmp): A(f'{sw} v{r}, v{t}')
            for r, t in zip(regs, tmp): A(f'{op} v{r}, v{r}, v{t}')
    def reduce_sgpr(regs, op, sdst):
        for pat in ('quad_perm:[1,0,3,2]', 'quad_perm:[2,3,0,1]', 'row_half_mirror', 'row_mirror'):
            for r in regs: A(f'{op}_dpp v{r}, v{r}, v{r} {pat} row_mask:0xf bank_mask:0xf')
        for r in regs: A(f'{op}_dpp v{r}, v{r}, v{r} row_bcast:15 row_mask:0xa bank_mask:0xf')
        for r in regs: A(f'{op}_dpp v{r}, v{r}, v{r} row_bcast:31 row_mask:0xc bank_mask:0xf')
        for r, sd in zip(regs, sdst): A(f'v_readlane_b32 s{sd}, v{r}, 63')
    def unpack2(dst, src):
        A(f'v_lshlrev_b32 v{dst}, 16, v{src}'); A(f'v_and_b32 v{dst+1}, 0xffff0000, v{src}')
    def rbf2(dst, src, t):
        A(f'v_cvt_pk_bf16_f32 v{t}, v{src}, v{src+1}'); unpack2(dst, t)
    def pk(op, d, a, b, bcast=False, negb=False):
        m = ''
        if bcast: m += ' op_sel_hi:[1,0]'
        if negb: m += ' neg_lo:[0,1] neg_hi:[0,1]'
        A(f'v_pk_{op}_f32 v[{d}:{d+1}], v[{a}:{a+1}], v[{b}:{b+1}]{m}')
    def tree2(base, n):
        step = 1
        while step < n:
            for k in range(0, n, 2 * step): pk('add', base + 2 * k, base + 2 * k, base + 2 * (k + step))
            step *= 2
    def ln_stats_pk(xs, vm, vinv):
        a, b = vm, vm + 1
        A(f's_mov_b32 s62, {ONES}')
        for k, r in enumerate(xs):
            A(f'v_dot2_f32_bf16 v{a}, v{r}, s62, ' + ('0' if k == 0 else f'v{a}'))
            A(f'v_dot2_f32_bf16 v{b}, v{r}, v{r}, ' + ('0' if k == 0 else f'v{b}'))
        reduce_sgpr([a, b], 'v_add_f32', [62, 63])
        A(f'v_mul_f32 v{a}, s62, v{vinv}'); A(f'v_mul_f32 v{b}, s63, v{vinv}')
        A(f'v_fma_f32 v{b}, -v{a}, v{a}, v{b}')
        A(f'v_max_f32 v{b}, 0, v{b}')
        rbf2(a, a, vm + 3)
        A(f'v_add_f32 v{b}, 0x3727c5ac, v{b}')
        rbf(b, b)
        A(f'v_sqrt_f32 v{b}, v{b}')
        rbf(b, b)
        A(f'v_rcp_f32 v{vm+2}, v{b}')
    def ln_apply_pk(b4, vm):
        for h in (0, 2): pk('add', b4 + h, b4 + h, vm, bcast=True, negb=True)
        rbf4(b4, b4)
        for h in (0, 2): pk('mul', b4 + h, b4 + h, vm + 2, bcast=True)
        rbf4(b4, b4)
    def tr_addr(RS, vdst, vt0, vt1, base_sgpr=None, base_imm=0):
        T = RS // 32
        A(f'v_lshrrev_b32 v{vt0}, 2, v0'); A(f'v_mul_u32_u24 v{vt0}, {RS}, v{vt0}')
        A(f'v_and_b32 v{vt1}, 3, v0'); A(f'v_lshl_add_u32 v{vt0}, v{vt1}, 3, v{vt0}')
        if base_sgpr is not None: A(f'v_add_u32 v{vt0}, s{base_sgpr}, v{vt0}')
        if base_imm: A(f'v_add_u32 v{vt0}, {base_imm}, v{vt0}')
        if RS == 128: A(f'v_bfe_u32 v{vt1}, v0, 3, 2')
        elif RS == 64: A(f'v_bfe_u32 v{vt1}, v0, 4, 1')
        for ct in range(T):
            A(f'v_xor_b32 v{vdst+ct}, {ct}, v{vt1}')
            A(f'v_lshl_add_u32 v{vdst+ct}, v{vdst+ct}, 5, v{vt0}')
    def dma_addr(RS, rowstride, vdst, vt0, vt1):
        cpr = RS // 16; lg = cpr.bit_length() - 1
        A(f'v_lshrrev_b32 v{vt0}, {lg}, v0'); A(f'v_and_b32 v{vt1}, {cpr - 1}, v0')
        if RS == 128:
            A(f'v_bfe_u32 v{vdst}, v{vt0}, 1, 2'); A(f'v_lshlrev_b32 v{vdst}, 1, v{vdst}'); A(f'v_xor_b32 v{vt1}, v{vt1}, v{vdst}')
        elif RS == 64:
            A(f'v_bfe_u32 v{vdst}, v{vt0}, 2, 1'); A(f'v_lshlrev_b32 v{vdst}, 1, v{vdst}'); A(f'v_xor_b32 v{vt1}, v{vt1}, v{vdst}')
        A(f'v_mul_u32_u24 v{vt0}, {rowstride}, v{vt0}')
        A(f'v_lshl_add_u32 v{vdst}, v{vt1}, 4, v{vt0}')
    def dma_issue(n, sr, vaddr, s_goff, gstep, s_lds, lds_imm=0, pace=0, pol='nt'):
        sr = srd(sr) if sr in SRD else sr
        L = A.label('DS')
        A(f's_cbranch_execz {L}')
        for k in range(n):
            if s_lds is None: A(f's_mov_b32 m0, {lds_imm + 1024 * k}')
            else: A(f's_add_u32 m0, s{s_lds}, {lds_imm + 1024 * k}')
            A(f'buffer_load_dwordx4 v{vaddr}, {sr}, s{s_goff} offen {pol} lds')
            if k + 1 < n: A(f's_add_u32 s{s_goff}, s{s_goff}, {gstep}')
            if pace and k + 1 >= pace and k + 1 < n: A(f's_waitcnt vmcnt({pace-1})')
        A(f'{L}:')
    def tail_gate(mode):
        if mode == 'v': lds_wait(VISS, vZ, 7, cmp_val=6)
        elif mode == 'o': lds_wait(F_ODONE, vZ, 7)
    def y_hint(th, tag):
        if not th: return
        A(f's_cmp_lg_u32 s{sR}, 0'); A(f's_cbranch_scc1 L_YH_{tag}')
        L = A.label('YH'); D = A.label('YHD')
        set_exec(1)
        A('s_mov_b32 s63, 0')
        A(f'{L}:')
        A(f'buffer_load_dword v7, v3, {srd("DBG")}, 0 offen offset:128 sc1')
        A('s_waitcnt vmcnt(0)')
        A('v_readfirstlane_b32 s62, v7'); A(f's_cmp_ge_u32 s62, {th}'); A(f's_cbranch_scc1 {D}')
        A('s_sleep 2')
        A('s_add_u32 s63, s63, 1'); A(f's_cmp_lt_u32 s63, {SPIN_MAX}'); A(f's_cbranch_scc1 {L}')
        A(f'{D}:')
        full_exec()
        lds_set(F_YH)
        A(f'L_YH_{tag}:')
        lds_wait(F_YH, vZ, 7)
    def loc_store(instr):
        L = A.label('LS'); E = A.label('LSE')
        A('s_cmp_eq_u32 s73, 1'); A(f's_cbranch_scc1 {L}')
        A(instr + ' sc1'); A(f's_branch {E}')
        A(f'{L}:'); A(instr)
        A(f'{E}:')
    def get_loc(vt):
        lds_wait(F_LOC, vZ, vt); A('s_mov_b32 s73, s62')
    def set_loc(vx, vt):
        A('s_getreg_b32 s62, hwreg(HW_REG_XCC_ID)'); A('s_and_b32 s62, s62, 15'); A('s_add_u32 s62, s62, 1')
        A(f'v_cmp_ne_u32 vcc, s62, v{vx}')
        A('s_cmp_eq_u64 vcc, 0'); A('s_cselect_b32 s62, 1, 2')
        A(f'v_mov_b32 v{vt}, s62')
        A(f'ds_write_b32 v3, v{vt} offset:{F_LOC}')
    def merge4(acc, dst):
        for r in range(4): A(f'v_mov_b32 v{dst+r}, v{acc+r}')
        for ct in (1, 2, 3):
            m = 0x00010001 << ct
            A(f's_mov_b32 s80, {m}'); A(f's_mov_b32 s81, {m}')
            for r in range(4): A(f'v_cndmask_b32 v{dst+r}, v{dst+r}, v{acc+4*ct+r}, s[80:81]')
    def mod_addr(vdst, vcol, vt):
        A(f'v_lshrrev_b32 v{vt}, 6, v{vcol}'); A(f'v_lshlrev_b32 v{vt}, 11, v{vt}')
        A(f'v_and_b32 v{vdst}, 63, v{vcol}'); A(f'v_lshl_add_u32 v{vdst}, v{vdst}, 2, v{vt}')
    def mod_loads(vaddr, quads, nks, so='s64'):
        for ks in range(nks):
            for hf in range(2):
                q = quads[2 * ks + hf]
                A(f'buffer_load_dwordx4 v[{q}:{q+3}], v{vaddr}, {srd("WS")}, {so} offen offset:{512*ks+256*hf} sc1')
    def mod_tags(quads): return [q + 1 for q in quads] + [q + 3 for q in quads]
    def mod_sum(dst, quads, nks):
        for hf in range(2):
            for e in range(2):
                r = [quads[2 * ks + hf] + 2 * e for ks in range(nks)]
                d = dst + 2 * hf + e
                if nks == 2: A(f'v_add_f32 v{d}, v{r[0]}, v{r[1]}')
                else:
                    A(f'v_add_f32 v{r[0]}, v{r[0]}, v{r[1]}'); A(f'v_add_f32 v{r[2]}, v{r[2]}, v{r[3]}'); A(f'v_add_f32 v{d}, v{r[0]}, v{r[2]}')
    def get_nonce(vt):
        lds_wait(F_N, vZ, vt); A(f's_mov_b32 s{sN}, s62')
    def tree_add(base, n):
        step = 1
        while step < n:
            for k in range(0, n, 2 * step):
                for h2 in range(2):
                    a = base + 4 * k + 2 * h2; b = base + 4 * (k + step) + 2 * h2
                    A(f'v_pk_add_f32 v[{a}:{a+1}], v[{a}:{a+1}], v[{b}:{b+1}]')
            step *= 2
    def half_swap_add(base, tmp):
        for r in range(4): A(f'v_mov_b32 v{tmp+r}, v{base+r}')
        for r in range(4): A(f'v_permlane32_swap_b32 v{base+r}, v{tmp+r}')
        for h2 in range(2): A(f'v_pk_add_f32 v[{base+2*h2}:{base+1+2*h2}], v[{base+2*h2}:{base+1+2*h2}], v[{tmp+2*h2}:{tmp+1+2*h2}]')
    def fdiv(dst, num, den, t0, t1, t2, t3):
        A(f'v_rcp_f32 v{t0}, v{den}')
        A(f'v_mul_f32 v{t1}, v{num}, v{t0}')
        A(f'v_fma_f32 v{t2}, -v{t1}, v{den}, v{num}')
        A(f'v_fma_f32 v{t3}, v{t2}, v{t0}, v{t1}')
        A(f'v_cmp_o_f32 vcc, v{t3}, v{t3}')
        A(f'v_cndmask_b32 v{dst}, v{t1}, v{t3}, vcc')
    def ln_stats(xs, vm, vs, t0, t1):
        A(f'v_readfirstlane_b32 s62, v{xs[0]}')
        for r in xs: A(f'v_subrev_f32 v{r}, s62, v{r}')
        A(f'v_add_f32 v{vm}, v{xs[0]}, v{xs[1]}'); A(f'v_mul_f32 v{vs}, v{xs[0]}, v{xs[0]}')
        for k, r in enumerate(xs):
            if k >= 2: A(f'v_add_f32 v{vm}, v{vm}, v{r}')
            if k >= 1: A(f'v_fmac_f32 v{vs}, v{r}, v{r}')
        allreduce([vm, vs], 'v_add_f32', [t0, t1])
        inv = 0x3acccccd
        A(f'v_mul_f32 v{vm}, {inv}, v{vm}'); A(f'v_mul_f32 v{vs}, {inv}, v{vs}')
        A(f'v_fma_f32 v{vs}, -v{vm}, v{vm}, v{vs}')
        A(f'v_max_f32 v{vs}, 0, v{vs}')
        A(f'v_add_f32 v{vm}, s62, v{vm}')
        rbf(vm, vm); rbf(vs, vs)
        A(f'v_add_f32 v{vs}, 0x3727c5ac, v{vs}')
        rbf(vs, vs)
        A(f'v_sqrt_f32 v{vs}, v{vs}')
        rbf(vs, vs)
        A(f'v_rcp_f32 v{vs}, v{vs}')
    def ln_apply(b4, vm, vs):
        for r in range(4): A(f'v_sub_f32 v{b4+r}, v{b4+r}, v{vm}')
        rbf4(b4, b4)
        for r in range(4): A(f'v_mul_f32 v{b4+r}, v{b4+r}, v{vs}')
        rbf4(b4, b4)
    def unpack4(dst, src):
        A(f'v_lshlrev_b32 v{dst}, 16, v{src}'); A(f'v_and_b32 v{dst+1}, 0xffff0000, v{src}')
        A(f'v_lshlrev_b32 v{dst+2}, 16, v{src+1}'); A(f'v_and_b32 v{dst+3}, 0xffff0000, v{src+1}')
    def dry_check(ret):
        A(f's_cbranch_execz {ret}')
    def d_index():
        if RM:
            A(f's_mul_i32 s75, s{sX}, 10'); A(f's_add_u32 s75, s75, s{sI}'); A('s_sub_u32 s75, s75, 60')
            return
        A(f's_lshl_b32 s75, s{sX}, 2'); A(f's_add_u32 s75, s75, s{sI}'); A('s_sub_u32 s75, s75, 26')
        A(f's_lshl_b32 s62, s{sX}, 1'); A(f's_add_u32 s62, s62, s{sI}'); A('s_add_u32 s62, s62, 2')
        A(f's_cmp_ge_u32 s{sI}, 30'); A('s_cselect_b32 s75, s62, s75')
    def g_index():
        A(f's_mul_i32 s75, s{sX}, {12 if RM else 6}'); A(f's_add_u32 s75, s75, s{sI}'); A('s_sub_u32 s75, s75, 20')
    def branch_if_g(label):
        if RM: A(f's_cmp_lt_u32 s{sX}, 4')
        else: A(f's_cmp_lt_u32 s{sI}, 26')
        A(f's_cbranch_scc1 {label}')
    def branch_if_not_g(label):
        if RM: A(f's_cmp_ge_u32 s{sX}, 4')
        else: A(f's_cmp_ge_u32 s{sI}, 26')
        A(f's_cbranch_scc1 {label}')
    def branch_if_no_role(label):
        L = A.label('NR')
        A(f's_cmp_lt_u32 s{sI}, 30'); A(f's_cbranch_scc1 {L}')
        A(f's_cmp_ge_u32 s{sX}, 4'); A(f's_cbranch_scc1 {label}')
        A(f'{L}:')
    def branch_if_not_gcand(label):
        L = A.label('GC')
        A(f's_cmp_lt_u32 s{sI}, 20'); A(f's_cbranch_scc1 {label}')
        A(f's_cmp_lt_u32 s{sI}, 26'); A(f's_cbranch_scc1 {L}')
        A(f's_cmp_lt_u32 s{sI}, 30'); A(f's_cbranch_scc1 {label}')
        A(f's_cmp_lt_u32 s{sX}, 4'); A(f's_cbranch_scc1 {label}')
        A(f'{L}:')
    def stage_a(first, scoff):
        base = LDS_A if first else LDS_T
        A('s_lshr_b32 s68, s76, 2'); A('s_and_b32 s69, s76, 3')
        A('v_lshlrev_b32 v7, 3, v0'); A('s_mul_i32 s62, s69, 320')
        A(f'buffer_load_dwordx2 v[10:11], v7, {srd("C")}, s62 offen')
        dma_addr(128, 7680, 6, 8, 9)
        A(f's_mul_i32 s70, s69, {160 * 7680}'); A('s_lshl_b32 s62, s68, 7'); A('s_add_u32 s70, s70, s62')
        dma_issue(20, 'WMOD', 6, 70, 8 * 7680, None, base, pol=FPOL, pace=(0 if first else APACE))
        if first: A('s_barrier')
        A('s_waitcnt vmcnt(20)')
        unpack4(12, 10)
        A(f's_mov_b32 s62, {LOG2E | 0x80000000}')
        for r in range(4): A(f'v_mul_f32 v{16+r}, s62, v{12+r}')
        for r in range(4): A(f'v_exp_f32 v{16+r}, v{16+r}')
        for r in range(4): A(f'v_add_f32 v{16+r}, 1.0, v{16+r}')
        for r in range(4): fdiv(12 + r, 12 + r, 16 + r, 20, 21, 22, 23)
        A('v_cvt_pk_bf16_f32 v16, v12, v13'); A('v_cvt_pk_bf16_f32 v17, v14, v15')
        set_exec((1 << 40) - 1)
        A(f'ds_write_b64 v7, v[16:17] offset:{scoff}')
        full_exec()
        tr_addr(128, 6, 10, 11, base_imm=base)
        A(f'v_lshrrev_b32 v10, 4, v0'); A('v_lshlrev_b32 v10, 3, v10')
        for u in range(5):
            A(f'ds_read2_b64 v[{28+4*u}:{31+4*u}], v10 offset0:{scoff//8 + 8*u} offset1:{scoff//8 + 8*u + 4}')
        A('v_and_b32 v11, 15, v0'); A('v_lshlrev_b32 v11, 6, v11'); A('v_lshrrev_b32 v12, 4, v0'); A('v_lshl_add_u32 v11, v12, 4, v11')
        if first:
            A(f's_waitcnt vmcnt({FA_AT})'); lds_set(F_A)
        A('s_waitcnt vmcnt(0)')
        for u in range(5):
            for ct in range(4):
                r = 48 + (u * 4 + ct) * 4
                for hh in range(2):
                    A(f'ds_read_b64_tr_b16 v[{r+2*hh}:{r+2*hh+1}], v{6+ct} offset:{(32*u+16*hh)*128}')
        for r in range(16): A(f'v_mov_b32 v{12+r}, 0')
        A('s_waitcnt lgkmcnt(0)')
        if first: lds_inc(CNT_FREE)
        for u in range(5):
            for ct in range(4):
                r = 48 + (u * 4 + ct) * 4
                A(f'v_mfma_f32_16x16x32_bf16 v[{12+4*ct}:{15+4*ct}], v[{r}:{r+3}], v[{28+4*u}:{31+4*u}], v[{12+4*ct}:{15+4*ct}]')
        A(f's_lshl_b32 s70, s76, 9'); A(f's_add_u32 s70, s70, {R_MOD}')
        get_nonce(49)
        merge4(12, 52)
        A('v_mov_b32 v56, v52'); A('v_mov_b32 v58, v53'); A('v_mov_b32 v60, v54'); A('v_mov_b32 v62, v55')
        for r in (57, 59, 61, 63): A(f'v_mov_b32 v{r}, s{sN}')
        set_exec(0x000f000f000f000f)
        A(f'buffer_store_dwordx4 v[56:59], v11, {srd("WS")}, s70 offen sc1')
        A(f'buffer_store_dwordx4 v[60:63], v11, {srd("WS")}, s70 offen offset:256 sc1')
        full_exec()
    def finalize_line(sline2):
        A('v_lshrrev_b32 v8, 4, v0'); A('v_lshlrev_b32 v8, 9, v8'); A('v_and_b32 v9, 15, v0'); A('v_lshlrev_b32 v9, 4, v9'); A('v_add_u32 v8, v8, v9')
        A(f's_lshl_b32 s64, s{sline2}, 11'); A(f's_add_u32 s64, s64, {R_MOD + 20 * 2048}')
        A(f's_lshl_b32 s72, s{sline2}, 8'); A(f's_add_u32 s72, s72, {R_MF}')
        get_nonce(10)
        def ld():
            A(f'buffer_load_dwordx4 v[12:15], v8, {srd("WS")}, s64 offen sc1')
            A(f'buffer_load_dwordx4 v[16:19], v8, {srd("WS")}, s64 offen offset:256 sc1')
        poll(ld, [], 10, tags=[13, 15, 17, 19], sleep=8)
        vals = [12, 14, 16, 18]
        for sw in ('v_permlane16_swap_b32', 'v_permlane32_swap_b32'):
            for r in vals: A(f'v_mov_b32 v{r+1}, v{r}')
            for r in vals: A(f'{sw} v{r}, v{r+1}')
            for r in vals: A(f'v_add_f32 v{r}, v{r}, v{r+1}')
        A('v_cvt_pk_bf16_f32 v20, v12, v14'); A('v_cvt_pk_bf16_f32 v22, v16, v18'); A(f'v_mov_b32 v21, s{sN}'); A(f'v_mov_b32 v23, s{sN}')
        set_exec(0xffff)
        A(f'buffer_store_dwordx4 v[20:23], v9, {srd("WS")}, s72 offen sc1')
        full_exec()
    def kb_pi():
        A(f's_mul_i32 s68, s{sI}, 43'); A('s_lshr_b32 s68, s68, 8'); A('s_mul_i32 s62, s68, 6'); A(f's_sub_u32 s69, s{sI}, s62')

    A(HEADER_COMMENT.rstrip())
    A(f'; @launch grid=(256,1,1) block=(1024,1,1) lds={LDS_SIZE}')
    A('.amdgcn_target "amdgcn-amd-amdhsa--gfx950"')
    A('.text'); A(f'.globl {NAME}_kernel'); A('.p2align 8'); A(f'.type {NAME}_kernel,@function'); A(f'{NAME}_kernel:')
    for n in ('K', 'WMOD', 'WQ', 'WS', 'C', 'X', 'V', 'DBG', 'WO', 'WG', 'WU', 'WD', 'OUT'):
        A(f's_load_dwordx2 s[{SRD[n]}:{SRD[n]+1}], s[0:1], {KARG[n]}')
    if stamps:
        for k in range(1, 8): A(f's_mov_b32 s{86+2*k}, 0')
    stamp(0)
    A('v_lshrrev_b32 v1, 6, v0'); A('v_and_b32 v0, 63, v0')
    A(f'v_readfirstlane_b32 s{sW}, v1')
    for n in SRD:
        A(f's_mov_b32 s{SRD[n]+2}, {SIZE[n]}'); A(f's_mov_b32 s{SRD[n]+3}, 0x20000')
    A(f's_mov_b32 s{sLIVE}, -1'); A(f's_mov_b32 s{sN}, 0')
    A('s_cmp_ge_u32 s2, 256'); A('s_cbranch_scc1 L_END')
    A(f's_and_b32 s{sX}, s2, 7'); A(f's_lshr_b32 s{sI}, s2, 3')
    A(f's_lshr_b32 s{sH}, s{sI}, 3'); A(f's_lshl_b32 s62, s{sX}, 2'); A(f's_add_u32 s{sH}, s{sH}, s62')
    A(f's_and_b32 s{sS}, s{sI}, 7'); A(f's_and_b32 s{sR}, s{sW}, 7')
    A('v_lshrrev_b32 v1, 3, v0'); A('v_mul_u32_u24 v1, 1536, v1'); A('v_and_b32 v2, 7, v0'); A('v_lshl_add_u32 v2, v2, 4, v1')
    A('v_mov_b32 v3, 0'); A('v_mov_b32 v4, 1')
    A(f's_lshl_b32 s67, s{sH}, 12'); A(f's_lshl_b32 s62, s{sS}, 9'); A('s_add_u32 s67, s67, s62'); A('s_mul_i32 s67, s67, 384')
    A(f's_mul_i32 s65, s{sR}, 24576'); A('s_add_u32 s65, s65, s67'); A('s_add_u32 s66, s65, 12288')
    A(f's_lshl_b32 s62, s{sR}, 2'); A('v_mov_b32 v5, s62')
    A('s_waitcnt lgkmcnt(0)')
    A(f's_cmp_ge_u32 s{sW}, 8'); A('s_cbranch_scc1 L_KWAVE')
    A(f's_cmp_eq_u32 s{sR}, 2'); A('s_cbranch_scc1 L_F2')
    A(f's_cmp_ge_u32 s{sR}, 3'); A('s_cbranch_scc1 L_F3')

    kb_pi()
    A(f's_lshl_b32 s71, s{sR}, 14'); A(f's_add_u32 s71, s71, {LDS_B}')
    A('v_lshlrev_b32 v7, 2, v0')
    for j in range(5): A(f'buffer_load_dword v{10+j}, v7, {srd("X")}, 0 offen offset:{256*j}')
    A('v_and_b32 v8, 31, v0'); A('v_lshlrev_b32 v8, 3, v8'); A('s_lshl_b32 s62, s68, 8')
    A(f'buffer_load_dwordx2 v[16:17], v8, {srd("X")}, s62 offen')
    if SOFT: A('s_barrier')
    A(f's_cmp_ge_u32 s{sI}, 30'); A('s_cbranch_scc1 L_F01_NODMA')
    dma_addr(128, 12288, 6, 7, 8)
    A(f's_mul_i32 s70, s68, {128 * 12288}'); A(f's_mul_i32 s62, s{sX}, 1536'); A('s_add_u32 s70, s70, s62')
    A('s_lshl_b32 s62, s69, 8'); A('s_add_u32 s70, s70, s62'); A(f's_lshl_b32 s62, s{sR}, 7'); A('s_add_u32 s70, s70, s62')
    if SOFT: lds_wait(F_A, vZ, 9)
    dma_issue(16, 'WQ', 6, 70, 8 * 12288, 71, pol=FPOL)
    A(f's_waitcnt vmcnt({FB_AT})')
    A('L_F01_NODMA:')
    lds_inc(CNT_B)
    if not SOFT: A('s_barrier')
    A('L_F01_DRY:')
    A('s_waitcnt vmcnt(0)')
    A(f's_cmp_ge_u32 s{sI}, 30'); A('s_cbranch_scc1 L_F01_SKIPB')
    tr_addr(128, 40, 44, 45, base_sgpr=71)
    for u in range(4):
        for ct in range(4):
            r = 64 + (u * 4 + ct) * 4
            for hh in range(2):
                A(f'ds_read_b64_tr_b16 v[{r+2*hh}:{r+2*hh+1}], v{40+ct} offset:{(32*u+16*hh)*128}')
    A(f'v_lshrrev_b32 v46, 4, v0'); A('v_lshlrev_b32 v46, 3, v46')
    A('s_waitcnt lgkmcnt(0)')
    lds_inc(CNT_FREE)
    A(f's_cmp_eq_u32 s{sR}, 1'); A('s_cbranch_scc1 L_F1_WAITH')
    A('v_mov_b32 v29, 0x3acccccd')
    ln_stats_pk([10, 11, 12, 13, 14], 30, 29)
    unpack4(34, 16)
    ln_apply_pk(34, 30)
    A('v_and_b32 v8, 31, v0'); A('v_lshlrev_b32 v8, 2, v8'); A('v_lshrrev_b32 v9, 5, v0'); A('v_mul_u32_u24 v9, 640, v9'); A('v_add_u32 v8, v8, v9')
    A('s_lshl_b32 s62, s68, 7'); A('v_add_u32 v8, s62, v8')
    mod_addr(8, 8, 9)
    get_nonce(9)
    stamp(1)
    A(f's_mov_b32 s64, {R_MOD}')
    Q = [10, 14, 18, 22, 48, 52, 56, 60]
    A('v_and_b32 v47, 31, v0'); A('v_lshlrev_b32 v47, 3, v47'); A(f's_lshl_b32 s72, s{sX}, 8'); A(f's_add_u32 s72, s72, {R_CLR}')
    poll(lambda: (mod_loads(8, Q, 4), A(f'buffer_load_dwordx2 v[38:39], v47, {srd("WS")}, s72 offen sc1')), [], 9, tags=mod_tags(Q) + [38])
    set_loc(39, 9)
    stamp(2)
    mod_sum(26, Q, 4)
    rbf4(48, 26)
    for r in range(4): A(f'v_mov_b32 v{52+r}, v{48+r}')
    for r in range(4): A(f'v_permlane32_swap_b32 v{48+r}, v{52+r}')
    for r in range(4): A(f'v_add_f32 v{52+r}, 1.0, v{52+r}')
    rbf4(52, 52)
    for r in range(4): A(f'v_mul_f32 v{52+r}, v{34+r}, v{52+r}')
    rbf4(52, 52)
    for r in range(4): A(f'v_add_f32 v{52+r}, v{52+r}, v{48+r}')
    A('v_cvt_pk_bf16_f32 v56, v52, v53'); A('v_cvt_pk_bf16_f32 v57, v54, v55')
    A('v_and_b32 v8, 31, v0'); A('v_lshlrev_b32 v8, 3, v8')
    A(f'ds_write_b64 v8, v[56:57] offset:{HV}')
    lds_set(F_H)
    dstamp(2, 8, vt=(1, 47))
    A('s_branch L_F01_C')
    A('L_F1_WAITH:')
    lds_wait(F_H, vZ, 18)
    A('L_F01_C:')
    for u in range(4):
        A(f'ds_read2_b64 v[{48+4*u}:{51+4*u}], v46 offset0:{HV//8 + 8*u} offset1:{HV//8 + 8*u + 4}')
    for r in range(16): A(f'v_mov_b32 v{20+r}, 0')
    A('v_and_b32 v8, 15, v0'); A('v_lshlrev_b32 v8, 6, v8'); A('v_lshrrev_b32 v9, 4, v0'); A('v_lshl_add_u32 v8, v9, 4, v8')
    A('s_mul_i32 s70, s68, 24576'); A(f's_mul_i32 s62, s{sX}, 3072'); A('s_add_u32 s70, s70, s62'); A('s_lshl_b32 s62, s69, 9'); A('s_add_u32 s70, s70, s62')
    A(f's_lshl_b32 s62, s{sR}, 8'); A('s_add_u32 s70, s70, s62')
    A(f's_add_u32 s72, s70, {R_Q[0]}')
    A('s_waitcnt lgkmcnt(0)')
    for u in range(4):
        for ct in range(4):
            r = 64 + (u * 4 + ct) * 4
            A(f'v_mfma_f32_16x16x32_bf16 v[{20+4*ct}:{23+4*ct}], v[{r}:{r+3}], v[{48+4*u}:{51+4*u}], v[{20+4*ct}:{23+4*ct}]')
    lds_wait(F_CLR, vZ, 9)
    get_loc(9)
    merge4(20, 36)
    for r in range(4): A(f'v_or_b32 v{36+r}, 1, v{36+r}')
    set_exec(0x000f000f000f000f)
    loc_store(f'buffer_store_dwordx4 v[36:39], v8, {srd("WS")}, s72 offen')
    full_exec()
    stamp(3)
    A('s_branch L_F01_D')
    A('L_F01_SKIPB:')
    lds_inc(CNT_FREE)
    get_nonce(9)
    lds_wait(F_CLR, vZ, 9)
    A('L_F01_D:')
    A(f's_cmp_eq_u32 s{sR}, 1'); A('s_cbranch_scc1 L_F1_T')
    A(f's_cmp_lt_u32 s{sI}, 30'); A('s_cbranch_scc1 L_F0_QG')
    A('v_and_b32 v8, 31, v0'); A('v_lshlrev_b32 v8, 3, v8'); A(f's_lshl_b32 s64, s{sX}, 8'); A(f's_add_u32 s64, s64, {R_CLR}')
    poll(lambda: A(f'buffer_load_dwordx2 v[10:11], v8, {srd("WS")}, s64 offen sc1'), [], 9, tags=[10], sleep=8)
    set_loc(11, 9)
    A('L_F0_QG:')
    A('v_lshlrev_b32 v40, 4, v0'); A(f's_mul_i32 s62, s{sH}, 768'); A('v_add_u32 v40, s62, v40')
    for ks in range(1, 5): A(f'v_add_u32 v{40+ks}, {24576*ks}, v40')
    A('v_lshlrev_b32 v8, 3, v0')
    set_exec((1 << 48) - 1)
    def ld():
        for ks in range(5): A(f'buffer_load_dwordx4 v[{48+4*ks}:{51+4*ks}], v{40+ks}, {srd("WS")}, s64 offen sc1')
    poll(ld, list(range(48, 68)), 18, regionAB=R_Q)
    tree_add(48, 4)
    for h2 in range(2): A(f'v_pk_add_f32 v[{48+2*h2}:{49+2*h2}], v[{48+2*h2}:{49+2*h2}], v[{64+2*h2}:{65+2*h2}]')
    A('v_cvt_pk_bf16_f32 v56, v48, v49'); A('v_cvt_pk_bf16_f32 v57, v50, v51')
    A(f'ds_write_b64 v8, v[56:57] offset:{QV}')
    full_exec()
    lds_set(F_Q)
    dstamp(3, 8, vt=(1, 47))
    stamp(4)
    A(f's_lshl_b32 s62, s{sH}, 9'); A('v_add_u32 v14, s62, v8')
    poll(lambda: A(f'buffer_load_dwordx2 v[12:13], v14, {srd("WS")}, s64 offen sc1'), [12, 13], 15, regionAB=R_ST, sleep=2)
    A('v_and_b32 v12, 0xffff0000, v12')
    A('v_mov_b32 v16, v12')
    allreduce([16], 'v_max_f32', [15])
    A('v_sub_f32 v12, v12, v16'); A(f'v_mul_f32 v12, {LOG2E}, v12'); A('v_exp_f32 v12, v12'); A('v_mul_f32 v17, v12, v13')
    allreduce([17], 'v_add_f32', [15])
    A(f'ds_write_b64 v3, v[16:17] offset:{ML}')
    lds_set(F_ML)
    dstamp(5, 8, vt=(1, 47))
    stamp(5)
    if DYN:
        branch_if_not_gcand('L_F01_PV')
        set_exec(1)
        A('v_mov_b32 v12, 1')
        A(f'buffer_atomic_add v12, v3, {srd("DBG")}, 0 offen offset:192 sc0 sc1')
        A('s_waitcnt vmcnt(0)')
        A('v_readfirstlane_b32 s62, v12')
        A(f's_mul_hi_u32 s63, s62, {(1 << 32) // 56 + 1}'); A('s_mul_i32 s63, s63, 56'); A('s_sub_u32 s62, s62, s63'); A('s_add_u32 s62, s62, 1')
        A('v_mov_b32 v12, s62')
        A(f'ds_write_b32 v3, v12 offset:{F_TK}')
        full_exec()
    A('s_branch L_F01_PV')
    A('L_F1_T:')
    if DA:
        set_exec(1)
        A('v_mov_b32 v12, 1')
        A(f'buffer_atomic_add v12, v3, {srd("DBG")}, 0 offen offset:192 sc0 sc1')
        A('s_waitcnt vmcnt(0)')
        A('v_readfirstlane_b32 s76, v12')
        full_exec()
        A('s_and_b32 s76, s76, 255')
        A('s_cmp_ge_u32 s76, 160'); A('s_cbranch_scc1 L_F1_T2')
        A('s_add_u32 s76, s76, 80')
        stage_a(False, SC2)
        A('s_and_b32 s62, s76, 3'); A('s_cmp_lg_u32 s62, 3'); A('s_cbranch_scc1 L_F1_T2')
        A('s_lshr_b32 s77, s76, 2'); A('s_sub_u32 s77, s77, 20')
        finalize_line(77)
        A('L_F1_T2:')
        lds_set(F_YH)
    A(f's_cmp_lt_u32 s{sI}, 20'); A('s_cbranch_scc1 L_F01_PV')
    if not DYN: branch_if_no_role('L_F01_PV')
    get_nonce(9)
    A('v_lshlrev_b32 v8, 4, v0')
    A(f's_mov_b32 s64, {R_MF}'); A(f's_mov_b32 s72, {R_CLR}'); A(f's_mov_b32 s73, {R_MF + 4096}')
    if DYN: branch_if_not_gcand('L_F1_TD')
    else: branch_if_not_g('L_F1_TD')
    def ld():
        A(f'buffer_load_dwordx4 v[12:15], v8, {srd("WS")}, s72 offen sc1')
        A(f'buffer_load_dwordx4 v[48:51], v8, {srd("WS")}, s72 offen offset:1024 sc1')
        for k in range(8):
            A(f'buffer_load_dwordx4 v[{16+4*k}:{19+4*k}], v8, {srd("WS")}, {"s64" if k < 4 else "s73"} offen offset:{1024*(k%4)} sc1')
    poll(ld, [], 9, tags=[12, 14, 48, 50] + [17 + 4 * k for k in range(8)] + [19 + 4 * k for k in range(8)], sleep=8)
    for k in range(8):
        q = 16 + 4 * k
        A(f'v_and_b32 v{q+3}, 0xffff0000, v{q+2}'); A(f'v_lshlrev_b32 v{q+2}, 16, v{q+2}')
        A(f'v_and_b32 v{q+1}, 0xffff0000, v{q}'); A(f'v_lshlrev_b32 v{q}, 16, v{q}')
        if k >= 5:
            for r in range(4): A(f'v_add_f32 v{q+r}, 1.0, v{q+r}')
            rbf4(q, q)
        A(f'ds_write_b128 v8, v[{q}:{q+3}] offset:{MODV + 1024*k}')
    lds_set(F_MV)
    stamp(4)
    A('s_branch L_F01_PV')
    A('L_F1_TD:')
    d_index()
    A('v_and_b32 v10, 3, v0'); A('v_lshlrev_b32 v10, 4, v10'); A('s_lshl_b32 s62, s75, 6'); A(f's_add_u32 s64, s62, {R_MF + 7680}')
    def ld():
        A(f'buffer_load_dwordx4 v[12:15], v8, {srd("WS")}, s72 offen sc1')
        A(f'buffer_load_dwordx4 v[48:51], v8, {srd("WS")}, s72 offen offset:1024 sc1')
        A(f'buffer_load_dwordx4 v[16:19], v10, {srd("WS")}, s64 offen sc1')
    poll(ld, [], 9, tags=[12, 14, 48, 50, 17, 19], sleep=8)
    A('v_and_b32 v19, 0xffff0000, v18'); A('v_lshlrev_b32 v18, 16, v18'); A('v_and_b32 v17, 0xffff0000, v16'); A('v_lshlrev_b32 v16, 16, v16')
    A(f'ds_write_b128 v10, v[16:19] offset:{MODV}')
    lds_set(F_MV)
    stamp(4)
    A('L_F01_PV:')
    dry_check('L_DRYRET')
    lds_wait(CNT_VD, vZ, 9, cmp_val=6)
    A(f's_mul_i32 s62, s{sR}, 24576'); A(f's_add_u32 s62, s62, {LDS_A}'); A('v_lshl_add_u32 v8, v0, 4, s62')
    for n in range(24): A(f'ds_read_b128 v[{32+4*n}:{35+4*n}], v8 offset:{1024*n}')
    A('s_waitcnt lgkmcnt(0)')
    A('s_branch L_PV')

    A('L_F2:')
    if DA:
        A(f's_cmp_ge_u32 s{sX}, 4'); A('s_cbranch_scc1 L_F2_NONE')
        A(f's_cmp_ge_u32 s{sI}, 20'); A('s_cbranch_scc1 L_F2_NONE')
        A(f's_lshl_b32 s76, s{sI}, 2'); A(f's_add_u32 s76, s76, s{sX}')
    else:
        A('s_cmp_ge_u32 s2, 240'); A('s_cbranch_scc1 L_F2_NONE')
        A('s_mov_b32 s76, s2')
    stage_a(True, SC)
    dstamp(1, 8, vt=(1, 47))
    stamp(3)
    A('s_branch L_VSTREAM')
    A('L_F2_NONE:')
    A('s_barrier')
    lds_set(F_A)
    lds_inc(CNT_FREE)
    A('s_branch L_VSTREAM')

    A('L_F3:')
    A(f's_cmp_ge_u32 s{sR}, 4'); A('s_cbranch_scc1 L_F4')
    A('s_cmp_lg_u32 s2, 0'); A('s_cbranch_scc1 L_F3_B')
    A('s_memrealtime s[62:63]'); A('s_waitcnt lgkmcnt(0)'); A('s_or_b32 s62, s62, 1'); A('v_mov_b32 v8, s62')
    set_exec(1)
    A('v_mov_b32 v9, 0')
    A(f'buffer_atomic_cmpswap v[8:9], v3, {srd("DBG")}, 0 offen sc1')
    full_exec()
    A('L_F3_B:')
    A('v_lshlrev_b32 v7, 2, v0'); A('ds_write_b32 v7, v3')
    for k in range(3): A(f'ds_write_b32 v7, v3 offset:{OACC + 256*k}')
    A('s_waitcnt lgkmcnt(0)')
    A('s_barrier')
    set_exec(1)
    poll(lambda: A(f'buffer_load_dword v9, v3, {srd("DBG")}, 0 offen sc1'), [9], 10, sleep=NSLEEP)
    A(f'ds_write_b32 v3, v9 offset:{F_N}')
    full_exec()
    stamp(1)
    A('s_branch L_VSTREAM')
    A('L_F4:')
    A(f's_cmp_lg_u32 s{sR}, 4'); A('s_cbranch_scc1 L_F5')
    for r in range(4): A(f'v_mov_b32 v{8+r}, 0')
    kb_pi()
    A('s_mul_i32 s70, s68, 24576'); A(f's_mul_i32 s62, s{sX}, 3072'); A('s_add_u32 s70, s70, s62'); A('s_lshl_b32 s62, s69, 9'); A('s_add_u32 s70, s70, s62')
    A(f's_add_u32 s70, s70, {R_Q[0]}')
    A('v_and_b32 v12, 31, v0'); A('v_lshlrev_b32 v12, 4, v12'); A('v_lshrrev_b32 v13, 5, v0'); A(f'v_mul_u32_u24 v13, {R_Q[1]-R_Q[0]}, v13'); A('v_add_u32 v12, v12, v13')
    A(f's_cmp_ge_u32 s{sI}, 30'); A('s_cbranch_scc1 L_F4_B')
    set_exec(0xffffffff)
    A(f'buffer_store_dwordx4 v[8:11], v12, {srd("WS")}, s70 offen sc1')
    full_exec()
    A('L_F4_B:')
    A(f's_lshl_b32 s62, s{sH}, 3'); A(f's_add_u32 s62, s62, s{sS}'); A('s_mul_i32 s71, s62, 768'); A('s_lshl_b32 s72, s62, 6')
    A('v_lshlrev_b32 v12, 4, v0')
    A(f's_add_u32 s73, s71, {R_O[0]}'); A('v_add_u32 v13, s73, v12')
    A(f's_add_u32 s73, s72, {R_ST[0] - 768}'); A('v_add_u32 v14, s73, v12')
    A('v_cmp_lt_u32 vcc, 47, v0'); A('v_cndmask_b32 v13, v13, v14, vcc')
    A(f's_add_u32 s73, s71, {R_O[1]}'); A('v_add_u32 v15, s73, v12')
    A(f's_add_u32 s73, s72, {R_ST[1] - 768}'); A('v_add_u32 v14, s73, v12')
    A('v_cndmask_b32 v15, v15, v14, vcc')
    A(f's_cmp_ge_u32 s{sI}, 20'); A('s_cbranch_scc1 L_F4_C')
    A(f's_and_b32 s62, s{sI}, 1'); A(f's_lshl_b32 s63, s{sX}, 1'); A('s_add_u32 s62, s62, s63'); A('s_mul_i32 s74, s62, 2560')
    A(f's_lshr_b32 s62, s{sI}, 1'); A('s_lshl_b32 s62, s62, 8'); A('s_add_u32 s74, s74, s62'); A(f's_add_u32 s74, s74, {R_Y}')
    set_exec(0xffff)
    A(f'buffer_store_dwordx4 v[8:11], v12, {srd("WS")}, s74 offen sc1')
    full_exec()
    A('s_branch L_F4_D')
    A('L_F4_C:')
    branch_if_not_g('L_F4_D')
    g_index()
    A('s_and_b32 s62, s75, 1'); A('s_mul_i32 s74, s62, 3072'); A('s_lshr_b32 s62, s75, 1'); A('s_lshl_b32 s62, s62, 7'); A('s_add_u32 s74, s74, s62'); A(f's_add_u32 s74, s74, {R_HM}')
    set_exec(0xff)
    A(f'buffer_store_dwordx4 v[8:11], v12, {srd("WS")}, s74 offen sc1')
    full_exec()
    A('s_cmp_ge_u32 s75, 8'); A('s_cbranch_scc1 L_F4_D')
    A('s_mul_i32 s63, s75, 160'); A(f's_add_u32 s63, s63, {R_X2}')
    set_exec(0x3ff)
    A(f'buffer_store_dwordx4 v[8:11], v12, {srd("WS")}, s63 offen sc1')
    full_exec()
    A('L_F4_D:')
    set_exec((1 << 52) - 1)
    A(f'buffer_store_dwordx4 v[8:11], v13, {srd("WS")}, 0 offen sc1')
    full_exec()
    A('s_barrier')
    A('s_waitcnt vmcnt(0)')
    lds_set(F_CLR)
    stamp(1)
    get_nonce(12)
    A(f'v_mov_b32 v12, s{sN}')
    A('s_getreg_b32 s62, hwreg(HW_REG_XCC_ID)'); A('s_and_b32 s62, s62, 15'); A('s_add_u32 s62, s62, 1'); A('v_mov_b32 v13, s62')
    A(f's_lshl_b32 s70, s{sX}, 5'); A(f's_add_u32 s70, s70, s{sI}'); A('s_lshl_b32 s70, s70, 3'); A(f's_add_u32 s70, s70, {R_CLR}')
    set_exec(1)
    A(f'buffer_store_dwordx2 v[12:13], v3, {srd("WS")}, s70 offen sc1')
    full_exec()
    stamp(2)
    A('s_branch L_VSTREAM')
    A('L_F5:')
    A('s_barrier')
    if not DA:
        A(f's_cmp_lg_u32 s{sR}, 5'); A('s_cbranch_scc1 L_F6')
        A('s_cmp_ge_u32 s2, 40'); A('s_cbranch_scc1 L_F6')
        A('s_mov_b32 s76, s2')
        finalize_line(76)
        stamp(2)
    A('L_F6:')
    if PRET:
        A(f's_cmp_lg_u32 s{sR}, 7'); A('s_cbranch_scc1 L_F7_X')
        A('v_lshlrev_b32 v8, 17, v0')
        set_exec(0xffff)
        A(f'buffer_load_dword v9, v8, {srd("WG")}, 0 offen nt'); A(f'buffer_load_dword v10, v8, {srd("WU")}, 0 offen nt'); A(f'buffer_load_dword v11, v8, {srd("WD")}, 0 offen nt')
        A(f's_mul_i32 s62, s{sX}, {768 * 1280}')
        set_exec(0x1ff)
        A(f'buffer_load_dword v12, v8, {srd("WO")}, s62 offen nt')
        set_exec(0x3)
        A(f'buffer_load_dword v13, v8, {srd("V")}, s67 offen nt')
        set_exec(1)
        A(f'buffer_load_dword v14, v3, {srd("OUT")}, 0 offen nt')
        full_exec()
        A('L_F7_X:')
    if TD == 's':
        A(f's_cmp_lt_u32 s{sR}, 6'); A('s_cbranch_scc1 L_F6_X')
        A(f's_cmp_lt_u32 s{sI}, 26'); A('s_cbranch_scc1 L_F6_X')
        branch_if_no_role('L_F6_X')
        d_index()
        dma_addr(32, 1280, 6, 7, 8)
        A(f's_sub_u32 s76, s{sR}, 6')
        A(f's_mul_i32 s77, s76, {768 * 1280}'); A('s_lshl_b32 s62, s75, 5'); A('s_add_u32 s77, s77, s62')
        A(f's_mul_i32 s78, s76, 24576'); A(f's_add_u32 s78, s78, {LDS_T}')
        lds_wait(CNT_B, vZ, 9, cmp_val=2)
        dma_issue(24, 'WD', 6, 77, 32 * 1280, 78, pace=DPACE, pol=TPOL)
        A('s_waitcnt vmcnt(0)')
        lds_inc(CNT_TD)
        A('L_F6_X:')
    if dry:
        for r in list(range(6, 48)): A(f'v_mov_b32 v{r}, 0')
        A(f's_mov_b32 s{sLIVE}, 0'); A('s_mov_b64 exec, 0')
        A(f's_cmp_eq_u32 s{sR}, 5'); A('s_cbranch_scc1 L_F5_K')
        A(f's_cmp_eq_u32 s{sR}, 6'); A('s_cbranch_scc1 L_F6_F')
        A('s_branch L_PV')
        A('L_F5_K:'); A(f's_mov_b32 s{sR}, 0'); A('s_branch L_K_DRY')
        A('L_F6_F:'); A(f's_mov_b32 s{sR}, 0'); kb_pi(); A(f's_mov_b32 s71, {LDS_B}'); A('s_branch L_F01_DRY')
        A('L_DRYRET:')
        A(f's_mov_b32 s{sLIVE}, -1'); A('s_mov_b64 exec, -1'); A(f's_and_b32 s{sR}, s{sW}, 7')
        stamp(1)
    else:
        A('L_DRYRET:')

    VD = 32
    A('L_VSTREAM:')
    A('s_waitcnt vmcnt(0)')
    A(f's_sub_u32 s68, s{sR}, 2'); A('s_cmp_ge_u32 s68, 3'); A('s_cselect_b32 s69, 1, 0')
    A('s_mul_i32 s62, s69, 3'); A('s_sub_u32 s68, s68, s62')
    A('s_mul_i32 s70, s69, 24576'); A(f's_add_u32 s71, s70, {LDS_A}'); A('s_add_u32 s70, s70, s67')
    A('s_lshl_b32 s62, s68, 13'); A('s_add_u32 s71, s71, s62')
    lds_wait(CNT_FREE, vZ, 6, cmp_val=3)
    lds_wait(KISS, vPF, 6)
    stamp(5)
    d0 = DV0 or DV
    def vload(n):
        T, tt, c = n // 12, (n % 12) // 3, n % 3
        A(f'buffer_load_dwordx4 v[{VD+4*n}:{VD+4*n+3}], v2, {srd("V")}, s{65+T} offen offset:{tt*384+c*128} {KVPOL}')
    A('s_lshl_b32 s68, s68, 3'); A('s_mov_b32 s69, 0'); A('s_mov_b32 s74, 0'); A('s_mov_b32 s75, 0')
    A('L_VP:')
    A('s_lshl_b32 s62, s68, 7'); A('s_cmp_ge_u32 s68, 12'); A('s_cselect_b32 s63, 10752, 0'); A('s_add_u32 s62, s62, s63'); A('s_add_u32 s62, s62, s70')
    A('s_mov_b32 m0, s71')
    A(f'buffer_load_dwordx4 v2, {srd("V")}, s62 offen {KVPOL} lds')
    A('s_add_u32 s71, s71, 1024'); A('s_add_u32 s68, s68, 1'); A('s_add_u32 s69, s69, 1')
    A('s_cmp_lg_u32 s74, 0'); A('s_cbranch_scc1 L_VP_N')
    A(f'ds_read_b32 v6, v{vPF} offset:{PRDY}')
    A(f's_waitcnt vmcnt({d0-1}) lgkmcnt(0)')
    A('v_readfirstlane_b32 s74, v6')
    A('L_VP_N:')
    A('s_cmp_lt_u32 s69, 8'); A('s_cbranch_scc1 L_VP')
    A('s_cmp_lg_u32 s74, 0'); A('s_cbranch_scc1 L_VF_0')
    for n in range(24):
        vload(n)
        if n + 1 < 24 - VFREE:
            A(f'ds_read_b32 v6, v{vPF} offset:{PRDY}')
            A(f's_waitcnt vmcnt({DV-1}) lgkmcnt(0)')
            if n + 1 == DV:
                lds_inc(CNT_VD); A('s_mov_b32 s75, 1')
            A('v_readfirstlane_b32 s62, v6'); A('s_cmp_lg_u32 s62, 0'); A(f's_cbranch_scc1 L_VF_{n+1}')
    A('s_branch L_VF_E')
    for n in range(24):
        A(f'L_VF_{n}:'); vload(n)
    A('s_cmp_lg_u32 s75, 0'); A('s_cbranch_scc1 L_VF_E')
    lds_inc(VISS)
    A('s_waitcnt vmcnt(24)')
    lds_inc(CNT_VD)
    A('s_branch L_VF_E2')
    A('L_VF_E:')
    lds_inc(VISS)
    A('L_VF_E2:')
    if WV:
        A(f's_cmp_ge_u32 s{sI}, 20'); A('s_cbranch_scc1 L_WV_NO')
        dma_addr(128, 1280, 6, 7, 8)
        A(f's_mul_i32 s70, s{sX}, 768'); A(f's_and_b32 s62, s{sI}, 1'); A('s_mul_i32 s62, s62, 384'); A('s_add_u32 s70, s70, s62')
        A(f's_sub_u32 s71, s{sR}, 2'); A('s_lshl_b32 s62, s71, 6'); A('s_add_u32 s70, s70, s62'); A('s_mul_i32 s70, s70, 1280')
        A(f's_lshr_b32 s62, s{sI}, 1'); A('s_lshl_b32 s62, s62, 7'); A('s_add_u32 s70, s70, s62')
        A('s_lshl_b32 s71, s71, 13'); A(f's_add_u32 s71, s71, {LDS_T}')
        dma_issue(8, 'WO', 6, 70, 8 * 1280, 71, pol=TPOL)
        A('s_branch L_WV_E')
        A('L_WV_NO:')
        A('v_mov_b32 v6, 0x7ffff000')
        for k in range(8): A(f'buffer_load_dword v2, v6, {srd("X")}, 0 offen')
        A('L_WV_E:')
    if diagV:
        stamp(3); A('s_waitcnt vmcnt(0)'); stamp(4)
    A('L_PV:')
    A('v_and_b32 v14, 7, v0')
    A('v_and_b32 v15, 1, v14'); A('v_lshlrev_b32 v15, 4, v15'); A('v_mov_b32 v10, 0xffff'); A('v_lshlrev_b32 v15, v15, v10')
    A('v_lshrrev_b32 v14, 1, v14')
    for d in range(4):
        A(f'v_cmp_eq_u32 vcc, {d}, v14'); A(f'v_cndmask_b32 v{6+d}, 0, v15, vcc')
    for r in range(12): A(f'v_mov_b32 v{16+r}, 0')
    A('v_lshrrev_b32 v14, 3, v0'); A('v_lshlrev_b32 v14, 4, v14'); A(f's_lshl_b32 s62, s{sR}, 8'); A('v_add_u32 v14, s62, v14')
    A('v_bfe_u32 v1, v0, 4, 1'); A('v_lshlrev_b32 v1, 7, v1'); A('v_and_b32 v15, 7, v0'); A('v_lshl_add_u32 v1, v15, 2, v1')
    A('v_lshrrev_b32 v15, 5, v0'); A('v_lshl_add_u32 v1, v15, 5, v1'); A(f's_mul_i32 s62, s{sR}, 768'); A('v_add_u32 v1, s62, v1')
    A(f's_lshl_b32 s62, s{sH}, 3'); A(f's_add_u32 s62, s62, s{sS}'); A('s_mul_i32 s62, s62, 768')
    A(f's_add_u32 s72, s62, {R_O[0]}')
    lds_wait(PRDY, vPF, 15)
    get_loc(15)
    stamp(6)
    for T in range(2):
        A(f'ds_read_b128 v[10:13], v14 offset:{PD + 128*T}')
        A('s_waitcnt lgkmcnt(0)')
        for tt in range(4):
            t = 4 * T + tt
            for d in range(4): A(f'v_and_b32 v{28+d}, v{10+tt}, v{6+d}')
            for c in range(3):
                n = 3 * t + c
                A(f's_waitcnt vmcnt({23-n+(8 if WV else 0)})')
                A(f'v_mfma_f32_16x16x32_bf16 v[{16+4*c}:{19+4*c}], v[{VD+4*n}:{VD+4*n+3}], v[28:31], v[{16+4*c}:{19+4*c}]')
    A('v_lshlrev_b32 v14, 4, v0')
    for k in range(6): A(f'v_permlane32_swap_b32 v{16+2*k}, v{17+2*k}')
    for k in range(6): A(f'v_add_f32_dpp v{16+2*k}, v{17+2*k}, v{16+2*k} row_ror:8 row_mask:0xf bank_mask:0xf')
    set_exec(0x00ff00ff00ff00ff)
    for k in range(6): A(f'ds_write_b32 v1, v{16+2*k} offset:{RED + 256*(k//2) + 64*(k%2)}')
    set_exec(1)
    A(f'ds_add_rtn_u32 v15, v3, v4 offset:{CNT_O}')
    set_exec((1 << 48) - 1)
    for k in range(8): A(f'ds_read_b128 v[{32+4*k}:{35+4*k}], v14 offset:{RED + 768*k}')
    A('s_waitcnt lgkmcnt(8)')
    A('v_readfirstlane_b32 s62, v15')
    A('s_cbranch_execz L_VRED')
    A('s_cmp_lg_u32 s62, 7'); A('s_cbranch_scc1 L_VEND')
    A('L_VRED:')
    A('s_waitcnt lgkmcnt(0)')
    tree_add(32, 8)
    for r in range(4): A(f'v_or_b32 v{32+r}, 1, v{32+r}')
    loc_store(f'buffer_store_dwordx4 v[32:35], v14, {srd("WS")}, s72 offen')
    lds_set(F_ODONE)
    dstamp(6, 8, vt=(1, 47))
    dry_check('L_DRYRET')
    A('L_VEND:')
    stamp(7)
    if WV:
        A(f's_cmp_lt_u32 s{sR}, 2'); A('s_cbranch_scc1 L_VEND2')
        A(f's_cmp_ge_u32 s{sI}, 20'); A('s_cbranch_scc1 L_VEND2')
        A('s_waitcnt vmcnt(0)')
        lds_inc(CNT_TD)
        A('L_VEND2:')
    if TG == 'w':
        A(f's_cmp_lt_u32 s{sI}, 20'); A('s_cbranch_scc1 L_VEND3')
        A(f's_cmp_ge_u32 s{sI}, 26'); A('s_cbranch_scc1 L_VEND3')
        full_exec()
        A(f's_mul_i32 s75, s{sX}, 6'); A(f's_add_u32 s75, s75, s{sI}'); A('s_sub_u32 s75, s75, 20')
        A('s_bitcmp1_b32 s75, 0')
        A(f's_cselect_b32 s68, s{SRD["WU"]}, s{SRD["WG"]}'); A(f's_cselect_b32 s69, s{SRD["WU"]+1}, s{SRD["WG"]+1}')
        A(f's_mov_b32 s70, {SIZE["WG"]}'); A('s_mov_b32 s71, 0x20000')
        dma_addr(128, 3072, 6, 7, 8)
        A(f's_mul_i32 s72, s{sR}, {80 * 3072}'); A('s_lshr_b32 s62, s75, 1'); A('s_lshl_b32 s62, s62, 7'); A('s_add_u32 s72, s72, s62')
        A(f's_mul_i32 s73, s{sR}, 10240'); A(f's_add_u32 s73, s73, {LDS_T}')
        if GWG: lds_wait(VISS, vZ, 9, cmp_val=6)
        dma_issue(10, 's[68:71]', 6, 72, 8 * 3072, 73, pace=TDEPTH, pol=TPOL)
        A('s_waitcnt vmcnt(0)')
        lds_inc(CNT_TD)
        A('L_VEND3:')
    flush_stamps()
    A('s_endpgm')

    A('L_KWAVE:')
    KD = 32
    def kload(n):
        T, tt, c = n // 12, (n % 12) // 3, n % 3
        A(f'buffer_load_dwordx4 v[{KD+4*n}:{KD+4*n+3}], v2, {srd("K")}, s{65+T} offen offset:{tt*384+c*128} {KVPOL}')
    for n in range(24):
        kload(n)
        if n + 1 == (SOFT or DK):
            A('s_barrier')
            if SOFT and KW == 'a': lds_wait(F_A, vZ, 6)
            if SOFT and KW == 'b': lds_wait(CNT_B, vZ, 6, cmp_val=2)
        if n + 1 >= DK and n + 1 < 24:
            if KADAPT and n + 1 >= KA0:
                A(f'ds_read_b32 v6, v{vZ} offset:{F_Q}')
                A(f's_waitcnt vmcnt({DK-1}) lgkmcnt(0)')
                A('v_readfirstlane_b32 s62, v6'); A('s_cmp_lg_u32 s62, 0'); A(f's_cbranch_scc1 L_KF_{n+1}')
            else:
                A(f's_waitcnt vmcnt({DK-1})')
    if KADAPT:
        A('s_branch L_KF_E')
        for n in range(KA0, 24):
            A(f'L_KF_{n}:'); kload(n)
            if DKF and n + 1 < 24: A(f's_waitcnt vmcnt({DKF-1})')
        A('L_KF_E:')
    lds_set(KISS, vPF)
    dstamp(4, 8, 8, vt=(1, 7))
    stamp(1)
    A('L_K_DRY:')
    A('v_and_b32 v6, 7, v0'); A('v_lshlrev_b32 v6, 4, v6')
    A(f's_lshl_b32 s62, s{sH}, 6'); A(f's_lshl_b32 s63, s{sS}, 3'); A('s_add_u32 s62, s62, s63'); A(f's_add_u32 s62, s62, s{sR}'); A('s_lshl_b32 s62, s62, 3')
    A(f's_add_u32 s72, s62, {R_ST[0]}')
    def setmask(m, s): A(f's_mov_b32 s{s}, {m}'); A(f's_mov_b32 s{s+1}, {m}')
    setmask(0xf0f0f0f0, 80); setmask(0xaaaaaaaa, 82); setmask(0xcccccccc, 84)
    get_loc(7)
    lds_wait(F_Q, vZ, 7)
    stamp(2)
    for c in range(3): A(f'ds_read_b128 v[{8+4*c}:{11+4*c}], v6 offset:{QV + 128*c}')
    A('s_waitcnt lgkmcnt(0)')
    for tp in range(0, 8, 2):
        A(f's_waitcnt vmcnt({21 - 3*(tp+1)})')
        for c in range(3):
            for d in range(4):
                for t in (tp, tp + 1):
                    kr = KD + 4 * (3 * t + c) + d
                    src2 = '0' if (c == 0 and d == 0) else f'v{20+t}'
                    A(f'v_dot2_f32_bf16 v{20+t}, v{kr}, v{8+4*c+d}, {src2}')
    for j in range(4):
        A(f'v_cndmask_b32 v{8+j}, v{20+j}, v{24+j}, s[80:81]')
        A(f'v_cndmask_b32 v{12+j}, v{24+j}, v{20+j}, s[80:81]')
    for j in range(4): A(f'v_add_f32_dpp v{8+j}, v{12+j}, v{8+j} row_half_mirror row_mask:0xf bank_mask:0xf')
    for jj in (0, 1):
        A(f'v_cndmask_b32 v{12+jj}, v{8+2*jj}, v{9+2*jj}, s[82:83]')
        A(f'v_cndmask_b32 v{14+jj}, v{9+2*jj}, v{8+2*jj}, s[82:83]')
    for jj in (0, 1): A(f'v_add_f32_dpp v{12+jj}, v{14+jj}, v{12+jj} quad_perm:[1,0,3,2] row_mask:0xf bank_mask:0xf')
    A('v_cndmask_b32 v8, v12, v13, s[84:85]'); A('v_cndmask_b32 v9, v13, v12, s[84:85]')
    A('v_add_f32_dpp v8, v9, v8 quad_perm:[2,3,0,1] row_mask:0xf bank_mask:0xf')
    rbf(8, 8); A(f'v_mul_f32 v8, {SCALE}, v8'); rbf(8, 8)
    A('v_mov_b32 v9, v8')
    allreduce([9], 'v_max_f32', [10])
    A('v_sub_f32 v10, v8, v9'); A(f'v_mul_f32 v10, {LOG2E}, v10'); A('v_exp_f32 v10, v10')
    allreduce([10], 'v_add_f32', [11])
    A('v_or_b32 v12, 1, v9'); A('v_mov_b32 v13, v10')
    set_exec(1)
    loc_store(f'buffer_store_dwordx2 v[12:13], v3, {srd("WS")}, s72 offen')
    full_exec()
    stamp(3)
    A('v_mov_b32 v127, v8')
    A(f's_cmp_lt_u32 s{sR}, 2'); A('s_cselect_b32 s62, 8, 0'); A('v_add_u32 v126, s62, v5')
    def emit_p():
        lds_wait(F_ML, vZ, 120)
        A(f'ds_read_b64 v[120:121], v3 offset:{ML}')
        A('v_bfe_u32 v122, v0, 2, 1'); A('v_lshlrev_b32 v122, 5, v122'); A('v_lshrrev_b32 v123, 3, v0'); A('v_lshl_add_u32 v122, v123, 2, v122')
        A('v_and_b32 v123, 3, v0'); A('v_add_u32 v122, v122, v123'); A('v_lshlrev_b32 v122, 2, v122'); A(f's_lshl_b32 s62, s{sR}, 8'); A('v_add_u32 v122, s62, v122')
        A('s_waitcnt lgkmcnt(0)')
        A('v_sub_f32 v127, v127, v120'); A(f'v_mul_f32 v127, {LOG2E}, v127'); A('v_exp_f32 v127, v127')
        fdiv(127, 127, 121, 120, 123, 124, 125)
        A('v_cvt_pk_bf16_f32 v127, v127, v127')
        A(f'ds_write_b32 v122, v127 offset:{PD}')
        lds_set(PRDY, vPF)
        stamp(4)
    A(f's_cmp_lt_u32 s{sI}, 20'); A('s_cbranch_scc1 L_TW')
    if DYN:
        branch_if_not_gcand('L_TD')
        emit_p()
        lds_wait(F_TK, vZ, 7)
        A('s_sub_u32 s75, s62, 1')
        A('s_cmp_lt_u32 s75, 48'); A('s_cbranch_scc1 L_TG')
        A('s_branch L_KEND')
    else:
        branch_if_g('L_TG')
        branch_if_no_role('L_TNONE')
        A('s_branch L_TD')
        A('L_TNONE:')
        emit_p()
        A('s_branch L_KEND')

    FR = 64
    def wg_common(nk, rows_per_kg):
        A(f's_and_b32 s76, s{sR}, 3'); A(f's_lshr_b32 s77, s{sR}, 2')
        A(f's_mul_i32 s78, s76, {rows_per_kg * 128}'); A(f's_add_u32 s78, s78, {LDS_T}')
        A('v_lshrrev_b32 v12, 2, v0'); A('v_lshlrev_b32 v12, 7, v12'); A('v_and_b32 v13, 3, v0'); A('v_lshl_add_u32 v12, v13, 3, v12'); A('v_add_u32 v12, s78, v12')
        A('v_bfe_u32 v13, v0, 3, 2'); A('s_lshl_b32 s62, s77, 1')
        A('v_xor_b32 v10, s62, v13'); A('v_xor_b32 v11, 1, v10')
        A('v_lshl_add_u32 v10, v10, 5, v12'); A('v_lshl_add_u32 v11, v11, 5, v12')
        A(f's_lshl_b32 s74, s{sR}, 9'); A(f's_add_u32 s74, s74, {STG}')
        A('v_lshrrev_b32 v19, 4, v0'); A('v_lshl_add_u32 v19, v19, 3, s74')
        A('v_lshrrev_b32 v18, 4, v0'); A('v_lshlrev_b32 v18, 4, v18'); A('s_lshl_b32 s62, s76, 8'); A('s_lshl_b32 s63, s77, 7'); A('s_add_u32 s62, s62, s63'); A('v_add_u32 v18, s62, v18')
        A('v_lshlrev_b32 v27, 3, v0')
        A(f's_mul_i32 s62, s77, {rows_per_kg * 64}'); A('s_add_u32 s73, s78, s62')
    def wg_fetch(nk, acc):
        for r in range(8): A(f'v_mov_b32 v{acc+r}, 0')
        A('s_waitcnt vmcnt(0)')
        lds_inc(CNT_TD)
        lds_wait(CNT_TD, vZ, 7, cmp_val=8)
        for u in range(nk):
            for ct in range(2):
                r = FR + (u * 2 + ct) * 4
                for hh in range(2): A(f'ds_read_b64_tr_b16 v[{r+2*hh}:{r+2*hh+1}], v{10+ct} offset:{(32*u+16*hh)*128}')
    def wg_mfma(nk, acc, bb):
        for u in range(nk): A(f'ds_read2_b64 v[{bb+4*u}:{bb+3+4*u}], v19 offset0:{8*u} offset1:{8*u+4}')
        for u in range(nk):
            A(f's_waitcnt lgkmcnt({nk-1-u})')
            for ct in range(2):
                r = FR + (u * 2 + ct) * 4
                A(f'v_mfma_f32_16x16x32_bf16 v[{acc+4*ct}:{acc+3+4*ct}], v[{r}:{r+3}], v[{bb+4*u}:{bb+3+4*u}], v[{acc+4*ct}:{acc+3+4*ct}]')
        set_exec(0x0001000100010001)
        for ct in range(2): A(f'ds_write_b128 v18, v[{acc+4*ct}:{acc+3+4*ct}] offset:{TRED + 64*ct}')
        A('s_waitcnt lgkmcnt(0)')
        barrier()
        A(f's_cmp_lg_u32 s{sR}, 0'); A('s_cbranch_scc1 L_KEND')
        set_exec(0xffffffff)
        for k in range(4): A(f'ds_read_b64 v[{32+2*k}:{33+2*k}], v27 offset:{TRED + 256*k}')
        A('s_waitcnt lgkmcnt(0)')
        tree2(32, 4)

    A('L_TW:')
    wg_common(3, 96)
    dma_addr(128, 1280, 6, 7, 8)
    A(f's_and_b32 s75, s{sI}, 1')
    A(f's_mul_i32 s70, s{sX}, 768'); A('s_mul_i32 s62, s75, 384'); A('s_add_u32 s70, s70, s62'); A('s_mul_i32 s62, s76, 96'); A('s_add_u32 s70, s70, s62')
    A(f's_lshl_b32 s62, s{sX}, 2'); A('s_lshl_b32 s63, s75, 1'); A('s_add_u32 s62, s62, s63'); A('s_lshr_b32 s63, s76, 1'); A('s_add_u32 s62, s62, s63'); A('s_mul_i32 s62, s62, 6144')
    A('s_and_b32 s63, s76, 1'); A('s_mul_i32 s63, s63, 384'); A('s_add_u32 s62, s62, s63')
    if X4:
        A('v_lshrrev_b32 v14, 5, v0'); A('v_mul_u32_u24 v14, 3072, v14'); A('v_and_b32 v15, 31, v0'); A('v_lshl_add_u32 v14, v15, 4, v14'); A('v_add_u32 v14, s62, v14')
    else:
        A('v_lshl_add_u32 v14, v0, 3, s62'); A('v_add_u32 v15, 3072, v14')
    A('s_mul_i32 s62, s77, 48'); A('s_add_u32 s70, s70, s62'); A('s_mul_i32 s70, s70, 1280')
    A(f's_lshr_b32 s62, s{sI}, 1'); A('s_lshl_b32 s62, s62, 7'); A('s_add_u32 s70, s70, s62')
    A('v_lshl_add_u32 v16, v15, 3, s74' if X4 else 'v_lshl_add_u32 v16, v0, 2, s74')
    A(f's_lshl_b32 s63, s{sX}, 1'); A('s_add_u32 s63, s63, s75'); A('s_mul_i32 s75, s63, 2560'); A('s_lshl_b32 s62, s62, 1'); A('s_add_u32 s75, s75, s62'); A(f's_add_u32 s75, s75, {R_Y}')
    emit_p()
    def w_tr():
        for u in range(3):
            for ct in range(2):
                r = FR + (u * 2 + ct) * 4
                for hh in range(2): A(f'ds_read_b64_tr_b16 v[{r+2*hh}:{r+2*hh+1}], v{10+ct} offset:{(32*u+16*hh)*128}')
    if not WV:
        if DA: lds_wait(F_YH, vZ, 7)
        tail_gate(TW)
        dma_issue(6, 'WO', 6, 70, 8 * 1280, 73, pace=TDEPTH, pol=TPOL)
        wg_fetch(3, 112)
        stamp(5)
    else:
        for r in range(8): A(f'v_mov_b32 v{112+r}, 0')
    lds_wait(F_ODONE, vZ, 7)
    if X4:
        set_exec(0x00ffffff00ffffff)
        def ld():
            for n in range(4): A(f'buffer_load_dwordx4 v[{32+4*n}:{35+4*n}], v14, {srd("WS")}, s64 offen offset:{768*n} sc1')
        poll(ld, list(range(32, 48)), 7, regionAB=R_O, sleep=0)
        stamp(6)
        tree_add(32, 4)
        half_swap_add(32, 36)
        A('v_cvt_pk_bf16_f32 v36, v32, v33'); A('v_cvt_pk_bf16_f32 v37, v34, v35')
        A('ds_write_b64 v16, v[36:37]')
        full_exec()
    else:
        set_exec((1 << 48) - 1)
        def ld():
            for n in range(8): A(f'buffer_load_dwordx2 v[{32+2*n}:{33+2*n}], v{14 + n//4}, {srd("WS")}, s64 offen offset:{768*(n%4)} sc1')
        poll(ld, list(range(32, 48)), 7, regionAB=R_O, sleep=0)
        stamp(6)
        tree2(32, 8)
        A('v_cvt_pk_bf16_f32 v36, v32, v33')
        A('ds_write_b32 v16, v36')
        full_exec()
    if WV:
        lds_wait(CNT_TD, vZ, 7, cmp_val=6)
        stamp(5)
        w_tr()
    wg_mfma(3, 112, 40)
    for r in range(2): A(f'v_or_b32 v{32+r}, 1, v{32+r}')
    if WIDE:
        A('v_mov_b32_dpp v34, v32 quad_perm:[1,1,3,3] row_mask:0xf bank_mask:0xf'); A('v_mov_b32_dpp v35, v33 quad_perm:[1,1,3,3] row_mask:0xf bank_mask:0xf')
        set_exec(0x55555555)
        A(f'buffer_store_dwordx4 v[32:35], v27, {srd("WS")}, s75 offen sc1')
    else:
        A(f'buffer_store_dwordx2 v[32:33], v27, {srd("WS")}, s75 offen sc1')
    dstamp(7, 8); dstamp(8, 13)
    if YTH:
        set_exec(1)
        A(f'buffer_atomic_add v4, v3, {srd("DBG")}, 0 offen offset:128 sc1')
    A('s_branch L_KEND')

    A('L_TG:')
    if not DYN: g_index()
    wg_common(5, 160)
    A('s_bitcmp1_b32 s75, 0')
    A(f's_cselect_b32 s68, s{SRD["WU"]}, s{SRD["WG"]}'); A(f's_cselect_b32 s69, s{SRD["WU"]+1}, s{SRD["WG"]+1}')
    A(f's_mov_b32 s70, {SIZE["WG"]}'); A('s_mov_b32 s71, 0x20000'); G_SRD = 's[68:71]'
    dma_addr(128, 3072, 6, 7, 8)
    A('s_mul_i32 s72, s76, 160'); A('s_mul_i32 s62, s77, 80'); A('s_add_u32 s72, s72, s62'); A('s_mul_i32 s72, s72, 3072')
    A('s_lshr_b32 s62, s75, 1'); A('s_lshl_b32 s62, s62, 7'); A('s_add_u32 s72, s72, s62')
    A('s_and_b32 s63, s75, 1'); A('s_mul_i32 s63, s63, 3072'); A('s_add_u32 s62, s62, s63'); A(f's_add_u32 s84, s62, {R_HM}')
    if X4:
        A('v_and_b32 v7, 31, v0'); A('v_min_u32 v7, 19, v7')
        A(f's_mul_i32 s62, s{sR}, 160'); A('v_lshl_add_u32 v14, v7, 3, s62')
        A(f'buffer_load_dwordx2 v[24:25], v14, {srd("X")}, 0 offen')
        A('v_lshlrev_b32 v17, 1, v14')
        A('v_lshrrev_b32 v7, 5, v0'); A('v_mul_u32_u24 v7, 2560, v7'); A('v_add_u32 v26, v7, v17')
        A('v_min_u32 v7, 39, v0')
    else:
        A('v_min_u32 v7, 39, v0')
        A(f's_mul_i32 s62, s{sR}, 160'); A('v_lshl_add_u32 v14, v7, 2, s62')
        A(f'buffer_load_dword v28, v14, {srd("X")}, 0 offen')
        A('v_lshlrev_b32 v17, 1, v14')
        A('v_add_u32 v26, 20480, v17')
    A('s_mul_i32 s62, s76, 320'); A('v_lshl_add_u32 v30, v7, 3, s62')
    A('v_lshlrev_b32 v31, 1, v30')
    A('v_lshl_add_u32 v16, v0, 3, s74')
    A('v_lshlrev_b32 v15, 4, v0'); A('v_lshlrev_b32 v9, 2, v0')
    A('v_mov_b32 v29, 0x3acccccd'); A('v_mov_b32 v8, 0x80000000')
    if not DYN: emit_p()
    lds_wait(F_MV, vZ, 7)
    A(f'ds_read_b128 v[20:23], v17 offset:{MODV}' if X4 else f'ds_read_b64 v[20:21], v17 offset:{MODV}')
    A(f'ds_read_b128 v[104:107], v31 offset:{MODV + 2560}'); A(f'ds_read_b128 v[108:111], v31 offset:{MODV + 5120}')
    def g_tr():
        for u in range(5):
            for ct in range(2):
                r = FR + (u * 2 + ct) * 4
                for hh in range(2): A(f'ds_read_b64_tr_b16 v[{r+2*hh}:{r+2*hh+1}], v{10+ct} offset:{(32*u+16*hh)*128}')
    if TG == 'w':
        for r in range(8): A(f'v_mov_b32 v{112+r}, 0')
        A('s_waitcnt vmcnt(0)'); A('s_mov_b32 s73, 0')
    else:
        tail_gate(TG)
        dma_issue(10, G_SRD, 6, 72, 8 * 3072, 73, pace=TDEPTH, pol=TPOL)
        wg_fetch(5, 112)
    if X4: unpack4(120, 24)
    else: unpack2(22, 28)
    stamp(5)
    for k in range(4): A(f's_mov_b32 s{80+k}, {R_Y + 5120*k}')
    lds_wait(F_ODONE, vZ, 7)
    if X4:
        MG = 0x000fffff000fffff
        set_exec(MG)
        A('s_mov_b32 s85, 0xff'); A('s_mov_b32 s63, 0')
        A('L_GP:')
        for g in range(8):
            A(f's_bitcmp1_b32 s85, {g}'); A(f's_cbranch_scc0 L_GPI_{g}')
            A(f's_mov_b32 s62, {R_Y + 5120*g}')
            A(f'buffer_load_dwordx4 v[{32+4*g}:{35+4*g}], v26, {srd("WS")}, s62 offen sc1')
            A(f'L_GPI_{g}:')
        if TG == 'w':
            A('s_cmp_lg_u32 s73, 0'); A('s_cbranch_scc1 L_GFH')
            A(f'ds_read_b32 v7, v3 offset:{CNT_TD}'); A('s_waitcnt lgkmcnt(0)'); A('v_readfirstlane_b32 s62, v7')
            A('s_cmp_lt_u32 s62, 8'); A('s_cbranch_scc1 L_GFH')
            full_exec(); g_tr(); set_exec(MG)
            A('s_mov_b32 s73, 1')
            A('L_GFH:')
        A('s_waitcnt vmcnt(0)')
        for g in range(8):
            q = 32 + 4 * g
            A(f's_bitcmp1_b32 s85, {g}'); A(f's_cbranch_scc0 L_GPC_{g}')
            A(f'v_min3_u32 v7, v{q}, v{q+1}, v{q+2}'); A(f'v_min_u32 v7, v7, v{q+3}')
            A('v_cmp_eq_u32 vcc, 0, v7')
            A(f's_cbranch_vccnz L_GPC_{g}')
            A(f's_bitset0_b32 s85, {g}')
            A(f'L_GPC_{g}:')
        A('s_cmp_eq_u32 s85, 0'); A('s_cbranch_scc1 L_GPD')
        if TG == 'w' and GSLEEP:
            A('s_cmp_lg_u32 s73, 0'); A('s_cbranch_scc1 L_GNS'); A(f's_sleep {GSLEEP}'); A('L_GNS:')
        if TG != 'w' and GS2: A(f's_sleep {GS2}')
        A('s_add_u32 s63, s63, 1'); A(f's_cmp_lt_u32 s63, {SPIN_MAX}'); A('s_cbranch_scc1 L_GP')
        A('L_GPD:')
        stamp(6)
        tree_add(32, 8)
        half_swap_add(32, 36)
        rbf4(32, 32)
        for h in (0, 2): pk('mul', 32 + h, 32 + h, 20 + h)
        rbf4(32, 32)
        for h in (0, 2): pk('add', 32 + h, 32 + h, 120 + h)
        A('v_cvt_pk_bf16_f32 v40, v32, v33'); A('v_cvt_pk_bf16_f32 v41, v34, v35')
        A(f'ds_write_b64 v14, v[40:41] offset:{X2P}')
    else:
        y_hint(YTH, 'G')
        set_exec((1 << 40) - 1)
        def yld(n):
            A(f'buffer_load_dwordx2 v[{32+2*n}:{33+2*n}], v{17 if n < 8 else 26}, {srd("WS")}, s{80 + (n%8)//2} offen offset:{2560*(n%2)} sc1')
        if not GMASK:
            def ld():
                for n in range(16): yld(n)
            poll(ld, list(range(32, 64)), 7)
        else:
            A('s_mov_b32 s85, 0xff'); A('s_mov_b32 s63, 0')
            A('L_GP:')
            for g in range(8):
                A(f's_bitcmp1_b32 s85, {g}'); A(f's_cbranch_scc0 L_GPI_{g}')
                yld(2 * g); yld(2 * g + 1)
                A(f'L_GPI_{g}:')
            A('s_waitcnt vmcnt(0)')
            for g in range(8):
                q = 32 + 4 * g
                A(f's_bitcmp1_b32 s85, {g}'); A(f's_cbranch_scc0 L_GPC_{g}')
                A(f'v_min3_u32 v7, v{q}, v{q+1}, v{q+2}'); A(f'v_min_u32 v7, v7, v{q+3}')
                A('v_cmp_eq_u32 vcc, 0, v7')
                A(f's_cbranch_vccnz L_GPC_{g}')
                A(f's_bitset0_b32 s85, {g}')
                A(f'L_GPC_{g}:')
            A('s_cmp_eq_u32 s85, 0'); A('s_cbranch_scc1 L_GPD')
            A('s_add_u32 s63, s63, 1'); A(f's_cmp_lt_u32 s63, {SPIN_MAX}'); A('s_cbranch_scc1 L_GP')
            A('L_GPD:')
        stamp(6)
        tree2(32, 16)
        rbf2(32, 32, 36)
        pk('mul', 32, 32, 20)
        rbf2(32, 32, 36)
        pk('add', 32, 32, 22)
        A('v_cvt_pk_bf16_f32 v37, v32, v33')
        A(f'ds_write_b32 v14, v37 offset:{X2P}')
    full_exec()
    A('s_waitcnt lgkmcnt(0)')
    barrier()
    A(f'ds_read_b128 v[32:35], v15 offset:{X2P}'); A(f'ds_read_b32 v36, v9 offset:{X2P+1024}')
    A(f'ds_read_b64 v[38:39], v30 offset:{X2P}')
    A(f's_cmp_lg_u32 s{sR}, s75'); A('s_cbranch_scc1 L_TG_NX')
    A(f's_mov_b32 s62, {R_X2}')
    if X4:
        set_exec(0xfffff)
        for r in (40, 41): A(f'v_cmp_eq_u32 vcc, 0, v{r}'); A(f'v_cndmask_b32 v{r}, v{r}, v8, vcc')
        A(f'buffer_store_dwordx2 v[40:41], v14, {srd("WS")}, s62 offen sc1')
    else:
        set_exec((1 << 40) - 1)
        A('v_cmp_eq_u32 vcc, 0, v37'); A('v_cndmask_b32 v37, v37, v8, vcc')
        A(f'buffer_store_dword v37, v14, {srd("WS")}, s62 offen sc1')
    full_exec()
    A('L_TG_NX:')
    dstamp_n(9, 0, 8)
    A('s_waitcnt lgkmcnt(1)')
    ln_stats_pk([32, 33, 34, 35, 36], 48, 29)
    A('s_waitcnt lgkmcnt(0)')
    unpack4(44, 38)
    ln_apply_pk(44, 48)
    for h in (0, 2): pk('mul', 44 + h, 44 + h, 108 + h)
    rbf4(44, 44)
    for h in (0, 2): pk('add', 44 + h, 44 + h, 104 + h)
    A('v_cvt_pk_bf16_f32 v36, v44, v45'); A('v_cvt_pk_bf16_f32 v37, v46, v47')
    A('ds_write_b64 v16, v[36:37]')
    if TG == 'w':
        A('s_cmp_lg_u32 s73, 0'); A('s_cbranch_scc1 L_GFF')
        lds_wait(CNT_TD, vZ, 7, cmp_val=8)
        g_tr()
        A('L_GFF:')
    wg_mfma(5, 112, 40)
    A('v_cvt_pk_bf16_f32 v36, v32, v33')
    A('v_cmp_eq_u32 vcc, 0, v36'); A('v_cndmask_b32 v36, v36, v8, vcc')
    if WIDE:
        for k in (1, 2, 3): A(f'v_mov_b32_dpp v{36+k}, v36 quad_perm:[{k},{k},{k},{k}] row_mask:0xf bank_mask:0xf')
        set_exec(0x11111111)
        A(f'buffer_store_dwordx4 v[36:39], v9, {srd("WS")}, s84 offen sc1')
    else:
        A(f'buffer_store_dword v36, v9, {srd("WS")}, s84 offen sc1')
    dstamp_n(10, 0)
    A('s_branch L_KEND')

    A('L_TD:')
    d_index()
    dma_addr(32, 1280, 6, 7, 8)
    A(f's_mul_i32 s77, s{sR}, {192 * 1280}'); A('s_lshl_b32 s62, s75, 5'); A('s_add_u32 s77, s77, s62')
    A(f's_mul_i32 s78, s{sR}, 6144'); A(f's_add_u32 s78, s78, {LDS_T}')
    A('v_lshl_add_u32 v10, v0, 3, s78')
    A('v_and_b32 v14, 7, v0'); A('v_lshlrev_b32 v9, 3, v14')
    A(f's_mul_i32 s62, s{sH}, 6144'); A('v_mul_u32_u24 v11, 768, v14'); A('v_add_u32 v11, s62, v11')
    A('s_lshl_b32 s62, s75, 5'); A('v_lshl_add_u32 v14, v14, 2, s62')
    A(f's_mul_i32 s62, s{sR}, 384'); A('v_lshl_add_u32 v17, v0, 3, s62')
    A(f'v_add_u32 v18, {R_X2 - R_HM}, v14')
    A('v_lshrrev_b32 v28, 4, v0'); A('v_lshlrev_b32 v28, 4, v28'); A(f's_lshl_b32 s62, s{sR}, 6'); A('v_add_u32 v28, s62, v28')
    A(f's_lshl_b32 s74, s{sR}, 9'); A(f's_add_u32 s74, s74, {STG}')
    A('v_lshl_add_u32 v16, v0, 3, s74')
    A('v_lshrrev_b32 v19, 4, v0'); A('v_lshl_add_u32 v19, v19, 3, s74')
    emit_p()
    lds_wait(F_MV, vZ, 7)
    A(f'ds_read_b64 v[20:21], v9 offset:{MODV}')
    if TD == 't':
        A(f's_cmp_lg_u32 s{sR}, 0'); A('s_cbranch_scc1 L_TD_W')
        lds_wait(F_ODONE, vZ, 7)
        set_exec(0xff)
        poll(lambda: A(f'buffer_load_dword v12, v11, {srd("WS")}, s64 offen sc1'), [12], 7, regionAB=R_O, sleep=1)
        full_exec()
        lds_set(CNT_TD)
        A('L_TD_W:')
        lds_wait(CNT_TD, vZ, 7)
    elif TD == 's':
        lds_wait(CNT_TD, vZ, 7, cmp_val=2)
    else:
        tail_gate(TD)
    if TD != 's': dma_issue(6, 'WD', 6, 77, 32 * 1280, 78, pace=TDEPTH, pol=TPOL)
    for r in range(4): A(f'v_mov_b32 v{24+r}, 0')
    A('s_waitcnt vmcnt(0)')
    for u in range(6):
        r = FR + u * 4
        for hh in range(2): A(f'ds_read_b64_tr_b16 v[{r+2*hh}:{r+2*hh+1}], v10 offset:{(32*u+16*hh)*32}')
    stamp(5)
    lds_wait(F_ODONE, vZ, 7)
    y_hint(160 if YTH else 0, 'D')
    A(f's_mov_b32 s64, {R_HM}')
    set_exec((1 << 48) - 1)
    def ld():
        A(f'buffer_load_dwordx2 v[32:33], v17, {srd("WS")}, s64 offen sc1')
        A(f'buffer_load_dwordx2 v[34:35], v17, {srd("WS")}, s64 offen offset:3072 sc1')
        A(f'buffer_load_dword v36, v18, {srd("WS")}, s64 offen sc1')
    poll(ld, [32, 33, 34, 35, 36], 7, sleep=DSLEEP)
    stamp(6)
    unpack4(40, 32); unpack4(44, 34)
    for h in (0, 2): pk('mul', 40 + h, 40 + h, 44 + h)
    A('v_cvt_pk_bf16_f32 v32, v40, v41'); A('v_cvt_pk_bf16_f32 v33, v42, v43')
    A('ds_write_b64 v16, v[32:33]')
    full_exec()
    for u in range(6): A(f'ds_read2_b64 v[{40+4*u}:{43+4*u}], v19 offset0:{8*u} offset1:{8*u+4}')
    unpack2(38, 36)
    for u in range(6):
        r = FR + u * 4
        A(f's_waitcnt lgkmcnt({5-u})')
        A(f'v_mfma_f32_16x16x32_bf16 v[24:27], v[{r}:{r+3}], v[{40+4*u}:{43+4*u}], v[24:27]')
    set_exec(0x0001000100010001)
    A(f'ds_write_b128 v28, v[24:27] offset:{TRED}')
    A('s_waitcnt lgkmcnt(0)')
    barrier()
    A(f's_cmp_lg_u32 s{sR}, 0'); A('s_cbranch_scc1 L_KEND')
    set_exec(0xff)
    for k in range(8): A(f'ds_read_b64 v[{64+2*k}:{65+2*k}], v9 offset:{TRED + 64*k}')
    A('s_waitcnt lgkmcnt(0)')
    tree2(64, 8)
    rbf2(64, 64, 68)
    pk('mul', 64, 64, 20)
    rbf2(64, 64, 68)
    pk('add', 64, 64, 38)
    A('v_cvt_pk_bf16_f32 v68, v64, v65')
    A(f'buffer_store_dword v68, v14, {srd("OUT")}, 0 offen')
    dstamp_n(11, 0); dstamp_n(12, 5); dstamp_n(13, 26); dstamp_n(14, 31); dstamp_n(15, 38)
    A('L_KEND:')
    dry_check('L_DRYRET')
    stamp(7)
    flush_stamps()
    A('L_END:')
    A('s_endpgm')
    A('.section .rodata,"a"'); A('.p2align 6'); A(f'.amdhsa_kernel {NAME}_kernel')
    A('  .amdhsa_next_free_vgpr 128'); A('  .amdhsa_next_free_sgpr 102'); A('  .amdhsa_accum_offset 128')
    A('  .amdhsa_group_segment_fixed_size 0'); A('  .amdhsa_kernarg_size 112'); A('  .amdhsa_user_sgpr_count 2')
    A('  .amdhsa_user_sgpr_kernarg_segment_ptr 1'); A('  .amdhsa_system_sgpr_workgroup_id_x 1')
    A('  .amdhsa_float_denorm_mode_32 3'); A('  .amdhsa_float_denorm_mode_16_64 3')
    A('.end_amdhsa_kernel')
    return A.finish()

if __name__ == '__main__':
    import argparse
    ap = argparse.ArgumentParser()
    ap.add_argument('-o', default='cdna_kernels/' + NAME + '.s')
    ap.add_argument('--stamps', action='store_true')
    ap.add_argument('--cfg', default='')
    a = ap.parse_args()
    open(a.o, 'w').write(gen(stamps=a.stamps, **eval('dict(' + a.cfg + ')')))
```

```python
import sys
from asmfw import Asm
NAME = 'adaLN_cond__gqa_block_cached__glu_gated_bilinear__decode'
HEADER_COMMENT = open('cdna_kernels/' + NAME + '.s.ref').read().split('; Override launch')[0]

R_MOD = 0xE0000; R_Y = 0x00000; R_HM = 0x10000; R_X2 = 0x12000; R_CLR = 0x18000; R_MF = 0x1A000
R_Q = (0x20000, 0x40000); R_ST = (0x60000, 0x64000); R_O = (0x70000, 0xA0000)
R_DBG = 0x200000
F_N, F_H, F_Q, F_ML, F_CLR, CNT_O, F_ODONE, CNT_FREE, CNT_VD, F_MV, CNT_TD, F_A, CNT_B, F_YH, F_TK, F_LOC = 0, 4, 8, 12, 16, 20, 24, 28, 32, 36, 40, 44, 48, 52, 56, 60
KISS, VISS, PRDY, ML = 64, 96, 128, 192
SC, HV, QV, PD, OACC = 0x100, 0x280, 0x380, 0x800, 0x1000
X2P, TRED, STG, MODV, RED = 0x1400, 0x1A00, 0x2000, 0x3000, 0x1000
ONES = 0x3f803f80
SC2 = 0x500
LDS_A, LDS_B, LDS_T = 0x6000, 0xB000, 0x13000
LDS_SIZE = 0x27000
SRD = dict(X=4, K=8, V=12, WQ=16, WO=20, WG=24, WU=28, WD=32, C=36, WMOD=40, OUT=44, DBG=48, WS=52)
KARG = dict(X=0, K=8, V=16, WQ=24, WO=32, WG=48, WU=56, WD=64, C=72, WMOD=80, OUT=88, DBG=96, WS=104)
SIZE = dict(X=1280, K=50331648, V=50331648, WQ=7864320, WO=7864320, WG=1966080, WU=1966080, WD=1966080, C=1280,
            WMOD=4915200, OUT=1280, DBG=256, WS=268435456)
def srd(n): return f's[{SRD[n]}:{SRD[n]+3}]'
sW, sX, sI, sH, sS, sR = 56, 57, 58, 59, 60, 61
sN, sLIVE = 79, 3
LOG2E = 0x3fb8aa3b
SCALE = 0x3d93cd3a
SPIN_MAX = 300000

def gen(DK=3, DV=4, VISS_AT=24, stamps=False, sleep_poll=1, NSLEEP=4, dry=False, TW='v', TG='v', TD='o', TDEPTH=3, TPOL='nt', VFREE=0, diagV=False, VADAPT=True, KADAPT=True, SOFT=1, FA_AT=10, FB_AT=8, KW='b', YTH=0, KVPOL='nt', FPOL='nt', dbg=False, WV=False, GMASK=True, X4=True, DPACE=4, PRET=False, DVF=0, DKF=0, WIDE=True, DSLEEP=0, DYN=False, GSLEEP=1, GWG=True, DV0=0, KA0=12, AB='AB', GS2=0, RM=1, DA=False, APACE=6, DLY=''):
    A = Asm()
    vZ, vONE, vPF = 3, 4, 5
    def stamp(idx):
        if stamps: A(f's_memrealtime s[{86 + 2*idx}:{87 + 2*idx}]')
    def flush_stamps():
        if not stamps: return
        A('s_waitcnt lgkmcnt(0)')
        A(f's_lshl_b32 s62, s2, 4'); A(f's_add_u32 s62, s62, s{sW}'); A('s_lshl_b32 s62, s62, 5'); A(f's_add_u32 s62, s62, {R_DBG}')
        A('s_mov_b64 exec, 1')
        for k in range(8): A(f'v_mov_b32 v{8+k}, s{86+2*k}')
        A('v_mov_b32 v1, 0')
        A(f'buffer_store_dwordx4 v[8:11], v1, {srd("WS")}, s62 offen')
        A(f'buffer_store_dwordx4 v[12:15], v1, {srd("WS")}, s62 offen offset:16')
    def dstamp(slot, wg, wave=None, vt=(1, 125)):
        if not dbg: return
        L = A.label('DS')
        A(f's_cmp_lg_u32 s2, {wg}'); A(f's_cbranch_scc1 {L}')
        if wave is not None: A(f's_cmp_lg_u32 s{sW}, {wave}'); A(f's_cbranch_scc1 {L}')
        A('s_mov_b64 s[98:99], exec'); A('s_mov_b64 exec, 1')
        A('s_memrealtime s[96:97]')
        A(f'ds_read_b32 v{vt[1]}, v3 offset:{F_N}')
        A('s_waitcnt lgkmcnt(0)')
        A(f'v_sub_u32 v{vt[1]}, s96, v{vt[1]}')
        A(f'buffer_store_dword v{vt[1]}, v3, {srd("DBG")}, 0 offen offset:{4*slot} sc1')
        A('s_mov_b64 exec, s[98:99]')
        A(f'{L}:')
    def dstamp_n(slot, n, wave=None):
        if not dbg: return
        L = A.label('DN')
        A(f's_cmp_lg_u32 s75, {n}'); A(f's_cbranch_scc1 {L}')
        if wave is not None: A(f's_cmp_lg_u32 s{sW}, {wave}'); A(f's_cbranch_scc1 {L}')
        A('s_mov_b64 s[98:99], exec'); A('s_mov_b64 exec, 1')
        A('s_memrealtime s[96:97]')
        A(f'ds_read_b32 v125, v3 offset:{F_N}')
        A('s_waitcnt lgkmcnt(0)')
        A('v_sub_u32 v125, s96, v125')
        A(f'buffer_store_dword v125, v3, {srd("DBG")}, 0 offen offset:{4*slot} sc1')
        A('s_mov_b64 exec, s[98:99]')
        A(f'{L}:')
    def set_exec(mask):
        lo, hi = mask & 0xffffffff, mask >> 32
        for nm, m in (('exec_lo', lo), ('exec_hi', hi)):
            if m == 0xffffffff: A(f's_mov_b32 {nm}, s{sLIVE}')
            elif m == 0: A(f's_mov_b32 {nm}, 0')
            else: A(f's_and_b32 {nm}, s{sLIVE}, {m}')
    def full_exec(): set_exec((1 << 64) - 1)
    def barrier():
        L = A.label('BR')
        A(f's_cbranch_execz {L}'); A('s_barrier'); A(f'{L}:')
    def lds_wait(off, vz, vt, cmp_val=None):
        L = A.label('LW'); D = A.label('LWD')
        A('s_mov_b32 s63, 0')
        A(f's_cbranch_execz {D}')
        A(f'{L}:')
        A(f'ds_read_b32 v{vt}, v{vz} offset:{off}')
        A('s_waitcnt lgkmcnt(0)')
        A(f'v_readfirstlane_b32 s62, v{vt}')
        if cmp_val is None: A('s_cmp_lg_u32 s62, 0')
        else: A(f's_cmp_ge_u32 s62, {cmp_val}')
        A(f's_cbranch_scc1 {D}')
        A('s_sleep 1')
        A('s_add_u32 s63, s63, 1'); A(f's_cmp_lt_u32 s63, {SPIN_MAX * 8}'); A(f's_cbranch_scc1 {L}')
        A(f'{D}:')
    def lds_set(off, vz=vZ): A(f'ds_write_b32 v{vz}, v{vONE} offset:{off}')
    def lds_inc(off):
        set_exec(1); A(f'ds_add_u32 v{vZ}, v{vONE} offset:{off}'); full_exec()
    def poll(loads, regs, vt, regionAB=None, sleep=None, tags=(), vt2=None):
        L = A.label('PL'); D = A.label('PD')
        A('s_mov_b32 s63, 0')
        if regionAB: A(f's_mov_b32 s64, {regionAB[0]}')
        A(f'{L}:')
        loads()
        A('s_waitcnt vmcnt(0)')
        r = list(regs); first = True
        while r:
            if first:
                if len(r) >= 3: A(f'v_min3_u32 v{vt}, v{r[0]}, v{r[1]}, v{r[2]}'); r = r[3:]
                elif len(r) == 2: A(f'v_min_u32 v{vt}, v{r[0]}, v{r[1]}'); r = []
                else: A(f'v_mov_b32 v{vt}, v{r[0]}'); r = []
                first = False
            elif len(r) >= 2: A(f'v_min3_u32 v{vt}, v{vt}, v{r[0]}, v{r[1]}'); r = r[2:]
            else: A(f'v_min_u32 v{vt}, v{vt}, v{r[0]}'); r = []
        if regs: A(f'v_cmp_eq_u32 vcc, 0, v{vt}')
        if tags:
            tg = list(tags)
            x = vt2 if regs else vt
            A(f'v_xor_b32 v{x}, s{sN}, v{tg[0]}')
            for tr in tg[1:]: A(f'v_xor_b32 v{tr}, s{sN}, v{tr}')
            rest = tg[1:]
            while rest:
                if len(rest) >= 2: A(f'v_or3_b32 v{x}, v{x}, v{rest[0]}, v{rest[1]}'); rest = rest[2:]
                else: A(f'v_or_b32 v{x}, v{x}, v{rest[0]}'); rest = []
            if regs: A(f'v_cmp_ne_u32 s[82:83], 0, v{x}'); A('s_or_b64 vcc, vcc, s[82:83]')
            else: A(f'v_cmp_ne_u32 vcc, 0, v{x}')
        A(f's_cbranch_vccz {D}')
        sl = sleep_poll if sleep is None else sleep
        if sl: A(f's_sleep {sl}')
        A('s_add_u32 s63, s63, 1'); A(f's_cmp_lt_u32 s63, {SPIN_MAX}'); A(f's_cbranch_scc1 {L}')
        A(f'{D}:')
    def rbf(dst, src):
        A(f'v_cvt_pk_bf16_f32 v{dst}, v{src}, v{src}')
        A(f'v_and_b32 v{dst}, 0xffff0000, v{dst}')
    def rbf4(dst, src):
        for h in range(2):
            A(f'v_cvt_pk_bf16_f32 v{dst+2*h+1}, v{src+2*h}, v{src+2*h+1}')
        for h in range(2):
            A(f'v_lshlrev_b32 v{dst+2*h}, 16, v{dst+2*h+1}')
            A(f'v_and_b32 v{dst+2*h+1}, 0xffff0000, v{dst+2*h+1}')
    def allreduce(regs, op, tmp):
        for pat in ('quad_perm:[1,0,3,2]', 'quad_perm:[2,3,0,1]', 'row_half_mirror', 'row_mirror'):
            for r in regs: A(f'{op}_dpp v{r}, v{r}, v{r} {pat} row_mask:0xf bank_mask:0xf')
        for sw in ('v_permlane16_swap_b32', 'v_permlane32_swap_b32'):
            for r, t in zip(regs, tmp): A(f'v_mov_b32 v{t}, v{r}')
            for r, t in zip(regs, tmp): A(f'{sw} v{r}, v{t}')
            for r, t in zip(regs, tmp): A(f'{op} v{r}, v{r}, v{t}')
    def reduce_sgpr(regs, op, sdst):
        for pat in ('quad_perm:[1,0,3,2]', 'quad_perm:[2,3,0,1]', 'row_half_mirror', 'row_mirror'):
            for r in regs: A(f'{op}_dpp v{r}, v{r}, v{r} {pat} row_mask:0xf bank_mask:0xf')
        for r in regs: A(f'{op}_dpp v{r}, v{r}, v{r} row_bcast:15 row_mask:0xa bank_mask:0xf')
        for r in regs: A(f'{op}_dpp v{r}, v{r}, v{r} row_bcast:31 row_mask:0xc bank_mask:0xf')
        for r, sd in zip(regs, sdst): A(f'v_readlane_b32 s{sd}, v{r}, 63')
    def unpack2(dst, src):
        A(f'v_lshlrev_b32 v{dst}, 16, v{src}'); A(f'v_and_b32 v{dst+1}, 0xffff0000, v{src}')
    def rbf2(dst, src, t):
        A(f'v_cvt_pk_bf16_f32 v{t}, v{src}, v{src+1}'); unpack2(dst, t)
    def pk(op, d, a, b, bcast=False, negb=False):
        m = ''
        if bcast: m += ' op_sel_hi:[1,0]'
        if negb: m += ' neg_lo:[0,1] neg_hi:[0,1]'
        A(f'v_pk_{op}_f32 v[{d}:{d+1}], v[{a}:{a+1}], v[{b}:{b+1}]{m}')
    def tree2(base, n):
        step = 1
        while step < n:
            for k in range(0, n, 2 * step): pk('add', base + 2 * k, base + 2 * k, base + 2 * (k + step))
            step *= 2
    def ln_stats_pk(xs, vm, vinv):
        a, b = vm, vm + 1
        A(f's_mov_b32 s62, {ONES}')
        for k, r in enumerate(xs):
            A(f'v_dot2_f32_bf16 v{a}, v{r}, s62, ' + ('0' if k == 0 else f'v{a}'))
            A(f'v_dot2_f32_bf16 v{b}, v{r}, v{r}, ' + ('0' if k == 0 else f'v{b}'))
        reduce_sgpr([a, b], 'v_add_f32', [62, 63])
        A(f'v_mul_f32 v{a}, s62, v{vinv}'); A(f'v_mul_f32 v{b}, s63, v{vinv}')
        A(f'v_fma_f32 v{b}, -v{a}, v{a}, v{b}')
        A(f'v_max_f32 v{b}, 0, v{b}')
        rbf2(a, a, vm + 3)
        A(f'v_add_f32 v{b}, 0x3727c5ac, v{b}')
        rbf(b, b)
        A(f'v_sqrt_f32 v{b}, v{b}')
        rbf(b, b)
        A(f'v_rcp_f32 v{vm+2}, v{b}')
    def ln_apply_pk(b4, vm):
        for h in (0, 2): pk('add', b4 + h, b4 + h, vm, bcast=True, negb=True)
        rbf4(b4, b4)
        for h in (0, 2): pk('mul', b4 + h, b4 + h, vm + 2, bcast=True)
        rbf4(b4, b4)
    def tr_addr(RS, vdst, vt0, vt1, base_sgpr=None, base_imm=0):
        T = RS // 32
        A(f'v_lshrrev_b32 v{vt0}, 2, v0'); A(f'v_mul_u32_u24 v{vt0}, {RS}, v{vt0}')
        A(f'v_and_b32 v{vt1}, 3, v0'); A(f'v_lshl_add_u32 v{vt0}, v{vt1}, 3, v{vt0}')
        if base_sgpr is not None: A(f'v_add_u32 v{vt0}, s{base_sgpr}, v{vt0}')
        if base_imm: A(f'v_add_u32 v{vt0}, {base_imm}, v{vt0}')
        if RS == 128: A(f'v_bfe_u32 v{vt1}, v0, 3, 2')
        elif RS == 64: A(f'v_bfe_u32 v{vt1}, v0, 4, 1')
        for ct in range(T):
            A(f'v_xor_b32 v{vdst+ct}, {ct}, v{vt1}')
            A(f'v_lshl_add_u32 v{vdst+ct}, v{vdst+ct}, 5, v{vt0}')
    def dma_addr(RS, rowstride, vdst, vt0, vt1):
        cpr = RS // 16; lg = cpr.bit_length() - 1
        A(f'v_lshrrev_b32 v{vt0}, {lg}, v0'); A(f'v_and_b32 v{vt1}, {cpr - 1}, v0')
        if RS == 128:
            A(f'v_bfe_u32 v{vdst}, v{vt0}, 1, 2'); A(f'v_lshlrev_b32 v{vdst}, 1, v{vdst}'); A(f'v_xor_b32 v{vt1}, v{vt1}, v{vdst}')
        elif RS == 64:
            A(f'v_bfe_u32 v{vdst}, v{vt0}, 2, 1'); A(f'v_lshlrev_b32 v{vdst}, 1, v{vdst}'); A(f'v_xor_b32 v{vt1}, v{vt1}, v{vdst}')
        A(f'v_mul_u32_u24 v{vt0}, {rowstride}, v{vt0}')
        A(f'v_lshl_add_u32 v{vdst}, v{vt1}, 4, v{vt0}')
    def dma_issue(n, sr, vaddr, s_goff, gstep, s_lds, lds_imm=0, pace=0, pol='nt'):
        sr = srd(sr) if sr in SRD else sr
        L = A.label('DS')
        A(f's_cbranch_execz {L}')
        for k in range(n):
            if s_lds is None: A(f's_mov_b32 m0, {lds_imm + 1024 * k}')
            else: A(f's_add_u32 m0, s{s_lds}, {lds_imm + 1024 * k}')
            A(f'buffer_load_dwordx4 v{vaddr}, {sr}, s{s_goff} offen {pol} lds')
            if k + 1 < n: A(f's_add_u32 s{s_goff}, s{s_goff}, {gstep}')
            if pace and k + 1 >= pace and k + 1 < n: A(f's_waitcnt vmcnt({pace-1})')
        A(f'{L}:')
    def tail_gate(mode):
        if mode == 'v': lds_wait(VISS, vZ, 7, cmp_val=6)
        elif mode == 'o': lds_wait(F_ODONE, vZ, 7)
    def y_hint(th, tag):
        if not th: return
        A(f's_cmp_lg_u32 s{sR}, 0'); A(f's_cbranch_scc1 L_YH_{tag}')
        L = A.label('YH'); D = A.label('YHD')
        set_exec(1)
        A('s_mov_b32 s63, 0')
        A(f'{L}:')
        A(f'buffer_load_dword v7, v3, {srd("DBG")}, 0 offen offset:128 sc1')
        A('s_waitcnt vmcnt(0)')
        A('v_readfirstlane_b32 s62, v7'); A(f's_cmp_ge_u32 s62, {th}'); A(f's_cbranch_scc1 {D}')
        A('s_sleep 2')
        A('s_add_u32 s63, s63, 1'); A(f's_cmp_lt_u32 s63, {SPIN_MAX}'); A(f's_cbranch_scc1 {L}')
        A(f'{D}:')
        full_exec()
        lds_set(F_YH)
        A(f'L_YH_{tag}:')
        lds_wait(F_YH, vZ, 7)
    def loc_store(instr):
        L = A.label('LS'); E = A.label('LSE')
        A('s_cmp_eq_u32 s73, 1'); A(f's_cbranch_scc1 {L}')
        A(instr + ' sc1'); A(f's_branch {E}')
        A(f'{L}:'); A(instr)
        A(f'{E}:')
    def get_loc(vt):
        lds_wait(F_LOC, vZ, vt); A('s_mov_b32 s73, s62')
    def set_loc(vx, vt):
        A('s_getreg_b32 s62, hwreg(HW_REG_XCC_ID)'); A('s_and_b32 s62, s62, 15'); A('s_add_u32 s62, s62, 1')
        A(f'v_cmp_ne_u32 vcc, s62, v{vx}')
        A('s_cmp_eq_u64 vcc, 0'); A('s_cselect_b32 s62, 1, 2')
        A(f'v_mov_b32 v{vt}, s62')
        A(f'ds_write_b32 v3, v{vt} offset:{F_LOC}')
    def merge4(acc, dst):
        for r in range(4): A(f'v_mov_b32 v{dst+r}, v{acc+r}')
        for ct in (1, 2, 3):
            m = 0x00010001 << ct
            A(f's_mov_b32 s80, {m}'); A(f's_mov_b32 s81, {m}')
            for r in range(4): A(f'v_cndmask_b32 v{dst+r}, v{dst+r}, v{acc+4*ct+r}, s[80:81]')
    def mod_addr(vdst, vcol, vt):
        A(f'v_lshrrev_b32 v{vt}, 6, v{vcol}'); A(f'v_lshlrev_b32 v{vt}, 11, v{vt}')
        A(f'v_and_b32 v{vdst}, 63, v{vcol}'); A(f'v_lshl_add_u32 v{vdst}, v{vdst}, 2, v{vt}')
    def mod_loads(vaddr, quads, nks, so='s64'):
        for ks in range(nks):
            for hf in range(2):
                q = quads[2 * ks + hf]
                A(f'buffer_load_dwordx4 v[{q}:{q+3}], v{vaddr}, {srd("WS")}, {so} offen offset:{512*ks+256*hf} sc1')
    def mod_tags(quads): return [q + 1 for q in quads] + [q + 3 for q in quads]
    def mod_sum(dst, quads, nks):
        for hf in range(2):
            for e in range(2):
                r = [quads[2 * ks + hf] + 2 * e for ks in range(nks)]
                d = dst + 2 * hf + e
                if nks == 2: A(f'v_add_f32 v{d}, v{r[0]}, v{r[1]}')
                else:
                    A(f'v_add_f32 v{r[0]}, v{r[0]}, v{r[1]}'); A(f'v_add_f32 v{r[2]}, v{r[2]}, v{r[3]}'); A(f'v_add_f32 v{d}, v{r[0]}, v{r[2]}')
    def get_nonce(vt):
        lds_wait(F_N, vZ, vt); A(f's_mov_b32 s{sN}, s62')
    def tree_add(base, n):
        step = 1
        while step < n:
            for k in range(0, n, 2 * step):
                for h2 in range(2):
                    a = base + 4 * k + 2 * h2; b = base + 4 * (k + step) + 2 * h2
                    A(f'v_pk_add_f32 v[{a}:{a+1}], v[{a}:{a+1}], v[{b}:{b+1}]')
            step *= 2
    def half_swap_add(base, tmp):
        for r in range(4): A(f'v_mov_b32 v{tmp+r}, v{base+r}')
        for r in range(4): A(f'v_permlane32_swap_b32 v{base+r}, v{tmp+r}')
        for h2 in range(2): A(f'v_pk_add_f32 v[{base+2*h2}:{base+1+2*h2}], v[{base+2*h2}:{base+1+2*h2}], v[{tmp+2*h2}:{tmp+1+2*h2}]')
    def fdiv(dst, num, den, t0, t1, t2, t3):
        A(f'v_rcp_f32 v{t0}, v{den}')
        A(f'v_mul_f32 v{t1}, v{num}, v{t0}')
        A(f'v_fma_f32 v{t2}, -v{t1}, v{den}, v{num}')
        A(f'v_fma_f32 v{t3}, v{t2}, v{t0}, v{t1}')
        A(f'v_cmp_o_f32 vcc, v{t3}, v{t3}')
        A(f'v_cndmask_b32 v{dst}, v{t1}, v{t3}, vcc')
    def ln_stats(xs, vm, vs, t0, t1):
        A(f'v_readfirstlane_b32 s62, v{xs[0]}')
        for r in xs: A(f'v_subrev_f32 v{r}, s62, v{r}')
        A(f'v_add_f32 v{vm}, v{xs[0]}, v{xs[1]}'); A(f'v_mul_f32 v{vs}, v{xs[0]}, v{xs[0]}')
        for k, r in enumerate(xs):
            if k >= 2: A(f'v_add_f32 v{vm}, v{vm}, v{r}')
            if k >= 1: A(f'v_fmac_f32 v{vs}, v{r}, v{r}')
        allreduce([vm, vs], 'v_add_f32', [t0, t1])
        inv = 0x3acccccd
        A(f'v_mul_f32 v{vm}, {inv}, v{vm}'); A(f'v_mul_f32 v{vs}, {inv}, v{vs}')
        A(f'v_fma_f32 v{vs}, -v{vm}, v{vm}, v{vs}')
        A(f'v_max_f32 v{vs}, 0, v{vs}')
        A(f'v_add_f32 v{vm}, s62, v{vm}')
        rbf(vm, vm); rbf(vs, vs)
        A(f'v_add_f32 v{vs}, 0x3727c5ac, v{vs}')
        rbf(vs, vs)
        A(f'v_sqrt_f32 v{vs}, v{vs}')
        rbf(vs, vs)
        A(f'v_rcp_f32 v{vs}, v{vs}')
    def ln_apply(b4, vm, vs):
        for r in range(4): A(f'v_sub_f32 v{b4+r}, v{b4+r}, v{vm}')
        rbf4(b4, b4)
        for r in range(4): A(f'v_mul_f32 v{b4+r}, v{b4+r}, v{vs}')
        rbf4(b4, b4)
    def unpack4(dst, src):
        A(f'v_lshlrev_b32 v{dst}, 16, v{src}'); A(f'v_and_b32 v{dst+1}, 0xffff0000, v{src}')
        A(f'v_lshlrev_b32 v{dst+2}, 16, v{src+1}'); A(f'v_and_b32 v{dst+3}, 0xffff0000, v{src+1}')
    def dry_check(ret):
        A(f's_cbranch_execz {ret}')
    def d_index():
        if RM:
            A(f's_mul_i32 s75, s{sX}, 10'); A(f's_add_u32 s75, s75, s{sI}'); A('s_sub_u32 s75, s75, 60')
            return
        A(f's_lshl_b32 s75, s{sX}, 2'); A(f's_add_u32 s75, s75, s{sI}'); A('s_sub_u32 s75, s75, 26')
        A(f's_lshl_b32 s62, s{sX}, 1'); A(f's_add_u32 s62, s62, s{sI}'); A('s_add_u32 s62, s62, 2')
        A(f's_cmp_ge_u32 s{sI}, 30'); A('s_cselect_b32 s75, s62, s75')
    def g_index():
        A(f's_mul_i32 s75, s{sX}, {12 if RM else 6}'); A(f's_add_u32 s75, s75, s{sI}'); A('s_sub_u32 s75, s75, 20')
    def branch_if_g(label):
        if RM: A(f's_cmp_lt_u32 s{sX}, 4')
        else: A(f's_cmp_lt_u32 s{sI}, 26')
        A(f's_cbranch_scc1 {label}')
    def branch_if_not_g(label):
        if RM: A(f's_cmp_ge_u32 s{sX}, 4')
        else: A(f's_cmp_ge_u32 s{sI}, 26')
        A(f's_cbranch_scc1 {label}')
    def branch_if_no_role(label):
        L = A.label('NR')
        A(f's_cmp_lt_u32 s{sI}, 30'); A(f's_cbranch_scc1 {L}')
        A(f's_cmp_ge_u32 s{sX}, 4'); A(f's_cbranch_scc1 {label}')
        A(f'{L}:')
    def branch_if_not_gcand(label):
        L = A.label('GC')
        A(f's_cmp_lt_u32 s{sI}, 20'); A(f's_cbranch_scc1 {label}')
        A(f's_cmp_lt_u32 s{sI}, 26'); A(f's_cbranch_scc1 {L}')
        A(f's_cmp_lt_u32 s{sI}, 30'); A(f's_cbranch_scc1 {label}')
        A(f's_cmp_lt_u32 s{sX}, 4'); A(f's_cbranch_scc1 {label}')
        A(f'{L}:')
    def stage_a(first, scoff):
        base = LDS_A if first else LDS_T
        A('s_lshr_b32 s68, s76, 2'); A('s_and_b32 s69, s76, 3')
        A('v_lshlrev_b32 v7, 3, v0'); A('s_mul_i32 s62, s69, 320')
        A(f'buffer_load_dwordx2 v[10:11], v7, {srd("C")}, s62 offen')
        dma_addr(128, 7680, 6, 8, 9)
        A(f's_mul_i32 s70, s69, {160 * 7680}'); A('s_lshl_b32 s62, s68, 7'); A('s_add_u32 s70, s70, s62')
        dma_issue(20, 'WMOD', 6, 70, 8 * 7680, None, base, pol=FPOL, pace=(0 if first else APACE))
        if first: A('s_barrier')
        A('s_waitcnt vmcnt(20)')
        unpack4(12, 10)
        A(f's_mov_b32 s62, {LOG2E | 0x80000000}')
        for r in range(4): A(f'v_mul_f32 v{16+r}, s62, v{12+r}')
        for r in range(4): A(f'v_exp_f32 v{16+r}, v{16+r}')
        for r in range(4): A(f'v_add_f32 v{16+r}, 1.0, v{16+r}')
        for r in range(4): fdiv(12 + r, 12 + r, 16 + r, 20, 21, 22, 23)
        A('v_cvt_pk_bf16_f32 v16, v12, v13'); A('v_cvt_pk_bf16_f32 v17, v14, v15')
        set_exec((1 << 40) - 1)
        A(f'ds_write_b64 v7, v[16:17] offset:{scoff}')
        full_exec()
        tr_addr(128, 6, 10, 11, base_imm=base)
        A(f'v_lshrrev_b32 v10, 4, v0'); A('v_lshlrev_b32 v10, 3, v10')
        for u in range(5):
            A(f'ds_read2_b64 v[{28+4*u}:{31+4*u}], v10 offset0:{scoff//8 + 8*u} offset1:{scoff//8 + 8*u + 4}')
        A('v_and_b32 v11, 15, v0'); A('v_lshlrev_b32 v11, 6, v11'); A('v_lshrrev_b32 v12, 4, v0'); A('v_lshl_add_u32 v11, v12, 4, v11')
        if first:
            A(f's_waitcnt vmcnt({FA_AT})'); lds_set(F_A)
        A('s_waitcnt vmcnt(0)')
        for u in range(5):
            for ct in range(4):
                r = 48 + (u * 4 + ct) * 4
                for hh in range(2):
                    A(f'ds_read_b64_tr_b16 v[{r+2*hh}:{r+2*hh+1}], v{6+ct} offset:{(32*u+16*hh)*128}')
        for r in range(16): A(f'v_mov_b32 v{12+r}, 0')
        A('s_waitcnt lgkmcnt(0)')
        if first: lds_inc(CNT_FREE)
        for u in range(5):
            for ct in range(4):
                r = 48 + (u * 4 + ct) * 4
                A(f'v_mfma_f32_16x16x32_bf16 v[{12+4*ct}:{15+4*ct}], v[{r}:{r+3}], v[{28+4*u}:{31+4*u}], v[{12+4*ct}:{15+4*ct}]')
        A(f's_lshl_b32 s70, s76, 9'); A(f's_add_u32 s70, s70, {R_MOD}')
        get_nonce(49)
        merge4(12, 52)
        A('v_mov_b32 v56, v52'); A('v_mov_b32 v58, v53'); A('v_mov_b32 v60, v54'); A('v_mov_b32 v62, v55')
        for r in (57, 59, 61, 63): A(f'v_mov_b32 v{r}, s{sN}')
        set_exec(0x000f000f000f000f)
        A(f'buffer_store_dwordx4 v[56:59], v11, {srd("WS")}, s70 offen sc1')
        A(f'buffer_store_dwordx4 v[60:63], v11, {srd("WS")}, s70 offen offset:256 sc1')
        full_exec()
    def finalize_line(sline2):
        A('v_lshrrev_b32 v8, 4, v0'); A('v_lshlrev_b32 v8, 9, v8'); A('v_and_b32 v9, 15, v0'); A('v_lshlrev_b32 v9, 4, v9'); A('v_add_u32 v8, v8, v9')
        A(f's_lshl_b32 s64, s{sline2}, 11'); A(f's_add_u32 s64, s64, {R_MOD + 20 * 2048}')
        A(f's_lshl_b32 s72, s{sline2}, 8'); A(f's_add_u32 s72, s72, {R_MF}')
        get_nonce(10)
        def ld():
            A(f'buffer_load_dwordx4 v[12:15], v8, {srd("WS")}, s64 offen sc1')
            A(f'buffer_load_dwordx4 v[16:19], v8, {srd("WS")}, s64 offen offset:256 sc1')
        poll(ld, [], 10, tags=[13, 15, 17, 19], sleep=8)
        vals = [12, 14, 16, 18]
        for sw in ('v_permlane16_swap_b32', 'v_permlane32_swap_b32'):
            for r in vals: A(f'v_mov_b32 v{r+1}, v{r}')
            for r in vals: A(f'{sw} v{r}, v{r+1}')
            for r in vals: A(f'v_add_f32 v{r}, v{r}, v{r+1}')
        A('v_cvt_pk_bf16_f32 v20, v12, v14'); A('v_cvt_pk_bf16_f32 v22, v16, v18'); A(f'v_mov_b32 v21, s{sN}'); A(f'v_mov_b32 v23, s{sN}')
        set_exec(0xffff)
        A(f'buffer_store_dwordx4 v[20:23], v9, {srd("WS")}, s72 offen sc1')
        full_exec()
    def kb_pi():
        A(f's_mul_i32 s68, s{sI}, 43'); A('s_lshr_b32 s68, s68, 8'); A('s_mul_i32 s62, s68, 6'); A(f's_sub_u32 s69, s{sI}, s62')

    A(HEADER_COMMENT.rstrip())
    A(f'; @launch grid=(256,1,1) block=(1024,1,1) lds={LDS_SIZE}')
    A('.amdgcn_target "amdgcn-amd-amdhsa--gfx950"')
    A('.text'); A(f'.globl {NAME}_kernel'); A('.p2align 8'); A(f'.type {NAME}_kernel,@function'); A(f'{NAME}_kernel:')
    for n in ('K', 'WMOD', 'WQ', 'WS', 'C', 'X', 'V', 'DBG', 'WO', 'WG', 'WU', 'WD', 'OUT'):
        A(f's_load_dwordx2 s[{SRD[n]}:{SRD[n]+1}], s[0:1], {KARG[n]}')
    if stamps:
        for k in range(1, 8): A(f's_mov_b32 s{86+2*k}, 0')
    stamp(0)
    A('v_lshrrev_b32 v1, 6, v0'); A('v_and_b32 v0, 63, v0')
    A(f'v_readfirstlane_b32 s{sW}, v1')
    for n in SRD:
        A(f's_mov_b32 s{SRD[n]+2}, {SIZE[n]}'); A(f's_mov_b32 s{SRD[n]+3}, 0x20000')
    A(f's_mov_b32 s{sLIVE}, -1'); A(f's_mov_b32 s{sN}, 0')
    A('s_cmp_ge_u32 s2, 256'); A('s_cbranch_scc1 L_END')
    A(f's_and_b32 s{sX}, s2, 7'); A(f's_lshr_b32 s{sI}, s2, 3')
    A(f's_lshr_b32 s{sH}, s{sI}, 3'); A(f's_lshl_b32 s62, s{sX}, 2'); A(f's_add_u32 s{sH}, s{sH}, s62')
    A(f's_and_b32 s{sS}, s{sI}, 7'); A(f's_and_b32 s{sR}, s{sW}, 7')
    A('v_lshrrev_b32 v1, 3, v0'); A('v_mul_u32_u24 v1, 1536, v1'); A('v_and_b32 v2, 7, v0'); A('v_lshl_add_u32 v2, v2, 4, v1')
    A('v_mov_b32 v3, 0'); A('v_mov_b32 v4, 1')
    A(f's_lshl_b32 s67, s{sH}, 12'); A(f's_lshl_b32 s62, s{sS}, 9'); A('s_add_u32 s67, s67, s62'); A('s_mul_i32 s67, s67, 384')
    A(f's_mul_i32 s65, s{sR}, 24576'); A('s_add_u32 s65, s65, s67'); A('s_add_u32 s66, s65, 12288')
    A(f's_lshl_b32 s62, s{sR}, 2'); A('v_mov_b32 v5, s62')
    if DLY == 'start': A('s_sleep 127')
    A('s_waitcnt lgkmcnt(0)')
    A(f's_cmp_ge_u32 s{sW}, 8'); A('s_cbranch_scc1 L_KWAVE')
    A(f's_cmp_eq_u32 s{sR}, 2'); A('s_cbranch_scc1 L_F2')
    A(f's_cmp_ge_u32 s{sR}, 3'); A('s_cbranch_scc1 L_F3')

    kb_pi()
    A(f's_lshl_b32 s71, s{sR}, 14'); A(f's_add_u32 s71, s71, {LDS_B}')
    A('v_lshlrev_b32 v7, 2, v0')
    for j in range(5): A(f'buffer_load_dword v{10+j}, v7, {srd("X")}, 0 offen offset:{256*j}')
    A('v_and_b32 v8, 31, v0'); A('v_lshlrev_b32 v8, 3, v8'); A('s_lshl_b32 s62, s68, 8')
    A(f'buffer_load_dwordx2 v[16:17], v8, {srd("X")}, s62 offen')
    if SOFT: A('s_barrier')
    A(f's_cmp_ge_u32 s{sI}, 30'); A('s_cbranch_scc1 L_F01_NODMA')
    dma_addr(128, 12288, 6, 7, 8)
    A(f's_mul_i32 s70, s68, {128 * 12288}'); A(f's_mul_i32 s62, s{sX}, 1536'); A('s_add_u32 s70, s70, s62')
    A('s_lshl_b32 s62, s69, 8'); A('s_add_u32 s70, s70, s62'); A(f's_lshl_b32 s62, s{sR}, 7'); A('s_add_u32 s70, s70, s62')
    if SOFT: lds_wait(F_A, vZ, 9)
    dma_issue(16, 'WQ', 6, 70, 8 * 12288, 71, pol=FPOL)
    A(f's_waitcnt vmcnt({FB_AT})')
    A('L_F01_NODMA:')
    lds_inc(CNT_B)
    if not SOFT: A('s_barrier')
    A('L_F01_DRY:')
    A('s_waitcnt vmcnt(0)')
    A(f's_cmp_ge_u32 s{sI}, 30'); A('s_cbranch_scc1 L_F01_SKIPB')
    tr_addr(128, 40, 44, 45, base_sgpr=71)
    for u in range(4):
        for ct in range(4):
            r = 64 + (u * 4 + ct) * 4
            for hh in range(2):
                A(f'ds_read_b64_tr_b16 v[{r+2*hh}:{r+2*hh+1}], v{40+ct} offset:{(32*u+16*hh)*128}')
    A(f'v_lshrrev_b32 v46, 4, v0'); A('v_lshlrev_b32 v46, 3, v46')
    A('s_waitcnt lgkmcnt(0)')
    lds_inc(CNT_FREE)
    A(f's_cmp_eq_u32 s{sR}, 1'); A('s_cbranch_scc1 L_F1_WAITH')
    A('v_mov_b32 v29, 0x3acccccd')
    ln_stats_pk([10, 11, 12, 13, 14], 30, 29)
    unpack4(34, 16)
    ln_apply_pk(34, 30)
    A('v_and_b32 v8, 31, v0'); A('v_lshlrev_b32 v8, 2, v8'); A('v_lshrrev_b32 v9, 5, v0'); A('v_mul_u32_u24 v9, 640, v9'); A('v_add_u32 v8, v8, v9')
    A('s_lshl_b32 s62, s68, 7'); A('v_add_u32 v8, s62, v8')
    mod_addr(8, 8, 9)
    get_nonce(9)
    stamp(1)
    A(f's_mov_b32 s64, {R_MOD}')
    Q = [10, 14, 18, 22, 48, 52, 56, 60]
    A('v_and_b32 v47, 31, v0'); A('v_lshlrev_b32 v47, 3, v47'); A(f's_lshl_b32 s72, s{sX}, 8'); A(f's_add_u32 s72, s72, {R_CLR}')
    poll(lambda: (mod_loads(8, Q, 4), A(f'buffer_load_dwordx2 v[38:39], v47, {srd("WS")}, s72 offen sc1')), [], 9, tags=mod_tags(Q) + [38])
    set_loc(39, 9)
    stamp(2)
    mod_sum(26, Q, 4)
    rbf4(48, 26)
    for r in range(4): A(f'v_mov_b32 v{52+r}, v{48+r}')
    for r in range(4): A(f'v_permlane32_swap_b32 v{48+r}, v{52+r}')
    for r in range(4): A(f'v_add_f32 v{52+r}, 1.0, v{52+r}')
    rbf4(52, 52)
    for r in range(4): A(f'v_mul_f32 v{52+r}, v{34+r}, v{52+r}')
    rbf4(52, 52)
    for r in range(4): A(f'v_add_f32 v{52+r}, v{52+r}, v{48+r}')
    A('v_cvt_pk_bf16_f32 v56, v52, v53'); A('v_cvt_pk_bf16_f32 v57, v54, v55')
    A('v_and_b32 v8, 31, v0'); A('v_lshlrev_b32 v8, 3, v8')
    A(f'ds_write_b64 v8, v[56:57] offset:{HV}')
    lds_set(F_H)
    dstamp(2, 8, vt=(1, 47))
    A('s_branch L_F01_C')
    A('L_F1_WAITH:')
    lds_wait(F_H, vZ, 18)
    A('L_F01_C:')
    for u in range(4):
        A(f'ds_read2_b64 v[{48+4*u}:{51+4*u}], v46 offset0:{HV//8 + 8*u} offset1:{HV//8 + 8*u + 4}')
    for r in range(16): A(f'v_mov_b32 v{20+r}, 0')
    A('v_and_b32 v8, 15, v0'); A('v_lshlrev_b32 v8, 6, v8'); A('v_lshrrev_b32 v9, 4, v0'); A('v_lshl_add_u32 v8, v9, 4, v8')
    A('s_mul_i32 s70, s68, 24576'); A(f's_mul_i32 s62, s{sX}, 3072'); A('s_add_u32 s70, s70, s62'); A('s_lshl_b32 s62, s69, 9'); A('s_add_u32 s70, s70, s62')
    A(f's_lshl_b32 s62, s{sR}, 8'); A('s_add_u32 s70, s70, s62')
    A(f's_add_u32 s72, s70, {R_Q[0]}')
    A('s_waitcnt lgkmcnt(0)')
    for u in range(4):
        for ct in range(4):
            r = 64 + (u * 4 + ct) * 4
            A(f'v_mfma_f32_16x16x32_bf16 v[{20+4*ct}:{23+4*ct}], v[{r}:{r+3}], v[{48+4*u}:{51+4*u}], v[{20+4*ct}:{23+4*ct}]')
    lds_wait(F_CLR, vZ, 9)
    get_loc(9)
    merge4(20, 36)
    for r in range(4): A(f'v_or_b32 v{36+r}, 1, v{36+r}')
    set_exec(0x000f000f000f000f)
    loc_store(f'buffer_store_dwordx4 v[36:39], v8, {srd("WS")}, s72 offen')
    full_exec()
    stamp(3)
    A('s_branch L_F01_D')
    A('L_F01_SKIPB:')
    lds_inc(CNT_FREE)
    get_nonce(9)
    lds_wait(F_CLR, vZ, 9)
    A('L_F01_D:')
    A(f's_cmp_eq_u32 s{sR}, 1'); A('s_cbranch_scc1 L_F1_T')
    A(f's_cmp_lt_u32 s{sI}, 30'); A('s_cbranch_scc1 L_F0_QG')
    A('v_and_b32 v8, 31, v0'); A('v_lshlrev_b32 v8, 3, v8'); A(f's_lshl_b32 s64, s{sX}, 8'); A(f's_add_u32 s64, s64, {R_CLR}')
    poll(lambda: A(f'buffer_load_dwordx2 v[10:11], v8, {srd("WS")}, s64 offen sc1'), [], 9, tags=[10], sleep=8)
    set_loc(11, 9)
    A('L_F0_QG:')
    A('v_lshlrev_b32 v40, 4, v0'); A(f's_mul_i32 s62, s{sH}, 768'); A('v_add_u32 v40, s62, v40')
    for ks in range(1, 5): A(f'v_add_u32 v{40+ks}, {24576*ks}, v40')
    A('v_lshlrev_b32 v8, 3, v0')
    set_exec((1 << 48) - 1)
    def ld():
        for ks in range(5): A(f'buffer_load_dwordx4 v[{48+4*ks}:{51+4*ks}], v{40+ks}, {srd("WS")}, s64 offen sc1')
    poll(ld, list(range(48, 68)), 18, regionAB=R_Q)
    tree_add(48, 4)
    for h2 in range(2): A(f'v_pk_add_f32 v[{48+2*h2}:{49+2*h2}], v[{48+2*h2}:{49+2*h2}], v[{64+2*h2}:{65+2*h2}]')
    A('v_cvt_pk_bf16_f32 v56, v48, v49'); A('v_cvt_pk_bf16_f32 v57, v50, v51')
    A(f'ds_write_b64 v8, v[56:57] offset:{QV}')
    full_exec()
    lds_set(F_Q)
    dstamp(3, 8, vt=(1, 47))
    stamp(4)
    A(f's_lshl_b32 s62, s{sH}, 9'); A('v_add_u32 v14, s62, v8')
    poll(lambda: A(f'buffer_load_dwordx2 v[12:13], v14, {srd("WS")}, s64 offen sc1'), [12, 13], 15, regionAB=R_ST, sleep=2)
    A('v_and_b32 v12, 0xffff0000, v12')
    A('v_mov_b32 v16, v12')
    allreduce([16], 'v_max_f32', [15])
    A('v_sub_f32 v12, v12, v16'); A(f'v_mul_f32 v12, {LOG2E}, v12'); A('v_exp_f32 v12, v12'); A('v_mul_f32 v17, v12, v13')
    allreduce([17], 'v_add_f32', [15])
    A(f'ds_write_b64 v3, v[16:17] offset:{ML}')
    lds_set(F_ML)
    dstamp(5, 8, vt=(1, 47))
    stamp(5)
    if DYN:
        branch_if_not_gcand('L_F01_PV')
        set_exec(1)
        A('v_mov_b32 v12, 1')
        A(f'buffer_atomic_add v12, v3, {srd("DBG")}, 0 offen offset:192 sc0 sc1')
        A('s_waitcnt vmcnt(0)')
        A('v_readfirstlane_b32 s62, v12')
        A(f's_mul_hi_u32 s63, s62, {(1 << 32) // 56 + 1}'); A('s_mul_i32 s63, s63, 56'); A('s_sub_u32 s62, s62, s63'); A('s_add_u32 s62, s62, 1')
        A('v_mov_b32 v12, s62')
        A(f'ds_write_b32 v3, v12 offset:{F_TK}')
        full_exec()
    A('s_branch L_F01_PV')
    A('L_F1_T:')
    if DA:
        set_exec(1)
        A('v_mov_b32 v12, 1')
        A(f'buffer_atomic_add v12, v3, {srd("DBG")}, 0 offen offset:192 sc0 sc1')
        A('s_waitcnt vmcnt(0)')
        A('v_readfirstlane_b32 s76, v12')
        full_exec()
        A('s_and_b32 s76, s76, 255')
        A('s_cmp_ge_u32 s76, 160'); A('s_cbranch_scc1 L_F1_T2')
        A('s_add_u32 s76, s76, 80')
        stage_a(False, SC2)
        A('s_and_b32 s62, s76, 3'); A('s_cmp_lg_u32 s62, 3'); A('s_cbranch_scc1 L_F1_T2')
        A('s_lshr_b32 s77, s76, 2'); A('s_sub_u32 s77, s77, 20')
        finalize_line(77)
        A('L_F1_T2:')
        lds_set(F_YH)
    A(f's_cmp_lt_u32 s{sI}, 20'); A('s_cbranch_scc1 L_F01_PV')
    if not DYN: branch_if_no_role('L_F01_PV')
    get_nonce(9)
    A('v_lshlrev_b32 v8, 4, v0')
    A(f's_mov_b32 s64, {R_MF}'); A(f's_mov_b32 s72, {R_CLR}'); A(f's_mov_b32 s73, {R_MF + 4096}')
    if DYN: branch_if_not_gcand('L_F1_TD')
    else: branch_if_not_g('L_F1_TD')
    def ld():
        A(f'buffer_load_dwordx4 v[12:15], v8, {srd("WS")}, s72 offen sc1')
        A(f'buffer_load_dwordx4 v[48:51], v8, {srd("WS")}, s72 offen offset:1024 sc1')
        for k in range(8):
            A(f'buffer_load_dwordx4 v[{16+4*k}:{19+4*k}], v8, {srd("WS")}, {"s64" if k < 4 else "s73"} offen offset:{1024*(k%4)} sc1')
    poll(ld, [], 9, tags=[12, 14, 48, 50] + [17 + 4 * k for k in range(8)] + [19 + 4 * k for k in range(8)], sleep=8)
    for k in range(8):
        q = 16 + 4 * k
        A(f'v_and_b32 v{q+3}, 0xffff0000, v{q+2}'); A(f'v_lshlrev_b32 v{q+2}, 16, v{q+2}')
        A(f'v_and_b32 v{q+1}, 0xffff0000, v{q}'); A(f'v_lshlrev_b32 v{q}, 16, v{q}')
        if k >= 5:
            for r in range(4): A(f'v_add_f32 v{q+r}, 1.0, v{q+r}')
            rbf4(q, q)
        A(f'ds_write_b128 v8, v[{q}:{q+3}] offset:{MODV + 1024*k}')
    lds_set(F_MV)
    stamp(4)
    A('s_branch L_F01_PV')
    A('L_F1_TD:')
    d_index()
    A('v_and_b32 v10, 3, v0'); A('v_lshlrev_b32 v10, 4, v10'); A('s_lshl_b32 s62, s75, 6'); A(f's_add_u32 s64, s62, {R_MF + 7680}')
    def ld():
        A(f'buffer_load_dwordx4 v[12:15], v8, {srd("WS")}, s72 offen sc1')
        A(f'buffer_load_dwordx4 v[48:51], v8, {srd("WS")}, s72 offen offset:1024 sc1')
        A(f'buffer_load_dwordx4 v[16:19], v10, {srd("WS")}, s64 offen sc1')
    poll(ld, [], 9, tags=[12, 14, 48, 50, 17, 19], sleep=8)
    A('v_and_b32 v19, 0xffff0000, v18'); A('v_lshlrev_b32 v18, 16, v18'); A('v_and_b32 v17, 0xffff0000, v16'); A('v_lshlrev_b32 v16, 16, v16')
    A(f'ds_write_b128 v10, v[16:19] offset:{MODV}')
    lds_set(F_MV)
    stamp(4)
    A('L_F01_PV:')
    dry_check('L_DRYRET')
    lds_wait(CNT_VD, vZ, 9, cmp_val=6)
    A(f's_mul_i32 s62, s{sR}, 24576'); A(f's_add_u32 s62, s62, {LDS_A}'); A('v_lshl_add_u32 v8, v0, 4, s62')
    for n in range(24): A(f'ds_read_b128 v[{32+4*n}:{35+4*n}], v8 offset:{1024*n}')
    A('s_waitcnt lgkmcnt(0)')
    A('s_branch L_PV')

    A('L_F2:')
    if DA:
        A(f's_cmp_ge_u32 s{sX}, 4'); A('s_cbranch_scc1 L_F2_NONE')
        A(f's_cmp_ge_u32 s{sI}, 20'); A('s_cbranch_scc1 L_F2_NONE')
        A(f's_lshl_b32 s76, s{sI}, 2'); A(f's_add_u32 s76, s76, s{sX}')
    else:
        A('s_cmp_ge_u32 s2, 240'); A('s_cbranch_scc1 L_F2_NONE')
        A('s_mov_b32 s76, s2')
    stage_a(True, SC)
    dstamp(1, 8, vt=(1, 47))
    stamp(3)
    A('s_branch L_VSTREAM')
    A('L_F2_NONE:')
    A('s_barrier')
    lds_set(F_A)
    lds_inc(CNT_FREE)
    A('s_branch L_VSTREAM')

    A('L_F3:')
    A(f's_cmp_ge_u32 s{sR}, 4'); A('s_cbranch_scc1 L_F4')
    A('s_cmp_lg_u32 s2, 0'); A('s_cbranch_scc1 L_F3_B')
    A('s_memrealtime s[62:63]'); A('s_waitcnt lgkmcnt(0)'); A('s_or_b32 s62, s62, 1'); A('v_mov_b32 v8, s62')
    set_exec(1)
    A('v_mov_b32 v9, 0')
    A(f'buffer_atomic_cmpswap v[8:9], v3, {srd("DBG")}, 0 offen sc1')
    full_exec()
    A('L_F3_B:')
    A('v_lshlrev_b32 v7, 2, v0'); A('ds_write_b32 v7, v3')
    for k in range(3): A(f'ds_write_b32 v7, v3 offset:{OACC + 256*k}')
    A('s_waitcnt lgkmcnt(0)')
    A('s_barrier')
    set_exec(1)
    poll(lambda: A(f'buffer_load_dword v9, v3, {srd("DBG")}, 0 offen sc1'), [9], 10, sleep=NSLEEP)
    A(f'ds_write_b32 v3, v9 offset:{F_N}')
    full_exec()
    stamp(1)
    A('s_branch L_VSTREAM')
    A('L_F4:')
    A(f's_cmp_lg_u32 s{sR}, 4'); A('s_cbranch_scc1 L_F5')
    for r in range(4): A(f'v_mov_b32 v{8+r}, 0')
    kb_pi()
    A('s_mul_i32 s70, s68, 24576'); A(f's_mul_i32 s62, s{sX}, 3072'); A('s_add_u32 s70, s70, s62'); A('s_lshl_b32 s62, s69, 9'); A('s_add_u32 s70, s70, s62')
    A(f's_add_u32 s70, s70, {R_Q[0]}')
    A('v_and_b32 v12, 31, v0'); A('v_lshlrev_b32 v12, 4, v12'); A('v_lshrrev_b32 v13, 5, v0'); A(f'v_mul_u32_u24 v13, {R_Q[1]-R_Q[0]}, v13'); A('v_add_u32 v12, v12, v13')
    A(f's_cmp_ge_u32 s{sI}, 30'); A('s_cbranch_scc1 L_F4_B')
    set_exec(0xffffffff)
    A(f'buffer_store_dwordx4 v[8:11], v12, {srd("WS")}, s70 offen sc1')
    full_exec()
    A('L_F4_B:')
    A(f's_lshl_b32 s62, s{sH}, 3'); A(f's_add_u32 s62, s62, s{sS}'); A('s_mul_i32 s71, s62, 768'); A('s_lshl_b32 s72, s62, 6')
    A('v_lshlrev_b32 v12, 4, v0')
    A(f's_add_u32 s73, s71, {R_O[0]}'); A('v_add_u32 v13, s73, v12')
    A(f's_add_u32 s73, s72, {R_ST[0] - 768}'); A('v_add_u32 v14, s73, v12')
    A('v_cmp_lt_u32 vcc, 47, v0'); A('v_cndmask_b32 v13, v13, v14, vcc')
    A(f's_add_u32 s73, s71, {R_O[1]}'); A('v_add_u32 v15, s73, v12')
    A(f's_add_u32 s73, s72, {R_ST[1] - 768}'); A('v_add_u32 v14, s73, v12')
    A('v_cndmask_b32 v15, v15, v14, vcc')
    A(f's_cmp_ge_u32 s{sI}, 20'); A('s_cbranch_scc1 L_F4_C')
    A(f's_and_b32 s62, s{sI}, 1'); A(f's_lshl_b32 s63, s{sX}, 1'); A('s_add_u32 s62, s62, s63'); A('s_mul_i32 s74, s62, 2560')
    A(f's_lshr_b32 s62, s{sI}, 1'); A('s_lshl_b32 s62, s62, 8'); A('s_add_u32 s74, s74, s62'); A(f's_add_u32 s74, s74, {R_Y}')
    set_exec(0xffff)
    A(f'buffer_store_dwordx4 v[8:11], v12, {srd("WS")}, s74 offen sc1')
    full_exec()
    A('s_branch L_F4_D')
    A('L_F4_C:')
    branch_if_not_g('L_F4_D')
    g_index()
    A('s_and_b32 s62, s75, 1'); A('s_mul_i32 s74, s62, 3072'); A('s_lshr_b32 s62, s75, 1'); A('s_lshl_b32 s62, s62, 7'); A('s_add_u32 s74, s74, s62'); A(f's_add_u32 s74, s74, {R_HM}')
    set_exec(0xff)
    A(f'buffer_store_dwordx4 v[8:11], v12, {srd("WS")}, s74 offen sc1')
    full_exec()
    A('s_cmp_ge_u32 s75, 8'); A('s_cbranch_scc1 L_F4_D')
    A('s_mul_i32 s63, s75, 160'); A(f's_add_u32 s63, s63, {R_X2}')
    set_exec(0x3ff)
    A(f'buffer_store_dwordx4 v[8:11], v12, {srd("WS")}, s63 offen sc1')
    full_exec()
    A('L_F4_D:')
    set_exec((1 << 52) - 1)
    A(f'buffer_store_dwordx4 v[8:11], v13, {srd("WS")}, 0 offen sc1')
    full_exec()
    A('s_barrier')
    A('s_waitcnt vmcnt(0)')
    lds_set(F_CLR)
    stamp(1)
    get_nonce(12)
    A(f'v_mov_b32 v12, s{sN}')
    A('s_getreg_b32 s62, hwreg(HW_REG_XCC_ID)'); A('s_and_b32 s62, s62, 15'); A('s_add_u32 s62, s62, 1'); A('v_mov_b32 v13, s62')
    A(f's_lshl_b32 s70, s{sX}, 5'); A(f's_add_u32 s70, s70, s{sI}'); A('s_lshl_b32 s70, s70, 3'); A(f's_add_u32 s70, s70, {R_CLR}')
    set_exec(1)
    A(f'buffer_store_dwordx2 v[12:13], v3, {srd("WS")}, s70 offen sc1')
    full_exec()
    stamp(2)
    A('s_branch L_VSTREAM')
    A('L_F5:')
    A('s_barrier')
    if not DA:
        A(f's_cmp_lg_u32 s{sR}, 5'); A('s_cbranch_scc1 L_F6')
        A('s_cmp_ge_u32 s2, 40'); A('s_cbranch_scc1 L_F6')
        A('s_mov_b32 s76, s2')
        finalize_line(76)
        stamp(2)
    A('L_F6:')
    if PRET:
        A(f's_cmp_lg_u32 s{sR}, 7'); A('s_cbranch_scc1 L_F7_X')
        A('v_lshlrev_b32 v8, 17, v0')
        set_exec(0xffff)
        A(f'buffer_load_dword v9, v8, {srd("WG")}, 0 offen nt'); A(f'buffer_load_dword v10, v8, {srd("WU")}, 0 offen nt'); A(f'buffer_load_dword v11, v8, {srd("WD")}, 0 offen nt')
        A(f's_mul_i32 s62, s{sX}, {768 * 1280}')
        set_exec(0x1ff)
        A(f'buffer_load_dword v12, v8, {srd("WO")}, s62 offen nt')
        set_exec(0x3)
        A(f'buffer_load_dword v13, v8, {srd("V")}, s67 offen nt')
        set_exec(1)
        A(f'buffer_load_dword v14, v3, {srd("OUT")}, 0 offen nt')
        full_exec()
        A('L_F7_X:')
    if TD == 's':
        A(f's_cmp_lt_u32 s{sR}, 6'); A('s_cbranch_scc1 L_F6_X')
        A(f's_cmp_lt_u32 s{sI}, 26'); A('s_cbranch_scc1 L_F6_X')
        branch_if_no_role('L_F6_X')
        d_index()
        dma_addr(32, 1280, 6, 7, 8)
        A(f's_sub_u32 s76, s{sR}, 6')
        A(f's_mul_i32 s77, s76, {768 * 1280}'); A('s_lshl_b32 s62, s75, 5'); A('s_add_u32 s77, s77, s62')
        A(f's_mul_i32 s78, s76, 24576'); A(f's_add_u32 s78, s78, {LDS_T}')
        lds_wait(CNT_B, vZ, 9, cmp_val=2)
        dma_issue(24, 'WD', 6, 77, 32 * 1280, 78, pace=DPACE, pol=TPOL)
        A('s_waitcnt vmcnt(0)')
        lds_inc(CNT_TD)
        A('L_F6_X:')
    if dry:
        for r in list(range(6, 48)): A(f'v_mov_b32 v{r}, 0')
        A(f's_mov_b32 s{sLIVE}, 0'); A('s_mov_b64 exec, 0')
        A(f's_cmp_eq_u32 s{sR}, 5'); A('s_cbranch_scc1 L_F5_K')
        A(f's_cmp_eq_u32 s{sR}, 6'); A('s_cbranch_scc1 L_F6_F')
        A('s_branch L_PV')
        A('L_F5_K:'); A(f's_mov_b32 s{sR}, 0'); A('s_branch L_K_DRY')
        A('L_F6_F:'); A(f's_mov_b32 s{sR}, 0'); kb_pi(); A(f's_mov_b32 s71, {LDS_B}'); A('s_branch L_F01_DRY')
        A('L_DRYRET:')
        A(f's_mov_b32 s{sLIVE}, -1'); A('s_mov_b64 exec, -1'); A(f's_and_b32 s{sR}, s{sW}, 7')
        stamp(1)
    else:
        A('L_DRYRET:')

    VD = 32
    A('L_VSTREAM:')
    A('s_waitcnt vmcnt(0)')
    A(f's_sub_u32 s68, s{sR}, 2'); A('s_cmp_ge_u32 s68, 3'); A('s_cselect_b32 s69, 1, 0')
    A('s_mul_i32 s62, s69, 3'); A('s_sub_u32 s68, s68, s62')
    A('s_mul_i32 s70, s69, 24576'); A(f's_add_u32 s71, s70, {LDS_A}'); A('s_add_u32 s70, s70, s67')
    A('s_lshl_b32 s62, s68, 13'); A('s_add_u32 s71, s71, s62')
    lds_wait(CNT_FREE, vZ, 6, cmp_val=3)
    lds_wait(KISS, vPF, 6)
    stamp(5)
    d0 = DV0 or DV
    def vload(n):
        T, tt, c = n // 12, (n % 12) // 3, n % 3
        A(f'buffer_load_dwordx4 v[{VD+4*n}:{VD+4*n+3}], v2, {srd("V")}, s{65+T} offen offset:{tt*384+c*128} {KVPOL}')
    A('s_lshl_b32 s68, s68, 3'); A('s_mov_b32 s69, 0'); A('s_mov_b32 s74, 0'); A('s_mov_b32 s75, 0')
    A('L_VP:')
    A('s_lshl_b32 s62, s68, 7'); A('s_cmp_ge_u32 s68, 12'); A('s_cselect_b32 s63, 10752, 0'); A('s_add_u32 s62, s62, s63'); A('s_add_u32 s62, s62, s70')
    A('s_mov_b32 m0, s71')
    A(f'buffer_load_dwordx4 v2, {srd("V")}, s62 offen {KVPOL} lds')
    A('s_add_u32 s71, s71, 1024'); A('s_add_u32 s68, s68, 1'); A('s_add_u32 s69, s69, 1')
    A('s_cmp_lg_u32 s74, 0'); A('s_cbranch_scc1 L_VP_N')
    A(f'ds_read_b32 v6, v{vPF} offset:{PRDY}')
    A(f's_waitcnt vmcnt({d0-1}) lgkmcnt(0)')
    A('v_readfirstlane_b32 s74, v6')
    A('L_VP_N:')
    A('s_cmp_lt_u32 s69, 8'); A('s_cbranch_scc1 L_VP')
    A('s_cmp_lg_u32 s74, 0'); A('s_cbranch_scc1 L_VF_0')
    for n in range(24):
        vload(n)
        if n + 1 < 24 - VFREE:
            A(f'ds_read_b32 v6, v{vPF} offset:{PRDY}')
            A(f's_waitcnt vmcnt({DV-1}) lgkmcnt(0)')
            if n + 1 == DV:
                lds_inc(CNT_VD); A('s_mov_b32 s75, 1')
            A('v_readfirstlane_b32 s62, v6'); A('s_cmp_lg_u32 s62, 0'); A(f's_cbranch_scc1 L_VF_{n+1}')
    A('s_branch L_VF_E')
    for n in range(24):
        A(f'L_VF_{n}:'); vload(n)
    A('s_cmp_lg_u32 s75, 0'); A('s_cbranch_scc1 L_VF_E')
    lds_inc(VISS)
    A('s_waitcnt vmcnt(24)')
    lds_inc(CNT_VD)
    A('s_branch L_VF_E2')
    A('L_VF_E:')
    lds_inc(VISS)
    A('L_VF_E2:')
    if WV:
        A(f's_cmp_ge_u32 s{sI}, 20'); A('s_cbranch_scc1 L_WV_NO')
        dma_addr(128, 1280, 6, 7, 8)
        A(f's_mul_i32 s70, s{sX}, 768'); A(f's_and_b32 s62, s{sI}, 1'); A('s_mul_i32 s62, s62, 384'); A('s_add_u32 s70, s70, s62')
        A(f's_sub_u32 s71, s{sR}, 2'); A('s_lshl_b32 s62, s71, 6'); A('s_add_u32 s70, s70, s62'); A('s_mul_i32 s70, s70, 1280')
        A(f's_lshr_b32 s62, s{sI}, 1'); A('s_lshl_b32 s62, s62, 7'); A('s_add_u32 s70, s70, s62')
        A('s_lshl_b32 s71, s71, 13'); A(f's_add_u32 s71, s71, {LDS_T}')
        dma_issue(8, 'WO', 6, 70, 8 * 1280, 71, pol=TPOL)
        A('s_branch L_WV_E')
        A('L_WV_NO:')
        A('v_mov_b32 v6, 0x7ffff000')
        for k in range(8): A(f'buffer_load_dword v2, v6, {srd("X")}, 0 offen')
        A('L_WV_E:')
    if diagV:
        stamp(3); A('s_waitcnt vmcnt(0)'); stamp(4)
    A('L_PV:')
    A('v_and_b32 v14, 7, v0')
    A('v_and_b32 v15, 1, v14'); A('v_lshlrev_b32 v15, 4, v15'); A('v_mov_b32 v10, 0xffff'); A('v_lshlrev_b32 v15, v15, v10')
    A('v_lshrrev_b32 v14, 1, v14')
    for d in range(4):
        A(f'v_cmp_eq_u32 vcc, {d}, v14'); A(f'v_cndmask_b32 v{6+d}, 0, v15, vcc')
    for r in range(12): A(f'v_mov_b32 v{16+r}, 0')
    A('v_lshrrev_b32 v14, 3, v0'); A('v_lshlrev_b32 v14, 4, v14'); A(f's_lshl_b32 s62, s{sR}, 8'); A('v_add_u32 v14, s62, v14')
    A('v_bfe_u32 v1, v0, 4, 1'); A('v_lshlrev_b32 v1, 7, v1'); A('v_and_b32 v15, 7, v0'); A('v_lshl_add_u32 v1, v15, 2, v1')
    A('v_lshrrev_b32 v15, 5, v0'); A('v_lshl_add_u32 v1, v15, 5, v1'); A(f's_mul_i32 s62, s{sR}, 768'); A('v_add_u32 v1, s62, v1')
    A(f's_lshl_b32 s62, s{sH}, 3'); A(f's_add_u32 s62, s62, s{sS}'); A('s_mul_i32 s62, s62, 768')
    A(f's_add_u32 s72, s62, {R_O[0]}')
    lds_wait(PRDY, vPF, 15)
    get_loc(15)
    stamp(6)
    for T in range(2):
        A(f'ds_read_b128 v[10:13], v14 offset:{PD + 128*T}')
        A('s_waitcnt lgkmcnt(0)')
        for tt in range(4):
            t = 4 * T + tt
            for d in range(4): A(f'v_and_b32 v{28+d}, v{10+tt}, v{6+d}')
            for c in range(3):
                n = 3 * t + c
                A(f's_waitcnt vmcnt({23-n+(8 if WV else 0)})')
                A(f'v_mfma_f32_16x16x32_bf16 v[{16+4*c}:{19+4*c}], v[{VD+4*n}:{VD+4*n+3}], v[28:31], v[{16+4*c}:{19+4*c}]')
    A('v_lshlrev_b32 v14, 4, v0')
    for k in range(6): A(f'v_permlane32_swap_b32 v{16+2*k}, v{17+2*k}')
    for k in range(6): A(f'v_add_f32_dpp v{16+2*k}, v{17+2*k}, v{16+2*k} row_ror:8 row_mask:0xf bank_mask:0xf')
    set_exec(0x00ff00ff00ff00ff)
    for k in range(6): A(f'ds_write_b32 v1, v{16+2*k} offset:{RED + 256*(k//2) + 64*(k%2)}')
    set_exec(1)
    A(f'ds_add_rtn_u32 v15, v3, v4 offset:{CNT_O}')
    set_exec((1 << 48) - 1)
    for k in range(8): A(f'ds_read_b128 v[{32+4*k}:{35+4*k}], v14 offset:{RED + 768*k}')
    A('s_waitcnt lgkmcnt(8)')
    A('v_readfirstlane_b32 s62, v15')
    A('s_cbranch_execz L_VRED')
    A('s_cmp_lg_u32 s62, 7'); A('s_cbranch_scc1 L_VEND')
    A('L_VRED:')
    A('s_waitcnt lgkmcnt(0)')
    tree_add(32, 8)
    for r in range(4): A(f'v_or_b32 v{32+r}, 1, v{32+r}')
    loc_store(f'buffer_store_dwordx4 v[32:35], v14, {srd("WS")}, s72 offen')
    lds_set(F_ODONE)
    dstamp(6, 8, vt=(1, 47))
    dry_check('L_DRYRET')
    A('L_VEND:')
    stamp(7)
    if WV:
        A(f's_cmp_lt_u32 s{sR}, 2'); A('s_cbranch_scc1 L_VEND2')
        A(f's_cmp_ge_u32 s{sI}, 20'); A('s_cbranch_scc1 L_VEND2')
        A('s_waitcnt vmcnt(0)')
        lds_inc(CNT_TD)
        A('L_VEND2:')
    if TG == 'w':
        A(f's_cmp_lt_u32 s{sI}, 20'); A('s_cbranch_scc1 L_VEND3')
        A(f's_cmp_ge_u32 s{sI}, 26'); A('s_cbranch_scc1 L_VEND3')
        full_exec()
        A(f's_mul_i32 s75, s{sX}, 6'); A(f's_add_u32 s75, s75, s{sI}'); A('s_sub_u32 s75, s75, 20')
        A('s_bitcmp1_b32 s75, 0')
        A(f's_cselect_b32 s68, s{SRD["WU"]}, s{SRD["WG"]}'); A(f's_cselect_b32 s69, s{SRD["WU"]+1}, s{SRD["WG"]+1}')
        A(f's_mov_b32 s70, {SIZE["WG"]}'); A('s_mov_b32 s71, 0x20000')
        dma_addr(128, 3072, 6, 7, 8)
        A(f's_mul_i32 s72, s{sR}, {80 * 3072}'); A('s_lshr_b32 s62, s75, 1'); A('s_lshl_b32 s62, s62, 7'); A('s_add_u32 s72, s72, s62')
        A(f's_mul_i32 s73, s{sR}, 10240'); A(f's_add_u32 s73, s73, {LDS_T}')
        if GWG: lds_wait(VISS, vZ, 9, cmp_val=6)
        dma_issue(10, 's[68:71]', 6, 72, 8 * 3072, 73, pace=TDEPTH, pol=TPOL)
        A('s_waitcnt vmcnt(0)')
        lds_inc(CNT_TD)
        A('L_VEND3:')
    flush_stamps()
    A('s_endpgm')

    A('L_KWAVE:')
    KD = 32
    def kload(n):
        T, tt, c = n // 12, (n % 12) // 3, n % 3
        A(f'buffer_load_dwordx4 v[{KD+4*n}:{KD+4*n+3}], v2, {srd("K")}, s{65+T} offen offset:{tt*384+c*128} {KVPOL}')
    for n in range(24):
        kload(n)
        if n + 1 == (SOFT or DK):
            A('s_barrier')
            if SOFT and KW == 'a': lds_wait(F_A, vZ, 6)
            if SOFT and KW == 'b': lds_wait(CNT_B, vZ, 6, cmp_val=2)
        if n + 1 >= DK and n + 1 < 24:
            if KADAPT and n + 1 >= KA0:
                A(f'ds_read_b32 v6, v{vZ} offset:{F_Q}')
                A(f's_waitcnt vmcnt({DK-1}) lgkmcnt(0)')
                A('v_readfirstlane_b32 s62, v6'); A('s_cmp_lg_u32 s62, 0'); A(f's_cbranch_scc1 L_KF_{n+1}')
            else:
                A(f's_waitcnt vmcnt({DK-1})')
    if KADAPT:
        A('s_branch L_KF_E')
        for n in range(KA0, 24):
            A(f'L_KF_{n}:'); kload(n)
            if DKF and n + 1 < 24: A(f's_waitcnt vmcnt({DKF-1})')
        A('L_KF_E:')
    lds_set(KISS, vPF)
    dstamp(4, 8, 8, vt=(1, 7))
    stamp(1)
    A('L_K_DRY:')
    A('v_and_b32 v6, 7, v0'); A('v_lshlrev_b32 v6, 4, v6')
    A(f's_lshl_b32 s62, s{sH}, 6'); A(f's_lshl_b32 s63, s{sS}, 3'); A('s_add_u32 s62, s62, s63'); A(f's_add_u32 s62, s62, s{sR}'); A('s_lshl_b32 s62, s62, 3')
    A(f's_add_u32 s72, s62, {R_ST[0]}')
    def setmask(m, s): A(f's_mov_b32 s{s}, {m}'); A(f's_mov_b32 s{s+1}, {m}')
    setmask(0xf0f0f0f0, 80); setmask(0xaaaaaaaa, 82); setmask(0xcccccccc, 84)
    get_loc(7)
    lds_wait(F_Q, vZ, 7)
    stamp(2)
    for c in range(3): A(f'ds_read_b128 v[{8+4*c}:{11+4*c}], v6 offset:{QV + 128*c}')
    A('s_waitcnt lgkmcnt(0)')
    for tp in range(0, 8, 2):
        A(f's_waitcnt vmcnt({21 - 3*(tp+1)})')
        for c in range(3):
            for d in range(4):
                for t in (tp, tp + 1):
                    kr = KD + 4 * (3 * t + c) + d
                    src2 = '0' if (c == 0 and d == 0) else f'v{20+t}'
                    A(f'v_dot2_f32_bf16 v{20+t}, v{kr}, v{8+4*c+d}, {src2}')
    for j in range(4):
        A(f'v_cndmask_b32 v{8+j}, v{20+j}, v{24+j}, s[80:81]')
        A(f'v_cndmask_b32 v{12+j}, v{24+j}, v{20+j}, s[80:81]')
    for j in range(4): A(f'v_add_f32_dpp v{8+j}, v{12+j}, v{8+j} row_half_mirror row_mask:0xf bank_mask:0xf')
    for jj in (0, 1):
        A(f'v_cndmask_b32 v{12+jj}, v{8+2*jj}, v{9+2*jj}, s[82:83]')
        A(f'v_cndmask_b32 v{14+jj}, v{9+2*jj}, v{8+2*jj}, s[82:83]')
    for jj in (0, 1): A(f'v_add_f32_dpp v{12+jj}, v{14+jj}, v{12+jj} quad_perm:[1,0,3,2] row_mask:0xf bank_mask:0xf')
    A('v_cndmask_b32 v8, v12, v13, s[84:85]'); A('v_cndmask_b32 v9, v13, v12, s[84:85]')
    A('v_add_f32_dpp v8, v9, v8 quad_perm:[2,3,0,1] row_mask:0xf bank_mask:0xf')
    rbf(8, 8); A(f'v_mul_f32 v8, {SCALE}, v8'); rbf(8, 8)
    A('v_mov_b32 v9, v8')
    allreduce([9], 'v_max_f32', [10])
    A('v_sub_f32 v10, v8, v9'); A(f'v_mul_f32 v10, {LOG2E}, v10'); A('v_exp_f32 v10, v10')
    allreduce([10], 'v_add_f32', [11])
    A('v_or_b32 v12, 1, v9'); A('v_mov_b32 v13, v10')
    set_exec(1)
    loc_store(f'buffer_store_dwordx2 v[12:13], v3, {srd("WS")}, s72 offen')
    full_exec()
    stamp(3)
    A('v_mov_b32 v127, v8')
    A(f's_cmp_lt_u32 s{sR}, 2'); A('s_cselect_b32 s62, 8, 0'); A('v_add_u32 v126, s62, v5')
    def emit_p():
        lds_wait(F_ML, vZ, 120)
        A(f'ds_read_b64 v[120:121], v3 offset:{ML}')
        A('v_bfe_u32 v122, v0, 2, 1'); A('v_lshlrev_b32 v122, 5, v122'); A('v_lshrrev_b32 v123, 3, v0'); A('v_lshl_add_u32 v122, v123, 2, v122')
        A('v_and_b32 v123, 3, v0'); A('v_add_u32 v122, v122, v123'); A('v_lshlrev_b32 v122, 2, v122'); A(f's_lshl_b32 s62, s{sR}, 8'); A('v_add_u32 v122, s62, v122')
        A('s_waitcnt lgkmcnt(0)')
        A('v_sub_f32 v127, v127, v120'); A(f'v_mul_f32 v127, {LOG2E}, v127'); A('v_exp_f32 v127, v127')
        fdiv(127, 127, 121, 120, 123, 124, 125)
        A('v_cvt_pk_bf16_f32 v127, v127, v127')
        A(f'ds_write_b32 v122, v127 offset:{PD}')
        lds_set(PRDY, vPF)
        stamp(4)
    A(f's_cmp_lt_u32 s{sI}, 20'); A('s_cbranch_scc1 L_TW')
    if DYN:
        branch_if_not_gcand('L_TD')
        emit_p()
        lds_wait(F_TK, vZ, 7)
        A('s_sub_u32 s75, s62, 1')
        A('s_cmp_lt_u32 s75, 48'); A('s_cbranch_scc1 L_TG')
        A('s_branch L_KEND')
    else:
        branch_if_g('L_TG')
        branch_if_no_role('L_TNONE')
        A('s_branch L_TD')
        A('L_TNONE:')
        emit_p()
        A('s_branch L_KEND')

    FR = 64
    def wg_common(nk, rows_per_kg):
        A(f's_and_b32 s76, s{sR}, 3'); A(f's_lshr_b32 s77, s{sR}, 2')
        A(f's_mul_i32 s78, s76, {rows_per_kg * 128}'); A(f's_add_u32 s78, s78, {LDS_T}')
        A('v_lshrrev_b32 v12, 2, v0'); A('v_lshlrev_b32 v12, 7, v12'); A('v_and_b32 v13, 3, v0'); A('v_lshl_add_u32 v12, v13, 3, v12'); A('v_add_u32 v12, s78, v12')
        A('v_bfe_u32 v13, v0, 3, 2'); A('s_lshl_b32 s62, s77, 1')
        A('v_xor_b32 v10, s62, v13'); A('v_xor_b32 v11, 1, v10')
        A('v_lshl_add_u32 v10, v10, 5, v12'); A('v_lshl_add_u32 v11, v11, 5, v12')
        A(f's_lshl_b32 s74, s{sR}, 9'); A(f's_add_u32 s74, s74, {STG}')
        A('v_lshrrev_b32 v19, 4, v0'); A('v_lshl_add_u32 v19, v19, 3, s74')
        A('v_lshrrev_b32 v18, 4, v0'); A('v_lshlrev_b32 v18, 4, v18'); A('s_lshl_b32 s62, s76, 8'); A('s_lshl_b32 s63, s77, 7'); A('s_add_u32 s62, s62, s63'); A('v_add_u32 v18, s62, v18')
        A('v_lshlrev_b32 v27, 3, v0')
        A(f's_mul_i32 s62, s77, {rows_per_kg * 64}'); A('s_add_u32 s73, s78, s62')
    def wg_fetch(nk, acc):
        for r in range(8): A(f'v_mov_b32 v{acc+r}, 0')
        A('s_waitcnt vmcnt(0)')
        lds_inc(CNT_TD)
        lds_wait(CNT_TD, vZ, 7, cmp_val=8)
        for u in range(nk):
            for ct in range(2):
                r = FR + (u * 2 + ct) * 4
                for hh in range(2): A(f'ds_read_b64_tr_b16 v[{r+2*hh}:{r+2*hh+1}], v{10+ct} offset:{(32*u+16*hh)*128}')
    def wg_mfma(nk, acc, bb):
        for u in range(nk): A(f'ds_read2_b64 v[{bb+4*u}:{bb+3+4*u}], v19 offset0:{8*u} offset1:{8*u+4}')
        for u in range(nk):
            A(f's_waitcnt lgkmcnt({nk-1-u})')
            for ct in range(2):
                r = FR + (u * 2 + ct) * 4
                A(f'v_mfma_f32_16x16x32_bf16 v[{acc+4*ct}:{acc+3+4*ct}], v[{r}:{r+3}], v[{bb+4*u}:{bb+3+4*u}], v[{acc+4*ct}:{acc+3+4*ct}]')
        set_exec(0x0001000100010001)
        for ct in range(2): A(f'ds_write_b128 v18, v[{acc+4*ct}:{acc+3+4*ct}] offset:{TRED + 64*ct}')
        A('s_waitcnt lgkmcnt(0)')
        barrier()
        A(f's_cmp_lg_u32 s{sR}, 0'); A('s_cbranch_scc1 L_KEND')
        set_exec(0xffffffff)
        for k in range(4): A(f'ds_read_b64 v[{32+2*k}:{33+2*k}], v27 offset:{TRED + 256*k}')
        A('s_waitcnt lgkmcnt(0)')
        tree2(32, 4)

    A('L_TW:')
    wg_common(3, 96)
    dma_addr(128, 1280, 6, 7, 8)
    A(f's_and_b32 s75, s{sI}, 1')
    A(f's_mul_i32 s70, s{sX}, 768'); A('s_mul_i32 s62, s75, 384'); A('s_add_u32 s70, s70, s62'); A('s_mul_i32 s62, s76, 96'); A('s_add_u32 s70, s70, s62')
    A(f's_lshl_b32 s62, s{sX}, 2'); A('s_lshl_b32 s63, s75, 1'); A('s_add_u32 s62, s62, s63'); A('s_lshr_b32 s63, s76, 1'); A('s_add_u32 s62, s62, s63'); A('s_mul_i32 s62, s62, 6144')
    A('s_and_b32 s63, s76, 1'); A('s_mul_i32 s63, s63, 384'); A('s_add_u32 s62, s62, s63')
    if X4:
        A('v_lshrrev_b32 v14, 5, v0'); A('v_mul_u32_u24 v14, 3072, v14'); A('v_and_b32 v15, 31, v0'); A('v_lshl_add_u32 v14, v15, 4, v14'); A('v_add_u32 v14, s62, v14')
    else:
        A('v_lshl_add_u32 v14, v0, 3, s62'); A('v_add_u32 v15, 3072, v14')
    A('s_mul_i32 s62, s77, 48'); A('s_add_u32 s70, s70, s62'); A('s_mul_i32 s70, s70, 1280')
    A(f's_lshr_b32 s62, s{sI}, 1'); A('s_lshl_b32 s62, s62, 7'); A('s_add_u32 s70, s70, s62')
    A('v_lshl_add_u32 v16, v15, 3, s74' if X4 else 'v_lshl_add_u32 v16, v0, 2, s74')
    A(f's_lshl_b32 s63, s{sX}, 1'); A('s_add_u32 s63, s63, s75'); A('s_mul_i32 s75, s63, 2560'); A('s_lshl_b32 s62, s62, 1'); A('s_add_u32 s75, s75, s62'); A(f's_add_u32 s75, s75, {R_Y}')
    emit_p()
    def w_tr():
        for u in range(3):
            for ct in range(2):
                r = FR + (u * 2 + ct) * 4
                for hh in range(2): A(f'ds_read_b64_tr_b16 v[{r+2*hh}:{r+2*hh+1}], v{10+ct} offset:{(32*u+16*hh)*128}')
    if not WV:
        if DA: lds_wait(F_YH, vZ, 7)
        tail_gate(TW)
        dma_issue(6, 'WO', 6, 70, 8 * 1280, 73, pace=TDEPTH, pol=TPOL)
        wg_fetch(3, 112)
        stamp(5)
    else:
        for r in range(8): A(f'v_mov_b32 v{112+r}, 0')
    lds_wait(F_ODONE, vZ, 7)
    if X4:
        set_exec(0x00ffffff00ffffff)
        def ld():
            for n in range(4): A(f'buffer_load_dwordx4 v[{32+4*n}:{35+4*n}], v14, {srd("WS")}, s64 offen offset:{768*n} sc1')
        poll(ld, list(range(32, 48)), 7, regionAB=R_O, sleep=0)
        stamp(6)
        tree_add(32, 4)
        half_swap_add(32, 36)
        A('v_cvt_pk_bf16_f32 v36, v32, v33'); A('v_cvt_pk_bf16_f32 v37, v34, v35')
        A('ds_write_b64 v16, v[36:37]')
        full_exec()
    else:
        set_exec((1 << 48) - 1)
        def ld():
            for n in range(8): A(f'buffer_load_dwordx2 v[{32+2*n}:{33+2*n}], v{14 + n//4}, {srd("WS")}, s64 offen offset:{768*(n%4)} sc1')
        poll(ld, list(range(32, 48)), 7, regionAB=R_O, sleep=0)
        stamp(6)
        tree2(32, 8)
        A('v_cvt_pk_bf16_f32 v36, v32, v33')
        A('ds_write_b32 v16, v36')
        full_exec()
    if WV:
        lds_wait(CNT_TD, vZ, 7, cmp_val=6)
        stamp(5)
        w_tr()
    wg_mfma(3, 112, 40)
    for r in range(2): A(f'v_or_b32 v{32+r}, 1, v{32+r}')
    if WIDE:
        A('v_mov_b32_dpp v34, v32 quad_perm:[1,1,3,3] row_mask:0xf bank_mask:0xf'); A('v_mov_b32_dpp v35, v33 quad_perm:[1,1,3,3] row_mask:0xf bank_mask:0xf')
        set_exec(0x55555555)
        A(f'buffer_store_dwordx4 v[32:35], v27, {srd("WS")}, s75 offen sc1')
    else:
        A(f'buffer_store_dwordx2 v[32:33], v27, {srd("WS")}, s75 offen sc1')
    dstamp(7, 8); dstamp(8, 13)
    if YTH:
        set_exec(1)
        A(f'buffer_atomic_add v4, v3, {srd("DBG")}, 0 offen offset:128 sc1')
    A('s_branch L_KEND')

    A('L_TG:')
    if not DYN: g_index()
    wg_common(5, 160)
    A('s_bitcmp1_b32 s75, 0')
    A(f's_cselect_b32 s68, s{SRD["WU"]}, s{SRD["WG"]}'); A(f's_cselect_b32 s69, s{SRD["WU"]+1}, s{SRD["WG"]+1}')
    A(f's_mov_b32 s70, {SIZE["WG"]}'); A('s_mov_b32 s71, 0x20000'); G_SRD = 's[68:71]'
    dma_addr(128, 3072, 6, 7, 8)
    A('s_mul_i32 s72, s76, 160'); A('s_mul_i32 s62, s77, 80'); A('s_add_u32 s72, s72, s62'); A('s_mul_i32 s72, s72, 3072')
    A('s_lshr_b32 s62, s75, 1'); A('s_lshl_b32 s62, s62, 7'); A('s_add_u32 s72, s72, s62')
    A('s_and_b32 s63, s75, 1'); A('s_mul_i32 s63, s63, 3072'); A('s_add_u32 s62, s62, s63'); A(f's_add_u32 s84, s62, {R_HM}')
    if X4:
        A('v_and_b32 v7, 31, v0'); A('v_min_u32 v7, 19, v7')
        A(f's_mul_i32 s62, s{sR}, 160'); A('v_lshl_add_u32 v14, v7, 3, s62')
        A(f'buffer_load_dwordx2 v[24:25], v14, {srd("X")}, 0 offen')
        A('v_lshlrev_b32 v17, 1, v14')
        A('v_lshrrev_b32 v7, 5, v0'); A('v_mul_u32_u24 v7, 2560, v7'); A('v_add_u32 v26, v7, v17')
        A('v_min_u32 v7, 39, v0')
    else:
        A('v_min_u32 v7, 39, v0')
        A(f's_mul_i32 s62, s{sR}, 160'); A('v_lshl_add_u32 v14, v7, 2, s62')
        A(f'buffer_load_dword v28, v14, {srd("X")}, 0 offen')
        A('v_lshlrev_b32 v17, 1, v14')
        A('v_add_u32 v26, 20480, v17')
    A('s_mul_i32 s62, s76, 320'); A('v_lshl_add_u32 v30, v7, 3, s62')
    A('v_lshlrev_b32 v31, 1, v30')
    A('v_lshl_add_u32 v16, v0, 3, s74')
    A('v_lshlrev_b32 v15, 4, v0'); A('v_lshlrev_b32 v9, 2, v0')
    A('v_mov_b32 v29, 0x3acccccd'); A('v_mov_b32 v8, 0x80000000')
    if not DYN: emit_p()
    lds_wait(F_MV, vZ, 7)
    A(f'ds_read_b128 v[20:23], v17 offset:{MODV}' if X4 else f'ds_read_b64 v[20:21], v17 offset:{MODV}')
    A(f'ds_read_b128 v[104:107], v31 offset:{MODV + 2560}'); A(f'ds_read_b128 v[108:111], v31 offset:{MODV + 5120}')
    def g_tr():
        for u in range(5):
            for ct in range(2):
                r = FR + (u * 2 + ct) * 4
                for hh in range(2): A(f'ds_read_b64_tr_b16 v[{r+2*hh}:{r+2*hh+1}], v{10+ct} offset:{(32*u+16*hh)*128}')
    if TG == 'w':
        for r in range(8): A(f'v_mov_b32 v{112+r}, 0')
        A('s_waitcnt vmcnt(0)'); A('s_mov_b32 s73, 0')
    else:
        tail_gate(TG)
        dma_issue(10, G_SRD, 6, 72, 8 * 3072, 73, pace=TDEPTH, pol=TPOL)
        wg_fetch(5, 112)
    if X4: unpack4(120, 24)
    else: unpack2(22, 28)
    stamp(5)
    for k in range(4): A(f's_mov_b32 s{80+k}, {R_Y + 5120*k}')
    lds_wait(F_ODONE, vZ, 7)
    if X4:
        MG = 0x000fffff000fffff
        set_exec(MG)
        A('s_mov_b32 s85, 0xff'); A('s_mov_b32 s63, 0')
        A('L_GP:')
        for g in range(8):
            A(f's_bitcmp1_b32 s85, {g}'); A(f's_cbranch_scc0 L_GPI_{g}')
            A(f's_mov_b32 s62, {R_Y + 5120*g}')
            A(f'buffer_load_dwordx4 v[{32+4*g}:{35+4*g}], v26, {srd("WS")}, s62 offen sc1')
            A(f'L_GPI_{g}:')
        if TG == 'w':
            A('s_cmp_lg_u32 s73, 0'); A('s_cbranch_scc1 L_GFH')
            A(f'ds_read_b32 v7, v3 offset:{CNT_TD}'); A('s_waitcnt lgkmcnt(0)'); A('v_readfirstlane_b32 s62, v7')
            A('s_cmp_lt_u32 s62, 8'); A('s_cbranch_scc1 L_GFH')
            full_exec(); g_tr(); set_exec(MG)
            A('s_mov_b32 s73, 1')
            A('L_GFH:')
        A('s_waitcnt vmcnt(0)')
        for g in range(8):
            q = 32 + 4 * g
            A(f's_bitcmp1_b32 s85, {g}'); A(f's_cbranch_scc0 L_GPC_{g}')
            A(f'v_min3_u32 v7, v{q}, v{q+1}, v{q+2}'); A(f'v_min_u32 v7, v7, v{q+3}')
            A('v_cmp_eq_u32 vcc, 0, v7')
            A(f's_cbranch_vccnz L_GPC_{g}')
            A(f's_bitset0_b32 s85, {g}')
            A(f'L_GPC_{g}:')
        A('s_cmp_eq_u32 s85, 0'); A('s_cbranch_scc1 L_GPD')
        if TG == 'w' and GSLEEP:
            A('s_cmp_lg_u32 s73, 0'); A('s_cbranch_scc1 L_GNS'); A(f's_sleep {GSLEEP}'); A('L_GNS:')
        if TG != 'w' and GS2: A(f's_sleep {GS2}')
        A('s_add_u32 s63, s63, 1'); A(f's_cmp_lt_u32 s63, {SPIN_MAX}'); A('s_cbranch_scc1 L_GP')
        A('L_GPD:')
        stamp(6)
        tree_add(32, 8)
        half_swap_add(32, 36)
        rbf4(32, 32)
        for h in (0, 2): pk('mul', 32 + h, 32 + h, 20 + h)
        rbf4(32, 32)
        for h in (0, 2): pk('add', 32 + h, 32 + h, 120 + h)
        A('v_cvt_pk_bf16_f32 v40, v32, v33'); A('v_cvt_pk_bf16_f32 v41, v34, v35')
        A(f'ds_write_b64 v14, v[40:41] offset:{X2P}')
    else:
        y_hint(YTH, 'G')
        set_exec((1 << 40) - 1)
        def yld(n):
            A(f'buffer_load_dwordx2 v[{32+2*n}:{33+2*n}], v{17 if n < 8 else 26}, {srd("WS")}, s{80 + (n%8)//2} offen offset:{2560*(n%2)} sc1')
        if not GMASK:
            def ld():
                for n in range(16): yld(n)
            poll(ld, list(range(32, 64)), 7)
        else:
            A('s_mov_b32 s85, 0xff'); A('s_mov_b32 s63, 0')
            A('L_GP:')
            for g in range(8):
                A(f's_bitcmp1_b32 s85, {g}'); A(f's_cbranch_scc0 L_GPI_{g}')
                yld(2 * g); yld(2 * g + 1)
                A(f'L_GPI_{g}:')
            A('s_waitcnt vmcnt(0)')
            for g in range(8):
                q = 32 + 4 * g
                A(f's_bitcmp1_b32 s85, {g}'); A(f's_cbranch_scc0 L_GPC_{g}')
                A(f'v_min3_u32 v7, v{q}, v{q+1}, v{q+2}'); A(f'v_min_u32 v7, v7, v{q+3}')
                A('v_cmp_eq_u32 vcc, 0, v7')
                A(f's_cbranch_vccnz L_GPC_{g}')
                A(f's_bitset0_b32 s85, {g}')
                A(f'L_GPC_{g}:')
            A('s_cmp_eq_u32 s85, 0'); A('s_cbranch_scc1 L_GPD')
            A('s_add_u32 s63, s63, 1'); A(f's_cmp_lt_u32 s63, {SPIN_MAX}'); A('s_cbranch_scc1 L_GP')
            A('L_GPD:')
        stamp(6)
        tree2(32, 16)
        rbf2(32, 32, 36)
        pk('mul', 32, 32, 20)
        rbf2(32, 32, 36)
        pk('add', 32, 32, 22)
        A('v_cvt_pk_bf16_f32 v37, v32, v33')
        A(f'ds_write_b32 v14, v37 offset:{X2P}')
    full_exec()
    A('s_waitcnt lgkmcnt(0)')
    barrier()
    A(f'ds_read_b128 v[32:35], v15 offset:{X2P}'); A(f'ds_read_b32 v36, v9 offset:{X2P+1024}')
    A(f'ds_read_b64 v[38:39], v30 offset:{X2P}')
    A(f's_cmp_lg_u32 s{sR}, s75'); A('s_cbranch_scc1 L_TG_NX')
    A(f's_mov_b32 s62, {R_X2}')
    if X4:
        set_exec(0xfffff)
        for r in (40, 41): A(f'v_cmp_eq_u32 vcc, 0, v{r}'); A(f'v_cndmask_b32 v{r}, v{r}, v8, vcc')
        A(f'buffer_store_dwordx2 v[40:41], v14, {srd("WS")}, s62 offen sc1')
    else:
        set_exec((1 << 40) - 1)
        A('v_cmp_eq_u32 vcc, 0, v37'); A('v_cndmask_b32 v37, v37, v8, vcc')
        A(f'buffer_store_dword v37, v14, {srd("WS")}, s62 offen sc1')
    full_exec()
    A('L_TG_NX:')
    dstamp_n(9, 0, 8)
    A('s_waitcnt lgkmcnt(1)')
    ln_stats_pk([32, 33, 34, 35, 36], 48, 29)
    A('s_waitcnt lgkmcnt(0)')
    unpack4(44, 38)
    ln_apply_pk(44, 48)
    for h in (0, 2): pk('mul', 44 + h, 44 + h, 108 + h)
    rbf4(44, 44)
    for h in (0, 2): pk('add', 44 + h, 44 + h, 104 + h)
    A('v_cvt_pk_bf16_f32 v36, v44, v45'); A('v_cvt_pk_bf16_f32 v37, v46, v47')
    A('ds_write_b64 v16, v[36:37]')
    if TG == 'w':
        A('s_cmp_lg_u32 s73, 0'); A('s_cbranch_scc1 L_GFF')
        lds_wait(CNT_TD, vZ, 7, cmp_val=8)
        g_tr()
        A('L_GFF:')
    wg_mfma(5, 112, 40)
    A('v_cvt_pk_bf16_f32 v36, v32, v33')
    A('v_cmp_eq_u32 vcc, 0, v36'); A('v_cndmask_b32 v36, v36, v8, vcc')
    if WIDE:
        for k in (1, 2, 3): A(f'v_mov_b32_dpp v{36+k}, v36 quad_perm:[{k},{k},{k},{k}] row_mask:0xf bank_mask:0xf')
        set_exec(0x11111111)
        A(f'buffer_store_dwordx4 v[36:39], v9, {srd("WS")}, s84 offen sc1')
    else:
        A(f'buffer_store_dword v36, v9, {srd("WS")}, s84 offen sc1')
    dstamp_n(10, 0)
    A('s_branch L_KEND')

    A('L_TD:')
    d_index()
    dma_addr(32, 1280, 6, 7, 8)
    A(f's_mul_i32 s77, s{sR}, {192 * 1280}'); A('s_lshl_b32 s62, s75, 5'); A('s_add_u32 s77, s77, s62')
    A(f's_mul_i32 s78, s{sR}, 6144'); A(f's_add_u32 s78, s78, {LDS_T}')
    A('v_lshl_add_u32 v10, v0, 3, s78')
    A('v_and_b32 v14, 7, v0'); A('v_lshlrev_b32 v9, 3, v14')
    A(f's_mul_i32 s62, s{sH}, 6144'); A('v_mul_u32_u24 v11, 768, v14'); A('v_add_u32 v11, s62, v11')
    A('s_lshl_b32 s62, s75, 5'); A('v_lshl_add_u32 v14, v14, 2, s62')
    A(f's_mul_i32 s62, s{sR}, 384'); A('v_lshl_add_u32 v17, v0, 3, s62')
    A(f'v_add_u32 v18, {R_X2 - R_HM}, v14')
    A('v_lshrrev_b32 v28, 4, v0'); A('v_lshlrev_b32 v28, 4, v28'); A(f's_lshl_b32 s62, s{sR}, 6'); A('v_add_u32 v28, s62, v28')
    A(f's_lshl_b32 s74, s{sR}, 9'); A(f's_add_u32 s74, s74, {STG}')
    A('v_lshl_add_u32 v16, v0, 3, s74')
    A('v_lshrrev_b32 v19, 4, v0'); A('v_lshl_add_u32 v19, v19, 3, s74')
    emit_p()
    lds_wait(F_MV, vZ, 7)
    A(f'ds_read_b64 v[20:21], v9 offset:{MODV}')
    if TD == 't':
        A(f's_cmp_lg_u32 s{sR}, 0'); A('s_cbranch_scc1 L_TD_W')
        lds_wait(F_ODONE, vZ, 7)
        set_exec(0xff)
        poll(lambda: A(f'buffer_load_dword v12, v11, {srd("WS")}, s64 offen sc1'), [12], 7, regionAB=R_O, sleep=1)
        full_exec()
        lds_set(CNT_TD)
        A('L_TD_W:')
        lds_wait(CNT_TD, vZ, 7)
    elif TD == 's':
        lds_wait(CNT_TD, vZ, 7, cmp_val=2)
    else:
        tail_gate(TD)
    if TD != 's': dma_issue(6, 'WD', 6, 77, 32 * 1280, 78, pace=TDEPTH, pol=TPOL)
    for r in range(4): A(f'v_mov_b32 v{24+r}, 0')
    A('s_waitcnt vmcnt(0)')
    for u in range(6):
        r = FR + u * 4
        for hh in range(2): A(f'ds_read_b64_tr_b16 v[{r+2*hh}:{r+2*hh+1}], v10 offset:{(32*u+16*hh)*32}')
    stamp(5)
    lds_wait(F_ODONE, vZ, 7)
    y_hint(160 if YTH else 0, 'D')
    A(f's_mov_b32 s64, {R_HM}')
    set_exec((1 << 48) - 1)
    def ld():
        A(f'buffer_load_dwordx2 v[32:33], v17, {srd("WS")}, s64 offen sc1')
        A(f'buffer_load_dwordx2 v[34:35], v17, {srd("WS")}, s64 offen offset:3072 sc1')
        A(f'buffer_load_dword v36, v18, {srd("WS")}, s64 offen sc1')
    poll(ld, [32, 33, 34, 35, 36], 7, sleep=DSLEEP)
    stamp(6)
    unpack4(40, 32); unpack4(44, 34)
    for h in (0, 2): pk('mul', 40 + h, 40 + h, 44 + h)
    A('v_cvt_pk_bf16_f32 v32, v40, v41'); A('v_cvt_pk_bf16_f32 v33, v42, v43')
    A('ds_write_b64 v16, v[32:33]')
    full_exec()
    for u in range(6): A(f'ds_read2_b64 v[{40+4*u}:{43+4*u}], v19 offset0:{8*u} offset1:{8*u+4}')
    unpack2(38, 36)
    for u in range(6):
        r = FR + u * 4
        A(f's_waitcnt lgkmcnt({5-u})')
        A(f'v_mfma_f32_16x16x32_bf16 v[24:27], v[{r}:{r+3}], v[{40+4*u}:{43+4*u}], v[24:27]')
    set_exec(0x0001000100010001)
    A(f'ds_write_b128 v28, v[24:27] offset:{TRED}')
    A('s_waitcnt lgkmcnt(0)')
    barrier()
    A(f's_cmp_lg_u32 s{sR}, 0'); A('s_cbranch_scc1 L_KEND')
    set_exec(0xff)
    for k in range(8): A(f'ds_read_b64 v[{64+2*k}:{65+2*k}], v9 offset:{TRED + 64*k}')
    A('s_waitcnt lgkmcnt(0)')
    tree2(64, 8)
    rbf2(64, 64, 68)
    pk('mul', 64, 64, 20)
    rbf2(64, 64, 68)
    pk('add', 64, 64, 38)
    A('v_cvt_pk_bf16_f32 v68, v64, v65')
    if DLY == 'end': A('s_sleep 127')
    A(f'buffer_store_dword v68, v14, {srd("OUT")}, 0 offen')
    dstamp_n(11, 0); dstamp_n(12, 5); dstamp_n(13, 26); dstamp_n(14, 31); dstamp_n(15, 38)
    A('L_KEND:')
    dry_check('L_DRYRET')
    stamp(7)
    flush_stamps()
    A('L_END:')
    A('s_endpgm')
    A('.section .rodata,"a"'); A('.p2align 6'); A(f'.amdhsa_kernel {NAME}_kernel')
    A('  .amdhsa_next_free_vgpr 128'); A('  .amdhsa_next_free_sgpr 102'); A('  .amdhsa_accum_offset 128')
    A('  .amdhsa_group_segment_fixed_size 0'); A('  .amdhsa_kernarg_size 112'); A('  .amdhsa_user_sgpr_count 2')
    A('  .amdhsa_user_sgpr_kernarg_segment_ptr 1'); A('  .amdhsa_system_sgpr_workgroup_id_x 1')
    A('  .amdhsa_float_denorm_mode_32 3'); A('  .amdhsa_float_denorm_mode_16_64 3')
    A('.end_amdhsa_kernel')
    return A.finish()

if __name__ == '__main__':
    import argparse
    ap = argparse.ArgumentParser()
    ap.add_argument('-o', default='cdna_kernels/' + NAME + '.s')
    ap.add_argument('--stamps', action='store_true')
    ap.add_argument('--cfg', default='')
    a = ap.parse_args()
    open(a.o, 'w').write(gen(stamps=a.stamps, **eval('dict(' + a.cfg + ')')))
```
